```python
import torch

def _softmax(x, axis=-1):
    return torch.softmax(x, dim=axis)
def _gelu(x):
    return torch.nn.functional.gelu(x, approximate="tanh")
def _silu(x):
    return torch.nn.functional.silu(x)
def _sigmoid(x):
    return torch.sigmoid(x)
def _layernorm(x, axis=-1, eps=1e-5):
    m = x.mean(dim=axis, keepdim=True)
    v = x.var(dim=axis, keepdim=True, unbiased=False)
    return (x - m) / torch.sqrt(v + eps)
def _scatter_add(tgt, idx, src, axis=0):
    return tgt.clone().index_add_(axis, idx, src)
def _segment_sum(src, seg, n):
    out = torch.zeros((n,) + src.shape[1:], dtype=src.dtype)
    return out.index_add_(0, seg, src)
def _pad(x, pw):
    flat = tuple(v for pair in reversed(pw) for v in pair)
    return torch.nn.functional.pad(x, flat)

kernel_name = 'concat_heads__mha_block__sliding_local_dilated__prompt'

def setup_inputs():

    _w = (lambda a: (lambda t: t.to(torch.bfloat16) if t.is_floating_point() else t)(torch.as_tensor(a)))
    def _A_setup():
        B, S, D, H = 1, 2048, 1024, 32
        return {
            "x": _w((lambda *s: torch.randn(*s, dtype=torch.bfloat16) * 0.1)(B, S, D)),
            "wqkv": _w((lambda *s: torch.randn(*s, dtype=torch.bfloat16) * 0.4)(D, 3 * D)),
            "wo": _w((lambda *s: torch.randn(*s, dtype=torch.bfloat16) * 0.8)(D, D)),
        }
    _A_in = _A_setup()

    def _B_setup():
        B, S, D = 1, 2048, 1024
        return {
            "x": _w((lambda *s: torch.randn(*s, dtype=torch.bfloat16) * 0.1)(B, S, D)),
            "wqkv": _w((lambda *s: torch.randn(*s, dtype=torch.bfloat16) * 0.4)(D, 3 * D)),
            "wo": _w((lambda *s: torch.randn(*s, dtype=torch.bfloat16) * 0.8)(D, D)),
        }
    _B_in = _B_setup()

    return {
        "A_x": _A_in["x"],
        "A_wqkv": _A_in["wqkv"],
        "A_wo": _A_in["wo"],
        "B_x": _B_in["x"],
        "B_wqkv": _B_in["wqkv"],
        "B_wo": _B_in["wo"],
    }

def reference(A_x, A_wqkv, A_wo, B_x, B_wqkv, B_wo):
    def _A_ref(x, wqkv, wo):
        B, S, D = x.shape
        H = 32
        Dh = D // H
        qkv = (lambda x, *d: x.permute(*d))((x @ wqkv).reshape(B, S, 3, H, Dh), 2, 0, 3, 1, 4)
        q, k, v = qkv[0], qkv[1], qkv[2]
        scores = torch.einsum("bhqd,bhkd->bhqk", q, k) * (Dh ** -0.5)
        p = _softmax(scores, axis=-1)
        o = torch.einsum("bhqk,bhkd->bhqd", p, v)
        return (lambda x, *d: x.permute(*d))(o, 0, 2, 1, 3).reshape(B, S, D) @ wo

    def _B_ref(x, wqkv, wo):
        B, S, D = x.shape
        H = 32; Dh = D // H
        W, dil = 8, 2
        qkv = (lambda x, *d: x.permute(*d))((x @ wqkv).reshape(B, S, 3, H, Dh), 2, 0, 3, 1, 4)
        q, k, v = qkv[0], qkv[1], qkv[2]
        scale = Dh ** -0.5
        pos = torch.arange(S)
        off = torch.arange(W) * dil
        idx = pos[:, None] - off[None, :]
        mask = idx >= 0
        idx_c = torch.where(mask, idx, 0).reshape(-1)
        kg = k[:, :, idx_c, :].reshape(B, H, S, W, Dh)
        vg = v[:, :, idx_c, :].reshape(B, H, S, W, Dh)
        logits = torch.einsum("bhsd,bhswd->bhsw", q, kg) * scale
        logits = torch.where(mask[None, None, :, :], logits, -1e9)
        attn = _softmax(logits, axis=-1)
        o = torch.einsum("bhsw,bhswd->bhsd", attn, vg)
        return (lambda x, *d: x.permute(*d))(o, 0, 2, 1, 3).reshape(B, S, D) @ wo

    a = _A_ref(A_x, A_wqkv, A_wo)
    b = _B_ref(B_x, B_wqkv, B_wo)
    return torch.concatenate([a, b], axis=-1)
```

```python
class Asm:
    def __init__(self):
        self.lines = []
        self._lbl = 0
    def __call__(self, s):
        for l in s.split("\n"):
            l = l.strip()
            if not l: continue
            if l.endswith(":") or l.startswith("."):
                self.lines.append(l)
            else:
                self.lines.append("    " + l)
    def c(self, s):
        self.lines.append("    ; " + s)
    def label(self, name):
        self.lines.append(name + ":")
    def newlabel(self, p="L"):
        self._lbl += 1
        return f"{p}_{self._lbl}"
    def text(self):
        return "\n".join(self.lines) + "\n"

def vr(a, n=1):
    return f"v{a}" if n == 1 else f"v[{a}:{a+n-1}]"
def sr(a, n=1):
    return f"s{a}" if n == 1 else f"s[{a}:{a+n-1}]"

def kernel_begin(A, name):
    A(f".globl {name}")
    A(".p2align 8")
    A(f".type {name},@function")
    A.label(name)

def descriptor(name, nvgpr, nsgpr=102, accum=None):
    if accum is None:
        accum = (nvgpr + 3) // 4 * 4
    return f""".p2align 6
.amdhsa_kernel {name}
  .amdhsa_next_free_vgpr {nvgpr}
  .amdhsa_next_free_sgpr {nsgpr}
  .amdhsa_accum_offset {accum}
  .amdhsa_group_segment_fixed_size 0
  .amdhsa_kernarg_size 72
  .amdhsa_user_sgpr_count 2
  .amdhsa_user_sgpr_kernarg_segment_ptr 1
  .amdhsa_system_sgpr_workgroup_id_x 1
.end_amdhsa_kernel
"""

def interleave(main, fill, pattern=None):
    out = []
    n = len(main)
    if pattern is None:
        base, extra = divmod(len(fill), n)
        pattern = [base + (1 if i < extra else 0) for i in range(n)]
    k = 0
    for i, m in enumerate(main):
        out.append(m)
        for _ in range(pattern[i]):
            if k < len(fill):
                out.append(fill[k]); k += 1
    out += fill[k:]
    return out
```

```python
from asmlib import *
import struct, math

WS_Q = 0
WS_KV = 8 << 20
WS_O = 24 << 20
WS_BYTES = 32 << 20
QSCALE = (32 ** -0.5) * math.log2(math.e)
def f32bits(x): return struct.unpack("<I", struct.pack("<f", x))[0]

K1_LDS = 114688
K1_NAME = "qkv_gemm_kernel"

def M32(d, a, b, c):
    cs = "0" if c is None else vr(c, 16)
    return f"v_mfma_f32_32x32x16_bf16 {vr(d,16)}, {vr(a,4)}, {vr(b,4)}, {cs}"

def gen_k1(A, opts=None):
    opts = opts or {}
    store_mod = opts.get("store_mod", "")
    kernel_begin(A, K1_NAME)
    stamp = opts.get("stamp", False)
    def ST(i):
        if stamp:
            A(f"s_memtime s[{50+2*i}:{51+2*i}]")
            if i in (0, 4): A(f"s_memrealtime s[{60+(2 if i else 0)}:{61+(2 if i else 0)}]")
    ST(0)
    A("s_cmp_ge_u32 s2, 256")
    A("s_cbranch_scc1 K1_done")
    A("s_load_dwordx2 s[24:25], s[0:1], 0")
    A("s_load_dwordx2 s[26:27], s[0:1], 8")
    A("s_load_dwordx2 s[28:29], s[0:1], 24")
    A("s_load_dwordx2 s[30:31], s[0:1], 32")
    A("s_load_dwordx2 s[32:33], s[0:1], 64")
    A("s_and_b32 s34, s2, 7")
    A("s_lshr_b32 s35, s2, 3")
    A("s_lshr_b32 s16, s34, 2")
    A("s_and_b32 s17, s34, 1")
    A("s_lshl_b32 s17, s17, 2")
    A("s_and_b32 s36, s35, 3")
    A("s_add_u32 s17, s17, s36")
    A("s_lshr_b32 s18, s34, 1")
    A("s_and_b32 s18, s18, 1")
    A("s_lshl_b32 s18, s18, 3")
    A("s_lshr_b32 s36, s35, 2")
    A("s_add_u32 s18, s18, s36")
    A("v_lshrrev_b32 v14, 6, v0")
    A("v_and_b32 v1, 63, v0")
    A("v_readfirstlane_b32 s19, v14")
    A("v_lshrrev_b32 v15, 3, v1")
    A("v_lshl_add_u32 v15, v14, 3, v15")
    A("v_lshrrev_b32 v16, 4, v1")
    A("v_and_b32 v17, 1, v14")
    A("v_lshl_add_u32 v17, v17, 2, v16")
    A("v_and_b32 v18, 7, v1")
    A("v_xor_b32 v17, v18, v17")
    A("v_lshlrev_b32 v17, 4, v17")
    A("v_lshl_add_u32 v7, v15, 11, v17")
    for i in range(1, 4):
        A(f"v_add_u32 v{7+i}, {i*131072}, v7")
    A("v_and_b32 v16, 1, v16")
    A("v_lshlrev_b32 v16, 2, v16")
    A("v_xor_b32 v16, v18, v16")
    A("v_lshlrev_b32 v16, 4, v16")
    A("v_mul_u32_u24 v11, 6144, v15")
    A("v_add_u32 v11, v11, v16")
    A("v_add_u32 v12, 2048, v11")
    A("v_add_u32 v13, 4096, v11")
    A("s_lshl_b32 s20, s19, 10")
    A("s_waitcnt lgkmcnt(0)")
    A("s_cmp_eq_u32 s16, 0")
    A("s_cselect_b32 s4, s24, s28")
    A("s_cselect_b32 s5, s25, s29")
    A("s_cselect_b32 s8, s26, s30")
    A("s_cselect_b32 s9, s27, s31")
    A("s_lshl_b32 s36, s17, 19")
    A("s_add_u32 s4, s4, s36")
    A("s_addc_u32 s5, s5, 0")
    A("s_mov_b32 s6, 0x80000")
    A("s_mov_b32 s7, 0x20000")
    A("s_lshl_b32 s36, s18, 7")
    A("s_add_u32 s8, s8, s36")
    A("s_addc_u32 s9, s9, 0")
    A(f"s_sub_u32 s10, {1024*6144}, s36")
    A("s_mov_b32 s11, 0x20000")
    A("s_mov_b32 s12, s32")
    A("s_mov_b32 s13, s33")
    A(f"s_mov_b32 s14, {WS_BYTES}")
    A("s_mov_b32 s15, 0x20000")
    rot = opts.get("rot", 1)
    if rot == 1:
        A("s_lshl_b32 s21, s34, 8")
    elif rot == 2:
        A("s_and_b32 s21, s35, 15")
        A("s_lshl_b32 s21, s21, 7")
    else:
        A("s_mov_b32 s21, 0")
    A("s_mul_i32 s22, s21, 3072")

    XB = [0, 32768]; WB = [65536, 90112]
    def dma(stage):
        L = []
        for i in range(4):
            L.append([f"s_add_u32 m0, s20, {XB[stage] + i*8192}", "s_nop 0",
                      f"buffer_load_dwordx4 v{7+i}, s[4:7], s21 offen lds"])
        for ty in range(3):
            L.append([f"s_add_u32 m0, s20, {WB[stage] + ty*8192}", "s_nop 0",
                      f"buffer_load_dwordx4 v{11+ty}, s[8:11], s22 offen lds"])
        return L
    adv = ["s_add_u32 s21, s21, 128", "s_and_b32 s21, s21, 2047", "s_mul_i32 s22, s21, 3072"]
    for st in range(2):
        for g in dma(st):
            for l in g: A(l)
        for l in adv: A(l)
    A("v_lshrrev_b32 v15, 1, v14")
    A("v_and_b32 v16, 31, v1")
    A("v_lshl_add_u32 v16, v15, 6, v16")
    A("v_lshlrev_b32 v16, 7, v16")
    A("v_lshrrev_b32 v17, 1, v1")
    A("v_and_b32 v17, 7, v17")
    A("v_lshrrev_b32 v18, 5, v1")
    A("v_xor_b32 v17, v17, v18")
    for k16 in range(4):
        A(f"v_xor_b32 v19, {2*k16}, v17")
        A(f"v_lshl_add_u32 v{2+k16}, v19, 4, v16")
    A("v_lshrrev_b32 v16, 2, v1")
    A("v_and_b32 v16, 3, v16")
    A("v_lshl_add_u32 v17, v18, 3, v16")
    A("v_lshlrev_b32 v17, 7, v17")
    A("v_lshrrev_b32 v16, 1, v16")
    A("v_and_b32 v19, 1, v14")
    A("v_xor_b32 v16, v16, v19")
    A("v_lshl_add_u32 v17, v16, 6, v17")
    A("v_lshrrev_b32 v16, 4, v1")
    A("v_and_b32 v16, 1, v16")
    A("v_lshl_add_u32 v17, v16, 5, v17")
    A("v_and_b32 v16, 3, v1")
    A("v_lshl_add_u32 v17, v16, 3, v17")
    A("v_add_u32 v6, 65536, v17")
    ACC = 64
    for i in range(96): A(f"v_mov_b32 v{ACC+i}, 0")

    FS = [16, 36]
    def xf(s, mt): return FS[s] + 4*mt
    def wf(s, ty): return FS[s] + 8 + 4*ty
    def reads(stage, k16, s):
        L = []
        L.append(f"ds_read_b128 {vr(xf(s,0),4)}, v{2+k16} offset:{XB[stage]}")
        for ty in range(3):
            for half in range(2):
                L.append(f"ds_read_b64_tr_b16 {vr(wf(s,ty)+2*half,2)}, v6 offset:{stage*24576 + ty*8192 + k16*2048 + half*512}")
            if ty == 0:
                L.append(f"ds_read_b128 {vr(xf(s,1),4)}, v{2+k16} offset:{XB[stage]+4096}")
        return L
    def mfmas(s):
        L = []
        for ty in range(3):
            for mt in range(2):
                d = ACC + (mt*3+ty)*16
                if ty < 2: L.append(M32(d, wf(s,ty), xf(s,mt), d))
                else:      L.append(M32(d, xf(s,mt), wf(s,ty), d))
        return L
    A("s_waitcnt vmcnt(7)")
    A("s_barrier")
    ST(1)
    for l in reads(0, 0, 0): A(l)
    A("s_mov_b32 s23, 8")
    A(".p2align 6")
    A.label("K1_loop")
    for stage in range(2):
        pend = []
        for sub in range(4):
            s = sub & 1
            if sub < 3:
                A("s_waitcnt lgkmcnt(0)")
                fill = reads(stage, sub+1, s^1)
                if sub == 0 and pend is not None:
                    pass
                seq = interleave(mfmas(s), fill, [2,2,2,2,0,0])
                for l in seq: A(l)
            else:
                A("s_waitcnt lgkmcnt(0) vmcnt(0)")
                A("s_barrier")
                if stage == 0:
                    A("s_cmp_eq_u32 s23, 1")
                    A("s_cselect_b32 s6, 0, s6")
                    A("s_cselect_b32 s10, 0, s10")
                rd = reads(stage^1, 0, s^1)
                d = dma(stage)
                m = mfmas(s)
                A(m[0])
                for l in rd[0:4]: A(l)
                A(m[1])
                for l in rd[4:8]: A(l)
                A(m[2])
                for g in d[0:2]:
                    for l in g: A(l)
                A(m[3])
                for g in d[2:4]:
                    for l in g: A(l)
                A(m[4])
                for g in d[4:6]:
                    for l in g: A(l)
                A(m[5])
                for g in d[6:7]:
                    for l in g: A(l)
                for l in adv: A(l)
    A("s_sub_u32 s23, s23, 1")
    A("s_cmp_lg_u32 s23, 0")
    A("s_cbranch_scc1 K1_loop")
    ST(2)
    A("s_waitcnt lgkmcnt(0)")
    A("s_and_b32 s36, s19, 1")
    A("s_lshl_b32 s37, s18, 1")
    A("s_add_u32 s36, s36, s37")
    A("s_lshl_b32 s36, s36, 6")
    A("s_lshl_b32 s37, s17, 3")
    A("s_add_u32 s36, s36, s37")
    A("s_lshr_b32 s37, s19, 1")
    A("s_lshl_b32 s37, s37, 1")
    A("s_add_u32 s36, s36, s37")
    A("s_lshl_b32 s38, s36, 11")
    A("s_lshl_b32 s37, s16, 22")
    A("s_add_u32 s38, s38, s37")
    A("s_lshl_b32 s39, s36, 12")
    A("s_lshl_b32 s37, s16, 23")
    A("s_add_u32 s39, s39, s37")
    A(f"s_add_u32 s39, s39, {WS_KV}")
    A("s_add_u32 s40, s39, 4096")
    A(f"s_mov_b32 s41, {f32bits(QSCALE)}")
    A("v_lshlrev_b32 v2, 4, v1")
    A("v_and_b32 v3, 0x33, v1")
    A("v_and_b32 v4, 4, v1")
    A("v_lshl_add_u32 v3, v4, 1, v3")
    A("v_and_b32 v4, 8, v1")
    A("v_lshrrev_b32 v4, 1, v4")
    A("v_add_u32 v3, v3, v4")
    A("v_lshlrev_b32 v3, 4, v3")
    A("s_nop 7")
    pk = 16
    n = 0
    for ty in (1, 2, 0):
        for mt in range(2):
            d = ACC + (mt*3+ty)*16
            p = 16 + (n % 5) * 8
            n += 1
            if ty == 0:
                for r in range(16): A(f"v_mul_f32 v{d+r}, s41, v{d+r}")
            for r in range(8):
                A(f"v_cvt_pk_bf16_f32 v{p+r}, v{d+2*r}, v{d+2*r+1}")
            for m in range(2):
                if ty == 0:
                    A(f"buffer_store_dwordx4 {vr(p+4*m,4)}, v2, s[12:15], s38 offen offset:{mt*2048+m*1024}{store_mod}")
                elif ty == 1:
                    A(f"buffer_store_dwordx4 {vr(p+4*m,4)}, v3, s[12:15], s{39+mt} offen offset:{m*1024}{store_mod}")
                else:
                    A(f"buffer_store_dwordx4 {vr(p+4*m,4)}, v2, s[12:15], s{39+mt} offen offset:{2048+m*1024}{store_mod}")
    if stamp:
        ST(3)
        A("s_waitcnt vmcnt(0)")
        ST(4)
        A("s_waitcnt lgkmcnt(0)")
        A("s_lshl_b32 s36, s2, 3")
        A("s_add_u32 s36, s36, s19")
        A("s_lshl_b32 s36, s36, 6")
        A(f"s_add_u32 s36, s36, {64<<20}")
        A("s_mov_b32 s14, 0x8000000")
        A("v_mov_b32 v2, 0")
        for i in range(14):
            A(f"v_mov_b32 v3, s{50+i}")
            A(f"buffer_store_dword v3, v2, s[12:15], s36 offen offset:{4*i}")
    A.label("K1_done")
    A("s_endpgm")
    return descriptor(K1_NAME, 160, 80)
```

```python
from asmlib import *
from k1 import WS_Q, WS_KV, WS_O, WS_BYTES, M32, f32bits

K2_NAME = "attn_kernel"
K2_BLOCK = 512
NS = 6
RING = NS * 16384
K2_LDS = RING + 64

IDX = 4; ONES = 8; Q = 12; KF = 20; VF = 28; L = 36; O = 40; NEGM = 56; SA = 72; SB = 88
QB = 104; KBP = 112; KBC = 120; VBC = 128; VBP = 136

def S32(d, a, b): return f"v_smfmac_f32_32x32x32_bf16 {vr(d,16)}, {vr(a,4)}, {vr(b,8)}, v{IDX}"
def S16(d, a, b): return f"v_smfmac_f32_16x16x64_bf16 {vr(d,4)}, {vr(a,4)}, {vr(b,8)}, v{IDX}"
def E(r): return f"v_exp_f32 v{r}, v{r}"

def key_of(r, hb): return 16 * (r >> 3) + 8 * hb + (r & 7)
def bmask(r, prev):
    m = 0
    for l in range(64):
        q = l & 31; hb = l >> 5
        d = q - key_of(r, hb) + (32 if prev else 0)
        if 0 <= d <= 14 and d % 2 == 0: m |= 1 << l
    return m

def rowmax(A, regs, dst, tmp):
    regs = list(regs)
    A(f"v_max3_f32 v{dst}, v{regs[0]}, v{regs[1]}, v{regs[2]}")
    i = 3
    while i + 1 < len(regs):
        A(f"v_max3_f32 v{dst}, v{regs[i]}, v{regs[i+1]}, v{dst}"); i += 2
    if i < len(regs):
        A(f"v_max_f32 v{dst}, v{regs[i]}, v{dst}")
    A(f"v_mov_b32 v{tmp}, v{dst}")
    A("s_nop 1")
    A(f"v_permlane32_swap_b32 v{dst}, v{tmp}")
    A("s_nop 1")
    A(f"v_max_f32 v{dst}, v{dst}, v{tmp}")

def gen_k2(A, opts=None):
    opts = opts or {}
    stamp = opts.get("stamp", False)
    force_fb = opts.get("force_fb", False)
    store_mod = opts.get("store_mod", "")
    kernel_begin(A, K2_NAME)
    def ST(i):
        if stamp:
            A(f"s_memtime s[{50+2*i}:{51+2*i}]")
            if i in (0, 4): A(f"s_memrealtime s[{60+(2 if i else 0)}:{61+(2 if i else 0)}]")
    ST(0)
    A("s_cmp_ge_u32 s2, 256")
    A("s_cbranch_scc1 K2_done")
    A("s_load_dwordx2 s[32:33], s[0:1], 64")
    A("s_and_b32 s34, s2, 7")
    A("s_lshr_b32 s35, s2, 3")
    A("s_and_b32 s16, s35, 3")
    A("s_lshl_b32 s34, s34, 2")
    A("s_add_u32 s16, s16, s34")
    A("s_lshr_b32 s17, s35, 2")
    A("v_lshrrev_b32 v5, 6, v0")
    A("v_and_b32 v6, 63, v0")
    A("v_readfirstlane_b32 s19, v5")
    A("v_lshlrev_b32 v1, 4, v6")
    A("s_lshl_b32 s20, s17, 3")
    A("s_add_u32 s20, s20, s19")
    A("s_lshl_b32 s26, s16, 6")
    A("s_add_u32 s26, s26, s20")
    A("s_lshl_b32 s27, s26, 11")
    A(f"s_add_u32 s28, s27, {4<<20}")
    A("s_lshl_b32 s29, s26, 12")
    A(f"s_add_u32 s29, s29, {WS_KV + (8<<20)}")
    A("s_sub_u32 s30, s29, 4096")
    A("s_cmp_eq_u32 s20, 0")
    A("s_cselect_b32 s30, s29, s30")
    A("s_lshl_b32 s31, s20, 5")
    A("s_add_u32 s31, s31, s16")
    A("s_lshl_b32 s31, s31, 11")
    A(f"s_add_u32 s31, s31, {WS_O}")
    A("s_lshl_b32 s36, s16, 18")
    A(f"s_add_u32 s36, s36, {WS_KV}")
    A("s_lshl_b32 s37, s19, 11")
    A("s_waitcnt lgkmcnt(0)")
    A("s_add_u32 s4, s32, s36")
    A("s_addc_u32 s5, s33, 0")
    A("s_mov_b32 s6, 0x40000")
    A("s_mov_b32 s7, 0x20000")
    A("s_mov_b32 s8, s32")
    A("s_mov_b32 s9, s33")
    A(f"s_mov_b32 s10, {WS_BYTES}")
    A("s_mov_b32 s11, 0x20000")
    A("s_mov_b32 s24, 0")
    for m in range(2):
        A(f"buffer_load_dwordx4 {vr(QB+4*m,4)}, v1, s[8:11], s28 offen offset:{1024*m}")
    for m in range(2):
        A(f"buffer_load_dwordx4 {vr(KBC+4*m,4)}, v1, s[8:11], s29 offen offset:{1024*m}")
    for m in range(2):
        A(f"buffer_load_dwordx4 {vr(KBP+4*m,4)}, v1, s[8:11], s30 offen offset:{1024*m}")
    for m in range(2):
        A(f"buffer_load_dwordx4 {vr(VBC+4*m,4)}, v1, s[8:11], s29 offen offset:{2048+1024*m}")
    A(f"buffer_load_dwordx4 {vr(VBP,4)}, v1, s[8:11], s30 offen offset:3072")
    for m in range(2):
        A(f"buffer_load_dwordx4 {vr(Q+4*m,4)}, v1, s[8:11], s27 offen offset:{1024*m}")
    def dma():
        return ["s_add_u32 m0, s22, s37", "s_nop 0",
                "buffer_load_dwordx4 v1, s[4:7], s21 offen lds",
                "buffer_load_dwordx4 v1, s[4:7], s21 offen offset:1024 lds",
                "s_add_u32 s21, s21, 16384",
                "s_add_u32 s22, s22, 16384",
                f"s_cmp_eq_u32 s22, {RING}",
                "s_cselect_b32 s22, 0, s22"]
    def start_stream():
        A("s_mov_b32 s21, s37")
        A("s_mov_b32 s22, 0")
        for s in range(NS - 1):
            for l in dma(): A(l)
    start_stream()
    A(f"v_mov_b32 v{IDX}, 0xdddd")
    A("v_and_b32 v5, 4, v6")
    A("v_cmp_eq_u32 vcc, 0, v5")
    A("v_mov_b32 v7, 0x3f803f80")
    A("s_nop 0")
    A(f"v_cndmask_b32 v{ONES}, 0, v7, vcc")
    A(f"v_cndmask_b32 v{ONES+1}, 0, v7, vcc")
    A(f"v_cndmask_b32 v{ONES+2}, v7, 0, vcc".replace("v7, 0, vcc", "v7, v7, vcc") if False else f"v_sub_u32 v{ONES+2}, v7, v{ONES}")
    A(f"v_mov_b32 v{ONES+3}, v{ONES+2}")
    for i in range(16): A(f"v_mov_b32 v{O+i}, 0")
    for i in range(4): A(f"v_mov_b32 v{L+i}, 0")
    A("v_mov_b32 v7, 0xff800000")
    nd = 2 * (NS - 1)
    A(f"s_waitcnt vmcnt({nd+5})")
    A(M32(SA, KBC, QB, None))
    A(M32(SB, KBP, QB, None))
    A(M32(SA, KBC+4, QB+4, SA))
    A(M32(SB, KBP+4, QB+4, SB))
    A("s_nop 7")
    A("s_nop 3")
    for r in range(16):
        m = bmask(r, False)
        A(f"s_mov_b32 s40, {m & 0xffffffff}")
        A(f"s_mov_b32 s41, {m >> 32}")
        A(f"v_cndmask_b32 v{SA+r}, v7, v{SA+r}, s[40:41]")
    A("s_cmp_eq_u32 s20, 0")
    for r in range(8, 16):
        m = bmask(r, True)
        A(f"s_cselect_b32 s40, 0, {m & 0xffffffff}")
        A(f"s_cselect_b32 s41, 0, {m >> 32}")
        A(f"v_cndmask_b32 v{SB+r}, v7, v{SB+r}, s[40:41]")
    bregs = list(range(SA, SA+16)) + list(range(SB+8, SB+16))
    rowmax(A, bregs, 5, 6)
    for r in bregs: A(f"v_sub_f32 v{r}, v{r}, v5")
    for r in bregs: A(E(r))
    A(f"s_waitcnt vmcnt({nd+2})")
    A("s_nop 0")
    A(S32(O, VBC, SA)); A(S16(L, ONES, SA))
    A(S32(O, VBC+4, SA+8)); A(S16(L, ONES, SA+8))
    A(S32(O, VBP, SB+8)); A(S16(L, ONES, SB+8))
    A("s_nop 7")
    A(f"v_rcp_f32 v5, v{L}")
    A("s_nop 3")
    for i in range(16): A(f"v_mul_f32 v{O+i}, v5, v{O+i}")
    for i in range(8): A(f"v_cvt_pk_bf16_f32 v{QB+i}, v{O+2*i}, v{O+2*i+1}")
    ST(1)
    A(f"s_waitcnt vmcnt({nd-2})")
    A("s_barrier")
    A(f"ds_read_b128 {vr(KF,4)}, v1 offset:0")
    A(f"ds_read_b128 {vr(KF+4,4)}, v1 offset:1024")
    A("s_waitcnt lgkmcnt(0)")
    A(M32(SA, KF, Q, None))
    A(M32(SA, KF+4, Q+4, SA))
    A("s_nop 7")
    A("s_nop 3")
    rowmax(A, range(SA, SA+16), 5, 6)
    A("s_branch K2_main")
    A.label("K2_restart")
    start_stream()
    A(f"s_waitcnt vmcnt({nd-2})")
    A("s_barrier")
    A(f"ds_read_b128 {vr(KF,4)}, v1 offset:0")
    A(f"ds_read_b128 {vr(KF+4,4)}, v1 offset:1024")
    A.label("K2_main")
    for i in range(16): A(f"v_sub_f32 v{NEGM+i}, 0, v5")
    for i in range(16): A(f"v_mov_b32 v{O+i}, 0")
    for i in range(4): A(f"v_mov_b32 v{L+i}, 0")
    for i in range(8): A(f"v_mov_b32 v{SB+8+i}, 0")
    for i in range(4): A(f"v_mov_b32 v{VF+4+i}, 0")
    A("v_mov_b32 v2, v1")
    A("s_mov_b32 s25, 16384")
    A("v_add_u32 v3, 16384, v1")
    A("s_waitcnt lgkmcnt(0)")
    A(M32(SA, KF, Q, NEGM))
    A(M32(SA, KF+4, Q+4, SA))
    A(f"ds_read_b128 {vr(KF,4)}, v1 offset:4096")
    A(f"ds_read_b128 {vr(KF+4,4)}, v1 offset:5120")
    A(f"ds_read_b128 {vr(VF,4)}, v1 offset:2048")
    A("s_mov_b32 s23, 16")
    A("s_nop 7")
    A("s_nop 0")
    A(E(SA))
    ST(2)
    A(".p2align 6")
    A.label("K2_loop")
    for i in range(4):
        cur, nxt = (SA, SB) if i % 2 == 0 else (SB, SA)
        A("s_waitcnt lgkmcnt(3)")
        A(S32(O, VF+4, nxt+8))
        A(f"ds_read_b128 {vr(VF+4,4)}, v2 offset:{i*4096+3072}")
        A(E(cur+1)); A(E(cur+2)); A(E(cur+3))
        A(S16(L, ONES, nxt+8))
        A(E(cur+4)); A(E(cur+5))
        A("s_waitcnt lgkmcnt(3)")
        A(M32(nxt, KF, Q, NEGM))
        A(E(cur+6)); A(E(cur+7)); A(E(cur+8))
        A("s_waitcnt lgkmcnt(2)")
        A(M32(nxt, KF+4, Q+4, nxt))
        if i == 2:
            A(f"s_waitcnt vmcnt({2*(NS-3)})")
            A("s_barrier")
        ka, ko = ("v2", (i+2)*4096) if i < 2 else ("v3", (i-2)*4096)
        A(f"ds_read_b128 {vr(KF,4)}, {ka} offset:{ko}")
        A(f"ds_read_b128 {vr(KF+4,4)}, {ka} offset:{ko+1024}")
        A(E(cur+9)); A(E(cur+10)); A(E(cur+11))
        A("s_waitcnt lgkmcnt(3)")
        A(S32(O, VF, cur))
        va, vo = ("v2", (i+1)*4096) if i < 3 else ("v3", 0)
        A(f"ds_read_b128 {vr(VF,4)}, {va} offset:{vo+2048}")
        if i == 2:
            d = dma()
            A(d[0]); A(E(cur+12)); A(d[2]); A(E(cur+13)); A(d[3]); A(E(cur+14))
            for l in d[4:]: A(l)
        else:
            A(E(cur+12)); A(E(cur+13)); A(E(cur+14))
        A(S16(L, ONES, cur))
        A(E(cur+15)); A(E(nxt))
        if i == 3:
            A("v_mov_b32 v2, v3")
            A("s_add_u32 s25, s25, 16384")
            A(f"s_cmp_eq_u32 s25, {RING}")
            A("s_cselect_b32 s25, 0, s25")
            A("v_add_u32 v3, s25, v1")
            A("s_sub_u32 s23, s23, 1")
            A("s_cmp_lg_u32 s23, 0")
            A("s_cbranch_scc1 K2_loop")
    A("s_waitcnt lgkmcnt(0)")
    A(S32(O, VF+4, SB+8))
    A(S16(L, ONES, SB+8))
    ST(3)
    A("s_nop 7")
    A("s_nop 3")
    A(f"v_mov_b32 v6, {f32bits(2.0**64)}")
    A(f"v_cmp_nlt_f32 vcc, v{L}, v6")
    A("s_mov_b64 s[42:43], vcc")
    A("s_movk_i32 s44, 0x207")
    for i in range(16):
        A(f"v_cmp_class_f32 vcc, v{O+i}, s44")
        A("s_or_b64 s[42:43], s[42:43], vcc")
    if force_fb:
        A("s_mov_b64 s[42:43], -1")
    A("s_cmp_lg_u64 s[42:43], 0")
    A("s_cselect_b32 s44, 1, 0")
    A("v_mov_b32 v6, s44")
    A("s_lshl_b32 s45, s19, 2")
    A(f"s_add_u32 s45, s45, {RING}")
    A("v_mov_b32 v7, s45")
    A("ds_write_b32 v7, v6")
    A(f"v_rcp_f32 v5, v{L}")
    A("s_nop 0")
    for i in range(16): A(f"v_mul_f32 v{O+i}, v5, v{O+i}")
    for i in range(8): A(f"v_cvt_pk_bf16_f32 v{SA+i}, v{O+2*i}, v{O+2*i+1}")
    for m in range(2):
        A(f"buffer_store_dwordx4 {vr(SA+4*m,4)}, v1, s[8:11], s31 offen offset:{1024*m}{store_mod}")
    A("s_cmp_lg_u32 s24, 0")
    A("s_cbranch_scc1 K2_fin")
    A(f"s_add_u32 s45, s31, {4<<20}")
    for m in range(2):
        A(f"buffer_store_dwordx4 {vr(QB+4*m,4)}, v1, s[8:11], s45 offen offset:{1024*m}{store_mod}")
    A("s_waitcnt lgkmcnt(0)")
    A("s_barrier")
    A(f"v_mov_b32 v7, {RING}")
    A(f"ds_read_b128 {vr(SB,4)}, v7")
    A(f"ds_read_b128 {vr(SB+4,4)}, v7 offset:16")
    A("s_waitcnt lgkmcnt(0)")
    A(f"v_or3_b32 v6, v{SB}, v{SB+1}, v{SB+2}")
    A(f"v_or3_b32 v6, v{SB+3}, v{SB+4}, v6")
    A(f"v_or3_b32 v6, v{SB+5}, v{SB+6}, v6")
    A(f"v_or_b32 v6, v{SB+7}, v6")
    A("s_nop 0")
    A("v_readfirstlane_b32 s44, v6")
    A("s_nop 3")
    A("s_cmp_eq_u32 s44, 0")
    A("s_cbranch_scc1 K2_fin")
    A("s_mov_b32 s24, 1")
    A("v_mov_b32 v5, 0xff800000")
    A("s_mov_b32 s21, 0")
    A.label("K2_maxloop")
    A(f"buffer_load_dwordx4 {vr(KF,4)}, v1, s[4:7], s21 offen")
    A(f"buffer_load_dwordx4 {vr(KF+4,4)}, v1, s[4:7], s21 offen offset:1024")
    A("s_waitcnt vmcnt(0)")
    A(M32(SA, KF, Q, None))
    A(M32(SA, KF+4, Q+4, SA))
    A("s_nop 7")
    A("s_nop 3")
    for i in range(8): A(f"v_max3_f32 v5, v{SA+2*i}, v{SA+2*i+1}, v5")
    A("s_add_u32 s21, s21, 4096")
    A("s_cmp_lt_u32 s21, 0x40000")
    A("s_cbranch_scc1 K2_maxloop")
    A("v_mov_b32 v6, v5")
    A("s_nop 1")
    A("v_permlane32_swap_b32 v5, v6")
    A("s_nop 1")
    A("v_max_f32 v5, v5, v6")
    A("s_barrier")
    A("s_branch K2_restart")
    A.label("K2_fin")
    if stamp:
        A("s_waitcnt vmcnt(0)")
        ST(4)
        A("s_waitcnt lgkmcnt(0)")
        A("s_lshl_b32 s36, s2, 3")
        A("s_add_u32 s36, s36, s19")
        A("s_lshl_b32 s36, s36, 6")
        A(f"s_add_u32 s36, s36, {opts.get('stamp_off', 65)<<20}")
        A("s_mov_b32 s10, 0x8000000")
        A("v_mov_b32 v2, 0")
        for i in range(14):
            A(f"v_mov_b32 v3, s{50+i}")
            A(f"buffer_store_dword v3, v2, s[8:11], s36 offen offset:{4*i}")
    A.label("K2_done")
    A("s_endpgm")
    return descriptor(K2_NAME, 140, 80)
```

```python
from asmlib import *
from k1 import WS_O, WS_BYTES, M32

K3_NAME = "oproj_kernel"
K3_BLOCK = 512
NS3 = 4
SLOT = 32768
K3_LDS = NS3 * SLOT

def gen_k3(A, opts=None):
    opts = opts or {}
    stamp = opts.get("stamp", False)
    store_mod = opts.get("store_mod", "")
    kernel_begin(A, K3_NAME)
    def ST(i):
        if stamp:
            A(f"s_memtime s[{50+2*i}:{51+2*i}]")
            if i in (0, 4): A(f"s_memrealtime s[{60+(2 if i else 0)}:{61+(2 if i else 0)}]")
    ST(0)
    A("s_cmp_ge_u32 s2, 256")
    A("s_cbranch_scc1 K3_done")
    A("s_load_dwordx2 s[24:25], s[0:1], 16")
    A("s_load_dwordx2 s[26:27], s[0:1], 40")
    A("s_load_dwordx2 s[28:29], s[0:1], 48")
    A("s_load_dwordx2 s[32:33], s[0:1], 64")
    A("s_and_b32 s34, s2, 7")
    A("s_lshr_b32 s35, s2, 3")
    A("s_lshr_b32 s16, s34, 2")
    A("s_and_b32 s17, s34, 1")
    A("s_lshl_b32 s17, s17, 3")
    A("s_and_b32 s36, s35, 7")
    A("s_add_u32 s17, s17, s36")
    A("s_lshr_b32 s18, s34, 1")
    A("s_and_b32 s18, s18, 1")
    A("s_lshl_b32 s18, s18, 2")
    A("s_lshr_b32 s36, s35, 3")
    A("s_add_u32 s18, s18, s36")
    A("v_lshrrev_b32 v14, 6, v0")
    A("v_and_b32 v1, 63, v0")
    A("v_readfirstlane_b32 s19, v14")
    A("s_waitcnt lgkmcnt(0)")
    A("s_lshl_b32 s36, s16, 22")
    A("s_lshl_b32 s37, s17, 18")
    A("s_add_u32 s36, s36, s37")
    A(f"s_add_u32 s36, s36, {WS_O}")
    A("s_add_u32 s4, s32, s36")
    A("s_addc_u32 s5, s33, 0")
    A("s_mov_b32 s6, 0x40000")
    A("s_mov_b32 s7, 0x20000")
    A("s_cmp_eq_u32 s16, 0")
    A("s_cselect_b32 s8, s24, s26")
    A("s_cselect_b32 s9, s25, s27")
    A("s_lshl_b32 s36, s18, 8")
    A("s_add_u32 s8, s8, s36")
    A("s_addc_u32 s9, s9, 0")
    A(f"s_sub_u32 s10, {1024*2048}, s36")
    A("s_mov_b32 s11, 0x20000")
    A("s_mov_b32 s12, s28")
    A("s_mov_b32 s13, s29")
    A(f"s_mov_b32 s14, {2048*4096}")
    A("s_mov_b32 s15, 0x20000")
    A("s_cmp_lt_u32 s19, 4")
    A("s_cbranch_scc1 K3_compute")
    A("s_sub_u32 s20, s19, 4")
    A("v_lshlrev_b32 v2, 4, v1")
    A("s_lshl_b32 s36, s20, 16")
    A("v_add_u32 v2, s36, v2")
    A("v_lshrrev_b32 v3, 4, v1")
    A("v_lshlrev_b32 v4, 2, v3")
    A("v_and_b32 v5, 15, v1")
    A("v_xor_b32 v4, v4, v5")
    A("v_lshlrev_b32 v4, 4, v4")
    A("s_lshl_b32 s36, s20, 4")
    A("v_add_u32 v3, s36, v3")
    A("v_lshl_add_u32 v4, v3, 11, v4")
    for i in range(4):
        A(f"v_add_u32 v{5+i}, {i*8192 - i*1024}, v4")
    A("s_lshl_b32 s37, s20, 12")
    rot = opts.get("rot", 1)
    if rot:
        A("s_lshl_b32 s21, s34, 13")
    else:
        A("s_mov_b32 s21, 0")
    A("s_lshl_b32 s22, s21, 5")
    A("s_mov_b32 s23, 0")
    def dma():
        L = [f"s_add_u32 m0, s23, s37", "s_nop 0"]
        for i in range(4):
            L.append(f"buffer_load_dwordx4 v2, s[4:7], s21 offen offset:{1024*i} lds")
        L += [f"s_add_u32 m0, m0, 16384", "s_nop 0"]
        for i in range(4):
            L.append(f"buffer_load_dwordx4 v{5+i}, s[8:11], s22 offen offset:{1024*i} lds")
        L += ["s_add_u32 s21, s21, 4096", "s_and_b32 s21, s21, 0xffff", "s_lshl_b32 s22, s21, 5",
              f"s_add_u32 s23, s23, {SLOT}", f"s_cmp_eq_u32 s23, {NS3*SLOT}", "s_cselect_b32 s23, 0, s23"]
        return L
    for s in range(NS3):
        for l in dma(): A(l)
    A(f"s_waitcnt vmcnt({8*(NS3-1)})")
    A("s_barrier")
    A(f"s_mov_b32 s38, {16-NS3}")
    A.label("K3_lloop")
    A(f"s_waitcnt vmcnt({8*(NS3-2)})")
    A("s_barrier")
    for l in dma(): A(l)
    A("s_sub_u32 s38, s38, 1")
    A("s_cmp_lg_u32 s38, 0")
    A("s_cbranch_scc1 K3_lloop")
    for j in range(NS3 - 1):
        A(f"s_waitcnt vmcnt({8*(NS3-2-j)})")
        A("s_barrier")
    A("s_endpgm")
    A.label("K3_compute")
    A("v_lshrrev_b32 v15, 1, v14")
    A("v_and_b32 v16, 1, v14")
    A("v_lshlrev_b32 v2, 4, v1")
    A("v_lshl_add_u32 v2, v15, 13, v2")
    A("v_lshrrev_b32 v17, 2, v1")
    A("v_and_b32 v17, 3, v17")
    A("v_lshrrev_b32 v18, 5, v1")
    A("v_lshl_add_u32 v19, v18, 2, v17")
    A("v_lshlrev_b32 v19, 8, v19")
    A("v_lshlrev_b32 v20, 3, v16")
    A("v_lshrrev_b32 v21, 4, v1")
    A("v_and_b32 v21, 1, v21")
    A("v_lshl_add_u32 v20, v21, 1, v20")
    A("v_lshrrev_b32 v21, 1, v1")
    A("v_and_b32 v21, 1, v21")
    A("v_add_u32 v20, v20, v21")
    A("v_lshlrev_b32 v21, 2, v17")
    A("v_xor_b32 v20, v20, v21")
    A("v_lshl_add_u32 v19, v20, 4, v19")
    A("v_and_b32 v21, 1, v1")
    A("v_lshl_add_u32 v19, v21, 3, v19")
    A("v_add_u32 v3, 16384, v19")
    A("v_xor_b32 v4, 64, v3")
    ACC = 64
    FS = [24, 40]
    for i in range(64): A(f"v_mov_b32 v{ACC+i}, 0")
    for i in range(16): A(f"v_mov_b32 v{FS[1]+i}, 0")
    def of(s, st): return FS[s] + 4*st
    def wf(s, nt): return FS[s] + 8 + 4*nt
    def reads(k16, s):
        L = []
        L.append(f"ds_read_b128 {vr(of(s,0),4)}, v5 offset:{k16*1024}")
        for half in range(2): L.append(f"ds_read_b64_tr_b16 {vr(wf(s,0)+2*half,2)}, v6 offset:{k16*4096+half*2048}")
        L.append(f"ds_read_b128 {vr(of(s,1),4)}, v5 offset:{4096+k16*1024}")
        for half in range(2): L.append(f"ds_read_b64_tr_b16 {vr(wf(s,1)+2*half,2)}, v7 offset:{k16*4096+half*2048}")
        return L
    def mfmas(s):
        L = []
        for nt in range(2):
            for st in range(2):
                d = ACC + (st*2+nt)*16
                L.append(M32(d, wf(s,nt), of(s,st), d))
        return L
    A("s_mov_b32 s23, 0")
    A("s_mov_b32 s38, 16")
    ST(1)
    A(".p2align 6")
    A.label("K3_cloop")
    A("v_add_u32 v5, s23, v2")
    A("v_add_u32 v6, s23, v3")
    A("v_add_u32 v7, s23, v4")
    A(f"s_add_u32 s23, s23, {SLOT}")
    A(f"s_cmp_eq_u32 s23, {NS3*SLOT}")
    A("s_cselect_b32 s23, 0, s23")
    for sub in range(4):
        s = (sub + 1) & 1
        A("s_waitcnt lgkmcnt(0)")
        if sub == 0: A("s_barrier")
        for l in interleave(mfmas(s), reads(sub, s^1), [3,3,0,0]): A(l)
    A("s_sub_u32 s38, s38, 1")
    A("s_cmp_lg_u32 s38, 0")
    A("s_cbranch_scc1 K3_cloop")
    A("s_waitcnt lgkmcnt(0)")
    for l in mfmas(1): A(l)
    ST(2)
    A("v_and_b32 v2, 31, v1")
    A("v_lshlrev_b32 v2, 12, v2")
    A("v_lshl_add_u32 v2, v18, 4, v2")
    A("s_lshl_b32 s36, s17, 7")
    A("s_lshr_b32 s37, s19, 1")
    A("s_lshl_b32 s37, s37, 6")
    A("s_add_u32 s36, s36, s37")
    A("s_lshl_b32 s36, s36, 12")
    A("s_lshl_b32 s37, s16, 11")
    A("s_add_u32 s36, s36, s37")
    A("s_lshl_b32 s37, s18, 8")
    A("s_add_u32 s36, s36, s37")
    A("s_and_b32 s37, s19, 1")
    A("s_lshl_b32 s37, s37, 7")
    A("s_add_u32 s36, s36, s37")
    A(f"s_add_u32 s37, s36, {32*4096}")
    A("s_nop 1")
    n = 0
    for nt in range(2):
        for st in range(2):
            d = ACC + (st*2+nt)*16
            p = 24 + (n % 4) * 8; n += 1
            for r in range(8): A(f"v_cvt_pk_bf16_f32 v{p+r}, v{d+2*r}, v{d+2*r+1}")
            A("s_nop 1")
            for pp in range(2):
                A(f"v_permlane32_swap_b32 v{p+4*pp}, v{p+4*pp+2}")
                A(f"v_permlane32_swap_b32 v{p+4*pp+1}, v{p+4*pp+3}")
            for pp in range(2):
                A(f"buffer_store_dwordx4 {vr(p+4*pp,4)}, v2, s[12:15], s{36+st} offen offset:{nt*64+pp*32}{store_mod}")
    if stamp:
        ST(3)
        A("s_waitcnt vmcnt(0)")
        ST(4)
        A("s_waitcnt lgkmcnt(0)")
        A("s_lshl_b32 s36, s2, 3")
        A("s_add_u32 s36, s36, s19")
        A("s_lshl_b32 s36, s36, 6")
        A(f"s_add_u32 s36, s36, {opts.get('stamp_off', 66)<<20}")
        A("s_mov_b32 s12, s32")
        A("s_mov_b32 s13, s33")
        A("s_mov_b32 s14, 0x8000000")
        A("v_mov_b32 v2, 0")
        for rep in range(2):
            for i in range(14):
                A(f"v_mov_b32 v3, s{50+i}")
                A(f"buffer_store_dword v3, v2, s[12:15], s36 offen offset:{4*i+256*rep}")
    A.label("K3_done")
    A("s_endpgm")
    return descriptor(K3_NAME, 128, 80)
```

```python
import sys, os
sys.path.insert(0, os.path.dirname(__file__))
from asmlib import *
import k1
HEADER = """; concat_heads__mha_block__sliding_local_dilated__prompt : 3-launch pipeline (generated by gen/build.py)
"""
def build(kernels=("k1",), opts=None):
    opts = opts or {}
    A = Asm()
    launches = []
    descs = []
    A('.amdgcn_target "amdgcn-amd-amdhsa--gfx950"')
    A(".text")
    if "k1" in kernels:
        descs.append(k1.gen_k1(A, opts.get("k1")))
        launches.append(f"; @launch kernel={k1.K1_NAME} grid=(256,1,1) block=(512,1,1) lds={k1.K1_LDS}")
    if "k2" in kernels:
        import k2
        descs.append(k2.gen_k2(A, opts.get("k2")))
        launches.append(f"; @launch kernel={k2.K2_NAME} grid=(256,1,1) block=({k2.K2_BLOCK},1,1) lds={k2.K2_LDS}")
    if "k3" in kernels:
        import k3
        descs.append(k3.gen_k3(A, opts.get("k3")))
        launches.append(f"; @launch kernel={k3.K3_NAME} grid=(256,1,1) block=({k3.K3_BLOCK},1,1) lds={k3.K3_LDS}")
    txt = HEADER + "\n".join(launches) + "\n" + A.text() + '.section .rodata,"a"\n' + "".join(descs)
    return txt
if __name__ == "__main__":
    ks = sys.argv[2].split(",") if len(sys.argv) > 2 else ["k1", "k2", "k3"]
    import json
    opts = json.loads(sys.argv[3]) if len(sys.argv) > 3 else {}
    open(sys.argv[1], "w").write(build(ks, opts))
```

```python
class Asm:
    def __init__(self):
        self.lines = []
        self._lbl = 0
    def __call__(self, s):
        for l in s.split("\n"):
            l = l.strip()
            if not l: continue
            if l.endswith(":") or l.startswith("."):
                self.lines.append(l)
            else:
                self.lines.append("    " + l)
    def c(self, s):
        self.lines.append("    ; " + s)
    def label(self, name):
        self.lines.append(name + ":")
    def newlabel(self, p="L"):
        self._lbl += 1
        return f"{p}_{self._lbl}"
    def text(self):
        return "\n".join(self.lines) + "\n"

def vr(a, n=1):
    return f"v{a}" if n == 1 else f"v[{a}:{a+n-1}]"
def sr(a, n=1):
    return f"s{a}" if n == 1 else f"s[{a}:{a+n-1}]"

def kernel_begin(A, name):
    A(f".globl {name}")
    A(".p2align 8")
    A(f".type {name},@function")
    A.label(name)

def descriptor(name, nvgpr, nsgpr=102, accum=None):
    if accum is None:
        accum = (nvgpr + 3) // 4 * 4
    return f""".p2align 6
.amdhsa_kernel {name}
  .amdhsa_next_free_vgpr {nvgpr}
  .amdhsa_next_free_sgpr {nsgpr}
  .amdhsa_accum_offset {accum}
  .amdhsa_group_segment_fixed_size 0
  .amdhsa_kernarg_size 72
  .amdhsa_user_sgpr_count 2
  .amdhsa_user_sgpr_kernarg_segment_ptr 1
  .amdhsa_system_sgpr_workgroup_id_x 1
.end_amdhsa_kernel
"""

def interleave(main, fill, pattern=None):
    out = []
    n = len(main)
    if pattern is None:
        base, extra = divmod(len(fill), n)
        pattern = [base + (1 if i < extra else 0) for i in range(n)]
    k = 0
    for i, m in enumerate(main):
        out.append(m)
        for _ in range(pattern[i]):
            if k < len(fill):
                out.append(fill[k]); k += 1
    out += fill[k:]
    return out

def schedule_waits(items, passes=2, init_queue=None):
    q = list(init_queue or [])
    out = []
    for p in range(passes):
        out = []
        for it in items:
            if it[0] == 'op':
                idx = [i for i, t in enumerate(q) if t in it[2]]
                if idx:
                    last = max(idx)
                    n = len(q) - 1 - last
                    n = min(n, 14)
                    out.append(f"s_waitcnt lgkmcnt({n})")
                    q = q[len(q) - n:] if n else []
                out.append(it[1])
            elif it[0] == 'rd':
                out.append(it[1]); q.append(it[2])
            elif it[0] == 'all':
                out.append("s_waitcnt lgkmcnt(0)"); q = []
                if it[1]: out.append(it[1])
            else:
                out.append(it[1])
    return out, q
```

```python
from asmlib import *
import struct, math

WS_Q = 0
WS_KV = 4 << 20
WS_B = 12 << 20
WS_O = 24 << 20
WS_BYTES = 32 << 20
QSCALE = (32 ** -0.5) * math.log2(math.e)
def f32bits(x): return struct.unpack("<I", struct.pack("<f", x))[0]

XSLOT = 32768; WBASE = 3 * XSLOT; WSLOT = 12288; WEND = WBASE + 5 * WSLOT
K1_LDS = WEND
K1_NAME = "qkv_gemm_kernel"
def k1_block(opts): return 640

def M32(d, a, b, c):
    cs = "0" if c is None else vr(c, 16)
    return f"v_mfma_f32_32x32x16_bf16 {vr(d,16)}, {vr(a,4)}, {vr(b,4)}, {cs}"
def M16(d, a, b, c):
    cs = "0" if c is None else vr(c, 4)
    return f"v_mfma_f32_16x16x32_bf16 {vr(d,4)}, {vr(a,4)}, {vr(b,4)}, {cs}"

def gen_k1(A, opts=None):
    opts = opts or {}
    store_mod = opts.get("store_mod", " sc1")
    stamp = opts.get("stamp", False)
    code_pf = opts.get("code_pf", 1)
    barpos = opts.get("barpos", 4)
    kernel_begin(A, K1_NAME)
    pst = opts.get("pst", False)
    def PST(i):
        if pst:
            A(f"s_memtime s[{50+2*i}:{51+2*i}]")
            if i == 4: A("s_memrealtime s[62:63]")
    def ST(i):
        if stamp and not (pst and i > 0):
            A(f"s_memtime s[{50+2*i}:{51+2*i}]")
            if i in (0, 4): A(f"s_memrealtime s[{60+(2 if i else 0)}:{61+(2 if i else 0)}]")
    ST(0)
    A("s_load_dwordx4 s[24:27], s[0:1], 0")
    A("s_load_dwordx4 s[28:31], s[0:1], 24")
    A("v_lshrrev_b32 v14, 6, v0")
    A("v_and_b32 v1, 63, v0")
    A("v_readfirstlane_b32 s19, v14")
    A("s_cmp_ge_u32 s2, 256")
    A("s_cbranch_scc1 K1_done")
    A("s_and_b32 s34, s2, 7")
    A("s_lshr_b32 s35, s2, 3")
    A("s_lshr_b32 s16, s34, 2")
    A("s_and_b32 s17, s34, 1")
    A("s_lshl_b32 s17, s17, 2")
    A("s_and_b32 s36, s35, 3")
    A("s_add_u32 s17, s17, s36")
    A("s_lshr_b32 s18, s34, 1")
    A("s_and_b32 s18, s18, 1")
    A("s_lshl_b32 s18, s18, 3")
    A("s_lshr_b32 s36, s35, 2")
    A("s_add_u32 s18, s18, s36")
    A("s_cmp_lt_u32 s19, 8")
    A("s_cbranch_scc1 K1_compute")
    A("s_lshr_b32 s49, s34, 1")
    A("s_xor_b32 s49, s49, s34")
    A("s_and_b32 s49, s49, 1")
    A("s_lshl_b32 s49, s49, 10")
    A("s_lshl_b32 s23, s16, 9")
    A("s_add_u32 s49, s49, s23")
    A("s_and_b32 s23, s34, 1")
    A("s_lshl_b32 s23, s23, 8")
    A("s_add_u32 s49, s49, s23")
    A("s_add_u32 s48, s17, s18")
    A("s_and_b32 s48, s48, 1")
    A("s_mov_b32 s7, 0x20000")
    A("v_lshrrev_b32 v15, 3, v1")
    A("v_lshrrev_b32 v16, 4, v1")
    A("v_and_b32 v18, 7, v1")
    A("s_mov_b32 s40, 0")
    A("s_cmp_eq_u32 s19, 8")
    A("s_cbranch_scc1 K1_xload")
    A("s_lshl_b32 s39, s18, 7")
    A(f"s_sub_u32 s6, {1024*6144}, s39")
    A("v_and_b32 v16, 1, v16")
    A("v_lshlrev_b32 v16, 1, v16")
    A("v_xor_b32 v16, v18, v16")
    A("v_lshlrev_b32 v16, 4, v16")
    A("v_mul_u32_u24 v17, 6144, v15")
    A("v_add_u32 v2, v17, v16")
    A("v_xor_b32 v16, 64, v16")
    A("v_add_u32 v3, v17, v16")
    A(f"v_add_u32 v3, {8*6144-1024}, v3")
    A(f"v_add_u32 v4, {16*6144-2048}, v2")
    A(f"v_add_u32 v5, {16*6144-2048}, v3")
    A("s_lshl_b32 s48, s48, 1")
    A(f"s_mov_b32 s22, {WBASE}")
    A("s_cmp_eq_u32 s16, 0")
    A("s_waitcnt lgkmcnt(0)")
    A("s_cselect_b32 s4, s26, s30")
    A("s_cselect_b32 s5, s27, s31")
    A("s_add_u32 s4, s4, s39")
    A("s_addc_u32 s5, s5, 0")
    A.label("K1_wgo")
    A("s_xor_b32 s23, s40, s48")
    A("s_lshl_b32 s23, s23, 6")
    A("s_add_u32 s23, s23, s49")
    A("s_and_b32 s23, s23, 2047")
    A("s_mul_i32 s20, s23, 3072")
    for ty in range(3):
        A(f"s_add_u32 m0, s22, {ty*4096}")
        if ty: A("s_add_u32 s20, s20, 2048")
        else: A("s_add_u32 s40, s40, 1")
        for i in range(4):
            A(f"buffer_load_dwordx4 v{2+i}, s[4:7], s20 offen offset:{1024*i} lds")
    A(f"s_add_u32 s22, s22, {WSLOT}")
    A(f"s_cmp_eq_u32 s22, {WEND}")
    A(f"s_cselect_b32 s22, {WBASE}, s22")
    WPRE = opts.get("wpre", 3)
    A(f"s_cmp_eq_u32 s40, {WPRE}")
    A("s_cbranch_scc0 K1_w1")
    A(f"s_waitcnt vmcnt({12*(WPRE-2)})")
    A("s_barrier")
    A.label("K1_w1")
    A("s_cmp_lt_u32 s40, 5")
    A("s_cbranch_scc1 K1_wgo")
    A("s_bitcmp0_b32 s40, 0")
    A("s_cbranch_scc1 K1_w2")
    A("s_waitcnt vmcnt(12)")
    A("s_barrier")
    A("s_branch K1_wgo")
    A.label("K1_w2")
    A("s_cmp_lt_u32 s40, 32")
    A("s_cbranch_scc1 K1_wgo")
    A("s_waitcnt vmcnt(0)")
    A("s_barrier")
    A("s_barrier")
    A("s_endpgm")
    A.label("K1_xload")
    A("s_mov_b32 s6, 0x80000")
    A("s_lshl_b32 s36, s17, 19")
    A("v_xor_b32 v17, v18, v16")
    A("v_lshlrev_b32 v17, 4, v17")
    A("v_lshl_add_u32 v2, v15, 11, v17")
    A("v_xor_b32 v3, 64, v2")
    A(f"v_add_u32 v3, {16384-1024}, v3")
    A(f"v_add_u32 v4, {32768-2048}, v2")
    A(f"v_add_u32 v5, {32768-2048}, v3")
    A("s_mov_b32 s22, 0")
    A("s_cmp_eq_u32 s16, 0")
    A("s_waitcnt lgkmcnt(0)")
    A("s_cselect_b32 s4, s24, s28")
    A("s_cselect_b32 s5, s25, s29")
    A("s_add_u32 s4, s4, s36")
    A("s_addc_u32 s5, s5, 0")
    A.label("K1_xgo")
    A("s_xor_b32 s21, s40, s48")
    A("s_lshl_b32 s21, s21, 7")
    A("s_add_u32 s21, s21, s49")
    A("s_and_b32 s21, s21, 2047")
    XB0 = opts.get("xb0", 4)
    for q in range(8):
        A(f"s_add_u32 m0, s22, {q*4096}")
        A(f"s_add_u32 s20, s21, {q*65536}")
        if q == XB0:
            A("s_cmp_eq_u32 s40, 1")
            A("s_cbranch_scc0 K1_x0")
            A(f"s_waitcnt vmcnt({4*XB0})")
            A("s_barrier")
            A.label("K1_x0")
        for i in range(4):
            A(f"buffer_load_dwordx4 v{2+i}, s[4:7], s20 offen offset:{1024*i} lds")
    A(f"s_add_u32 s22, s22, {XSLOT}")
    A(f"s_cmp_eq_u32 s22, {3*XSLOT}")
    A("s_cselect_b32 s22, 0, s22")
    A("s_add_u32 s40, s40, 1")
    A(f"s_cmp_lt_u32 s40, {2 if XB0 == 8 else 3}")
    A("s_cbranch_scc1 K1_xgo")
    A("s_waitcnt vmcnt(32)")
    A("s_barrier")
    A("s_cmp_lt_u32 s40, 16")
    A("s_cbranch_scc1 K1_xgo")
    A("s_waitcnt vmcnt(0)")
    A("s_barrier")
    A("s_barrier")
    A("s_endpgm")
    A.label("K1_compute")
    A("s_load_dwordx2 s[12:13], s[0:1], 64")
    if code_pf:
        A("s_getpc_b64 s[40:41]")
        A("v_and_b32 v20, 127, v0")
        A("v_lshlrev_b32 v20, 7, v20")
        A(f"v_min_u32 v20, {opts.get('code_bytes', 10240)}, v20")
        A("s_cmp_lt_u32 s19, 2")
        A("s_cbranch_scc0 K1_nopf")
        A("global_load_dword v21, v20, s[40:41]")
        A.label("K1_nopf")
    A(f"s_mov_b32 s14, {WS_BYTES}")
    A("s_mov_b32 s15, 0x20000")
    A("v_lshrrev_b32 v15, 1, v14")
    A("v_and_b32 v16, 15, v1")
    A("v_lshl_add_u32 v17, v15, 6, v16")
    A("v_lshlrev_b32 v17, 7, v17")
    A("v_lshrrev_b32 v16, 1, v16")
    A("v_lshrrev_b32 v18, 4, v1")
    A("v_xor_b32 v16, v16, v18")
    A("v_lshl_add_u32 v2, v16, 4, v17")
    A("v_xor_b32 v3, 64, v2")
    A("v_lshrrev_b32 v16, 2, v1")
    A("v_and_b32 v16, 3, v16")
    A("v_lshl_add_u32 v17, v18, 3, v16")
    A("v_lshlrev_b32 v17, 7, v17")
    A("v_lshrrev_b32 v16, 1, v16")
    A("v_and_b32 v19, 1, v18")
    A("v_lshl_add_u32 v16, v19, 1, v16")
    A("v_and_b32 v19, 1, v14")
    A("v_lshlrev_b32 v19, 1, v19")
    A("v_xor_b32 v16, v16, v19")
    A("v_lshl_add_u32 v17, v16, 5, v17")
    A("v_and_b32 v16, 3, v1")
    A("v_lshl_add_u32 v4, v16, 3, v17")
    A("v_xor_b32 v5, 32, v4")
    ACC = 72; XF = 8; WF = [24, 48]
    AX, AW0, AW1 = 0, 6, 7
    for i in range(96): A(f"v_mov_b32 v{ACC+i}, 0")
    A("s_and_b32 s36, s19, 1")
    A("s_lshl_b32 s37, s18, 1")
    A("s_add_u32 s36, s36, s37")
    A("s_lshl_b32 s36, s36, 6")
    A("s_lshl_b32 s37, s17, 3")
    A("s_add_u32 s36, s36, s37")
    A("s_lshr_b32 s37, s19, 1")
    A("s_lshl_b32 s37, s37, 1")
    A("s_add_u32 s36, s36, s37")
    A("s_lshl_b32 s64, s36, 11")
    A("s_add_u32 s65, s64, 2048")
    A("s_lshl_b32 s66, s36, 12")
    A(f"s_add_u32 s66, s66, {WS_KV}")
    A("s_add_u32 s67, s66, 4096")
    A("s_add_u32 s68, s66, 2048")
    A("s_add_u32 s69, s66, 6144")
    A("s_mul_i32 s37, s36, 6144")
    A(f"s_add_u32 s37, s37, {WS_B}")
    A("s_cmp_eq_u32 s16, 0")
    A("s_cbranch_scc1 K1_ofs_done")
    for ty in range(3):
        for mt in range(2):
            A(f"s_add_u32 s{64+2*ty+mt}, s37, {ty*2048+mt*6144}")
    A.label("K1_ofs_done")
    A(f"s_mov_b32 s41, {f32bits(QSCALE)}")
    def xf(st): return XF + 4*st
    def wf(s, n6): return WF[s] + 4*n6
    def acc(st, n6): return ACC + (st*6+n6)*4
    def xrd(st): return ('rd', f"ds_read_b128 {vr(xf(st),4)}, v{AX} offset:{st*2048}", f"x{st}")
    def wrds(s, first):
        L = []
        order = range(6)
        for i in order:
            ty, nt = i >> 1, i & 1
            for half in range(2):
                L.append(('rd', f"ds_read_b64_tr_b16 {vr(wf(s,i)+2*half,2)}, v{AW0+nt} offset:{ty*4096+half*512}", f"w{s}_{i}"))
        return L
    def mf(s, st, n6):
        d = acc(st, n6)
        t = M16(d, wf(s,n6), xf(st), d) if n6 < 4 else M16(d, xf(st), wf(s,n6), d)
        needs = [f"x{st}", f"w{s}_{n6}"]
        if st == 0 and n6 == 0 and opts.get("onewait", 1): needs = ["x0", "x1", "x2"] + [f"w{s}_{i}" for i in range(6)]
        return ('op', t, needs)
    def nextW():
        return [f"s_add_u32 s46, s46, {WSLOT}", f"s_cmp_eq_u32 s46, {WEND}", f"s_cselect_b32 s46, {WBASE}, s46",
                f"v_add_u32 v{AW0}, s46, v4", f"v_add_u32 v{AW1}, s46, v5"]
    A("s_mov_b32 s44, 0")
    A(f"s_mov_b32 s46, {WBASE}")
    A("s_mov_b32 s40, 16")
    A(f"v_mov_b32 v{AX}, v2")
    A(f"v_add_u32 v{AW0}, s46, v4")
    A(f"v_add_u32 v{AW1}, s46, v5")
    A("s_waitcnt vmcnt(0) lgkmcnt(0)")
    A("s_barrier")
    ST(1)
    if opts.get("touch", 1):
        A("s_mov_b64 exec, 1")
        A("buffer_load_dword v1, off, s[12:15], s64")
        A("buffer_load_dword v1, off, s[12:15], s66")
        A("s_mov_b64 exec, -1")
    items = []
    for sub in range(2):
        s = sub
        ms = [mf(s, st, (q if st % 2 == 0 else 5 - q)) for st in range(4) for q in range(6)]
        wr = wrds(s ^ 1, False)
        gaps = [[] for _ in range(24)]
        start = 0 if sub == 0 else barpos
        pre = nextW()
        if sub == 0:
            pre += [f"v_add_u32 v{AX}, s44, v3"]
        else:
            pre += [f"s_add_u32 s44, s44, {XSLOT}", f"s_cmp_eq_u32 s44, {3*XSLOT}", "s_cselect_b32 s44, 0, s44", f"v_add_u32 v{AX}, s44, v2",
                    "s_sub_u32 s40, s40, 1"]
        for i, l in enumerate(pre): gaps[min(i // 3, 2 if sub == 0 else barpos - 1)].append(('raw', l))
        if sub == 1:
            gaps[barpos - 1].append(('all', "s_barrier"))
        g = max(start, 2)
        for r in wr:
            if g in (5, 11, 17): g += 1
            gaps[g].append(r); g += 1
        assert g <= 23, g
        for st in range(4): gaps[6*st+5].append(xrd(st))
        if sub == 1: gaps[22].append(('raw', "s_cmp_lg_u32 s40, 0"))
        for i in range(24):
            items.append(ms[i]); items += gaps[i]
    pro = [it for it in items[len(items)//2 - 2:] if it[0] == 'rd' and (it[2].startswith("w0") or it[2].startswith("x"))]
    pro = pro[-16:]
    assert sorted(set(t[2] for t in pro)) == sorted([f"x{i}" for i in range(4)] + [f"w0_{i}" for i in range(6)])
    for it in pro: A(it[1])
    body, _ = schedule_waits(items, passes=2, init_queue=[t[2] for t in pro])
    body1, _ = schedule_waits(items, passes=1, init_queue=[t[2] for t in pro])
    A(".p2align 6")
    A.label("K1_loop")
    for l in body1: A(l)
    A("s_cbranch_scc1 K1_loop")
    ST(2)
    ex = opts.get("skipst", 0)
    if ex == 1:
        A("s_cmp_eq_u32 s16, 0"); A("s_cselect_b32 s14, s14, 0")
    if ex == 2:
        A("s_bitcmp0_b32 s35, 0"); A("s_cselect_b32 s14, s14, 0")
    if ex == 3:
        A("s_mov_b32 s14, 0")
    A("s_waitcnt vmcnt(0)")
    A("v_mbcnt_lo_u32_b32 v1, -1, 0")
    A("v_mbcnt_hi_u32_b32 v1, -1, v1")
    A("v_lshlrev_b32 v2, 4, v1")
    A("s_waitcnt lgkmcnt(0)")
    A("s_nop 2")
    n = 0
    def pk():
        nonlocal n
        p = 8 + (n % 16) * 4; n += 1
        return p
    for ty in (1, 2, 0):
        if ty < 2:
            for st in range(4):
                p = pk()
                for nt in range(2):
                    d = acc(st, 2*ty+nt)
                    if ty == 0:
                        for r in range(4): A(f"v_mul_f32 v{d+r}, s41, v{d+r}")
                    A(f"v_cvt_pk_bf16_f32 v{p+2*nt}, v{d}, v{d+1}")
                    A(f"v_cvt_pk_bf16_f32 v{p+2*nt+1}, v{d+2}, v{d+3}")
                A(f"buffer_store_dwordx4 {vr(p,4)}, v2, s[12:15], s{64+2*ty+(st>>1)} offen offset:{(st&1)*1024}{store_mod}")
        else:
            ps = []
            for mt in range(2):
                for nt in range(2):
                    p = pk(); ps.append((p, mt, nt))
                    for u in range(2):
                        d = acc(2*mt+u, 4+nt)
                        A(f"v_cvt_pk_bf16_f32 v{p+2*u}, v{d}, v{d+1}")
                        A(f"v_cvt_pk_bf16_f32 v{p+2*u+1}, v{d+2}, v{d+3}")
            A("s_nop 1")
            for p, mt, nt in ps:
                A(f"v_permlane16_swap_b32 v{p}, v{p+2}")
                A(f"v_permlane16_swap_b32 v{p+1}, v{p+3}")
                A(f"buffer_store_dwordx4 {vr(p,4)}, v2, s[12:15], s{68+mt} offen offset:{nt*1024}{store_mod}")
    if stamp:
        ST(3)
        A("s_waitcnt vmcnt(0)")
        ST(4)
        A("s_waitcnt lgkmcnt(0)")
        A("s_lshl_b32 s36, s2, 3")
        A("s_add_u32 s36, s36, s19")
        A("s_lshl_b32 s36, s36, 6")
        A(f"s_add_u32 s36, s36, {64<<20}")
        A("s_mov_b32 s14, 0x8000000")
        A("v_mov_b32 v2, 0")
        for i in range(14):
            A(f"v_mov_b32 v3, s{50+i}")
            A(f"buffer_store_dword v3, v2, s[12:15], s36 offen offset:{4*i}")
    A.label("K1_done")
    A("s_endpgm")
    return descriptor(K1_NAME, 168, 80)
```

```python
from asmlib import *
from k1 import WS_Q, WS_KV, WS_B, WS_O, WS_BYTES, M32, f32bits

K2_NAME = "attn_kernel"
NS = 6
STG = 16384
RING = NS * STG
BREG = RING
BBYTES = 4096 + 8 * 6144
FLAGS = BREG + BBYTES
K2_LDS = FLAGS + 64
XCH = 0
def k2_block(opts): return 576

IDX = 4; ONES = 8; KF = 12; VF = 20; MX = [28, 29]; SA = 32; SB = 48
Q = [64, 72]; L = [80, 84]; O = [96, 112]; NEGM = [128, 144]
QB = 128; KBP = 136; KBC = 144; VBC = 152; VBP = 12; PK = 16; OB = O[1]; LB = L[1]
NV = 160

def S32(d, a, b): return f"v_smfmac_f32_32x32x32_bf16 {vr(d,16)}, {vr(a,4)}, {vr(b,8)}, v{IDX}"
def S16(d, a, b): return f"v_smfmac_f32_16x16x64_bf16 {vr(d,4)}, {vr(a,4)}, {vr(b,8)}, v{IDX}"
def E(r): return f"v_exp_f32 v{r}, v{r}"

def key_of(r, hb): return 8 * (r >> 2) + 4 * hb + (r & 3)
def bmask(r, prev):
    m = 0
    for l in range(64):
        q = l & 31; hb = l >> 5
        d = q - key_of(r, hb) + (32 if prev else 0)
        if 0 <= d <= 14 and d % 2 == 0: m |= 1 << l
    return m

def rowmax(A, regs, dst, tmp):
    regs = list(regs)
    A(f"v_max3_f32 v{dst}, v{regs[0]}, v{regs[1]}, v{regs[2]}")
    i = 3
    while i + 1 < len(regs):
        A(f"v_max3_f32 v{dst}, v{regs[i]}, v{regs[i+1]}, v{dst}"); i += 2
    if i < len(regs):
        A(f"v_max_f32 v{dst}, v{regs[i]}, v{dst}")
    A(f"v_mov_b32 v{tmp}, v{dst}")
    A("s_nop 1")
    A(f"v_permlane32_swap_b32 v{dst}, v{tmp}")
    A("s_nop 1")
    A(f"v_max_f32 v{dst}, v{dst}, v{tmp}")

def read_flags(A, r, sdst):
    A(f"v_mov_b32 v7, {FLAGS}")
    A(f"ds_read_b128 {vr(r,4)}, v7")
    A(f"ds_read_b128 {vr(r+4,4)}, v7 offset:16")

def or_flags(A, r, sdst):
    A(f"v_or3_b32 v{r}, v{r}, v{r+4}, v{r+5}")
    A(f"v_or3_b32 v{r}, v{r}, v{r+6}, v{r+7}")
    A(f"v_or3_b32 v{r}, v{r}, v{r+1}, v{r+2}")
    A(f"v_or_b32 v{r}, v{r}, v{r+3}")
    A("s_nop 0")
    A(f"v_readfirstlane_b32 s{sdst}, v{r}")

def gen_k2(A, opts=None):
    opts = opts or {}
    stamp = opts.get("stamp", False)
    force_fb = opts.get("force_fb", False)
    store_mod = opts.get("store_mod", " sc1")
    wo_pf = opts.get("wo_pf", 1)
    code_pf = opts.get("code_pf", 1)
    prio = opts.get("prio", 0)
    kernel_begin(A, K2_NAME)
    def ST(i):
        if stamp:
            A(f"s_memtime s[{50+2*i}:{51+2*i}]")
            if i in (0, 4): A(f"s_memrealtime s[{60+(2 if i else 0)}:{61+(2 if i else 0)}]")
    ST(0)
    A("s_load_dwordx2 s[32:33], s[0:1], 64")
    A("s_load_dwordx2 s[46:47], s[0:1], 16")
    A("s_load_dwordx2 s[48:49], s[0:1], 40")
    A("s_cmp_ge_u32 s2, 256")
    A("s_cbranch_scc1 K2_done")
    A("v_lshrrev_b32 v5, 6, v0")
    A("v_and_b32 v6, 63, v0")
    A("v_readfirstlane_b32 s19, v5")
    A("s_and_b32 s34, s2, 7")
    A("s_lshr_b32 s35, s2, 3")
    A("s_and_b32 s16, s35, 3")
    A("s_lshl_b32 s34, s34, 2")
    A("s_add_u32 s16, s16, s34")
    A("s_lshr_b32 s17, s35, 2")
    A("v_lshlrev_b32 v1, 4, v6")
    A("s_lshl_b32 s36, s16, 18")
    A(f"s_add_u32 s36, s36, {WS_KV}")
    A("s_mov_b32 s24, 0")
    A("s_mov_b32 s6, 0x40000")
    A("s_mov_b32 s7, 0x20000")
    A(f"s_mov_b32 s10, {WS_BYTES}")
    A("s_mov_b32 s11, 0x20000")
    A("s_cmp_lt_u32 s19, 8")
    A("s_cbranch_scc1 K2_compute")

    A("v_lshlrev_b32 v2, 7, v6")
    if code_pf:
        A("s_getpc_b64 s[28:29]")
        A("global_load_dword v3, v2, s[28:29]")
        A("global_load_dword v3, v2, s[28:29] offset:64")
    A("s_lshl_b32 s26, s16, 6")
    A("s_lshl_b32 s27, s17, 3")
    A("s_add_u32 s26, s26, s27")
    A("s_mul_i32 s26, s26, 6144")
    A(f"s_add_u32 s26, s26, {WS_B - 4096}")
    A("s_mov_b32 s14, 0x200000")
    A("s_mov_b32 s15, 0x20000")
    A("s_and_b32 s27, s2, 127")
    A("s_lshl_b32 s27, s27, 14")
    A("s_waitcnt lgkmcnt(0)")
    A("s_add_u32 s4, s32, s36")
    A("s_addc_u32 s5, s33, 0")
    A("s_mov_b32 s8, s32")
    A("s_mov_b32 s9, s33")
    A("s_cmp_lt_u32 s2, 128")
    A("s_cselect_b32 s12, s46, s48")
    A("s_cselect_b32 s13, s47, s49")
    A.label("K2_lstart")
    def l_stage():
        for g in range(4):
            A(f"s_add_u32 m0, s22, {g * 4096}")
            A(f"s_add_u32 s20, s21, {(g >> 1) * 131072 + (g & 1) * 4096}")
            for i in range(4):
                A(f"buffer_load_dwordx4 v1, s[4:7], s20 offen offset:{1024*i} lds")
        A("s_add_u32 s21, s21, 8192")
        A(f"s_add_u32 s22, s22, {STG}")
        A(f"s_cmp_eq_u32 s22, {RING}")
        A("s_cselect_b32 s22, 0, s22")
    A("s_mov_b32 s21, 8192")
    A(f"s_mov_b32 s22, {STG}")
    A("s_mov_b32 s23, 0")
    A.label("K2_lloop")
    A("s_cmp_lt_u32 s23, 3")
    A("s_cbranch_scc1 K2_lissue")
    A("s_waitcnt vmcnt(48)")
    A("s_barrier")
    A.label("K2_lissue")
    l_stage()
    A("s_add_u32 s23, s23, 1")
    A("s_cmp_lt_u32 s23, 15")
    A("s_cbranch_scc1 K2_lloop")
    npf = 0
    if wo_pf:
        A("buffer_load_dword v3, v2, s[12:15], s27 offen")
        A("s_add_u32 s21, s27, 8192")
        A("buffer_load_dword v3, v2, s[12:15], s21 offen")
        npf = 2
    def l_b(g0, g1):
        for g in range(g0, g1):
            A(f"s_mov_b32 m0, {BREG + g * 4096}")
            A(f"s_add_u32 s21, s26, {g * 4096}")
            for i in range(4):
                A(f"buffer_load_dwordx4 v1, s[8:11], s21 offen offset:{1024*i} lds")
    A(f"s_waitcnt vmcnt({48+npf})"); A("s_barrier")
    l_b(0, 3)
    A(f"s_waitcnt vmcnt({32+npf+12})"); A("s_barrier")
    l_b(3, 7)
    A(f"s_waitcnt vmcnt({16+npf+28})"); A("s_barrier")
    l_b(7, 11)
    A(f"s_waitcnt vmcnt({npf+44})"); A("s_barrier")
    l_b(11, 13)
    A("s_waitcnt vmcnt(0)"); A("s_barrier")
    A("s_barrier")
    A("s_cmp_lg_u32 s24, 0")
    A("s_cbranch_scc1 K2_done")
    read_flags(A, 8, 44)
    A("s_waitcnt lgkmcnt(0)")
    or_flags(A, 8, 44)
    A("s_nop 3")
    A("s_cmp_eq_u32 s44, 0")
    A("s_cbranch_scc1 K2_done")
    A("s_mov_b32 s24, 1")
    A("s_barrier")
    A("s_branch K2_lstart")

    A.label("K2_compute")
    A("s_lshr_b32 s18, s19, 2")
    A("s_and_b32 s20, s19, 3")
    A("s_lshl_b32 s20, s20, 1")
    A("s_add_u32 s20, s20, s18")
    A("s_lshl_b32 s26, s17, 3")
    A("s_add_u32 s26, s26, s20")
    A("s_lshl_b32 s27, s16, 6")
    A("s_add_u32 s27, s27, s26")
    A("s_lshl_b32 s27, s27, 11")
    A("s_xor_b32 s28, s27, 2048")
    A("s_lshl_b32 s37, s19, 11")
    A("s_and_b32 s38, s37, 8191")
    A("s_lshl_b32 s39, s18, 17")
    A("s_add_u32 s38, s38, s39")
    A("s_lshl_b32 s39, s18, 13")
    A("v_and_b32 v31, 15, v6")
    A("v_lshlrev_b32 v31, 4, v31")
    A("v_and_b32 v5, 16, v6")
    A("v_lshl_add_u32 v31, v5, 6, v31")
    A("v_and_b32 v5, 32, v6")
    A("v_lshl_add_u32 v31, v5, 4, v31")
    A("s_mov_b32 m0, s37")
    A("s_waitcnt lgkmcnt(0)")
    A("s_add_u32 s4, s32, s36")
    A("s_addc_u32 s5, s33, 0")
    A("s_mov_b32 s8, s32")
    A("s_mov_b32 s9, s33")
    def stage0():
        for i in range(2):
            A(f"buffer_load_dwordx4 v1, s[4:7], s38 offen offset:{1024*i} lds")
    stage0()
    for x in range(2):
        for m in range(2):
            A(f"buffer_load_dwordx4 {vr(Q[x]+4*m,4)}, v31, s[8:11], s{27+x} offen offset:{256*m}")
    if prio:
        A("s_cmp_lt_u32 s19, 4")
        A(f"s_cbranch_scc{1 if prio == 1 else 0} K2_noprio")
        A("s_setprio 1")
        A.label("K2_noprio")
    A("s_lshl_b32 s31, s26, 5")
    A("s_add_u32 s31, s31, s16")
    A("s_lshl_b32 s31, s31, 11")
    A(f"s_add_u32 s31, s31, {WS_O}")
    A(f"v_mov_b32 v{IDX}, 0xdddd")
    A("v_and_b32 v5, 4, v6")
    A("v_cmp_eq_u32 vcc, 0, v5")
    A("v_mov_b32 v7, 0x3f803f80")
    A("v_add_u32 v30, s39, v31")
    A(f"v_cndmask_b32 v{ONES}, 0, v7, vcc")
    A(f"v_cndmask_b32 v{ONES+1}, 0, v7, vcc")
    A(f"v_sub_u32 v{ONES+2}, v7, v{ONES}")
    A(f"v_mov_b32 v{ONES+3}, v{ONES+2}")
    A.label("K2_restart")
    for x in range(2):
        for i in range(16): A(f"v_mov_b32 v{O[x]+i}, 0")
        for i in range(4): A(f"v_mov_b32 v{L[x]+i}, 0")
    A("v_mov_b32 v2, v30")
    A(f"s_mov_b32 s25, {STG}")
    A(f"v_add_u32 v3, {STG}, v30")
    A("s_waitcnt vmcnt(0)")
    A("s_barrier")
    ST(1)
    SX = [SA, SB]
    A("s_cmp_lg_u32 s24, 0")
    A("s_cbranch_scc1 K2_main")
    A(f"ds_read_b128 {vr(VF,4)}, v31 offset:0")
    A(f"ds_read_b128 {vr(VF+4,4)}, v31 offset:256")
    A("s_waitcnt lgkmcnt(0)")
    for x in range(2): A(M32(SX[x], VF, Q[x], None))
    for x in range(2): A(M32(SX[x], VF+4, Q[x]+4, SX[x]))
    A("s_nop 7")
    A("s_nop 2")
    for x in range(2): rowmax(A, range(SX[x], SX[x]+16), MX[x], 6)
    A.label("K2_main")
    A(f"ds_read_b128 {vr(KF,4)}, v2 offset:0")
    A(f"ds_read_b128 {vr(KF+4,4)}, v2 offset:256")
    A(f"ds_read_b128 {vr(VF,4)}, v2 offset:2048")
    for i in range(16): A(f"v_sub_f32 v{NEGM[0]+i}, 0, v{MX[0]}")
    for i in range(4): A(f"v_mov_b32 v{VF+4+i}, 0")
    A("s_waitcnt lgkmcnt(1)")
    A(M32(SA, KF, Q[0], NEGM[0]))
    A(M32(SA, KF+4, Q[0]+4, SA))
    for i in range(16): A(f"v_sub_f32 v{NEGM[1]+i}, 0, v{MX[1]}")
    for i in range(8): A(f"v_mov_b32 v{SB+8+i}, 0")
    A("s_mov_b32 s23, 16")
    A(E(SA))
    ST(2)
    A(".p2align 6")
    A.label("K2_loop")
    def rd(dst, tile, off):
        a, t = ("v2", tile) if tile < 2 else ("v3", tile - 2)
        return f"ds_read_b128 {vr(dst,4)}, {a} offset:{t*4096+off}"
    nslot = 4
    for u in range(nslot):
        cur, nxt = (SA, SB) if u % 2 == 0 else (SB, SA)
        i = u // 2; xc = u % 2; xp = xn = xc ^ 1
        if xc == 0:
            w_pv1 = w_qka = w_qkb = None; w_pv0 = 3
            r_pv1 = [rd(VF+4, i, 2304)]; r_qka = [rd(KF, i+1, 0)]; r_qkb = [rd(KF+4, i+1, 256)]; r_pv0 = []
        else:
            w_pv1, w_qka, w_qkb, w_pv0 = 2, 1, 0, None
            r_pv1 = r_qka = r_qkb = []; r_pv0 = [rd(VF, i+1, 2048)]
        bar = (u == opts.get("bar_slot", 1))
        last = (u == nslot - 1)
        def W(n):
            if n is not None: A(f"s_waitcnt lgkmcnt({n})")
        if w_pv1 is None and u != 0: A("s_nop 0")
        W(w_pv1)
        A(S32(O[xp], VF+4, nxt+8))
        for l in r_pv1: A(l)
        A(E(cur+1)); A(E(cur+2)); A(E(cur+3))
        A(S16(L[xp], ONES, nxt+8))
        A(E(cur+4)); A(E(cur+5))
        W(w_qka)
        A(M32(nxt, KF, Q[xn], NEGM[xn]))
        for l in r_qka: A(l)
        A(E(cur+6)); A(E(cur+7)); A(E(cur+8))
        W(w_qkb)
        A(M32(nxt, KF+4, Q[xn]+4, nxt))
        if bar: A("s_barrier")
        for l in r_qkb: A(l)
        A(E(cur+9)); A(E(cur+10)); A(E(cur+11))
        W(w_pv0)
        A(S32(O[xc], VF, cur))
        for l in r_pv0: A(l)
        A(E(cur+12))
        if last: A(f"s_add_u32 s25, s25, {STG}")
        A(E(cur+13))
        if last: A(f"s_cmp_eq_u32 s25, {RING}")
        A(E(cur+14))
        if last: A("s_cselect_b32 s25, 0, s25")
        elif xc == 1 and not bar: A("s_nop 0")
        A(S16(L[xc], ONES, cur))
        if last:
            A("s_sub_u32 s23, s23, 1")
            A("v_mov_b32 v2, v3")
            A("v_add_u32 v3, s25, v30")
            A("s_cmp_lg_u32 s23, 0")
        else: A("s_nop 0")
        A(E(cur+15)); A(E(nxt))
        if last: A("s_cbranch_scc1 K2_loop")
    A("s_waitcnt lgkmcnt(0)")
    A(S32(O[1], VF+4, SB+8))
    A(S16(L[1], ONES, SB+8))
    ST(3)
    if prio: A("s_setprio 0")
    A("s_mul_i32 s36, s20, 6144")
    A(f"s_add_u32 s36, s36, {BREG}")
    A("v_add_u32 v2, s36, v31")
    for m in range(2): A(f"ds_read_b128 {vr(QB+4*m,4)}, v2 offset:{4096+256*m}")
    for m in range(2): A(f"ds_read_b128 {vr(KBC+4*m,4)}, v2 offset:{6144+256*m}")
    for m in range(2): A(f"ds_read_b128 {vr(KBP+4*m,4)}, v2 offset:{256*m}")
    for m in range(2): A(f"ds_read_b128 {vr(VBC+4*m,4)}, v2 offset:{8192+256*m}")
    A(f"ds_read_b128 {vr(VBP,4)}, v2 offset:2304")
    A(f"s_mov_b32 s44, {f32bits(2.0**64)}")
    A(f"s_mov_b32 s45, {f32bits(2.0**120)}")
    A("s_mul_i32 s36, s19, 5120")
    A("v_add_u32 v3, s36, v1")
    A("s_mov_b64 s[42:43], 0")
    for x in range(2):
        A(f"v_cmp_ngt_f32 vcc, s44, v{L[x]}")
        A("s_or_b64 s[42:43], s[42:43], vcc")
        for i in range(16):
            A(f"v_cmp_ngt_f32 vcc, s45, abs(v{O[x]+i})")
            A("s_or_b64 s[42:43], s[42:43], vcc")
    for i in range(4): A(f"ds_write_b128 v3, {vr(O[1]+4*i,4)} offset:{XCH+1024*i}")
    A(f"ds_write_b32 v3, v{L[1]} offset:{XCH+4096}")
    if force_fb: A("s_mov_b64 s[42:43], -1")
    A("s_cmp_lg_u64 s[42:43], 0")
    A("s_cselect_b32 s44, 1, 0")
    A("v_mov_b32 v6, s44")
    A("s_lshl_b32 s45, s19, 2")
    A(f"s_add_u32 s45, s45, {FLAGS}")
    A("v_mov_b32 v7, s45")
    A("ds_write_b32 v7, v6")
    A("s_xor_b32 s36, s19, 4")
    A("s_mul_i32 s36, s36, 5120")
    A("v_add_u32 v3, s36, v1")
    A("s_cmp_lg_u32 s24, 0")
    A("s_cbranch_scc1 K2_xchg")
    A("v_mov_b32 v7, 0xff800000")
    A("s_waitcnt lgkmcnt(0)")
    A(M32(SA, KBC, QB, None))
    A(M32(SB, KBP, QB, None))
    A(M32(SA, KBC+4, QB+4, SA))
    A(M32(SB, KBP+4, QB+4, SB))
    for i in range(16): A(f"v_mov_b32 v{OB+i}, 0")
    for i in range(4): A(f"v_mov_b32 v{LB+i}, 0")
    for r in range(16):
        m = bmask(r, False)
        A(f"s_mov_b32 s40, {m & 0xffffffff}")
        A(f"s_mov_b32 s41, {m >> 32}")
        A(f"v_cndmask_b32 v{SA+r}, v7, v{SA+r}, s[40:41]")
    A("s_cmp_eq_u32 s26, 0")
    for r in range(8, 16):
        m = bmask(r, True)
        A(f"s_cselect_b32 s40, 0, {m & 0xffffffff}")
        A(f"s_cselect_b32 s41, 0, {m >> 32}")
        A(f"v_cndmask_b32 v{SB+r}, v7, v{SB+r}, s[40:41]")
    bregs = list(range(SA, SA+16)) + list(range(SB+8, SB+16))
    rowmax(A, bregs, 5, 6)
    for r in bregs: A(f"v_sub_f32 v{r}, v{r}, v5")
    for r in bregs[:10]: A(E(r))
    A(S32(OB, VBC, SA))
    for r in bregs[10:13]: A(E(r))
    A(S16(LB, ONES, SA))
    for r in bregs[13:18]: A(E(r))
    A(S32(OB, VBC+4, SA+8))
    for r in bregs[18:21]: A(E(r))
    A(S16(LB, ONES, SA+8))
    for r in bregs[21:24]: A(E(r))
    A("s_nop 1")
    A(S16(LB, ONES, SB+8))
    A(S32(OB, VBP, SB+8))
    A(f"s_add_u32 s45, s31, {4<<20}")
    A("s_nop 5")
    A(f"v_rcp_f32 v5, v{LB}")
    A("s_nop 3")
    for i in range(16): A(f"v_mul_f32 v{OB+i}, v5, v{OB+i}")
    for i in range(8): A(f"v_cvt_pk_bf16_f32 v{PK+i}, v{OB+2*i}, v{OB+2*i+1}")
    for m in range(2):
        A(f"buffer_store_dwordx4 {vr(PK+4*m,4)}, v1, s[8:11], s45 offen offset:{1024*m}{store_mod}")
    A.label("K2_xchg")
    A("s_waitcnt lgkmcnt(0)")
    A("s_barrier")
    for i in range(4): A(f"ds_read_b128 {vr(SA+4*i,4)}, v3 offset:{XCH+1024*i}")
    A(f"ds_read_b32 v5, v3 offset:{XCH+4096}")
    read_flags(A, SB, 44)
    A("s_waitcnt lgkmcnt(2)")
    A(f"v_add_f32 v5, v5, v{L[0]}")
    A("v_rcp_f32 v5, v5")
    for i in range(16): A(f"v_add_f32 v{O[0]+i}, v{SA+i}, v{O[0]+i}")
    for i in range(16): A(f"v_mul_f32 v{O[0]+i}, v5, v{O[0]+i}")
    for i in range(8): A(f"v_cvt_pk_bf16_f32 v{SA+i}, v{O[0]+2*i}, v{O[0]+2*i+1}")
    for m in range(2):
        A(f"buffer_store_dwordx4 {vr(SA+4*m,4)}, v1, s[8:11], s31 offen offset:{1024*m}{store_mod}")
    A("s_cmp_lg_u32 s24, 0")
    A("s_cbranch_scc1 K2_fin")
    A("s_waitcnt lgkmcnt(0)")
    or_flags(A, SB, 44)
    A("s_nop 3")
    A("s_cmp_eq_u32 s44, 0")
    A("s_cbranch_scc1 K2_fin")
    A("s_mov_b32 s24, 1")
    for x in range(2): A(f"v_mov_b32 v{MX[x]}, 0xff800000")
    A("s_mov_b32 s21, 0")
    A.label("K2_maxloop")
    A(f"buffer_load_dwordx4 {vr(KF,4)}, v31, s[4:7], s21 offen")
    A(f"buffer_load_dwordx4 {vr(KF+4,4)}, v31, s[4:7], s21 offen offset:256")
    A("s_waitcnt vmcnt(0)")
    for x in range(2): A(M32(SX[x], KF, Q[x], None))
    for x in range(2): A(M32(SX[x], KF+4, Q[x]+4, SX[x]))
    A("s_nop 7")
    A("s_nop 3")
    for x in range(2):
        for i in range(8): A(f"v_max3_f32 v{MX[x]}, v{SX[x]+2*i}, v{SX[x]+2*i+1}, v{MX[x]}")
    A("s_add_u32 s21, s21, 4096")
    A("s_cmp_lt_u32 s21, 0x40000")
    A("s_cbranch_scc1 K2_maxloop")
    for x in range(2):
        A(f"v_mov_b32 v6, v{MX[x]}")
        A("s_nop 1")
        A(f"v_permlane32_swap_b32 v{MX[x]}, v6")
        A("s_nop 1")
        A(f"v_max_f32 v{MX[x]}, v{MX[x]}, v6")
    A("s_barrier")
    A("s_mov_b32 m0, s37")
    A("s_nop 0")
    stage0()
    A("s_branch K2_restart")
    A.label("K2_fin")
    if stamp:
        A("s_waitcnt vmcnt(0)")
        ST(4)
        A("s_waitcnt lgkmcnt(0)")
        A("s_lshl_b32 s36, s2, 3")
        A("s_add_u32 s36, s36, s19")
        A("s_lshl_b32 s36, s36, 6")
        A(f"s_add_u32 s36, s36, {opts.get('stamp_off', 65)<<20}")
        A("s_mov_b32 s10, 0x8000000")
        A("v_mov_b32 v2, 0")
        for i in range(14):
            A(f"v_mov_b32 v3, s{50+i}")
            A(f"buffer_store_dword v3, v2, s[8:11], s36 offen offset:{4*i}")
    A.label("K2_done")
    A("s_endpgm")
    return descriptor(K2_NAME, NV, 80)
```

```python
import sys, os
sys.path.insert(0, os.path.dirname(__file__))
from asmlib import *
import k1
HEADER = """; concat_heads__mha_block__sliding_local_dilated__prompt : 3-launch pipeline (generated by gen/build.py)
"""
def build(kernels=("k1",), opts=None):
    opts = opts or {}
    A = Asm()
    launches = []
    descs = []
    A('.amdgcn_target "amdgcn-amd-amdhsa--gfx950"')
    A(".text")
    if "k1" in kernels:
        descs.append(k1.gen_k1(A, opts.get("k1")))
        k1blk = k1.k1_block(opts.get("k1"))
        launches.append(f"; @launch kernel={k1.K1_NAME} grid=(256,1,1) block=({k1blk},1,1) lds={k1.K1_LDS}")
    if "k2" in kernels:
        import k2
        descs.append(k2.gen_k2(A, opts.get("k2")))
        k2blk = k2.k2_block(opts.get("k2"))
        launches.append(f"; @launch kernel={k2.K2_NAME} grid=(256,1,1) block=({k2blk},1,1) lds={k2.K2_LDS}")
    if "k3" in kernels:
        import k3
        descs.append(k3.gen_k3(A, opts.get("k3")))
        launches.append(f"; @launch kernel={k3.K3_NAME} grid=(256,1,1) block=({k3.K3_BLOCK},1,1) lds={k3.K3_LDS}")
    txt = HEADER + "\n".join(launches) + "\n" + A.text() + '.section .rodata,"a"\n' + "".join(descs)
    return txt
if __name__ == "__main__":
    ks = sys.argv[2].split(",") if len(sys.argv) > 2 else ["k1", "k2", "k3"]
    import json
    opts = json.loads(sys.argv[3]) if len(sys.argv) > 3 else {}
    open(sys.argv[1], "w").write(build(ks, opts))
```

```python
from asmlib import *
from k1 import WS_Q, WS_KV, WS_B, WS_O, WS_BYTES, M32, f32bits

K2_NAME = "attn_kernel"
NS = 6
STG = 16384
RING = NS * STG
BREG = RING
BBYTES = 4096 + 8 * 6144
FLAGS = BREG + BBYTES
K2_LDS = FLAGS + 64
XCH = 0
def k2_block(opts): return 576

IDX = 4; ONES = 8; KF = 12; VF = 20; MX = [28, 29]; SA = 32; SB = 48
Q = [64, 72]; L = [80, 84]; O = [96, 112]; NEGM = [128, 144]
QB = 128; KBP = 136; KBC = 144; VBC = 152; VBP = 12; PK = 16; OB = O[1]; LB = L[1]
NV = 160

def S32(d, a, b): return f"v_smfmac_f32_32x32x32_bf16 {vr(d,16)}, {vr(a,4)}, {vr(b,8)}, v{IDX}"
def S16(d, a, b): return f"v_smfmac_f32_16x16x64_bf16 {vr(d,4)}, {vr(a,4)}, {vr(b,8)}, v{IDX}"
def E(r): return f"v_exp_f32 v{r}, v{r}"

def key_of(r, hb): return 8 * (r >> 2) + 4 * hb + (r & 3)
def bmask(r, prev):
    m = 0
    for l in range(64):
        q = l & 31; hb = l >> 5
        d = q - key_of(r, hb) + (32 if prev else 0)
        if 0 <= d <= 14 and d % 2 == 0: m |= 1 << l
    return m

def rowmax(A, regs, dst, tmp):
    regs = list(regs)
    A(f"v_max3_f32 v{dst}, v{regs[0]}, v{regs[1]}, v{regs[2]}")
    i = 3
    while i + 1 < len(regs):
        A(f"v_max3_f32 v{dst}, v{regs[i]}, v{regs[i+1]}, v{dst}"); i += 2
    if i < len(regs):
        A(f"v_max_f32 v{dst}, v{regs[i]}, v{dst}")
    A(f"v_mov_b32 v{tmp}, v{dst}")
    A("s_nop 1")
    A(f"v_permlane32_swap_b32 v{dst}, v{tmp}")
    A("s_nop 1")
    A(f"v_max_f32 v{dst}, v{dst}, v{tmp}")

def read_flags(A, r, sdst):
    A(f"v_mov_b32 v7, {FLAGS}")
    A(f"ds_read_b128 {vr(r,4)}, v7")
    A(f"ds_read_b128 {vr(r+4,4)}, v7 offset:16")

def or_flags(A, r, sdst):
    A(f"v_or3_b32 v{r}, v{r}, v{r+4}, v{r+5}")
    A(f"v_or3_b32 v{r}, v{r}, v{r+6}, v{r+7}")
    A(f"v_or3_b32 v{r}, v{r}, v{r+1}, v{r+2}")
    A(f"v_or_b32 v{r}, v{r}, v{r+3}")
    A("s_nop 0")
    A(f"v_readfirstlane_b32 s{sdst}, v{r}")

def gen_k2(A, opts=None):
    opts = opts or {}
    stamp = opts.get("stamp", False)
    force_fb = opts.get("force_fb", False)
    store_mod = opts.get("store_mod", " sc1")
    wo_pf = opts.get("wo_pf", 1)
    code_pf = opts.get("code_pf", 1)
    prio = opts.get("prio", 0)
    kernel_begin(A, K2_NAME)
    est = opts.get("est", False)
    def ST(i, e=False):
        if stamp and (e == est or i == 4):
            A(f"s_memtime s[{50+2*i}:{51+2*i}]")
            if i in (0, 4): A(f"s_memrealtime s[{60+(2 if i else 0)}:{61+(2 if i else 0)}]")
    ST(0)
    A("s_load_dwordx2 s[32:33], s[0:1], 64")
    A("s_load_dwordx2 s[46:47], s[0:1], 16")
    A("s_load_dwordx2 s[48:49], s[0:1], 40")
    A("s_cmp_ge_u32 s2, 256")
    A("s_cbranch_scc1 K2_done")
    A("v_lshrrev_b32 v5, 6, v0")
    A("v_and_b32 v6, 63, v0")
    A("v_readfirstlane_b32 s19, v5")
    A("s_and_b32 s34, s2, 7")
    A("s_lshr_b32 s35, s2, 3")
    A("s_and_b32 s16, s35, 3")
    A("s_lshl_b32 s34, s34, 2")
    A("s_add_u32 s16, s16, s34")
    A("s_lshr_b32 s17, s35, 2")
    A("v_lshlrev_b32 v1, 4, v6")
    A("s_lshl_b32 s36, s16, 18")
    A(f"s_add_u32 s36, s36, {WS_KV}")
    A("s_mov_b32 s24, 0")
    A("s_mov_b32 s6, 0x40000")
    A("s_mov_b32 s7, 0x20000")
    A(f"s_mov_b32 s10, {WS_BYTES}")
    A("s_mov_b32 s11, 0x20000")
    A("s_cmp_lt_u32 s19, 8")
    A("s_cbranch_scc1 K2_compute")

    A("v_lshlrev_b32 v2, 7, v6")
    if code_pf:
        A("s_getpc_b64 s[28:29]")
        A("global_load_dword v3, v2, s[28:29]")
        A("global_load_dword v3, v2, s[28:29] offset:64")
    A("s_lshl_b32 s26, s16, 6")
    A("s_lshl_b32 s27, s17, 3")
    A("s_add_u32 s26, s26, s27")
    A("s_mul_i32 s26, s26, 6144")
    A(f"s_add_u32 s26, s26, {WS_B - 4096}")
    A("s_mov_b32 s14, 0x200000")
    A("s_mov_b32 s15, 0x20000")
    A("s_and_b32 s27, s2, 127")
    A("s_lshl_b32 s27, s27, 14")
    A("s_waitcnt lgkmcnt(0)")
    A("s_add_u32 s4, s32, s36")
    A("s_addc_u32 s5, s33, 0")
    A("s_mov_b32 s8, s32")
    A("s_mov_b32 s9, s33")
    A("s_cmp_lt_u32 s2, 128")
    A("s_cselect_b32 s12, s46, s48")
    A("s_cselect_b32 s13, s47, s49")
    A.label("K2_lstart")
    def l_stage():
        for g in range(4):
            A(f"s_add_u32 m0, s22, {g * 4096}")
            A(f"s_add_u32 s20, s21, {(g >> 1) * 131072 + (g & 1) * 4096}")
            for i in range(4):
                A(f"buffer_load_dwordx4 v1, s[4:7], s20 offen offset:{1024*i} lds")
        A("s_add_u32 s21, s21, 8192")
        A(f"s_add_u32 s22, s22, {STG}")
        A(f"s_cmp_eq_u32 s22, {RING}")
        A("s_cselect_b32 s22, 0, s22")
    A("s_mov_b32 s21, 8192")
    A(f"s_mov_b32 s22, {STG}")
    A("s_mov_b32 s23, 0")
    A.label("K2_lloop")
    A("s_cmp_lt_u32 s23, 3")
    A("s_cbranch_scc1 K2_lissue")
    A("s_waitcnt vmcnt(48)")
    A("s_barrier")
    A.label("K2_lissue")
    l_stage()
    A("s_add_u32 s23, s23, 1")
    A("s_cmp_lt_u32 s23, 15")
    A("s_cbranch_scc1 K2_lloop")
    npf = 0
    if wo_pf:
        A("buffer_load_dword v3, v2, s[12:15], s27 offen")
        A("s_add_u32 s21, s27, 8192")
        A("buffer_load_dword v3, v2, s[12:15], s21 offen")
        npf = 2
    def l_b(g0, g1):
        for g in range(g0, g1):
            A(f"s_mov_b32 m0, {BREG + g * 4096}")
            A(f"s_add_u32 s21, s26, {g * 4096}")
            for i in range(4):
                A(f"buffer_load_dwordx4 v1, s[8:11], s21 offen offset:{1024*i} lds")
    A(f"s_waitcnt vmcnt({48+npf})"); A("s_barrier")
    l_b(0, 3)
    A(f"s_waitcnt vmcnt({32+npf+12})"); A("s_barrier")
    l_b(3, 7)
    A(f"s_waitcnt vmcnt({16+npf+28})"); A("s_barrier")
    l_b(7, 11)
    A(f"s_waitcnt vmcnt({npf+44})"); A("s_barrier")
    l_b(11, 13)
    A("s_waitcnt vmcnt(0)"); A("s_barrier")
    A("s_barrier")
    A("s_cmp_lg_u32 s24, 0")
    A("s_cbranch_scc1 K2_done")
    read_flags(A, 8, 44)
    A("s_waitcnt lgkmcnt(0)")
    or_flags(A, 8, 44)
    A("s_nop 3")
    A("s_cmp_eq_u32 s44, 0")
    A("s_cbranch_scc1 K2_done")
    A("s_mov_b32 s24, 1")
    A("s_barrier")
    A("s_branch K2_lstart")

    A.label("K2_compute")
    A("s_lshr_b32 s18, s19, 2")
    A("s_and_b32 s20, s19, 3")
    A("s_lshl_b32 s20, s20, 1")
    A("s_add_u32 s20, s20, s18")
    A("s_lshl_b32 s26, s17, 3")
    A("s_add_u32 s26, s26, s20")
    A("s_lshl_b32 s27, s16, 6")
    A("s_add_u32 s27, s27, s26")
    A("s_lshl_b32 s27, s27, 11")
    A("s_xor_b32 s28, s27, 2048")
    A("s_lshl_b32 s37, s19, 11")
    A("s_and_b32 s38, s37, 8191")
    A("s_lshl_b32 s39, s18, 17")
    A("s_add_u32 s38, s38, s39")
    A("s_lshl_b32 s39, s18, 13")
    A("v_and_b32 v31, 15, v6")
    A("v_lshlrev_b32 v31, 4, v31")
    A("v_and_b32 v5, 16, v6")
    A("v_lshl_add_u32 v31, v5, 6, v31")
    A("v_and_b32 v5, 32, v6")
    A("v_lshl_add_u32 v31, v5, 4, v31")
    A("s_mov_b32 m0, s37")
    A("s_waitcnt lgkmcnt(0)")
    A("s_add_u32 s4, s32, s36")
    A("s_addc_u32 s5, s33, 0")
    A("s_mov_b32 s8, s32")
    A("s_mov_b32 s9, s33")
    def stage0():
        for i in range(2):
            A(f"buffer_load_dwordx4 v1, s[4:7], s38 offen offset:{1024*i} lds")
    stage0()
    for x in range(2):
        for m in range(2):
            A(f"buffer_load_dwordx4 {vr(Q[x]+4*m,4)}, v31, s[8:11], s{27+x} offen offset:{256*m}")
    if prio:
        A("s_cmp_lt_u32 s19, 4")
        A(f"s_cbranch_scc{1 if prio == 1 else 0} K2_noprio")
        A("s_setprio 1")
        A.label("K2_noprio")
    A("s_lshl_b32 s31, s26, 5")
    A("s_add_u32 s31, s31, s16")
    A("s_lshl_b32 s31, s31, 11")
    A(f"s_add_u32 s31, s31, {WS_O}")
    A(f"v_mov_b32 v{IDX}, 0xdddd")
    A("v_and_b32 v5, 4, v6")
    A("v_cmp_eq_u32 vcc, 0, v5")
    A("v_mov_b32 v7, 0x3f803f80")
    A("v_add_u32 v30, s39, v31")
    A(f"v_cndmask_b32 v{ONES}, 0, v7, vcc")
    A(f"v_cndmask_b32 v{ONES+1}, 0, v7, vcc")
    A(f"v_sub_u32 v{ONES+2}, v7, v{ONES}")
    A(f"v_mov_b32 v{ONES+3}, v{ONES+2}")
    A.label("K2_restart")
    for x in range(2):
        for i in range(16): A(f"v_mov_b32 v{O[x]+i}, 0")
        for i in range(4): A(f"v_mov_b32 v{L[x]+i}, 0")
    A("v_mov_b32 v2, v30")
    A(f"s_mov_b32 s25, {STG}")
    A(f"v_add_u32 v3, {STG}, v30")
    A("s_waitcnt vmcnt(0)")
    A("s_barrier")
    ST(1)
    SX = [SA, SB]
    A("s_cmp_lg_u32 s24, 0")
    A("s_cbranch_scc1 K2_main")
    A(f"ds_read_b128 {vr(VF,4)}, v31 offset:0")
    A(f"ds_read_b128 {vr(VF+4,4)}, v31 offset:256")
    A("s_waitcnt lgkmcnt(0)")
    for x in range(2): A(M32(SX[x], VF, Q[x], None))
    for x in range(2): A(M32(SX[x], VF+4, Q[x]+4, SX[x]))
    A("s_nop 7")
    A("s_nop 2")
    for x in range(2): rowmax(A, range(SX[x], SX[x]+16), MX[x], 6)
    A.label("K2_main")
    A(f"ds_read_b128 {vr(KF,4)}, v2 offset:0")
    A(f"ds_read_b128 {vr(KF+4,4)}, v2 offset:256")
    A(f"ds_read_b128 {vr(VF,4)}, v2 offset:2048")
    for i in range(16): A(f"v_sub_f32 v{NEGM[0]+i}, 0, v{MX[0]}")
    for i in range(4): A(f"v_mov_b32 v{VF+4+i}, 0")
    A("s_waitcnt lgkmcnt(1)")
    A(M32(SA, KF, Q[0], NEGM[0]))
    A(M32(SA, KF+4, Q[0]+4, SA))
    for i in range(16): A(f"v_sub_f32 v{NEGM[1]+i}, 0, v{MX[1]}")
    for i in range(8): A(f"v_mov_b32 v{SB+8+i}, 0")
    A("s_mov_b32 s23, 16")
    A(E(SA))
    ST(2)
    A(".p2align 6")
    A.label("K2_loop")
    def rd(dst, tile, off):
        a, t = ("v2", tile) if tile < 2 else ("v3", tile - 2)
        return f"ds_read_b128 {vr(dst,4)}, {a} offset:{t*4096+off}"
    nslot = 4
    for u in range(nslot):
        cur, nxt = (SA, SB) if u % 2 == 0 else (SB, SA)
        i = u // 2; xc = u % 2; xp = xn = xc ^ 1
        if xc == 0:
            w_pv1 = w_qka = w_qkb = None; w_pv0 = 3
            r_pv1 = [rd(VF+4, i, 2304)]; r_qka = [rd(KF, i+1, 0)]; r_qkb = [rd(KF+4, i+1, 256)]; r_pv0 = []
        else:
            w_pv1, w_qka, w_qkb, w_pv0 = 2, 1, 0, None
            r_pv1 = r_qka = r_qkb = []; r_pv0 = [rd(VF, i+1, 2048)]
        bar = (u == opts.get("bar_slot", 1))
        last = (u == nslot - 1)
        def W(n):
            if n is not None: A(f"s_waitcnt lgkmcnt({n})")
        if w_pv1 is None and u != 0: A("s_nop 0")
        W(w_pv1)
        A(S32(O[xp], VF+4, nxt+8))
        for l in r_pv1: A(l)
        A(E(cur+1)); A(E(cur+2)); A(E(cur+3))
        A(S16(L[xp], ONES, nxt+8))
        A(E(cur+4)); A(E(cur+5))
        W(w_qka)
        A(M32(nxt, KF, Q[xn], NEGM[xn]))
        for l in r_qka: A(l)
        A(E(cur+6)); A(E(cur+7)); A(E(cur+8))
        W(w_qkb)
        A(M32(nxt, KF+4, Q[xn]+4, nxt))
        if bar: A("s_barrier")
        for l in r_qkb: A(l)
        A(E(cur+9)); A(E(cur+10)); A(E(cur+11))
        W(w_pv0)
        A(S32(O[xc], VF, cur))
        for l in r_pv0: A(l)
        A(E(cur+12))
        if last: A(f"s_add_u32 s25, s25, {STG}")
        A(E(cur+13))
        if last: A(f"s_cmp_eq_u32 s25, {RING}")
        A(E(cur+14))
        if last: A("s_cselect_b32 s25, 0, s25")
        elif xc == 1 and not bar: A("s_nop 0")
        A(S16(L[xc], ONES, cur))
        if last:
            A("s_sub_u32 s23, s23, 1")
            A("v_mov_b32 v2, v3")
            A("v_add_u32 v3, s25, v30")
            A("s_cmp_lg_u32 s23, 0")
        else: A("s_nop 0")
        A(E(cur+15)); A(E(nxt))
        if last: A("s_cbranch_scc1 K2_loop")
    A("s_waitcnt lgkmcnt(0)")
    A(S32(O[1], VF+4, SB+8))
    A(S16(L[1], ONES, SB+8))
    ST(3)
    ST(0, True)
    if prio: A("s_setprio 0")
    A("s_mul_i32 s36, s20, 6144")
    A(f"s_add_u32 s36, s36, {BREG}")
    A("v_add_u32 v2, s36, v31")
    for m in range(2): A(f"ds_read_b128 {vr(QB+4*m,4)}, v2 offset:{4096+256*m}")
    for m in range(2): A(f"ds_read_b128 {vr(KBC+4*m,4)}, v2 offset:{6144+256*m}")
    for m in range(2): A(f"ds_read_b128 {vr(KBP+4*m,4)}, v2 offset:{256*m}")
    for m in range(2): A(f"ds_read_b128 {vr(VBC+4*m,4)}, v2 offset:{8192+256*m}")
    A(f"ds_read_b128 {vr(VBP,4)}, v2 offset:2304")
    A(f"s_mov_b32 s44, {f32bits(2.0**64)}")
    A(f"s_mov_b32 s45, {f32bits(2.0**120)}")
    A("s_mul_i32 s36, s19, 5120")
    A("v_add_u32 v3, s36, v1")
    A("s_mov_b64 s[42:43], 0")
    for x in range(2):
        A(f"v_cmp_ngt_f32 vcc, s44, v{L[x]}")
        A("s_or_b64 s[42:43], s[42:43], vcc")
        for i in range(16):
            A(f"v_cmp_ngt_f32 vcc, s45, abs(v{O[x]+i})")
            A("s_or_b64 s[42:43], s[42:43], vcc")
    for i in range(4): A(f"ds_write_b128 v3, {vr(O[1]+4*i,4)} offset:{XCH+1024*i}")
    A(f"ds_write_b32 v3, v{L[1]} offset:{XCH+4096}")
    if force_fb: A("s_mov_b64 s[42:43], -1")
    A("s_cmp_lg_u64 s[42:43], 0")
    A("s_cselect_b32 s44, 1, 0")
    A("v_mov_b32 v6, s44")
    A("s_lshl_b32 s45, s19, 2")
    A(f"s_add_u32 s45, s45, {FLAGS}")
    A("v_mov_b32 v7, s45")
    A("ds_write_b32 v7, v6")
    A("s_xor_b32 s36, s19, 4")
    A("s_mul_i32 s36, s36, 5120")
    A("v_add_u32 v3, s36, v1")
    A("s_cmp_lg_u32 s24, 0")
    A("s_cbranch_scc1 K2_xchg")
    ST(1, True)
    A("v_mov_b32 v7, 0xff800000")
    A("s_waitcnt lgkmcnt(0)")
    A(M32(SA, KBC, QB, None))
    A(M32(SB, KBP, QB, None))
    A(M32(SA, KBC+4, QB+4, SA))
    A(M32(SB, KBP+4, QB+4, SB))
    for i in range(16): A(f"v_mov_b32 v{OB+i}, 0")
    for i in range(4): A(f"v_mov_b32 v{LB+i}, 0")
    for r in range(16):
        m = bmask(r, False)
        A(f"s_mov_b32 s40, {m & 0xffffffff}")
        A(f"s_mov_b32 s41, {m >> 32}")
        A(f"v_cndmask_b32 v{SA+r}, v7, v{SA+r}, s[40:41]")
    A("s_cmp_eq_u32 s26, 0")
    for r in range(8, 16):
        m = bmask(r, True)
        A(f"s_cselect_b32 s40, 0, {m & 0xffffffff}")
        A(f"s_cselect_b32 s41, 0, {m >> 32}")
        A(f"v_cndmask_b32 v{SB+r}, v7, v{SB+r}, s[40:41]")
    bregs = list(range(SA, SA+16)) + list(range(SB+8, SB+16))
    rowmax(A, bregs, 5, 6)
    for r in bregs: A(f"v_sub_f32 v{r}, v{r}, v5")
    for r in bregs[:10]: A(E(r))
    A(S32(OB, VBC, SA))
    for r in bregs[10:13]: A(E(r))
    A(S16(LB, ONES, SA))
    for r in bregs[13:18]: A(E(r))
    A(S32(OB, VBC+4, SA+8))
    for r in bregs[18:21]: A(E(r))
    A(S16(LB, ONES, SA+8))
    for r in bregs[21:24]: A(E(r))
    A("s_nop 1")
    A(S16(LB, ONES, SB+8))
    A(S32(OB, VBP, SB+8))
    A(f"s_add_u32 s45, s31, {4<<20}")
    A("s_nop 5")
    A(f"v_rcp_f32 v5, v{LB}")
    A("s_nop 3")
    for i in range(16): A(f"v_mul_f32 v{OB+i}, v5, v{OB+i}")
    for i in range(8): A(f"v_cvt_pk_bf16_f32 v{PK+i}, v{OB+2*i}, v{OB+2*i+1}")
    for m in range(2):
        A(f"buffer_store_dwordx4 {vr(PK+4*m,4)}, v1, s[8:11], s45 offen offset:{1024*m}{store_mod}")
    A.label("K2_xchg")
    ST(2, True)
    A("s_waitcnt lgkmcnt(0)")
    A("s_barrier")
    for i in range(4): A(f"ds_read_b128 {vr(SA+4*i,4)}, v3 offset:{XCH+1024*i}")
    A(f"ds_read_b32 v5, v3 offset:{XCH+4096}")
    read_flags(A, SB, 44)
    A("s_waitcnt lgkmcnt(2)")
    A(f"v_add_f32 v5, v5, v{L[0]}")
    A("v_rcp_f32 v5, v5")
    for i in range(16): A(f"v_add_f32 v{O[0]+i}, v{SA+i}, v{O[0]+i}")
    for i in range(16): A(f"v_mul_f32 v{O[0]+i}, v5, v{O[0]+i}")
    for i in range(8): A(f"v_cvt_pk_bf16_f32 v{SA+i}, v{O[0]+2*i}, v{O[0]+2*i+1}")
    for m in range(2):
        A(f"buffer_store_dwordx4 {vr(SA+4*m,4)}, v1, s[8:11], s31 offen offset:{1024*m}{store_mod}")
    A("s_cmp_lg_u32 s24, 0")
    A("s_cbranch_scc1 K2_fin")
    A("s_waitcnt lgkmcnt(0)")
    or_flags(A, SB, 44)
    A("s_nop 3")
    A("s_cmp_eq_u32 s44, 0")
    A("s_cbranch_scc1 K2_fin")
    A("s_mov_b32 s24, 1")
    for x in range(2): A(f"v_mov_b32 v{MX[x]}, 0xff800000")
    A("s_mov_b32 s21, 0")
    A.label("K2_maxloop")
    A(f"buffer_load_dwordx4 {vr(KF,4)}, v31, s[4:7], s21 offen")
    A(f"buffer_load_dwordx4 {vr(KF+4,4)}, v31, s[4:7], s21 offen offset:256")
    A("s_waitcnt vmcnt(0)")
    for x in range(2): A(M32(SX[x], KF, Q[x], None))
    for x in range(2): A(M32(SX[x], KF+4, Q[x]+4, SX[x]))
    A("s_nop 7")
    A("s_nop 3")
    for x in range(2):
        for i in range(8): A(f"v_max3_f32 v{MX[x]}, v{SX[x]+2*i}, v{SX[x]+2*i+1}, v{MX[x]}")
    A("s_add_u32 s21, s21, 4096")
    A("s_cmp_lt_u32 s21, 0x40000")
    A("s_cbranch_scc1 K2_maxloop")
    for x in range(2):
        A(f"v_mov_b32 v6, v{MX[x]}")
        A("s_nop 1")
        A(f"v_permlane32_swap_b32 v{MX[x]}, v6")
        A("s_nop 1")
        A(f"v_max_f32 v{MX[x]}, v{MX[x]}, v6")
    A("s_barrier")
    A("s_mov_b32 m0, s37")
    A("s_nop 0")
    stage0()
    A("s_branch K2_restart")
    A.label("K2_fin")
    ST(3, True)
    if stamp:
        A("s_waitcnt vmcnt(0)")
        ST(4)
        A("s_waitcnt lgkmcnt(0)")
        A("s_lshl_b32 s36, s2, 3")
        A("s_add_u32 s36, s36, s19")
        A("s_lshl_b32 s36, s36, 6")
        A(f"s_add_u32 s36, s36, {opts.get('stamp_off', 65)<<20}")
        A("s_mov_b32 s10, 0x8000000")
        A("v_mov_b32 v2, 0")
        for i in range(14):
            A(f"v_mov_b32 v3, s{50+i}")
            A(f"buffer_store_dword v3, v2, s[8:11], s36 offen offset:{4*i}")
    A.label("K2_done")
    A("s_endpgm")
    return descriptor(K2_NAME, NV, 80)
```

```python
from asmlib import *
from k1 import WS_O, WS_BYTES, M16

K3_NAME = "oproj_kernel"
K3_BLOCK = 512
SLOT = 32768
NS3 = 5
K3_LDS = NS3 * SLOT

def gen_k3(A, opts=None):
    opts = opts or {}
    stamp = opts.get("stamp", False)
    store_mod = opts.get("store_mod", " sc1")
    NS = opts.get("ns", NS3)
    kernel_begin(A, K3_NAME)
    def ST(i):
        if stamp:
            A(f"s_memtime s[{50+2*i}:{51+2*i}]")
            if i in (0, 4): A(f"s_memrealtime s[{60+(2 if i else 0)}:{61+(2 if i else 0)}]")
    ST(0)
    A("s_load_dwordx2 s[24:25], s[0:1], 16")
    A("s_load_dwordx4 s[28:31], s[0:1], 40")
    A("s_load_dwordx2 s[32:33], s[0:1], 64")
    A("v_lshrrev_b32 v14, 6, v0")
    A("v_and_b32 v1, 63, v0")
    A("v_readfirstlane_b32 s19, v14")
    A("s_cmp_ge_u32 s2, 256")
    A("s_cbranch_scc1 K3_done")
    A("s_and_b32 s34, s2, 7")
    A("s_lshr_b32 s35, s2, 3")
    A("s_lshr_b32 s16, s34, 2")
    A("s_and_b32 s17, s34, 1")
    A("s_lshl_b32 s17, s17, 3")
    A("s_and_b32 s36, s35, 7")
    A("s_add_u32 s17, s17, s36")
    A("s_lshr_b32 s18, s34, 1")
    A("s_and_b32 s18, s18, 1")
    A("s_lshl_b32 s18, s18, 2")
    A("s_lshr_b32 s36, s35, 3")
    A("s_add_u32 s18, s18, s36")
    A("s_cmp_lt_u32 s19, 4")
    A("s_cbranch_scc1 K3_compute")
    A("s_sub_u32 s20, s19, 4")
    A("s_lshl_b32 s36, s16, 22")
    A("s_lshl_b32 s37, s17, 18")
    A("s_add_u32 s36, s36, s37")
    A(f"s_add_u32 s36, s36, {WS_O}")
    A("s_mov_b32 s6, 0x40000")
    A("s_mov_b32 s7, 0x20000")
    A("s_lshl_b32 s39, s18, 8")
    A(f"s_sub_u32 s10, {1024*2048}, s39")
    A("s_mov_b32 s11, 0x20000")
    A("v_lshlrev_b32 v2, 4, v1")
    A("s_lshl_b32 s38, s20, 16")
    A("v_add_u32 v2, s38, v2")
    A("v_lshrrev_b32 v3, 4, v1")
    A("v_lshlrev_b32 v4, 1, v3")
    A("v_and_b32 v5, 15, v1")
    A("v_xor_b32 v4, v4, v5")
    A("v_lshlrev_b32 v4, 4, v4")
    A("s_lshl_b32 s38, s20, 4")
    A("v_add_u32 v3, s38, v3")
    A("v_lshl_add_u32 v5, v3, 11, v4")
    A("v_xor_b32 v6, 128, v5")
    A(f"v_add_u32 v6, {8192-1024}, v6")
    A(f"v_add_u32 v7, {16384-2048}, v5")
    A(f"v_add_u32 v8, {16384-2048}, v6")
    A("s_lshl_b32 s37, s20, 12")
    rot = opts.get("rot", 1)
    G = opts.get("grp", 1)
    if rot: A("s_lshl_b32 s44, s34, 13")
    else: A("s_mov_b32 s44, 0")
    if G > 2: A(f"s_and_b32 s44, s44, {-(G << 12)}")
    A("s_add_u32 s45, s17, s18")
    if G == 8: A("s_add_u32 s45, s45, s18")
    A(f"s_and_b32 s45, s45, {G-1}")
    A("s_lshl_b32 s21, s45, 12")
    A("s_add_u32 s21, s21, s44")
    A("s_and_b32 s21, s21, 0xffff")
    A("s_lshl_b32 s22, s21, 5")
    A("s_mov_b32 s23, s37")
    A("s_mov_b32 s38, 0")
    A("s_cmp_eq_u32 s16, 0")
    A("s_waitcnt lgkmcnt(0)")
    A("s_cselect_b32 s8, s24, s28")
    A("s_cselect_b32 s9, s25, s29")
    A("s_add_u32 s4, s32, s36")
    A("s_addc_u32 s5, s33, 0")
    A("s_add_u32 s8, s8, s39")
    A("s_addc_u32 s9, s9, 0")
    if opts.get("noload"):
        A("s_mov_b32 s6, 0"); A("s_mov_b32 s10, 0")
    PRE = opts.get("pre", 2)
    A.label("K3_lgo")
    A("s_add_u32 m0, s23, 16384")
    A("s_add_u32 s38, s38, 1")
    for i in range(4): A(f"buffer_load_dwordx4 v{5+i}, s[8:11], s22 offen offset:{1024*i} lds")
    A("s_mov_b32 m0, s23")
    A(f"s_add_u32 s23, s23, {SLOT}")
    for i in range(4): A(f"buffer_load_dwordx4 v2, s[4:7], s21 offen offset:{1024*i} lds")
    A("s_xor_b32 s21, s38, s45")
    A("s_lshl_b32 s21, s21, 12")
    A("s_add_u32 s21, s21, s44")
    A("s_and_b32 s21, s21, 0xffff")
    A("s_lshl_b32 s22, s21, 5")
    A(f"s_cmp_ge_u32 s23, {NS*SLOT}")
    A("s_cselect_b32 s23, s37, s23")
    A(f"s_cmp_eq_u32 s38, {PRE}")
    A("s_cbranch_scc0 K3_l1")
    A(f"s_waitcnt vmcnt({8*(PRE-1)})")
    A("s_barrier")
    A.label("K3_l1")
    A(f"s_cmp_lt_u32 s38, {NS}")
    A("s_cbranch_scc1 K3_lgo")
    A(f"s_waitcnt vmcnt({8*(NS-2)})")
    A("s_barrier")
    A("s_cmp_lt_u32 s38, 16")
    A("s_cbranch_scc1 K3_lgo")
    for j in range(NS - 2):
        A(f"s_waitcnt vmcnt({8*(NS-3-j)})")
        A("s_barrier")
    A("s_endpgm")
    A.label("K3_compute")
    A("v_lshrrev_b32 v15, 1, v14")
    A("v_and_b32 v16, 1, v14")
    A("v_lshrrev_b32 v18, 4, v1")
    A("v_and_b32 v17, 15, v1")
    A("v_lshlrev_b32 v2, 4, v17")
    A("v_lshl_add_u32 v2, v18, 9, v2")
    A("v_lshl_add_u32 v2, v15, 13, v2")
    A("v_lshrrev_b32 v19, 2, v1")
    A("v_and_b32 v19, 7, v19")
    A("v_lshrrev_b32 v20, 5, v1")
    A("v_lshl_add_u32 v20, v20, 4, v19")
    A("v_lshlrev_b32 v20, 8, v20")
    A("v_lshlrev_b32 v21, 2, v16")
    A("v_xor_b32 v21, v21, v19")
    A("v_lshl_add_u32 v20, v21, 5, v20")
    A("v_and_b32 v21, 3, v1")
    A("v_lshl_add_u32 v20, v21, 3, v20")
    A("v_add_u32 v3, 16384, v20")
    for a in range(1, 4): A(f"v_xor_b32 v{3+a}, {32*a}, v3")
    ACC = 88; FS = [24, 56]
    AO = 8; AW = 9
    for i in range(64): A(f"v_mov_b32 v{ACC+i}, 0")
    for i in range(32): A(f"v_mov_b32 v{FS[1]+i}, 0")
    A("v_lshlrev_b32 v22, 12, v17")
    A("v_and_b32 v21, 1, v18")
    A("v_lshl_add_u32 v22, v21, 5, v22")
    A("v_lshrrev_b32 v21, 1, v18")
    A("v_lshl_add_u32 v22, v21, 4, v22")
    A("s_lshl_b32 s36, s17, 7")
    A("s_lshr_b32 s37, s19, 1")
    A("s_lshl_b32 s37, s37, 6")
    A("s_add_u32 s36, s36, s37")
    A("s_lshl_b32 s36, s36, 12")
    A("s_lshl_b32 s37, s16, 11")
    A("s_add_u32 s36, s36, s37")
    A("s_lshl_b32 s37, s18, 8")
    A("s_add_u32 s36, s36, s37")
    A("s_and_b32 s37, s19, 1")
    A("s_lshl_b32 s37, s37, 7")
    A("s_add_u32 s40, s36, s37")
    for st in range(1, 4): A(f"s_add_u32 s{40+st}, s40, {st*16*4096}")
    A(f"s_mov_b32 s14, {2048*4096}")
    A("s_mov_b32 s15, 0x20000")
    A("s_waitcnt lgkmcnt(0)")
    A("s_mov_b32 s12, s30")
    A("s_mov_b32 s13, s31")
    def of(s, st): return FS[s] + 4*st
    def wf(s, a): return FS[s] + 16 + 4*a
    def acc(st, a): return ACC + (st*4+a)*4
    def reads(hh, s):
        L = []
        for i in range(4):
            L.append(f"ds_read_b128 {vr(of(s,i),4)}, v{AO} offset:{(i>>1)*4096+hh*2048+(i&1)*256}")
            for half in range(2):
                L.append(f"ds_read_b64_tr_b16 {vr(wf(s,i)+2*half,2)}, v{AW+i} offset:{hh*8192+half*2048}")
        return L
    def mfmas(s):
        if opts.get("nomfma"): return ["s_nop 0"] * 16
        return [M16(acc(st, a), wf(s, a), of(s, st), acc(st, a)) for st in range(4) for a in (range(4) if st % 2 == 0 else range(3, -1, -1))]
    A("s_mov_b32 s23, 0")
    A("s_mov_b32 s38, 16")
    A(f"v_mov_b32 v{AO}, v2")
    for a in range(4): A(f"v_mov_b32 v{AW+a}, v{3+a}")
    ST(1)
    def rd_items(hh, s):
        L = []
        for i in range(4):
            for half in range(2):
                L.append(('rd', f"ds_read_b64_tr_b16 {vr(wf(s,i)+2*half,2)}, v{AW+i} offset:{hh*8192+half*2048}", f"w{s}_{i}"))
            if i == 0: L.insert(0, ('rd', f"ds_read_b128 {vr(of(s,0),4)}, v{AO} offset:{hh*2048}", f"o{s}_0"))
        for i in range(1, 4):
            L.append(('rd', f"ds_read_b128 {vr(of(s,i),4)}, v{AO} offset:{(i>>1)*4096+hh*2048+(i&1)*256}", f"o{s}_{i}"))
        return L
    def mf_items(s):
        L = []
        for st in range(4):
            for a in (range(4) if st % 2 == 0 else range(3, -1, -1)):
                needs = [f"o{s}_{st}", f"w{s}_{a}"]
                if st == 0 and a == 0: needs += [f"w{s}_{i}" for i in range(4)]
                L.append(('op', M16(acc(st, a), wf(s, a), of(s, st), acc(st, a)), needs))
        return L
    upd = [f"s_add_u32 s23, s23, {SLOT}", f"s_cmp_eq_u32 s23, {NS*SLOT}", "s_cselect_b32 s23, 0, s23", "s_sub_u32 s38, s38, 1",
           f"v_add_u32 v{AO}, s23, v2"] + [f"v_add_u32 v{AW+a}, s23, v{3+a}" for a in range(4)] + ["s_cmp_lg_u32 s38, 0"]
    upd = [('raw', u) for u in upd]
    bp = opts.get("barpos", 2)
    rpg = opts.get("rpg", 2)
    m1 = mf_items(1)
    items = m1[:bp] + [('all', "s_barrier")] + interleave(m1[bp:], rd_items(0, 0), [rpg] * 16)
    items += interleave(mf_items(0), rd_items(1, 1) + upd, [rpg] * (12 // rpg) + [2] * 16)
    body, _ = schedule_waits(items, passes=2)
    A(".p2align 6")
    A.label("K3_cloop")
    for l in body: A(l)
    A("s_cbranch_scc1 K3_cloop")
    A("s_waitcnt lgkmcnt(0)")
    for l in mfmas(1): A(l)
    ST(2)
    n = 0
    for st in range(4):
        for pr in range(2):
            p = 24 + n * 4; n += 1
            for u in range(2):
                d = acc(st, 2*pr+u)
                A(f"v_cvt_pk_bf16_f32 v{p+2*u}, v{d}, v{d+1}")
                A(f"v_cvt_pk_bf16_f32 v{p+2*u+1}, v{d+2}, v{d+3}")
        A("s_nop 1")
        for pr in range(2):
            p = 24 + (n - 2 + pr) * 4
            A(f"v_permlane16_swap_b32 v{p}, v{p+2}")
            A(f"v_permlane16_swap_b32 v{p+1}, v{p+3}")
            A(f"buffer_store_dwordx4 {vr(p,4)}, v22, s[12:15], s{40+st} offen offset:{pr*64}{store_mod}")
    if stamp:
        ST(3)
        A("s_waitcnt vmcnt(0)")
        ST(4)
        A("s_waitcnt lgkmcnt(0)")
        A("s_lshl_b32 s36, s2, 3")
        A("s_add_u32 s36, s36, s19")
        A("s_lshl_b32 s36, s36, 6")
        A(f"s_add_u32 s36, s36, {opts.get('stamp_off', 66)<<20}")
        A("s_mov_b32 s12, s32")
        A("s_mov_b32 s13, s33")
        A("s_mov_b32 s14, 0x8000000")
        A("v_mov_b32 v2, 0")
        for rep in range(2):
            for i in range(14):
                A(f"v_mov_b32 v3, s{50+i}")
                A(f"buffer_store_dword v3, v2, s[12:15], s36 offen offset:{4*i+256*rep}")
    A.label("K3_done")
    A("s_endpgm")
    return descriptor(K3_NAME, 152, 80)
```

```python
import sys, os, json, struct, math
sys.path.insert(0, os.path.dirname(os.path.abspath(__file__)))
from asmlib import *

NAME = "concat_heads__mha_block__sliding_local_dilated__prompt_kernel"
WS_Q = 0
WS_KV = 4 << 20
WS_B = 12 << 20
WS_O = 24 << 20
WS_F = 32 << 20
WS_BYTES = (32 << 20) + 65536
QSCALE = (32 ** -0.5) * math.log2(math.e)
LDS_BYTES = 163840
def f32bits(x): return struct.unpack("<I", struct.pack("<f", x))[0]
def M32(d, a, b, c):
    cs = "0" if c is None else vr(c, 16)
    return f"v_mfma_f32_32x32x16_bf16 {vr(d,16)}, {vr(a,4)}, {vr(b,4)}, {cs}"
def M16(d, a, b, c):
    return f"v_mfma_f32_16x16x32_bf16 {vr(d,4)}, {vr(a,4)}, {vr(b,4)}, {vr(c,4)}"

P_AX, P_AW, P_AWO, P_BX, P_BW, P_BWO, P_OUT, P_DBG, P_WS = 76, 78, 80, 82, 84, 86, 88, 90, 92

def gen(opts=None):
    opts = opts or {}
    A = Asm()
    stamp = opts.get("stamp", False)
    SC = " sc1"
    LD = opts.get("ld_mod", " sc1")
    def ST(i):
        if stamp:
            A("s_memrealtime s[100:101]")
            A("s_waitcnt lgkmcnt(0)")
            A(f"s_mov_b32 s{50+i}, s100")
    def lane(dst):
        A(f"v_mbcnt_lo_u32_b32 v{dst}, -1, 0")
        A(f"v_mbcnt_hi_u32_b32 v{dst}, -1, v{dst}")
    def poll_cnt(tag, target, vtmp):
        A(f"s_mov_b32 s47, {opts.get('poll_max', 30000)}")
        A.label(f"{tag}_poll")
        A(f"buffer_load_dword v{vtmp}, off, s[72:75], 0 sc1")
        A("s_waitcnt vmcnt(0)")
        A(f"v_readfirstlane_b32 s46, v{vtmp}")
        A("s_sub_u32 s47, s47, 1")
        A("s_cmp_eq_u32 s47, 0")
        A(f"s_cbranch_scc1 {tag}_go")
        A(f"s_cmp_ge_u32 s46, {target}")
        A(f"s_cbranch_scc1 {tag}_go")
        A("s_sleep 8")
        A(f"s_branch {tag}_poll")
        A.label(f"{tag}_go")
    def poll(tag, off, nflags, vtmp):
        A(f"s_mov_b32 s47, {opts.get('poll_max', 30000)}")
        A("s_lshl_b32 s46, s2, 8")
        A(f"s_add_u32 s46, s46, {WS_F + off}")
        A(f"v_lshrrev_b32 v{vtmp+1}, 2, v1")
        A(f"v_and_b32 v{vtmp+1}, {4*nflags-1}, v{vtmp+1}")
        ST(0)
        A.label(f"{tag}_poll")
        A(f"buffer_load_dword v{vtmp}, v{vtmp+1}, s[12:15], s46 offen sc1")
        A("s_sub_u32 s47, s47, 1")
        A("s_waitcnt vmcnt(0)")
        A(f"v_cmp_eq_u32 vcc, 0, v{vtmp}")
        A("s_cmp_eq_u32 s47, 0")
        A(f"s_cbranch_scc1 {tag}_go")
        A("s_cmp_eq_u64 vcc, 0")
        A(f"s_cbranch_scc1 {tag}_go")
        if opts.get('poll_sleep', 1): A(f"s_sleep {opts.get('poll_sleep', 1)}")
        A(f"s_branch {tag}_poll")
        A.label(f"{tag}_go")
        ST(1)
        if stamp: A("s_mov_b32 s52, s47")
    def signal(vaddr, nl, vtmp):
        A(f"v_mov_b32 v{vtmp}, 1")
        A(f"s_mov_b64 exec, {(1 << nl) - 1}")
        A(f"buffer_store_dword v{vtmp}, v{vaddr}, s[12:15], 0 offen sc1")
        A("s_mov_b64 exec, -1")

    A('.amdgcn_target "amdgcn-amd-amdhsa--gfx950"')
    A(".text")
    kernel_begin(A, NAME)
    A("s_load_dwordx16 s[76:91], s[0:1], 0")
    A("s_load_dwordx2 s[92:93], s[0:1], 64")
    A("v_lshrrev_b32 v14, 6, v0")
    A("v_and_b32 v1, 63, v0")
    A("v_readfirstlane_b32 s19, v14")
    A("s_cmp_ge_u32 s2, 256")
    A("s_cbranch_scc1 L_done")
    XSLOT = 32768; WBASE = 3 * XSLOT; WSLOT = 12288; WEND = WBASE + 5 * WSLOT
    A("s_and_b32 s34, s2, 7")
    A("s_lshr_b32 s35, s2, 3")
    A("s_lshr_b32 s16, s34, 2")
    A("s_and_b32 s17, s34, 1")
    A("s_lshl_b32 s17, s17, 2")
    A("s_and_b32 s36, s35, 3")
    A("s_add_u32 s17, s17, s36")
    A("s_lshr_b32 s18, s34, 1")
    A("s_and_b32 s18, s18, 1")
    A("s_lshl_b32 s18, s18, 3")
    A("s_lshr_b32 s36, s35, 2")
    A("s_add_u32 s18, s18, s36")
    A(f"s_mov_b32 s14, {WS_BYTES}")
    A("s_mov_b32 s15, 0x20000")
    A("s_mov_b32 s74, 256")
    A("s_mov_b32 s75, 0x20000")
    A("s_mov_b32 s7, 0x20000")
    A("s_mov_b32 s11, 0x20000")
    def common_srds():
        A(f"s_mov_b32 s12, s{P_WS}")
        A(f"s_mov_b32 s13, s{P_WS+1}")
        A(f"s_mov_b32 s72, s{P_DBG}")
        A(f"s_mov_b32 s73, s{P_DBG+1}")
    A("s_cmp_lt_u32 s19, 8")
    A("s_cbranch_scc1 P1_compute")
    A("s_lshr_b32 s49, s34, 1")
    A("s_xor_b32 s49, s49, s34")
    A("s_and_b32 s49, s49, 1")
    A("s_lshl_b32 s49, s49, 10")
    A("s_lshl_b32 s23, s16, 9")
    A("s_add_u32 s49, s49, s23")
    A("s_and_b32 s23, s34, 1")
    A("s_lshl_b32 s23, s23, 8")
    A("s_add_u32 s49, s49, s23")
    A("s_add_u32 s48, s17, s18")
    A("s_and_b32 s48, s48, 1")
    A("v_lshrrev_b32 v15, 3, v1")
    A("v_lshrrev_b32 v16, 4, v1")
    A("v_and_b32 v18, 7, v1")
    A("s_mov_b32 s40, 0")
    A("s_cmp_eq_u32 s19, 8")
    A("s_cbranch_scc1 P1_xload")
    A("s_lshl_b32 s39, s18, 7")
    A(f"s_sub_u32 s6, {1024*6144}, s39")
    A("v_and_b32 v16, 1, v16")
    A("v_lshlrev_b32 v16, 1, v16")
    A("v_xor_b32 v16, v18, v16")
    A("v_lshlrev_b32 v16, 4, v16")
    A("v_mul_u32_u24 v17, 6144, v15")
    A("v_add_u32 v2, v17, v16")
    A("v_xor_b32 v16, 64, v16")
    A("v_add_u32 v3, v17, v16")
    A(f"v_add_u32 v3, {8*6144-1024}, v3")
    A(f"v_add_u32 v4, {16*6144-2048}, v2")
    A(f"v_add_u32 v5, {16*6144-2048}, v3")
    A("s_lshl_b32 s48, s48, 1")
    A(f"s_mov_b32 s22, {WBASE}")
    A("v_lshlrev_b32 v20, 2, v1")
    A("v_mov_b32 v21, 0")
    A("v_mov_b32 v22, 1")
    A("s_lshl_b32 s45, s2, 8")
    A(f"s_add_u32 s45, s45, {WS_F}")
    A("s_and_b32 s44, s35, 7")
    A("s_lshl_b32 s44, s44, 1")
    A("s_add_u32 s44, s44, 9")
    A("s_cmp_eq_u32 s16, 0")
    A("s_waitcnt lgkmcnt(0)")
    A(f"s_cselect_b32 s4, s{P_AW}, s{P_BW}")
    A(f"s_cselect_b32 s5, s{P_AW+1}, s{P_BW+1}")
    A("s_add_u32 s4, s4, s39")
    A("s_addc_u32 s5, s5, 0")
    common_srds()
    A("s_branch P1_wgo")
    A.label("P1_wclr")
    A("buffer_store_dword v21, v20, s[12:15], s45 offen sc1")
    A.label("P1_wwait")
    A("s_waitcnt vmcnt(12)")
    A("s_barrier")
    A("s_cmp_eq_u32 s40, s44")
    A("s_cbranch_scc0 P1_wgo")
    A("s_waitcnt vmcnt(0)")
    A("s_mov_b64 exec, 1")
    A("buffer_atomic_add v22, off, s[72:75], 0 sc1")
    A("s_mov_b64 exec, -1")
    A.label("P1_wgo")
    A("s_xor_b32 s23, s40, s48")
    A("s_lshl_b32 s23, s23, 6")
    A("s_add_u32 s23, s23, s49")
    A("s_and_b32 s23, s23, 2047")
    A("s_mul_i32 s20, s23, 3072")
    for ty in range(3):
        A(f"s_add_u32 m0, s22, {ty*4096}")
        if ty: A("s_add_u32 s20, s20, 2048")
        else: A("s_add_u32 s40, s40, 1")
        for i in range(4):
            A(f"buffer_load_dwordx4 v{2+i}, s[4:7], s20 offen offset:{1024*i} lds")
    A(f"s_add_u32 s22, s22, {WSLOT}")
    A(f"s_cmp_eq_u32 s22, {WEND}")
    A(f"s_cselect_b32 s22, {WBASE}, s22")
    WPRE = opts.get("wpre", 3)
    A(f"s_cmp_eq_u32 s40, {WPRE}")
    A("s_cbranch_scc0 P1_w1")
    A(f"s_waitcnt vmcnt({12*(WPRE-2)})")
    A("s_barrier")
    A.label("P1_w1")
    A("s_cmp_lt_u32 s40, 5")
    A("s_cbranch_scc1 P1_wgo")
    A("s_bitcmp0_b32 s40, 0")
    A("s_cbranch_scc1 P1_w2")
    A("s_cmp_eq_u32 s40, 5")
    A("s_cbranch_scc1 P1_wclr")
    A("s_branch P1_wwait")
    A.label("P1_w2")
    A("s_cmp_lt_u32 s40, 32")
    A("s_cbranch_scc1 P1_wgo")
    A("s_branch P1_ltail")
    A.label("P1_xload")
    A("s_mov_b32 s6, 0x80000")
    A("s_lshl_b32 s36, s17, 19")
    A("v_xor_b32 v17, v18, v16")
    A("v_lshlrev_b32 v17, 4, v17")
    A("v_lshl_add_u32 v2, v15, 11, v17")
    A("v_xor_b32 v3, 64, v2")
    A(f"v_add_u32 v3, {16384-1024}, v3")
    A(f"v_add_u32 v4, {32768-2048}, v2")
    A(f"v_add_u32 v5, {32768-2048}, v3")
    A("s_mov_b32 s22, 0")
    A("s_cmp_eq_u32 s16, 0")
    A("s_waitcnt lgkmcnt(0)")
    A(f"s_cselect_b32 s4, s{P_AX}, s{P_BX}")
    A(f"s_cselect_b32 s5, s{P_AX+1}, s{P_BX+1}")
    A("s_add_u32 s4, s4, s36")
    A("s_addc_u32 s5, s5, 0")
    A.label("P1_xgo")
    A("s_xor_b32 s21, s40, s48")
    A("s_lshl_b32 s21, s21, 7")
    A("s_add_u32 s21, s21, s49")
    A("s_and_b32 s21, s21, 2047")
    XB0 = opts.get("xb0", 4)
    for q in range(8):
        A(f"s_add_u32 m0, s22, {q*4096}")
        A(f"s_add_u32 s20, s21, {q*65536}")
        if q == XB0:
            A("s_cmp_eq_u32 s40, 1")
            A("s_cbranch_scc0 P1_x0")
            A(f"s_waitcnt vmcnt({4*XB0})")
            A("s_barrier")
            A.label("P1_x0")
        for i in range(4):
            A(f"buffer_load_dwordx4 v{2+i}, s[4:7], s20 offen offset:{1024*i} lds")
    A(f"s_add_u32 s22, s22, {XSLOT}")
    A(f"s_cmp_eq_u32 s22, {3*XSLOT}")
    A("s_cselect_b32 s22, 0, s22")
    A("s_add_u32 s40, s40, 1")
    A(f"s_cmp_lt_u32 s40, {2 if XB0 == 8 else 3}")
    A("s_cbranch_scc1 P1_xgo")
    A("s_waitcnt vmcnt(32)")
    A("s_barrier")
    A("s_cmp_lt_u32 s40, 16")
    A("s_cbranch_scc1 P1_xgo")
    A.label("P1_ltail")
    A("s_waitcnt vmcnt(0)")
    A("s_barrier")
    common_srds()
    A("v_lshrrev_b32 v10, 3, v1")
    A("s_lshl_b32 s45, s18, 1")
    A("v_add_u32 v10, s45, v10")
    A("v_and_b32 v11, 3, v10")
    A("v_lshrrev_b32 v10, 2, v10")
    A("v_lshl_add_u32 v10, v11, 3, v10")
    A("v_and_b32 v11, 7, v1")
    A("v_lshl_add_u32 v10, v11, 5, v10")
    A("s_lshl_b32 s45, s16, 3")
    A("s_add_u32 s45, s45, s17")
    A("s_lshl_b32 s45, s45, 2")
    A(f"s_add_u32 s45, s45, {WS_F}")
    A("v_lshlrev_b32 v10, 8, v10")
    A("v_add_u32 v10, s45, v10")
    A("s_barrier")
    A("s_branch P2_helpers")
    A.label("P1_compute")
    if opts.get("code_pf", 1):
        A("s_getpc_b64 s[40:41]")
        A("v_and_b32 v20, 127, v0")
        A("v_lshlrev_b32 v20, 7, v20")
        A("v_min_u32 v20, L_done-P1_compute-64, v20")
        A("s_cmp_lt_u32 s19, 2")
        A("s_cbranch_scc0 P1_nopf")
        A("global_load_dword v21, v20, s[40:41]")
        A.label("P1_nopf")
    ST(0)
    A("v_lshrrev_b32 v15, 1, v14")
    A("v_and_b32 v16, 15, v1")
    A("v_lshl_add_u32 v17, v15, 6, v16")
    A("v_lshlrev_b32 v17, 7, v17")
    A("v_lshrrev_b32 v16, 1, v16")
    A("v_lshrrev_b32 v18, 4, v1")
    A("v_xor_b32 v16, v16, v18")
    A("v_lshl_add_u32 v2, v16, 4, v17")
    A("v_xor_b32 v3, 64, v2")
    A("v_lshrrev_b32 v16, 2, v1")
    A("v_and_b32 v16, 3, v16")
    A("v_lshl_add_u32 v17, v18, 3, v16")
    A("v_lshlrev_b32 v17, 7, v17")
    A("v_lshrrev_b32 v16, 1, v16")
    A("v_and_b32 v19, 1, v18")
    A("v_lshl_add_u32 v16, v19, 1, v16")
    A("v_and_b32 v19, 1, v14")
    A("v_lshlrev_b32 v19, 1, v19")
    A("v_xor_b32 v16, v16, v19")
    A("v_lshl_add_u32 v17, v16, 5, v17")
    A("v_and_b32 v16, 3, v1")
    A("v_lshl_add_u32 v4, v16, 3, v17")
    A("v_xor_b32 v5, 32, v4")
    A("v_lshlrev_b32 v1, 4, v1")
    ACC = 72; XF = 8; WF = [24, 48]
    AX, AW0, AW1 = 0, 6, 7
    for i in range(0, 96, 2): A(f"v_mov_b64 v[{ACC+i}:{ACC+i+1}], 0")
    A("s_and_b32 s36, s19, 1")
    A("s_lshl_b32 s37, s18, 1")
    A("s_add_u32 s36, s36, s37")
    A("s_lshl_b32 s36, s36, 6")
    A("s_lshl_b32 s37, s17, 3")
    A("s_add_u32 s36, s36, s37")
    A("s_lshr_b32 s37, s19, 1")
    A("s_lshl_b32 s37, s37, 1")
    A("s_add_u32 s36, s36, s37")
    A("s_lshl_b32 s64, s36, 11")
    A("s_add_u32 s65, s64, 2048")
    A("s_lshl_b32 s66, s36, 12")
    A(f"s_add_u32 s66, s66, {WS_KV}")
    A("s_add_u32 s67, s66, 4096")
    A("s_add_u32 s68, s66, 2048")
    A("s_add_u32 s69, s66, 6144")
    A("s_mul_i32 s37, s36, 6144")
    A(f"s_add_u32 s37, s37, {WS_B}")
    A("s_cmp_eq_u32 s16, 0")
    A("s_cbranch_scc1 P1_ofs_done")
    for ty in range(3):
        for mt in range(2):
            A(f"s_add_u32 s{64+2*ty+mt}, s37, {ty*2048+mt*6144}")
    A.label("P1_ofs_done")
    A(f"s_mov_b32 s42, {f32bits(QSCALE)}")
    A(f"s_mov_b32 s43, {f32bits(QSCALE)}")
    barpos = opts.get("barpos", 4)
    def xf(st): return XF + 4*st
    def wf(s, n6): return WF[s] + 4*n6
    def acc(st, n6): return ACC + (st*6+n6)*4
    def xrd(st): return ('rd', f"ds_read_b128 {vr(xf(st),4)}, v{AX} offset:{st*2048}", f"x{st}")
    def wrds(s):
        L = []
        for i in range(6):
            ty, nt = i >> 1, i & 1
            for half in range(2):
                L.append(('rd', f"ds_read_b64_tr_b16 {vr(wf(s,i)+2*half,2)}, v{AW0+nt} offset:{ty*4096+half*512}", f"w{s}_{i}"))
        return L
    def mf(s, st, n6):
        d = acc(st, n6)
        t = M16(d, wf(s,n6), xf(st), d) if n6 < 4 else M16(d, xf(st), wf(s,n6), d)
        needs = [f"x{st}", f"w{s}_{n6}"]
        if st == 0 and n6 == 0: needs = ["x0", "x1", "x2"] + [f"w{s}_{i}" for i in range(6)]
        return ('op', t, needs)
    def nextW():
        return [f"s_add_u32 s46, s46, {WSLOT}", f"s_cmp_eq_u32 s46, {WEND}", f"s_cselect_b32 s46, {WBASE}, s46",
                f"v_add_u32 v{AW0}, s46, v4", f"v_add_u32 v{AW1}, s46, v5"]
    A("s_mov_b32 s44, 0")
    A(f"s_mov_b32 s46, {WBASE}")
    A("s_mov_b32 s40, 16")
    A(f"v_mov_b32 v{AX}, v2")
    A(f"v_add_u32 v{AW0}, s46, v4")
    A(f"v_add_u32 v{AW1}, s46, v5")
    A("s_waitcnt lgkmcnt(0)")
    common_srds()
    A("s_waitcnt vmcnt(0)")
    A("s_barrier")
    ST(1)
    items = []
    for sub in range(2):
        s = sub
        ms = [mf(s, st, (q if st % 2 == 0 else 5 - q)) for st in range(4) for q in range(6)]
        wr = wrds(s ^ 1)
        gaps = [[] for _ in range(24)]
        start = 0 if sub == 0 else barpos
        pre = nextW()
        if sub == 0:
            pre += [f"v_add_u32 v{AX}, s44, v3"]
        else:
            pre += [f"s_add_u32 s44, s44, {XSLOT}", f"s_cmp_eq_u32 s44, {3*XSLOT}", "s_cselect_b32 s44, 0, s44", f"v_add_u32 v{AX}, s44, v2",
                    "s_sub_u32 s40, s40, 1"]
        for i, l in enumerate(pre): gaps[min(i // 3, 2 if sub == 0 else barpos - 1)].append(('raw', l))
        if sub == 1: gaps[barpos - 1].append(('all', "s_barrier"))
        g = max(start, 2)
        for r in wr:
            if g in (5, 11, 17): g += 1
            gaps[g].append(r); g += 1
        assert g <= 23, g
        for st in range(4): gaps[6*st+5].append(xrd(st))
        if sub == 1: gaps[22].append(('raw', "s_cmp_lg_u32 s40, 0"))
        for i in range(24):
            items.append(ms[i]); items += gaps[i]
    pro = [it for it in items if it[0] == 'rd'][-16:]
    assert sorted(set(t[2] for t in pro)) == sorted([f"x{i}" for i in range(4)] + [f"w0_{i}" for i in range(6)])
    for it in pro: A(it[1])
    body1, _ = schedule_waits(items, passes=1, init_queue=[t[2] for t in pro])
    A(".p2align 6")
    A.label("P1_loop")
    for l in body1: A(l)
    A("s_cbranch_scc1 P1_loop")
    A("s_waitcnt lgkmcnt(0)")
    ST(2)
    A("s_nop 4")
    n = 0
    def pk():
        nonlocal n
        p = 8 + (n % 16) * 4; n += 1
        return p
    for ty in (1, 2, 0):
        if ty < 2:
            for st in range(4):
                p = pk()
                for nt in range(2):
                    d = acc(st, 2*ty+nt)
                    if ty == 0:
                        for r in (0, 2): A(f"v_pk_mul_f32 v[{d+r}:{d+r+1}], v[{d+r}:{d+r+1}], s[42:43]")
                    A(f"v_cvt_pk_bf16_f32 v{p+2*nt}, v{d}, v{d+1}")
                    A(f"v_cvt_pk_bf16_f32 v{p+2*nt+1}, v{d+2}, v{d+3}")
                A(f"buffer_store_dwordx4 {vr(p,4)}, v1, s[12:15], s{64+2*ty+(st>>1)} offen offset:{(st&1)*1024}{SC}")
        else:
            ps = []
            for mt in range(2):
                for nt in range(2):
                    p = pk(); ps.append((p, mt, nt))
                    for u in range(2):
                        d = acc(2*mt+u, 4+nt)
                        A(f"v_cvt_pk_bf16_f32 v{p+2*u}, v{d}, v{d+1}")
                        A(f"v_cvt_pk_bf16_f32 v{p+2*u+1}, v{d+2}, v{d+3}")
            A("s_nop 1")
            for p, mt, nt in ps:
                A(f"v_permlane16_swap_b32 v{p}, v{p+2}")
                A(f"v_permlane16_swap_b32 v{p+1}, v{p+3}")
                A(f"buffer_store_dwordx4 {vr(p,4)}, v1, s[12:15], s{68+mt} offen offset:{nt*1024}{SC}")
    A("s_waitcnt vmcnt(0)")
    A("s_barrier")
    ST(3)

    NS = 6; STG = 16384; RING = NS * STG; BREG = RING; FLAGS = BREG + 4096 + 8 * 6144; MASKT = FLAGS + 256; XCH = 0
    assert MASKT + 6144 <= LDS_BYTES
    IDX = 4; ONES = 8; KF = 12; VF = 20; MX = [28, 29]; SA = 32; SB = 48
    Q = [64, 72]; L = [80, 84]; O = [96, 112]; NEGM = [128, 144]
    QB = 128; KBP = 136; KBC = 144; VBC = 152; VBP = 12; PK = 16; OB = O[1]; LB = L[1]
    def S32(d, a, b): return f"v_smfmac_f32_32x32x32_bf16 {vr(d,16)}, {vr(a,4)}, {vr(b,8)}, v{IDX}"
    def S16(d, a, b): return f"v_smfmac_f32_16x16x64_bf16 {vr(d,4)}, {vr(a,4)}, {vr(b,8)}, v{IDX}"
    def E(r): return f"v_exp_f32 v{r}, v{r}"
    def key_of(r, hb): return 8 * (r >> 2) + 4 * hb + (r & 3)
    def bmask(r, prev):
        m = 0
        for l in range(64):
            d = (l & 31) - key_of(r, l >> 5) + (32 if prev else 0)
            if 0 <= d <= 14 and d % 2 == 0: m |= 1 << l
        return m
    def rowmax(regs, dst, tmp):
        regs = list(regs)
        A(f"v_max3_f32 v{dst}, v{regs[0]}, v{regs[1]}, v{regs[2]}")
        i = 3
        while i + 1 < len(regs):
            A(f"v_max3_f32 v{dst}, v{regs[i]}, v{regs[i+1]}, v{dst}"); i += 2
        if i < len(regs): A(f"v_max_f32 v{dst}, v{regs[i]}, v{dst}")
        A(f"v_mov_b32 v{tmp}, v{dst}")
        A("s_nop 1")
        A(f"v_permlane32_swap_b32 v{dst}, v{tmp}")
        A("s_nop 1")
        A(f"v_max_f32 v{dst}, v{dst}, v{tmp}")
    def read_flags(r):
        A(f"v_mov_b32 v7, {FLAGS}")
        A(f"ds_read_b128 {vr(r,4)}, v7")
        A(f"ds_read_b128 {vr(r+4,4)}, v7 offset:16")
    def or_flags(r, sdst):
        A(f"v_or3_b32 v{r}, v{r}, v{r+4}, v{r+5}")
        A(f"v_or3_b32 v{r}, v{r}, v{r+6}, v{r+7}")
        A(f"v_or3_b32 v{r}, v{r}, v{r+1}, v{r+2}")
        A(f"v_or_b32 v{r}, v{r}, v{r+3}")
        A("s_nop 0")
        A(f"v_readfirstlane_b32 s{sdst}, v{r}")
    def p2_ids():
        A("s_and_b32 s16, s35, 3")
        A("s_lshl_b32 s36, s34, 2")
        A("s_add_u32 s16, s16, s36")
        A("s_lshr_b32 s17, s35, 2")
        A("s_lshl_b32 s36, s16, 18")
        A(f"s_add_u32 s36, s36, {WS_KV}")
        A(f"s_add_u32 s4, s{P_WS}, s36")
        A(f"s_addc_u32 s5, s{P_WS+1}, 0")
        A("s_mov_b32 s6, 0x40000")
        A("s_mov_b32 s24, 0")
    p2_ids()
    A("v_lshrrev_b32 v6, 4, v1")
    A("s_lshr_b32 s18, s19, 2")
    A("s_and_b32 s20, s19, 3")
    A("s_lshl_b32 s20, s20, 1")
    A("s_add_u32 s20, s20, s18")
    A("s_lshl_b32 s26, s17, 3")
    A("s_add_u32 s26, s26, s20")
    A("s_lshl_b32 s39, s18, 13")
    A("v_and_b32 v31, 15, v6")
    A("v_lshlrev_b32 v31, 4, v31")
    A("v_and_b32 v5, 16, v6")
    A("v_lshl_add_u32 v31, v5, 6, v31")
    A("v_and_b32 v5, 32, v6")
    A("v_lshl_add_u32 v31, v5, 4, v31")
    A("s_lshl_b32 s31, s26, 5")
    A("s_add_u32 s31, s31, s16")
    A("s_lshl_b32 s31, s31, 11")
    A(f"s_add_u32 s31, s31, {WS_O}")
    A(f"v_mov_b32 v{IDX}, 0xdddd")
    A("v_and_b32 v5, 4, v6")
    A("v_cmp_eq_u32 vcc, 0, v5")
    A("v_mov_b32 v7, 0x3f803f80")
    A("v_add_u32 v30, s39, v31")
    A(f"v_cndmask_b32 v{ONES}, 0, v7, vcc")
    A(f"v_cndmask_b32 v{ONES+1}, 0, v7, vcc")
    A(f"v_sub_u32 v{ONES+2}, v7, v{ONES}")
    A(f"v_mov_b32 v{ONES+3}, v{ONES+2}")
    A("s_lshl_b32 s27, s20, 11")
    A(f"s_add_u32 s27, s27, {BREG}")
    A("v_add_u32 v5, s27, v31")
    A("v_xor_b32 v6, 2048, v5")
    A.label("P2_restart")
    for x in range(2):
        for i in range(0, 16, 2): A(f"v_mov_b64 v[{O[x]+i}:{O[x]+i+1}], 0")
        for i in range(0, 4, 2): A(f"v_mov_b64 v[{L[x]+i}:{L[x]+i+1}], 0")
    A("v_mov_b32 v2, v30")
    A(f"s_mov_b32 s25, {STG}")
    A(f"v_add_u32 v3, {STG}, v30")
    A("s_mov_b32 s23, 16")
    A("s_barrier")
    ST(4)
    SX = [SA, SB]
    A("s_cmp_lg_u32 s24, 0")
    A("s_cbranch_scc1 P2_main")
    A(f"ds_read_b128 {vr(VF,4)}, v31 offset:0")
    for x in range(2): A(f"ds_read_b128 {vr(Q[x],4)}, v{5+x}")
    A(f"ds_read_b128 {vr(VF+4,4)}, v31 offset:256")
    for x in range(2): A(f"ds_read_b128 {vr(Q[x]+4,4)}, v{5+x} offset:256")
    A("s_waitcnt lgkmcnt(3)")
    for x in range(2): A(M32(SX[x], VF, Q[x], None))
    A("s_waitcnt lgkmcnt(0)")
    for x in range(2): A(M32(SX[x], VF+4, Q[x]+4, SX[x]))
    A("s_nop 7")
    A("s_nop 2")
    for x in range(2): rowmax(range(SX[x], SX[x]+16), MX[x], 6)
    A.label("P2_main")
    A(f"ds_read_b128 {vr(KF,4)}, v2 offset:0")
    A(f"ds_read_b128 {vr(KF+4,4)}, v2 offset:256")
    A(f"ds_read_b128 {vr(VF,4)}, v2 offset:2048")
    def negm(x):
        A(f"v_sub_f32 v{NEGM[x]}, 0, v{MX[x]}")
        A(f"v_sub_f32 v{NEGM[x]+1}, 0, v{MX[x]}")
        for i in range(2, 16, 2): A(f"v_mov_b64 v[{NEGM[x]+i}:{NEGM[x]+i+1}], v[{NEGM[x]}:{NEGM[x]+1}]")
    negm(0)
    for i in (0, 2): A(f"v_mov_b64 v[{VF+4+i}:{VF+5+i}], 0")
    A("s_waitcnt lgkmcnt(1)")
    A(M32(SA, KF, Q[0], NEGM[0]))
    A(M32(SA, KF+4, Q[0]+4, SA))
    negm(1)
    for i in range(0, 8, 2): A(f"v_mov_b64 v[{SB+8+i}:{SB+9+i}], 0")
    A(E(SA))
    A(".p2align 6")
    A.label("P2_loop")
    def rd(dst, tile, off):
        a, t = ("v2", tile) if tile < 2 else ("v3", tile - 2)
        return f"ds_read_b128 {vr(dst,4)}, {a} offset:{t*4096+off}"
    for u in range(4):
        cur, nxt = (SA, SB) if u % 2 == 0 else (SB, SA)
        i = u // 2; xc = u % 2; xp = xn = xc ^ 1
        if xc == 0:
            w_pv1 = w_qka = w_qkb = None; w_pv0 = 3
            r_pv1 = [rd(VF+4, i, 2304)]; r_qka = [rd(KF, i+1, 0)]; r_qkb = [rd(KF+4, i+1, 256)]; r_pv0 = []
        else:
            w_pv1, w_qka, w_qkb, w_pv0 = 2, 1, 0, None
            r_pv1 = r_qka = r_qkb = []; r_pv0 = [rd(VF, i+1, 2048)]
        bar = (u == 1)
        last = (u == 3)
        def W(n):
            if n is not None: A(f"s_waitcnt lgkmcnt({n})")
        if w_pv1 is None: A("s_nop 0")
        W(w_pv1)
        A(S32(O[xp], VF+4, nxt+8))
        for l in r_pv1: A(l)
        A(E(cur+1)); A(E(cur+2)); A(E(cur+3))
        A(S16(L[xp], ONES, nxt+8))
        A(E(cur+4)); A(E(cur+5))
        W(w_qka)
        A(M32(nxt, KF, Q[xn], NEGM[xn]))
        for l in r_qka: A(l)
        A(E(cur+6)); A(E(cur+7)); A(E(cur+8))
        W(w_qkb)
        A(M32(nxt, KF+4, Q[xn]+4, nxt))
        if bar: A("s_barrier")
        for l in r_qkb: A(l)
        A(E(cur+9)); A(E(cur+10)); A(E(cur+11))
        W(w_pv0)
        A(S32(O[xc], VF, cur))
        for l in r_pv0: A(l)
        A(E(cur+12))
        if last: A(f"s_add_u32 s25, s25, {STG}")
        A(E(cur+13))
        if last: A(f"s_cmp_eq_u32 s25, {RING}")
        A(E(cur+14))
        if last: A("s_cselect_b32 s25, 0, s25")
        A(S16(L[xc], ONES, cur))
        if last:
            A("s_sub_u32 s23, s23, 1")
            A("v_mov_b32 v2, v3")
            A("v_add_u32 v3, s25, v30")
            A("s_cmp_lg_u32 s23, 0")
        else: A("s_nop 0")
        A(E(cur+15)); A(E(nxt))
        if last: A("s_cbranch_scc1 P2_loop")
    A("s_waitcnt lgkmcnt(0)")
    A(S32(O[1], VF+4, SB+8))
    A(S16(L[1], ONES, SB+8))
    ST(5)
    A("s_mul_i32 s36, s20, 6144")
    A(f"s_add_u32 s36, s36, {BREG}")
    A("v_add_u32 v2, s36, v31")
    A(f"v_add_u32 v3, {MASKT}, v1")
    for q in range(4): A(f"ds_read_b128 {vr(SA+4*q,4)}, v3 offset:{1024*q}")
    A(f"ds_read_b128 {vr(QB,4)}, v2 offset:4096")
    A(f"ds_read_b128 {vr(KBC,4)}, v2 offset:6144")
    for q in range(2): A(f"ds_read_b128 {vr(SB+8+4*q,4)}, v3 offset:{4096+1024*q}")
    A(f"ds_read_b128 {vr(KBP,4)}, v2 offset:0")
    A(f"ds_read_b128 {vr(QB+4,4)}, v2 offset:4352")
    A(f"ds_read_b128 {vr(KBC+4,4)}, v2 offset:6400")
    A(f"ds_read_b128 {vr(KBP+4,4)}, v2 offset:256")
    A(f"s_mov_b32 s44, {f32bits(2.0**56)}")
    A(f"v_mul_f32 v5, s44, v{L[0]}")
    for i in range(0, 16, 2): A(f"v_maximum3_f32 v5, |v{O[0]+i}|, |v{O[0]+i+1}|, v5")
    A(f"v_mul_f32 v6, s44, v{L[1]}")
    for i in range(0, 16, 2): A(f"v_maximum3_f32 v6, |v{O[1]+i}|, |v{O[1]+i+1}|, v6")
    A("s_mul_i32 s36, s19, 5120")
    A("v_add_u32 v7, s36, v1")
    A(f"s_mov_b32 s45, {f32bits(2.0**120)}")
    A("v_maximum3_f32 v5, v5, v6, v6")
    A("s_waitcnt lgkmcnt(0)")
    A("v_cmp_ngt_f32 vcc, s45, v5")
    A("s_cmp_lg_u32 s26, 0")
    A("s_cbranch_scc1 P2_t0done")
    A("v_mov_b32 v6, 0xff800000")
    for r in range(8, 16): A(f"v_mov_b32 v{SB+r}, v6")
    A("s_nop 1")
    A.label("P2_t0done")
    A(M32(SA, KBC, QB, SA))
    A(M32(SB, KBP, QB, SB))
    for i in range(4): A(f"ds_write_b128 v7, {vr(O[1]+4*i,4)} offset:{XCH+1024*i}")
    A(f"ds_write_b32 v7, v{L[1]} offset:{XCH+4096}")
    A(M32(SA, KBC+4, QB+4, SA))
    A(M32(SB, KBP+4, QB+4, SB))
    for m in range(2): A(f"ds_read_b128 {vr(VBC+4*m,4)}, v2 offset:{8192+256*m}")
    A(f"ds_read_b128 {vr(VBP,4)}, v2 offset:2304")
    if opts.get("force_fb"): A("s_mov_b64 vcc, -1")
    A("s_cmp_lg_u64 vcc, 0")
    A("s_cselect_b32 s44, 1, 0")
    A("v_mov_b32 v6, s44")
    A("s_lshl_b32 s45, s19, 2")
    A(f"s_add_u32 s45, s45, {FLAGS}")
    A("v_mov_b32 v7, s45")
    A("ds_write_b32 v7, v6")
    A("s_xor_b32 s36, s19, 4")
    A("s_mul_i32 s36, s36, 5120")
    A("v_add_u32 v3, s36, v1")
    A("s_cmp_lg_u32 s24, 0")
    A("s_cbranch_scc1 P2_xchg")
    bregs = list(range(SA, SA+16)) + list(range(SB+8, SB+16))
    rowmax(bregs, 6, 7)
    for r in bregs[::2]: A(f"v_pk_add_f32 v[{r}:{r+1}], v[{r}:{r+1}], v[6:7] op_sel_hi:[1,0] neg_lo:[0,1] neg_hi:[0,1]")
    A("s_waitcnt lgkmcnt(0)")
    for i in range(0, 16, 2): A(f"v_mov_b64 v[{OB+i}:{OB+i+1}], 0")
    for i in range(0, 4, 2): A(f"v_mov_b64 v[{LB+i}:{LB+i+1}], 0")
    for r in bregs[:10]: A(E(r))
    A(S32(OB, VBC, SA))
    for r in bregs[10:13]: A(E(r))
    A(S16(LB, ONES, SA))
    for r in bregs[13:18]: A(E(r))
    A(S32(OB, VBC+4, SA+8))
    for r in bregs[18:21]: A(E(r))
    A(S16(LB, ONES, SA+8))
    for r in bregs[21:24]: A(E(r))
    A("s_nop 1")
    A(S16(LB, ONES, SB+8))
    A(S32(OB, VBP, SB+8))
    A.label("P2_xchg")
    A("s_waitcnt lgkmcnt(0)")
    A("s_barrier")
    A(f"ds_read_b32 v5, v3 offset:{XCH+4096}")
    for i in range(4): A(f"ds_read_b128 {vr(SA+4*i,4)}, v3 offset:{XCH+1024*i}")
    read_flags(SB)
    A(f"s_add_u32 s45, s31, {4<<20}")
    A("s_cmp_lg_u32 s24, 0")
    A("s_cbranch_scc1 P2_nob")
    A(f"v_rcp_f32 v6, v{LB}")
    A("s_nop 2")
    for i in range(0, 16, 2): A(f"v_pk_mul_f32 v[{OB+i}:{OB+i+1}], v[{OB+i}:{OB+i+1}], v[6:7] op_sel_hi:[1,0]")
    for i in range(8): A(f"v_cvt_pk_bf16_f32 v{PK+i}, v{OB+2*i}, v{OB+2*i+1}")
    for m in range(2):
        A(f"buffer_store_dwordx4 {vr(PK+4*m,4)}, v1, s[12:15], s45 offen offset:{1024*m}{SC}")
    A.label("P2_nob")
    A("s_waitcnt lgkmcnt(2)")
    A(f"v_add_f32 v6, v5, v{L[0]}")
    A("v_rcp_f32 v6, v6")
    for i in range(0, 16, 2): A(f"v_pk_add_f32 v[{O[0]+i}:{O[0]+i+1}], v[{SA+i}:{SA+i+1}], v[{O[0]+i}:{O[0]+i+1}]")
    for i in range(0, 16, 2): A(f"v_pk_mul_f32 v[{O[0]+i}:{O[0]+i+1}], v[{O[0]+i}:{O[0]+i+1}], v[6:7] op_sel_hi:[1,0]")
    for i in range(8): A(f"v_cvt_pk_bf16_f32 v{SA+i}, v{O[0]+2*i}, v{O[0]+2*i+1}")
    for m in range(2):
        A(f"buffer_store_dwordx4 {vr(SA+4*m,4)}, v1, s[12:15], s31 offen offset:{1024*m}{SC}")
    A("s_cmp_lg_u32 s24, 0")
    A("s_cbranch_scc1 P2_fin")
    A("s_waitcnt lgkmcnt(0)")
    or_flags(SB, 44)
    A("s_nop 3")
    A("s_cmp_eq_u32 s44, 0")
    A("s_cbranch_scc0 P2_fallback")
    A.label("P2_fin")
    ST(6)
    A("s_waitcnt vmcnt(0)")
    A("s_barrier")
    ST(7)
    A("s_cmp_gt_u32 s19, 4")
    A("s_cbranch_scc1 L_done")

    NO = opts.get("no", 4); NW = 10 - NO; S3 = 16384; W3 = NO * S3
    def p3_ids():
        A("s_lshr_b32 s16, s34, 2")
        A("s_and_b32 s17, s34, 1")
        A("s_lshl_b32 s17, s17, 3")
        A("s_and_b32 s36, s35, 7")
        A("s_add_u32 s17, s17, s36")
        A("s_lshr_b32 s18, s34, 1")
        A("s_and_b32 s18, s18, 1")
        A("s_lshl_b32 s18, s18, 2")
        A("s_lshr_b32 s36, s35, 3")
        A("s_add_u32 s18, s18, s36")
    p3_ids()
    A("s_cmp_eq_u32 s19, 4")
    A("s_cbranch_scc1 P3_oload")
    A("v_lshrrev_b32 v1, 4, v1")
    A("s_lshr_b32 s36, s19, 1")
    A("s_and_b32 s37, s19, 1")
    A("v_lshrrev_b32 v18, 4, v1")
    A("v_and_b32 v17, 15, v1")
    A("v_lshlrev_b32 v2, 4, v17")
    A("v_lshl_add_u32 v2, v18, 9, v2")
    A("s_lshl_b32 s38, s36, 13")
    A("v_add_u32 v2, s38, v2")
    A("v_lshrrev_b32 v19, 2, v1")
    A("v_and_b32 v19, 7, v19")
    A("v_lshrrev_b32 v20, 5, v1")
    A("v_lshl_add_u32 v20, v20, 4, v19")
    A("v_lshlrev_b32 v20, 8, v20")
    A("s_lshl_b32 s38, s37, 2")
    A("v_xor_b32 v21, s38, v19")
    A("v_lshl_add_u32 v20, v21, 5, v20")
    A("v_and_b32 v21, 3, v1")
    A("v_lshl_add_u32 v3, v21, 3, v20")
    for a in range(1, 4): A(f"v_xor_b32 v{3+a}, {32*a}, v3")
    ACC3 = 88; FS = [24, 56]; AO = 8; AW = 9
    for i in range(0, 64, 2): A(f"v_mov_b64 v[{ACC3+i}:{ACC3+i+1}], 0")
    for i in range(0, 32, 2): A(f"v_mov_b64 v[{FS[1]+i}:{FS[1]+i+1}], 0")
    A("v_lshlrev_b32 v22, 12, v17")
    A("v_and_b32 v21, 1, v18")
    A("v_lshl_add_u32 v22, v21, 5, v22")
    A("v_lshrrev_b32 v21, 1, v18")
    A("v_lshl_add_u32 v22, v21, 4, v22")
    A("s_lshl_b32 s38, s17, 7")
    A("s_lshl_b32 s36, s36, 6")
    A("s_add_u32 s36, s36, s38")
    A("s_lshl_b32 s36, s36, 12")
    A("s_lshl_b32 s38, s16, 11")
    A("s_add_u32 s36, s36, s38")
    A("s_lshl_b32 s38, s18, 8")
    A("s_add_u32 s36, s36, s38")
    A("s_lshl_b32 s37, s37, 7")
    A("s_add_u32 s40, s36, s37")
    for st in range(1, 4): A(f"s_add_u32 s{40+st}, s40, {st*16*4096}")
    A(f"s_mov_b32 s8, s{P_OUT}")
    A(f"s_mov_b32 s9, s{P_OUT+1}")
    A(f"s_mov_b32 s10, {2048*4096}")
    def of(s, st): return FS[s] + 4*st
    def wf3(s, a): return FS[s] + 16 + 4*a
    def acc3(st, a): return ACC3 + (st*4+a)*4
    def rd_items(hh, s):
        L_ = [('rd', f"ds_read_b128 {vr(of(s,0),4)}, v{AO} offset:{hh*2048}", f"o{s}_0")]
        for i in range(4):
            for half in range(2):
                L_.append(('rd', f"ds_read_b64_tr_b16 {vr(wf3(s,i)+2*half,2)}, v{AW+i} offset:{hh*8192+half*2048}", f"w{s}_{i}"))
        for i in range(1, 4):
            L_.append(('rd', f"ds_read_b128 {vr(of(s,i),4)}, v{AO} offset:{(i>>1)*4096+hh*2048+(i&1)*256}", f"o{s}_{i}"))
        return L_
    def mf_items(s):
        L_ = []
        for st in range(4):
            for a in (range(4) if st % 2 == 0 else range(3, -1, -1)):
                needs = [f"o{s}_{st}", f"w{s}_{a}"]
                if st == 0 and a == 0: needs += [f"w{s}_{i}" for i in range(4)] + [f"o{s}_{i}" for i in range(4)]
                L_.append(('op', M16(acc3(st, a), wf3(s, a), of(s, st), acc3(st, a)), needs))
        return L_
    upd = [f"s_add_u32 s23, s23, {S3}", f"s_cmp_eq_u32 s23, {W3}", "s_cselect_b32 s23, 0, s23", f"v_add_u32 v{AO}, s23, v2",
           f"s_add_u32 s22, s22, {S3}", f"s_cmp_eq_u32 s22, {LDS_BYTES}", f"s_cselect_b32 s22, {W3}, s22", "s_sub_u32 s38, s38, 1"] + \
          [f"v_add_u32 v{AW+a}, s22, v{3+a}" for a in range(4)] + ["s_cmp_lg_u32 s38, 0"]
    upd = [('raw', u) for u in upd]
    items = [('all', "s_barrier")] + interleave(mf_items(1), rd_items(0, 0), [2] * 16)
    items += interleave(mf_items(0), rd_items(1, 1) + upd, [2] * 16)
    body, _ = schedule_waits(items, passes=2)
    A("s_mov_b32 s23, 0")
    A(f"s_mov_b32 s22, {W3}")
    A("s_mov_b32 s38, 16")
    A(f"v_mov_b32 v{AO}, v2")
    for a in range(4): A(f"v_add_u32 v{AW+a}, s22, v{3+a}")
    if stamp:
        A("s_barrier"); ST(8); A("s_branch P3_first")
    A(".p2align 6")
    A.label("P3_loop")
    for i, l in enumerate(body):
        A(l)
        if l == "s_barrier" and stamp: A.label("P3_first")
    A("s_cbranch_scc1 P3_loop")
    A("s_waitcnt lgkmcnt(0)")
    for it in mf_items(1): A(it[1])
    ST(9)
    n = 0
    for st in range(4):
        for pr in range(2):
            p = 24 + n * 4; n += 1
            for u in range(2):
                d = acc3(st, 2*pr+u)
                A(f"v_cvt_pk_bf16_f32 v{p+2*u}, v{d}, v{d+1}")
                A(f"v_cvt_pk_bf16_f32 v{p+2*u+1}, v{d+2}, v{d+3}")
        A("s_nop 1")
        for pr in range(2):
            p = 24 + (n - 2 + pr) * 4
            A(f"v_permlane16_swap_b32 v{p}, v{p+2}")
            A(f"v_permlane16_swap_b32 v{p+1}, v{p+3}")
            A(f"buffer_store_dwordx4 {vr(p,4)}, v22, s[8:11], s{40+st} offen offset:{pr*64}{SC}")
    if stamp:
        A("s_waitcnt vmcnt(0)")
        ST(10)
        if opts.get("dbgout") is not None:
            A(f"s_cmp_lg_u32 s2, {opts['dbgout']}")
            A("s_cbranch_scc1 L_nodbg")
            A("s_cmp_lg_u32 s19, 0")
            A("s_cbranch_scc1 L_nodbg")
            for i in range(1, 11):
                A(f"s_sub_u32 s36, s{50+i}, s50")
                A("v_mov_b32 v3, s36")
                A(f"buffer_store_dword v3, off, s[72:75], 0 offset:{4*i}")
            A.label("L_nodbg")
        A("s_lshl_b32 s36, s2, 2")
        A("s_add_u32 s36, s36, s19")
        A("s_lshl_b32 s36, s36, 6")
        A(f"s_add_u32 s36, s36, {64<<20}")
        A("s_mov_b32 s14, 0x8000000")
        for i in range(12):
            A(f"v_mov_b32 v3, s{50+i}")
            A(f"buffer_store_dword v3, off, s[12:15], s36 offset:{4*i}")
    A("s_endpgm")
    def ring_loader(tag, nslots, base, issue, pre):
        A(f"s_mov_b32 s23, {base}")
        A("s_mov_b32 s38, 0")
        A.label(f"{tag}_go2")
        issue()
        A("s_add_u32 s38, s38, 1")
        A(f"s_add_u32 s23, s23, {S3}")
        A(f"s_cmp_eq_u32 s23, {base + nslots*S3}")
        A(f"s_cselect_b32 s23, {base}, s23")
        A(f"s_cmp_eq_u32 s38, {pre}")
        A(f"s_cbranch_scc0 {tag}_l1")
        A(f"s_waitcnt vmcnt({min(63, 16*(pre-1))})")
        A("s_barrier")
        A.label(f"{tag}_l1")
        A(f"s_cmp_lt_u32 s38, {nslots}")
        A(f"s_cbranch_scc1 {tag}_go2")
        A(f"s_waitcnt vmcnt({min(63, 16*(nslots-2))})")
        A("s_barrier")
        A("s_cmp_lt_u32 s38, 16")
        A(f"s_cbranch_scc1 {tag}_go2")
        for j in range(nslots - 2):
            A(f"s_waitcnt vmcnt({min(63, 16*(nslots-3-j))})")
            A("s_barrier")
        if stamp:
            A("s_lshl_b32 s36, s2, 1")
            A("s_lshr_b32 s37, s19, 3")
            A("s_add_u32 s36, s36, s37")
            A("s_lshl_b32 s36, s36, 6")
            A(f"s_add_u32 s36, s36, {65<<20}")
            A("s_mov_b32 s14, 0x8000000")
            for i in range(3):
                A(f"v_mov_b32 v3, s{50+i}")
                A(f"buffer_store_dword v3, off, s[12:15], s36 offset:{4*i}")
        A("s_endpgm")
    A.label("P3_oload")
    A("s_lshl_b32 s36, s16, 22")
    A("s_lshl_b32 s37, s17, 18")
    A("s_add_u32 s36, s36, s37")
    A(f"s_add_u32 s36, s36, {WS_O}")
    A(f"s_add_u32 s4, s{P_WS}, s36")
    A(f"s_addc_u32 s5, s{P_WS+1}, 0")
    A("s_mov_b32 s6, 0x40000")
    A("s_lshl_b32 s21, s34, 13")
    poll("P3_o", 128, 32, 2)
    def o_issue():
        for t in range(4):
            A(f"s_add_u32 m0, s23, {t*4096}")
            A(f"s_add_u32 s20, s21, {t*65536}")
            for i in range(4): A(f"buffer_load_dwordx4 v1, s[4:7], s20 offen offset:{1024*i}{LD} lds")
        A("s_add_u32 s21, s21, 4096")
        A("s_and_b32 s21, s21, 0xffff")
    ring_loader("P3_o", NO, 0, o_issue, opts.get("opre", 2))

    A.label("P2_fallback")
    A("s_mov_b32 s24, 1")
    for x in range(2): A(f"v_mov_b32 v{MX[x]}, 0xff800000")
    A("s_mov_b32 s21, 0")
    A.label("P2_maxloop")
    A(f"buffer_load_dwordx4 {vr(KF,4)}, v31, s[4:7], s21 offen{LD}")
    A(f"buffer_load_dwordx4 {vr(KF+4,4)}, v31, s[4:7], s21 offen offset:256{LD}")
    A("s_waitcnt vmcnt(0)")
    for x in range(2): A(M32(SX[x], KF, Q[x], None))
    for x in range(2): A(M32(SX[x], KF+4, Q[x]+4, SX[x]))
    A("s_nop 7")
    A("s_nop 3")
    for x in range(2):
        for i in range(8): A(f"v_max3_f32 v{MX[x]}, v{SX[x]+2*i}, v{SX[x]+2*i+1}, v{MX[x]}")
    A("s_add_u32 s21, s21, 4096")
    A("s_cmp_lt_u32 s21, 0x40000")
    A("s_cbranch_scc1 P2_maxloop")
    for x in range(2):
        A(f"v_mov_b32 v6, v{MX[x]}")
        A("s_nop 1")
        A(f"v_permlane32_swap_b32 v{MX[x]}, v6")
        A("s_nop 1")
        A(f"v_max_f32 v{MX[x]}, v{MX[x]}, v6")
    A("s_barrier")
    A("s_branch P2_restart")

    A.label("P2_helpers")
    p2_ids()
    A("v_lshlrev_b32 v1, 4, v1")
    A("s_lshl_b32 s26, s16, 6")
    A("s_lshl_b32 s27, s17, 3")
    A("s_add_u32 s26, s26, s27")
    A("v_lshrrev_b32 v41, 4, v1")
    A("v_lshrrev_b32 v42, 3, v41")
    A("v_and_b32 v42, 1, v42")
    A("s_lshl_b32 s40, s17, 1")
    A("v_add_u32 v42, s40, v42")
    A("v_lshrrev_b32 v40, 3, v42")
    A("v_and_b32 v42, 7, v42")
    A("v_lshl_add_u32 v40, v42, 3, v40")
    A("v_and_b32 v42, 3, v41")
    A("v_lshl_add_u32 v40, v42, 6, v40")
    A("v_and_b32 v42, 4, v41")
    A("v_lshrrev_b32 v42, 1, v42")
    A("v_add_u32 v40, v40, v42")
    A("v_and_b32 v42, 16, v41")
    A("v_lshrrev_b32 v42, 2, v42")
    A("v_add_u32 v40, v40, v42")
    A("s_lshl_b32 s40, s16, 2")
    A(f"s_add_u32 s40, s40, {WS_F + 128}")
    A("v_lshlrev_b32 v40, 8, v40")
    A("v_add_u32 v40, s40, v40")
    A("s_cmp_eq_u32 s19, 9")
    A("s_cbranch_scc1 P2_aux")
    A("s_lshl_b32 s27, s26, 11")
    A("s_barrier")
    poll("P2_k", 0, 8, 2)
    A.label("P2_lstart")
    def l_stage():
        for g in range(4):
            A(f"s_add_u32 m0, s22, {g * 4096}")
            A(f"s_add_u32 s20, s21, {(g >> 1) * 131072 + (g & 1) * 4096}")
            for i in range(4):
                A(f"buffer_load_dwordx4 v1, s[4:7], s20 offen offset:{1024*i}{LD} lds")
        A("s_add_u32 s21, s21, 8192")
        A(f"s_add_u32 s22, s22, {STG}")
        A(f"s_cmp_eq_u32 s22, {RING}")
        A("s_cselect_b32 s22, 0, s22")
    for g in range(4):
        A(f"s_mov_b32 m0, {BREG + g * 4096}")
        A(f"s_add_u32 s20, s27, {g * 4096}")
        for i in range(4):
            A(f"buffer_load_dwordx4 v1, s[12:15], s20 offen offset:{1024*i}{LD} lds")
    A("s_mov_b32 s21, 0")
    A("s_mov_b32 s22, 0")
    A("s_mov_b32 s23, 0")
    KPRE = opts.get("kpre", 2)
    A.label("P2_lloop")
    l_stage()
    A("s_add_u32 s23, s23, 1")
    A(f"s_cmp_eq_u32 s23, {KPRE}")
    A("s_cbranch_scc0 P2_l1")
    A(f"s_waitcnt vmcnt({16*(KPRE-1)})")
    A("s_barrier")
    A.label("P2_l1")
    A("s_cmp_lt_u32 s23, 5")
    A("s_cbranch_scc1 P2_lloop")
    A("s_waitcnt vmcnt(48)")
    A("s_barrier")
    A("s_cmp_lt_u32 s23, 16")
    A("s_cbranch_scc1 P2_lloop")
    for n_ in (32, 16, 0):
        A(f"s_waitcnt vmcnt({n_})"); A("s_barrier")
    A("s_barrier")
    A("s_branch P2_htail")
    A.label("P2_aux")
    A("s_mul_i32 s26, s26, 6144")
    A(f"s_add_u32 s26, s26, {WS_B - 4096}")
    A("s_add_u32 s27, s26, 6144")
    A("s_cmp_eq_u32 s17, 0")
    A("s_cselect_b32 s27, s27, s26")
    poll_cnt("P2_c", 256, 2)
    A("v_mov_b32 v7, 0xff800000")
    for q in range(24):
        m = bmask(q, False) if q < 16 else bmask(q - 8, True)
        A(f"s_mov_b32 s40, {m & 0xffffffff}")
        A(f"s_mov_b32 s41, {m >> 32}")
        A(f"v_cndmask_b32 v{16+q}, v7, 0, s[40:41]")
    A(f"v_add_u32 v3, {MASKT}, v1")
    A("s_barrier")
    signal(10, 16, 2)
    for q in range(6): A(f"ds_write_b128 v3, {vr(16+4*q,4)} offset:{1024*q}")
    A("s_waitcnt lgkmcnt(0)")
    A.label("P2_astart")
    for i in range(9): A("s_barrier")
    poll("P2_b", 32, 8, 4)
    for grp in ((0, 4), (4, 8), (8, 11), (11, 13)):
        for g in range(*grp):
            A(f"s_mov_b32 m0, {BREG + g * 4096}")
            if g == 0: A("s_mov_b32 s20, s27")
            else: A(f"s_add_u32 s20, s26, {g * 4096}")
            for i in range(4):
                A(f"buffer_load_dwordx4 v1, s[12:15], s20 offen offset:{1024*i}{LD} lds")
        A("s_barrier")
    for i in range(3): A("s_barrier")
    A("s_waitcnt vmcnt(0)")
    A("s_barrier")
    A.label("P2_htail")
    A("s_barrier")
    A("s_cmp_lg_u32 s24, 0")
    A("s_cbranch_scc1 P2_hfin")
    read_flags(8)
    A("s_waitcnt lgkmcnt(0)")
    or_flags(8, 44)
    A("s_nop 3")
    A("s_cmp_eq_u32 s44, 0")
    A("s_cbranch_scc1 P2_hfin")
    A("s_mov_b32 s24, 1")
    A("s_barrier")
    A("s_cmp_eq_u32 s19, 9")
    A("s_cbranch_scc1 P2_astart")
    A("s_branch P2_lstart")
    A.label("P2_hfin")
    A("s_cmp_eq_u32 s19, 9")
    A("s_cbranch_scc0 P3_wload")
    A("s_barrier")
    signal(40, 32, 2)
    A("s_endpgm")
    A.label("P3_wload")
    p3_ids()
    A("v_lshrrev_b32 v1, 4, v1")
    A("s_lshl_b32 s39, s18, 8")
    A(f"s_sub_u32 s6, {1024*2048}, s39")
    A("v_lshrrev_b32 v3, 4, v1")
    A("v_lshlrev_b32 v4, 1, v3")
    A("v_and_b32 v5, 15, v1")
    A("v_xor_b32 v4, v4, v5")
    A("v_lshlrev_b32 v4, 4, v4")
    A("v_lshl_add_u32 v5, v3, 11, v4")
    A("v_xor_b32 v6, 128, v5")
    A(f"v_add_u32 v6, {8192-1024}, v6")
    A(f"v_add_u32 v7, {16384-2048}, v5")
    A(f"v_add_u32 v8, {16384-2048}, v6")
    A("s_cmp_eq_u32 s16, 0")
    A(f"s_cselect_b32 s4, s{P_AWO}, s{P_BWO}")
    A(f"s_cselect_b32 s5, s{P_AWO+1}, s{P_BWO+1}")
    A("s_add_u32 s4, s4, s39")
    A("s_addc_u32 s5, s5, 0")
    A("s_lshl_b32 s21, s34, 18")
    A("s_barrier")
    def w_issue():
        for q in range(4):
            A(f"s_add_u32 m0, s23, {q*4096}")
            A(f"s_add_u32 s20, s21, {q*32768}")
            for i in range(4): A(f"buffer_load_dwordx4 v{5+i}, s[4:7], s20 offen offset:{1024*i} lds")
        A("s_add_u32 s21, s21, 0x20000")
        A("s_and_b32 s21, s21, 0x1fffff")
    ring_loader("P3_w", NW, W3, w_issue, NW)
    A.label("L_done")
    A("s_endpgm")
    hdr = ("; concat_heads__mha_block__sliding_local_dilated__prompt : fused single-launch kernel (generated by gen/mega.py)\n"
           "; Kernarg: 0 A_x, 8 A_wqkv, 16 A_wo, 24 B_x, 32 B_wqkv, 40 B_wo, 48 out, 56 debug, 64 ws\n"
           f"; @launch grid=(256,1,1) block=(640,1,1) lds={LDS_BYTES}\n")
    return hdr + A.text() + '.section .rodata,"a"\n' + descriptor(NAME, 168, 102)

if __name__ == "__main__":
    opts = json.loads(sys.argv[2]) if len(sys.argv) > 2 else {}
    open(sys.argv[1], "w").write(gen(opts))
```

```python
import sys, os, json, struct, math
sys.path.insert(0, os.path.dirname(os.path.abspath(__file__)))
from asmlib import *

NAME = "concat_heads__mha_block__sliding_local_dilated__prompt_kernel"
WS_Q = 0
WS_KV = 4 << 20
WS_B = 12 << 20
WS_O = 24 << 20
WS_F = 32 << 20
WS_BYTES = (32 << 20) + 65536
QSCALE = (32 ** -0.5) * math.log2(math.e)
LDS_BYTES = 163840
def f32bits(x): return struct.unpack("<I", struct.pack("<f", x))[0]
def M32(d, a, b, c):
    cs = "0" if c is None else vr(c, 16)
    return f"v_mfma_f32_32x32x16_bf16 {vr(d,16)}, {vr(a,4)}, {vr(b,4)}, {cs}"
def M16(d, a, b, c):
    return f"v_mfma_f32_16x16x32_bf16 {vr(d,4)}, {vr(a,4)}, {vr(b,4)}, {vr(c,4)}"

P_AX, P_AW, P_AWO, P_BX, P_BW, P_BWO, P_OUT, P_DBG, P_WS = 76, 78, 80, 82, 84, 86, 88, 90, 92

def gen(opts=None):
    opts = opts or {}
    A = Asm()
    stamp = opts.get("stamp", False)
    SC = " sc1"
    LD = opts.get("ld_mod", " sc1")
    def ST(i):
        if stamp:
            A("s_memrealtime s[100:101]")
            A("s_waitcnt lgkmcnt(0)")
            A(f"s_mov_b32 s{50+i}, s100")
    def lane(dst):
        A(f"v_mbcnt_lo_u32_b32 v{dst}, -1, 0")
        A(f"v_mbcnt_hi_u32_b32 v{dst}, -1, v{dst}")
    def poll_cnt(tag, target, vtmp):
        A(f"s_mov_b32 s47, {opts.get('poll_max', 30000)}")
        A.label(f"{tag}_poll")
        A(f"buffer_load_dword v{vtmp}, off, s[72:75], 0 sc1")
        A("s_waitcnt vmcnt(0)")
        A(f"v_readfirstlane_b32 s46, v{vtmp}")
        A("s_sub_u32 s47, s47, 1")
        A("s_cmp_eq_u32 s47, 0")
        A(f"s_cbranch_scc1 {tag}_go")
        A(f"s_cmp_ge_u32 s46, {target}")
        A(f"s_cbranch_scc1 {tag}_go")
        A("s_sleep 8")
        A(f"s_branch {tag}_poll")
        A.label(f"{tag}_go")
    def poll(tag, off, nflags, vtmp):
        A(f"s_mov_b32 s47, {opts.get('poll_max', 30000)}")
        A("s_lshl_b32 s46, s2, 8")
        A(f"s_add_u32 s46, s46, {WS_F + off}")
        A(f"v_lshrrev_b32 v{vtmp+1}, 2, v1")
        A(f"v_and_b32 v{vtmp+1}, {4*nflags-1}, v{vtmp+1}")
        ST(0)
        A.label(f"{tag}_poll")
        A(f"buffer_load_dword v{vtmp}, v{vtmp+1}, s[12:15], s46 offen sc1")
        A("s_sub_u32 s47, s47, 1")
        A("s_waitcnt vmcnt(0)")
        A(f"v_cmp_eq_u32 vcc, 0, v{vtmp}")
        A("s_cmp_eq_u32 s47, 0")
        A(f"s_cbranch_scc1 {tag}_go")
        A("s_cmp_eq_u64 vcc, 0")
        A(f"s_cbranch_scc1 {tag}_go")
        if opts.get('poll_sleep', 1): A(f"s_sleep {opts.get('poll_sleep', 1)}")
        A(f"s_branch {tag}_poll")
        A.label(f"{tag}_go")
        ST(1)
        if stamp: A("s_mov_b32 s52, s47")
    def signal(vaddr, nl, vtmp):
        A(f"v_mov_b32 v{vtmp}, 1")
        A(f"s_mov_b64 exec, {(1 << nl) - 1}")
        A(f"buffer_store_dword v{vtmp}, v{vaddr}, s[12:15], 0 offen sc1")
        A("s_mov_b64 exec, -1")

    A('.amdgcn_target "amdgcn-amd-amdhsa--gfx950"')
    A(".text")
    kernel_begin(A, NAME)
    if opts.get("padto"):
        A("s_memrealtime s[98:99]")
    A("s_load_dwordx16 s[76:91], s[0:1], 0")
    A("s_load_dwordx2 s[92:93], s[0:1], 64")
    A("v_lshrrev_b32 v14, 6, v0")
    A("v_and_b32 v1, 63, v0")
    A("v_readfirstlane_b32 s19, v14")
    A("s_cmp_ge_u32 s2, 256")
    A("s_cbranch_scc1 L_done")
    XSLOT = 32768; WBASE = 3 * XSLOT; WSLOT = 12288; WEND = WBASE + 5 * WSLOT
    A("s_and_b32 s34, s2, 7")
    A("s_lshr_b32 s35, s2, 3")
    A("s_lshr_b32 s16, s34, 2")
    A("s_and_b32 s17, s34, 1")
    A("s_lshl_b32 s17, s17, 2")
    A("s_and_b32 s36, s35, 3")
    A("s_add_u32 s17, s17, s36")
    A("s_lshr_b32 s18, s34, 1")
    A("s_and_b32 s18, s18, 1")
    A("s_lshl_b32 s18, s18, 3")
    A("s_lshr_b32 s36, s35, 2")
    A("s_add_u32 s18, s18, s36")
    A(f"s_mov_b32 s14, {WS_BYTES}")
    A("s_mov_b32 s15, 0x20000")
    A("s_mov_b32 s74, 256")
    A("s_mov_b32 s75, 0x20000")
    A("s_mov_b32 s7, 0x20000")
    A("s_mov_b32 s11, 0x20000")
    def common_srds():
        A(f"s_mov_b32 s12, s{P_WS}")
        A(f"s_mov_b32 s13, s{P_WS+1}")
        A(f"s_mov_b32 s72, s{P_DBG}")
        A(f"s_mov_b32 s73, s{P_DBG+1}")
    A("s_cmp_lt_u32 s19, 8")
    A("s_cbranch_scc1 P1_compute")
    A("s_lshr_b32 s49, s34, 1")
    A("s_xor_b32 s49, s49, s34")
    A("s_and_b32 s49, s49, 1")
    A("s_lshl_b32 s49, s49, 10")
    A("s_lshl_b32 s23, s16, 9")
    A("s_add_u32 s49, s49, s23")
    A("s_and_b32 s23, s34, 1")
    A("s_lshl_b32 s23, s23, 8")
    A("s_add_u32 s49, s49, s23")
    A("s_add_u32 s48, s17, s18")
    A("s_and_b32 s48, s48, 1")
    A("v_lshrrev_b32 v15, 3, v1")
    A("v_lshrrev_b32 v16, 4, v1")
    A("v_and_b32 v18, 7, v1")
    A("s_mov_b32 s40, 0")
    A("s_cmp_eq_u32 s19, 8")
    A("s_cbranch_scc1 P1_xload")
    A("s_lshl_b32 s39, s18, 7")
    A(f"s_sub_u32 s6, {1024*6144}, s39")
    A("v_and_b32 v16, 1, v16")
    A("v_lshlrev_b32 v16, 1, v16")
    A("v_xor_b32 v16, v18, v16")
    A("v_lshlrev_b32 v16, 4, v16")
    A("v_mul_u32_u24 v17, 6144, v15")
    A("v_add_u32 v2, v17, v16")
    A("v_xor_b32 v16, 64, v16")
    A("v_add_u32 v3, v17, v16")
    A(f"v_add_u32 v3, {8*6144-1024}, v3")
    A(f"v_add_u32 v4, {16*6144-2048}, v2")
    A(f"v_add_u32 v5, {16*6144-2048}, v3")
    A("s_lshl_b32 s48, s48, 1")
    A(f"s_mov_b32 s22, {WBASE}")
    A("v_lshlrev_b32 v20, 2, v1")
    A("v_mov_b32 v21, 0")
    A("v_mov_b32 v22, 1")
    A("s_lshl_b32 s45, s2, 8")
    A(f"s_add_u32 s45, s45, {WS_F}")
    A("s_and_b32 s44, s35, 7")
    A("s_lshl_b32 s44, s44, 1")
    A("s_add_u32 s44, s44, 9")
    A("s_cmp_eq_u32 s16, 0")
    A("s_waitcnt lgkmcnt(0)")
    A(f"s_cselect_b32 s4, s{P_AW}, s{P_BW}")
    A(f"s_cselect_b32 s5, s{P_AW+1}, s{P_BW+1}")
    A("s_add_u32 s4, s4, s39")
    A("s_addc_u32 s5, s5, 0")
    common_srds()
    A("s_branch P1_wgo")
    A.label("P1_wclr")
    A("buffer_store_dword v21, v20, s[12:15], s45 offen sc1")
    A.label("P1_wwait")
    A("s_waitcnt vmcnt(12)")
    A("s_barrier")
    A("s_cmp_eq_u32 s40, s44")
    A("s_cbranch_scc0 P1_wgo")
    A("s_waitcnt vmcnt(0)")
    A("s_mov_b64 exec, 1")
    A("buffer_atomic_add v22, off, s[72:75], 0 sc1")
    A("s_mov_b64 exec, -1")
    A.label("P1_wgo")
    A("s_xor_b32 s23, s40, s48")
    A("s_lshl_b32 s23, s23, 6")
    A("s_add_u32 s23, s23, s49")
    A("s_and_b32 s23, s23, 2047")
    A("s_mul_i32 s20, s23, 3072")
    for ty in range(3):
        A(f"s_add_u32 m0, s22, {ty*4096}")
        if ty: A("s_add_u32 s20, s20, 2048")
        else: A("s_add_u32 s40, s40, 1")
        for i in range(4):
            A(f"buffer_load_dwordx4 v{2+i}, s[4:7], s20 offen offset:{1024*i} lds")
    A(f"s_add_u32 s22, s22, {WSLOT}")
    A(f"s_cmp_eq_u32 s22, {WEND}")
    A(f"s_cselect_b32 s22, {WBASE}, s22")
    WPRE = opts.get("wpre", 3)
    A(f"s_cmp_eq_u32 s40, {WPRE}")
    A("s_cbranch_scc0 P1_w1")
    A(f"s_waitcnt vmcnt({12*(WPRE-2)})")
    A("s_barrier")
    A.label("P1_w1")
    A("s_cmp_lt_u32 s40, 5")
    A("s_cbranch_scc1 P1_wgo")
    A("s_bitcmp0_b32 s40, 0")
    A("s_cbranch_scc1 P1_w2")
    A("s_cmp_eq_u32 s40, 5")
    A("s_cbranch_scc1 P1_wclr")
    A("s_branch P1_wwait")
    A.label("P1_w2")
    A("s_cmp_lt_u32 s40, 32")
    A("s_cbranch_scc1 P1_wgo")
    A("s_branch P1_ltail")
    A.label("P1_xload")
    A("s_mov_b32 s6, 0x80000")
    A("s_lshl_b32 s36, s17, 19")
    A("v_xor_b32 v17, v18, v16")
    A("v_lshlrev_b32 v17, 4, v17")
    A("v_lshl_add_u32 v2, v15, 11, v17")
    A("v_xor_b32 v3, 64, v2")
    A(f"v_add_u32 v3, {16384-1024}, v3")
    A(f"v_add_u32 v4, {32768-2048}, v2")
    A(f"v_add_u32 v5, {32768-2048}, v3")
    A("s_mov_b32 s22, 0")
    A("s_cmp_eq_u32 s16, 0")
    A("s_waitcnt lgkmcnt(0)")
    A(f"s_cselect_b32 s4, s{P_AX}, s{P_BX}")
    A(f"s_cselect_b32 s5, s{P_AX+1}, s{P_BX+1}")
    A("s_add_u32 s4, s4, s36")
    A("s_addc_u32 s5, s5, 0")
    A.label("P1_xgo")
    A("s_xor_b32 s21, s40, s48")
    A("s_lshl_b32 s21, s21, 7")
    A("s_add_u32 s21, s21, s49")
    A("s_and_b32 s21, s21, 2047")
    XB0 = opts.get("xb0", 4)
    for q in range(8):
        A(f"s_add_u32 m0, s22, {q*4096}")
        A(f"s_add_u32 s20, s21, {q*65536}")
        if q == XB0:
            A("s_cmp_eq_u32 s40, 1")
            A("s_cbranch_scc0 P1_x0")
            A(f"s_waitcnt vmcnt({4*XB0})")
            A("s_barrier")
            A.label("P1_x0")
        for i in range(4):
            A(f"buffer_load_dwordx4 v{2+i}, s[4:7], s20 offen offset:{1024*i} lds")
    A(f"s_add_u32 s22, s22, {XSLOT}")
    A(f"s_cmp_eq_u32 s22, {3*XSLOT}")
    A("s_cselect_b32 s22, 0, s22")
    A("s_add_u32 s40, s40, 1")
    A(f"s_cmp_lt_u32 s40, {2 if XB0 == 8 else 3}")
    A("s_cbranch_scc1 P1_xgo")
    A("s_waitcnt vmcnt(32)")
    A("s_barrier")
    A("s_cmp_lt_u32 s40, 16")
    A("s_cbranch_scc1 P1_xgo")
    A.label("P1_ltail")
    A("s_waitcnt vmcnt(0)")
    A("s_barrier")
    common_srds()
    A("v_lshrrev_b32 v10, 3, v1")
    A("s_lshl_b32 s45, s18, 1")
    A("v_add_u32 v10, s45, v10")
    A("v_and_b32 v11, 3, v10")
    A("v_lshrrev_b32 v10, 2, v10")
    A("v_lshl_add_u32 v10, v11, 3, v10")
    A("v_and_b32 v11, 7, v1")
    A("v_lshl_add_u32 v10, v11, 5, v10")
    A("s_lshl_b32 s45, s16, 3")
    A("s_add_u32 s45, s45, s17")
    A("s_lshl_b32 s45, s45, 2")
    A(f"s_add_u32 s45, s45, {WS_F}")
    A("v_lshlrev_b32 v10, 8, v10")
    A("v_add_u32 v10, s45, v10")
    A("s_barrier")
    A("s_branch P2_helpers")
    A.label("P1_compute")
    if opts.get("code_pf", 1):
        A("s_getpc_b64 s[40:41]")
        A("v_and_b32 v20, 127, v0")
        A("v_lshlrev_b32 v20, 7, v20")
        A("v_min_u32 v20, L_done-P1_compute-64, v20")
        A("s_cmp_lt_u32 s19, 2")
        A("s_cbranch_scc0 P1_nopf")
        A("global_load_dword v21, v20, s[40:41]")
        A.label("P1_nopf")
    ST(0)
    A("v_lshrrev_b32 v15, 1, v14")
    A("v_and_b32 v16, 15, v1")
    A("v_lshl_add_u32 v17, v15, 6, v16")
    A("v_lshlrev_b32 v17, 7, v17")
    A("v_lshrrev_b32 v16, 1, v16")
    A("v_lshrrev_b32 v18, 4, v1")
    A("v_xor_b32 v16, v16, v18")
    A("v_lshl_add_u32 v2, v16, 4, v17")
    A("v_xor_b32 v3, 64, v2")
    A("v_lshrrev_b32 v16, 2, v1")
    A("v_and_b32 v16, 3, v16")
    A("v_lshl_add_u32 v17, v18, 3, v16")
    A("v_lshlrev_b32 v17, 7, v17")
    A("v_lshrrev_b32 v16, 1, v16")
    A("v_and_b32 v19, 1, v18")
    A("v_lshl_add_u32 v16, v19, 1, v16")
    A("v_and_b32 v19, 1, v14")
    A("v_lshlrev_b32 v19, 1, v19")
    A("v_xor_b32 v16, v16, v19")
    A("v_lshl_add_u32 v17, v16, 5, v17")
    A("v_and_b32 v16, 3, v1")
    A("v_lshl_add_u32 v4, v16, 3, v17")
    A("v_xor_b32 v5, 32, v4")
    A("v_lshlrev_b32 v1, 4, v1")
    ACC = 72; XF = 8; WF = [24, 48]
    AX, AW0, AW1 = 0, 6, 7
    for i in range(0, 96, 2): A(f"v_mov_b64 v[{ACC+i}:{ACC+i+1}], 0")
    A("s_and_b32 s36, s19, 1")
    A("s_lshl_b32 s37, s18, 1")
    A("s_add_u32 s36, s36, s37")
    A("s_lshl_b32 s36, s36, 6")
    A("s_lshl_b32 s37, s17, 3")
    A("s_add_u32 s36, s36, s37")
    A("s_lshr_b32 s37, s19, 1")
    A("s_lshl_b32 s37, s37, 1")
    A("s_add_u32 s36, s36, s37")
    A("s_lshl_b32 s64, s36, 11")
    A("s_add_u32 s65, s64, 2048")
    A("s_lshl_b32 s66, s36, 12")
    A(f"s_add_u32 s66, s66, {WS_KV}")
    A("s_add_u32 s67, s66, 4096")
    A("s_add_u32 s68, s66, 2048")
    A("s_add_u32 s69, s66, 6144")
    A("s_mul_i32 s37, s36, 6144")
    A(f"s_add_u32 s37, s37, {WS_B}")
    A("s_cmp_eq_u32 s16, 0")
    A("s_cbranch_scc1 P1_ofs_done")
    for ty in range(3):
        for mt in range(2):
            A(f"s_add_u32 s{64+2*ty+mt}, s37, {ty*2048+mt*6144}")
    A.label("P1_ofs_done")
    A(f"s_mov_b32 s42, {f32bits(QSCALE)}")
    A(f"s_mov_b32 s43, {f32bits(QSCALE)}")
    barpos = opts.get("barpos", 4)
    def xf(st): return XF + 4*st
    def wf(s, n6): return WF[s] + 4*n6
    def acc(st, n6): return ACC + (st*6+n6)*4
    def xrd(st): return ('rd', f"ds_read_b128 {vr(xf(st),4)}, v{AX} offset:{st*2048}", f"x{st}")
    def wrds(s):
        L = []
        for i in range(6):
            ty, nt = i >> 1, i & 1
            for half in range(2):
                L.append(('rd', f"ds_read_b64_tr_b16 {vr(wf(s,i)+2*half,2)}, v{AW0+nt} offset:{ty*4096+half*512}", f"w{s}_{i}"))
        return L
    def mf(s, st, n6):
        d = acc(st, n6)
        t = M16(d, wf(s,n6), xf(st), d) if n6 < 4 else M16(d, xf(st), wf(s,n6), d)
        needs = [f"x{st}", f"w{s}_{n6}"]
        if st == 0 and n6 == 0: needs = ["x0", "x1", "x2"] + [f"w{s}_{i}" for i in range(6)]
        return ('op', t, needs)
    def nextW():
        return [f"s_add_u32 s46, s46, {WSLOT}", f"s_cmp_eq_u32 s46, {WEND}", f"s_cselect_b32 s46, {WBASE}, s46",
                f"v_add_u32 v{AW0}, s46, v4", f"v_add_u32 v{AW1}, s46, v5"]
    A("s_mov_b32 s44, 0")
    A(f"s_mov_b32 s46, {WBASE}")
    A("s_mov_b32 s40, 16")
    A(f"v_mov_b32 v{AX}, v2")
    A(f"v_add_u32 v{AW0}, s46, v4")
    A(f"v_add_u32 v{AW1}, s46, v5")
    A("s_waitcnt lgkmcnt(0)")
    common_srds()
    A("s_waitcnt vmcnt(0)")
    A("s_barrier")
    ST(1)
    items = []
    for sub in range(2):
        s = sub
        ms = [mf(s, st, (q if st % 2 == 0 else 5 - q)) for st in range(4) for q in range(6)]
        wr = wrds(s ^ 1)
        gaps = [[] for _ in range(24)]
        start = 0 if sub == 0 else barpos
        pre = nextW()
        if sub == 0:
            pre += [f"v_add_u32 v{AX}, s44, v3"]
        else:
            pre += [f"s_add_u32 s44, s44, {XSLOT}", f"s_cmp_eq_u32 s44, {3*XSLOT}", "s_cselect_b32 s44, 0, s44", f"v_add_u32 v{AX}, s44, v2",
                    "s_sub_u32 s40, s40, 1"]
        for i, l in enumerate(pre): gaps[min(i // 3, 2 if sub == 0 else barpos - 1)].append(('raw', l))
        if sub == 1: gaps[barpos - 1].append(('all', "s_barrier"))
        g = max(start, 2)
        for r in wr:
            if g in (5, 11, 17): g += 1
            gaps[g].append(r); g += 1
        assert g <= 23, g
        for st in range(4): gaps[6*st+5].append(xrd(st))
        if sub == 1: gaps[22].append(('raw', "s_cmp_lg_u32 s40, 0"))
        for i in range(24):
            items.append(ms[i]); items += gaps[i]
    pro = [it for it in items if it[0] == 'rd'][-16:]
    assert sorted(set(t[2] for t in pro)) == sorted([f"x{i}" for i in range(4)] + [f"w0_{i}" for i in range(6)])
    for it in pro: A(it[1])
    body1, _ = schedule_waits(items, passes=1, init_queue=[t[2] for t in pro])
    A(".p2align 6")
    A.label("P1_loop")
    for l in body1: A(l)
    A("s_cbranch_scc1 P1_loop")
    A("s_waitcnt lgkmcnt(0)")
    ST(2)
    A("s_nop 4")
    n = 0
    def pk():
        nonlocal n
        p = 8 + (n % 16) * 4; n += 1
        return p
    for ty in (1, 2, 0):
        if ty < 2:
            for st in range(4):
                p = pk()
                for nt in range(2):
                    d = acc(st, 2*ty+nt)
                    if ty == 0:
                        for r in (0, 2): A(f"v_pk_mul_f32 v[{d+r}:{d+r+1}], v[{d+r}:{d+r+1}], s[42:43]")
                    A(f"v_cvt_pk_bf16_f32 v{p+2*nt}, v{d}, v{d+1}")
                    A(f"v_cvt_pk_bf16_f32 v{p+2*nt+1}, v{d+2}, v{d+3}")
                A(f"buffer_store_dwordx4 {vr(p,4)}, v1, s[12:15], s{64+2*ty+(st>>1)} offen offset:{(st&1)*1024}{SC}")
        else:
            ps = []
            for mt in range(2):
                for nt in range(2):
                    p = pk(); ps.append((p, mt, nt))
                    for u in range(2):
                        d = acc(2*mt+u, 4+nt)
                        A(f"v_cvt_pk_bf16_f32 v{p+2*u}, v{d}, v{d+1}")
                        A(f"v_cvt_pk_bf16_f32 v{p+2*u+1}, v{d+2}, v{d+3}")
            A("s_nop 1")
            for p, mt, nt in ps:
                A(f"v_permlane16_swap_b32 v{p}, v{p+2}")
                A(f"v_permlane16_swap_b32 v{p+1}, v{p+3}")
                A(f"buffer_store_dwordx4 {vr(p,4)}, v1, s[12:15], s{68+mt} offen offset:{nt*1024}{SC}")
    A("s_waitcnt vmcnt(0)")
    A("s_barrier")
    ST(3)

    NS = 6; STG = 16384; RING = NS * STG; BREG = RING; FLAGS = BREG + 4096 + 8 * 6144; MASKT = FLAGS + 256; XCH = 0
    assert MASKT + 6144 <= LDS_BYTES
    IDX = 4; ONES = 8; KF = 12; VF = 20; MX = [28, 29]; SA = 32; SB = 48
    Q = [64, 72]; L = [80, 84]; O = [96, 112]; NEGM = [128, 144]
    QB = 128; KBP = 136; KBC = 144; VBC = 152; VBP = 12; PK = 16; OB = O[1]; LB = L[1]
    def S32(d, a, b): return f"v_smfmac_f32_32x32x32_bf16 {vr(d,16)}, {vr(a,4)}, {vr(b,8)}, v{IDX}"
    def S16(d, a, b): return f"v_smfmac_f32_16x16x64_bf16 {vr(d,4)}, {vr(a,4)}, {vr(b,8)}, v{IDX}"
    def E(r): return f"v_exp_f32 v{r}, v{r}"
    def key_of(r, hb): return 8 * (r >> 2) + 4 * hb + (r & 3)
    def bmask(r, prev):
        m = 0
        for l in range(64):
            d = (l & 31) - key_of(r, l >> 5) + (32 if prev else 0)
            if 0 <= d <= 14 and d % 2 == 0: m |= 1 << l
        return m
    def rowmax(regs, dst, tmp):
        regs = list(regs)
        A(f"v_max3_f32 v{dst}, v{regs[0]}, v{regs[1]}, v{regs[2]}")
        i = 3
        while i + 1 < len(regs):
            A(f"v_max3_f32 v{dst}, v{regs[i]}, v{regs[i+1]}, v{dst}"); i += 2
        if i < len(regs): A(f"v_max_f32 v{dst}, v{regs[i]}, v{dst}")
        A(f"v_mov_b32 v{tmp}, v{dst}")
        A("s_nop 1")
        A(f"v_permlane32_swap_b32 v{dst}, v{tmp}")
        A("s_nop 1")
        A(f"v_max_f32 v{dst}, v{dst}, v{tmp}")
    def read_flags(r):
        A(f"v_mov_b32 v7, {FLAGS}")
        A(f"ds_read_b128 {vr(r,4)}, v7")
        A(f"ds_read_b128 {vr(r+4,4)}, v7 offset:16")
    def or_flags(r, sdst):
        A(f"v_or3_b32 v{r}, v{r}, v{r+4}, v{r+5}")
        A(f"v_or3_b32 v{r}, v{r}, v{r+6}, v{r+7}")
        A(f"v_or3_b32 v{r}, v{r}, v{r+1}, v{r+2}")
        A(f"v_or_b32 v{r}, v{r}, v{r+3}")
        A("s_nop 0")
        A(f"v_readfirstlane_b32 s{sdst}, v{r}")
    def p2_ids():
        A("s_and_b32 s16, s35, 3")
        A("s_lshl_b32 s36, s34, 2")
        A("s_add_u32 s16, s16, s36")
        A("s_lshr_b32 s17, s35, 2")
        A("s_lshl_b32 s36, s16, 18")
        A(f"s_add_u32 s36, s36, {WS_KV}")
        A(f"s_add_u32 s4, s{P_WS}, s36")
        A(f"s_addc_u32 s5, s{P_WS+1}, 0")
        A("s_mov_b32 s6, 0x40000")
        A("s_mov_b32 s24, 0")
    p2_ids()
    A("v_lshrrev_b32 v6, 4, v1")
    A("s_lshr_b32 s18, s19, 2")
    A("s_and_b32 s20, s19, 3")
    A("s_lshl_b32 s20, s20, 1")
    A("s_add_u32 s20, s20, s18")
    A("s_lshl_b32 s26, s17, 3")
    A("s_add_u32 s26, s26, s20")
    A("s_lshl_b32 s39, s18, 13")
    A("v_and_b32 v31, 15, v6")
    A("v_lshlrev_b32 v31, 4, v31")
    A("v_and_b32 v5, 16, v6")
    A("v_lshl_add_u32 v31, v5, 6, v31")
    A("v_and_b32 v5, 32, v6")
    A("v_lshl_add_u32 v31, v5, 4, v31")
    A("s_lshl_b32 s31, s26, 5")
    A("s_add_u32 s31, s31, s16")
    A("s_lshl_b32 s31, s31, 11")
    A(f"s_add_u32 s31, s31, {WS_O}")
    A(f"v_mov_b32 v{IDX}, 0xdddd")
    A("v_and_b32 v5, 4, v6")
    A("v_cmp_eq_u32 vcc, 0, v5")
    A("v_mov_b32 v7, 0x3f803f80")
    A("v_add_u32 v30, s39, v31")
    A(f"v_cndmask_b32 v{ONES}, 0, v7, vcc")
    A(f"v_cndmask_b32 v{ONES+1}, 0, v7, vcc")
    A(f"v_sub_u32 v{ONES+2}, v7, v{ONES}")
    A(f"v_mov_b32 v{ONES+3}, v{ONES+2}")
    A("s_lshl_b32 s27, s20, 11")
    A(f"s_add_u32 s27, s27, {BREG}")
    A("v_add_u32 v5, s27, v31")
    A("v_xor_b32 v6, 2048, v5")
    A.label("P2_restart")
    for x in range(2):
        for i in range(0, 16, 2): A(f"v_mov_b64 v[{O[x]+i}:{O[x]+i+1}], 0")
        for i in range(0, 4, 2): A(f"v_mov_b64 v[{L[x]+i}:{L[x]+i+1}], 0")
    A("v_mov_b32 v2, v30")
    A(f"s_mov_b32 s25, {STG}")
    A(f"v_add_u32 v3, {STG}, v30")
    A("s_mov_b32 s23, 16")
    A("s_barrier")
    ST(4)
    SX = [SA, SB]
    A("s_cmp_lg_u32 s24, 0")
    A("s_cbranch_scc1 P2_main")
    A(f"ds_read_b128 {vr(VF,4)}, v31 offset:0")
    for x in range(2): A(f"ds_read_b128 {vr(Q[x],4)}, v{5+x}")
    A(f"ds_read_b128 {vr(VF+4,4)}, v31 offset:256")
    for x in range(2): A(f"ds_read_b128 {vr(Q[x]+4,4)}, v{5+x} offset:256")
    A("s_waitcnt lgkmcnt(3)")
    for x in range(2): A(M32(SX[x], VF, Q[x], None))
    A("s_waitcnt lgkmcnt(0)")
    for x in range(2): A(M32(SX[x], VF+4, Q[x]+4, SX[x]))
    A("s_nop 7")
    A("s_nop 2")
    for x in range(2): rowmax(range(SX[x], SX[x]+16), MX[x], 6)
    A.label("P2_main")
    A(f"ds_read_b128 {vr(KF,4)}, v2 offset:0")
    A(f"ds_read_b128 {vr(KF+4,4)}, v2 offset:256")
    A(f"ds_read_b128 {vr(VF,4)}, v2 offset:2048")
    def negm(x):
        A(f"v_sub_f32 v{NEGM[x]}, 0, v{MX[x]}")
        A(f"v_sub_f32 v{NEGM[x]+1}, 0, v{MX[x]}")
        for i in range(2, 16, 2): A(f"v_mov_b64 v[{NEGM[x]+i}:{NEGM[x]+i+1}], v[{NEGM[x]}:{NEGM[x]+1}]")
    negm(0)
    for i in (0, 2): A(f"v_mov_b64 v[{VF+4+i}:{VF+5+i}], 0")
    A("s_waitcnt lgkmcnt(1)")
    A(M32(SA, KF, Q[0], NEGM[0]))
    A(M32(SA, KF+4, Q[0]+4, SA))
    negm(1)
    for i in range(0, 8, 2): A(f"v_mov_b64 v[{SB+8+i}:{SB+9+i}], 0")
    A(E(SA))
    A(".p2align 6")
    A.label("P2_loop")
    def rd(dst, tile, off):
        a, t = ("v2", tile) if tile < 2 else ("v3", tile - 2)
        return f"ds_read_b128 {vr(dst,4)}, {a} offset:{t*4096+off}"
    for u in range(4):
        cur, nxt = (SA, SB) if u % 2 == 0 else (SB, SA)
        i = u // 2; xc = u % 2; xp = xn = xc ^ 1
        if xc == 0:
            w_pv1 = w_qka = w_qkb = None; w_pv0 = 3
            r_pv1 = [rd(VF+4, i, 2304)]; r_qka = [rd(KF, i+1, 0)]; r_qkb = [rd(KF+4, i+1, 256)]; r_pv0 = []
        else:
            w_pv1, w_qka, w_qkb, w_pv0 = 2, 1, 0, None
            r_pv1 = r_qka = r_qkb = []; r_pv0 = [rd(VF, i+1, 2048)]
        bar = (u == 1)
        last = (u == 3)
        def W(n):
            if n is not None: A(f"s_waitcnt lgkmcnt({n})")
        if w_pv1 is None: A("s_nop 0")
        W(w_pv1)
        A(S32(O[xp], VF+4, nxt+8))
        for l in r_pv1: A(l)
        A(E(cur+1)); A(E(cur+2)); A(E(cur+3))
        A(S16(L[xp], ONES, nxt+8))
        A(E(cur+4)); A(E(cur+5))
        W(w_qka)
        A(M32(nxt, KF, Q[xn], NEGM[xn]))
        for l in r_qka: A(l)
        A(E(cur+6)); A(E(cur+7)); A(E(cur+8))
        W(w_qkb)
        A(M32(nxt, KF+4, Q[xn]+4, nxt))
        if bar: A("s_barrier")
        for l in r_qkb: A(l)
        A(E(cur+9)); A(E(cur+10)); A(E(cur+11))
        W(w_pv0)
        A(S32(O[xc], VF, cur))
        for l in r_pv0: A(l)
        A(E(cur+12))
        if last: A(f"s_add_u32 s25, s25, {STG}")
        A(E(cur+13))
        if last: A(f"s_cmp_eq_u32 s25, {RING}")
        A(E(cur+14))
        if last: A("s_cselect_b32 s25, 0, s25")
        A(S16(L[xc], ONES, cur))
        if last:
            A("s_sub_u32 s23, s23, 1")
            A("v_mov_b32 v2, v3")
            A("v_add_u32 v3, s25, v30")
            A("s_cmp_lg_u32 s23, 0")
        else: A("s_nop 0")
        A(E(cur+15)); A(E(nxt))
        if last: A("s_cbranch_scc1 P2_loop")
    A("s_waitcnt lgkmcnt(0)")
    A(S32(O[1], VF+4, SB+8))
    A(S16(L[1], ONES, SB+8))
    ST(5)
    A("s_mul_i32 s36, s20, 6144")
    A(f"s_add_u32 s36, s36, {BREG}")
    A("v_add_u32 v2, s36, v31")
    A(f"v_add_u32 v3, {MASKT}, v1")
    for q in range(4): A(f"ds_read_b128 {vr(SA+4*q,4)}, v3 offset:{1024*q}")
    A(f"ds_read_b128 {vr(QB,4)}, v2 offset:4096")
    A(f"ds_read_b128 {vr(KBC,4)}, v2 offset:6144")
    for q in range(2): A(f"ds_read_b128 {vr(SB+8+4*q,4)}, v3 offset:{4096+1024*q}")
    A(f"ds_read_b128 {vr(KBP,4)}, v2 offset:0")
    A(f"ds_read_b128 {vr(QB+4,4)}, v2 offset:4352")
    A(f"ds_read_b128 {vr(KBC+4,4)}, v2 offset:6400")
    A(f"ds_read_b128 {vr(KBP+4,4)}, v2 offset:256")
    A(f"s_mov_b32 s44, {f32bits(2.0**56)}")
    A(f"v_mul_f32 v5, s44, v{L[0]}")
    for i in range(0, 16, 2): A(f"v_maximum3_f32 v5, |v{O[0]+i}|, |v{O[0]+i+1}|, v5")
    A(f"v_mul_f32 v6, s44, v{L[1]}")
    for i in range(0, 16, 2): A(f"v_maximum3_f32 v6, |v{O[1]+i}|, |v{O[1]+i+1}|, v6")
    A("s_mul_i32 s36, s19, 5120")
    A("v_add_u32 v7, s36, v1")
    A(f"s_mov_b32 s45, {f32bits(2.0**120)}")
    A("v_maximum3_f32 v5, v5, v6, v6")
    A("s_waitcnt lgkmcnt(0)")
    A("v_cmp_ngt_f32 vcc, s45, v5")
    A("s_cmp_lg_u32 s26, 0")
    A("s_cbranch_scc1 P2_t0done")
    A("v_mov_b32 v6, 0xff800000")
    for r in range(8, 16): A(f"v_mov_b32 v{SB+r}, v6")
    A("s_nop 1")
    A.label("P2_t0done")
    A(M32(SA, KBC, QB, SA))
    A(M32(SB, KBP, QB, SB))
    for i in range(4): A(f"ds_write_b128 v7, {vr(O[1]+4*i,4)} offset:{XCH+1024*i}")
    A(f"ds_write_b32 v7, v{L[1]} offset:{XCH+4096}")
    A(M32(SA, KBC+4, QB+4, SA))
    A(M32(SB, KBP+4, QB+4, SB))
    for m in range(2): A(f"ds_read_b128 {vr(VBC+4*m,4)}, v2 offset:{8192+256*m}")
    A(f"ds_read_b128 {vr(VBP,4)}, v2 offset:2304")
    if opts.get("force_fb"): A("s_mov_b64 vcc, -1")
    A("s_cmp_lg_u64 vcc, 0")
    A("s_cselect_b32 s44, 1, 0")
    A("v_mov_b32 v6, s44")
    A("s_lshl_b32 s45, s19, 2")
    A(f"s_add_u32 s45, s45, {FLAGS}")
    A("v_mov_b32 v7, s45")
    A("ds_write_b32 v7, v6")
    A("s_xor_b32 s36, s19, 4")
    A("s_mul_i32 s36, s36, 5120")
    A("v_add_u32 v3, s36, v1")
    A("s_cmp_lg_u32 s24, 0")
    A("s_cbranch_scc1 P2_xchg")
    bregs = list(range(SA, SA+16)) + list(range(SB+8, SB+16))
    rowmax(bregs, 6, 7)
    for r in bregs[::2]: A(f"v_pk_add_f32 v[{r}:{r+1}], v[{r}:{r+1}], v[6:7] op_sel_hi:[1,0] neg_lo:[0,1] neg_hi:[0,1]")
    A("s_waitcnt lgkmcnt(0)")
    for i in range(0, 16, 2): A(f"v_mov_b64 v[{OB+i}:{OB+i+1}], 0")
    for i in range(0, 4, 2): A(f"v_mov_b64 v[{LB+i}:{LB+i+1}], 0")
    for r in bregs[:10]: A(E(r))
    A(S32(OB, VBC, SA))
    for r in bregs[10:13]: A(E(r))
    A(S16(LB, ONES, SA))
    for r in bregs[13:18]: A(E(r))
    A(S32(OB, VBC+4, SA+8))
    for r in bregs[18:21]: A(E(r))
    A(S16(LB, ONES, SA+8))
    for r in bregs[21:24]: A(E(r))
    A("s_nop 1")
    A(S16(LB, ONES, SB+8))
    A(S32(OB, VBP, SB+8))
    A.label("P2_xchg")
    A("s_waitcnt lgkmcnt(0)")
    A("s_barrier")
    A(f"ds_read_b32 v5, v3 offset:{XCH+4096}")
    for i in range(4): A(f"ds_read_b128 {vr(SA+4*i,4)}, v3 offset:{XCH+1024*i}")
    read_flags(SB)
    A(f"s_add_u32 s45, s31, {4<<20}")
    A("s_cmp_lg_u32 s24, 0")
    A("s_cbranch_scc1 P2_nob")
    A(f"v_rcp_f32 v6, v{LB}")
    A("s_nop 2")
    for i in range(0, 16, 2): A(f"v_pk_mul_f32 v[{OB+i}:{OB+i+1}], v[{OB+i}:{OB+i+1}], v[6:7] op_sel_hi:[1,0]")
    for i in range(8): A(f"v_cvt_pk_bf16_f32 v{PK+i}, v{OB+2*i}, v{OB+2*i+1}")
    for m in range(2):
        A(f"buffer_store_dwordx4 {vr(PK+4*m,4)}, v1, s[12:15], s45 offen offset:{1024*m}{SC}")
    A.label("P2_nob")
    A("s_waitcnt lgkmcnt(2)")
    A(f"v_add_f32 v6, v5, v{L[0]}")
    A("v_rcp_f32 v6, v6")
    for i in range(0, 16, 2): A(f"v_pk_add_f32 v[{O[0]+i}:{O[0]+i+1}], v[{SA+i}:{SA+i+1}], v[{O[0]+i}:{O[0]+i+1}]")
    for i in range(0, 16, 2): A(f"v_pk_mul_f32 v[{O[0]+i}:{O[0]+i+1}], v[{O[0]+i}:{O[0]+i+1}], v[6:7] op_sel_hi:[1,0]")
    for i in range(8): A(f"v_cvt_pk_bf16_f32 v{SA+i}, v{O[0]+2*i}, v{O[0]+2*i+1}")
    for m in range(2):
        A(f"buffer_store_dwordx4 {vr(SA+4*m,4)}, v1, s[12:15], s31 offen offset:{1024*m}{SC}")
    A("s_cmp_lg_u32 s24, 0")
    A("s_cbranch_scc1 P2_fin")
    A("s_waitcnt lgkmcnt(0)")
    or_flags(SB, 44)
    A("s_nop 3")
    A("s_cmp_eq_u32 s44, 0")
    A("s_cbranch_scc0 P2_fallback")
    A.label("P2_fin")
    ST(6)
    A("s_waitcnt vmcnt(0)")
    A("s_barrier")
    ST(7)
    A("s_cmp_gt_u32 s19, 4")
    A("s_cbranch_scc1 L_done")

    NO = opts.get("no", 4); NW = 10 - NO; S3 = 16384; W3 = NO * S3
    def p3_ids():
        A("s_lshr_b32 s16, s34, 2")
        A("s_and_b32 s17, s34, 1")
        A("s_lshl_b32 s17, s17, 3")
        A("s_and_b32 s36, s35, 7")
        A("s_add_u32 s17, s17, s36")
        A("s_lshr_b32 s18, s34, 1")
        A("s_and_b32 s18, s18, 1")
        A("s_lshl_b32 s18, s18, 2")
        A("s_lshr_b32 s36, s35, 3")
        A("s_add_u32 s18, s18, s36")
    p3_ids()
    A("s_cmp_eq_u32 s19, 4")
    A("s_cbranch_scc1 P3_oload")
    A("v_lshrrev_b32 v1, 4, v1")
    A("s_lshr_b32 s36, s19, 1")
    A("s_and_b32 s37, s19, 1")
    A("v_lshrrev_b32 v18, 4, v1")
    A("v_and_b32 v17, 15, v1")
    A("v_lshlrev_b32 v2, 4, v17")
    A("v_lshl_add_u32 v2, v18, 9, v2")
    A("s_lshl_b32 s38, s36, 13")
    A("v_add_u32 v2, s38, v2")
    A("v_lshrrev_b32 v19, 2, v1")
    A("v_and_b32 v19, 7, v19")
    A("v_lshrrev_b32 v20, 5, v1")
    A("v_lshl_add_u32 v20, v20, 4, v19")
    A("v_lshlrev_b32 v20, 8, v20")
    A("s_lshl_b32 s38, s37, 2")
    A("v_xor_b32 v21, s38, v19")
    A("v_lshl_add_u32 v20, v21, 5, v20")
    A("v_and_b32 v21, 3, v1")
    A("v_lshl_add_u32 v3, v21, 3, v20")
    for a in range(1, 4): A(f"v_xor_b32 v{3+a}, {32*a}, v3")
    ACC3 = 88; FS = [24, 56]; AO = 8; AW = 9
    for i in range(0, 64, 2): A(f"v_mov_b64 v[{ACC3+i}:{ACC3+i+1}], 0")
    for i in range(0, 32, 2): A(f"v_mov_b64 v[{FS[1]+i}:{FS[1]+i+1}], 0")
    A("v_lshlrev_b32 v22, 12, v17")
    A("v_and_b32 v21, 1, v18")
    A("v_lshl_add_u32 v22, v21, 5, v22")
    A("v_lshrrev_b32 v21, 1, v18")
    A("v_lshl_add_u32 v22, v21, 4, v22")
    A("s_lshl_b32 s38, s17, 7")
    A("s_lshl_b32 s36, s36, 6")
    A("s_add_u32 s36, s36, s38")
    A("s_lshl_b32 s36, s36, 12")
    A("s_lshl_b32 s38, s16, 11")
    A("s_add_u32 s36, s36, s38")
    A("s_lshl_b32 s38, s18, 8")
    A("s_add_u32 s36, s36, s38")
    A("s_lshl_b32 s37, s37, 7")
    A("s_add_u32 s40, s36, s37")
    for st in range(1, 4): A(f"s_add_u32 s{40+st}, s40, {st*16*4096}")
    A(f"s_mov_b32 s8, s{P_OUT}")
    A(f"s_mov_b32 s9, s{P_OUT+1}")
    A(f"s_mov_b32 s10, {2048*4096}")
    def of(s, st): return FS[s] + 4*st
    def wf3(s, a): return FS[s] + 16 + 4*a
    def acc3(st, a): return ACC3 + (st*4+a)*4
    def rd_items(hh, s):
        L_ = [('rd', f"ds_read_b128 {vr(of(s,0),4)}, v{AO} offset:{hh*2048}", f"o{s}_0")]
        for i in range(4):
            for half in range(2):
                L_.append(('rd', f"ds_read_b64_tr_b16 {vr(wf3(s,i)+2*half,2)}, v{AW+i} offset:{hh*8192+half*2048}", f"w{s}_{i}"))
        for i in range(1, 4):
            L_.append(('rd', f"ds_read_b128 {vr(of(s,i),4)}, v{AO} offset:{(i>>1)*4096+hh*2048+(i&1)*256}", f"o{s}_{i}"))
        return L_
    def mf_items(s):
        L_ = []
        for st in range(4):
            for a in (range(4) if st % 2 == 0 else range(3, -1, -1)):
                needs = [f"o{s}_{st}", f"w{s}_{a}"]
                if st == 0 and a == 0: needs += [f"w{s}_{i}" for i in range(4)] + [f"o{s}_{i}" for i in range(4)]
                L_.append(('op', M16(acc3(st, a), wf3(s, a), of(s, st), acc3(st, a)), needs))
        return L_
    upd = [f"s_add_u32 s23, s23, {S3}", f"s_cmp_eq_u32 s23, {W3}", "s_cselect_b32 s23, 0, s23", f"v_add_u32 v{AO}, s23, v2",
           f"s_add_u32 s22, s22, {S3}", f"s_cmp_eq_u32 s22, {LDS_BYTES}", f"s_cselect_b32 s22, {W3}, s22", "s_sub_u32 s38, s38, 1"] + \
          [f"v_add_u32 v{AW+a}, s22, v{3+a}" for a in range(4)] + ["s_cmp_lg_u32 s38, 0"]
    upd = [('raw', u) for u in upd]
    items = [('all', "s_barrier")] + interleave(mf_items(1), rd_items(0, 0), [2] * 16)
    items += interleave(mf_items(0), rd_items(1, 1) + upd, [2] * 16)
    body, _ = schedule_waits(items, passes=2)
    A("s_mov_b32 s23, 0")
    A(f"s_mov_b32 s22, {W3}")
    A("s_mov_b32 s38, 16")
    A(f"v_mov_b32 v{AO}, v2")
    for a in range(4): A(f"v_add_u32 v{AW+a}, s22, v{3+a}")
    if stamp:
        A("s_barrier"); ST(8); A("s_branch P3_first")
    A(".p2align 6")
    A.label("P3_loop")
    for i, l in enumerate(body):
        A(l)
        if l == "s_barrier" and stamp: A.label("P3_first")
    A("s_cbranch_scc1 P3_loop")
    A("s_waitcnt lgkmcnt(0)")
    for it in mf_items(1): A(it[1])
    ST(9)
    n = 0
    for st in range(4):
        for pr in range(2):
            p = 24 + n * 4; n += 1
            for u in range(2):
                d = acc3(st, 2*pr+u)
                A(f"v_cvt_pk_bf16_f32 v{p+2*u}, v{d}, v{d+1}")
                A(f"v_cvt_pk_bf16_f32 v{p+2*u+1}, v{d+2}, v{d+3}")
        A("s_nop 1")
        for pr in range(2):
            p = 24 + (n - 2 + pr) * 4
            A(f"v_permlane16_swap_b32 v{p}, v{p+2}")
            A(f"v_permlane16_swap_b32 v{p+1}, v{p+3}")
            A(f"buffer_store_dwordx4 {vr(p,4)}, v22, s[8:11], s{40+st} offen offset:{pr*64}{SC}")
    if opts.get("padto"):
        A("s_waitcnt vmcnt(0)")
        A.label("L_pad")
        A("s_memrealtime s[100:101]")
        A("s_waitcnt lgkmcnt(0)")
        A("s_sub_u32 s36, s100, s98")
        A(f"s_cmp_lt_u32 s36, {opts['padto']}")
        A("s_cbranch_scc1 L_pad")
    if stamp:
        A("s_waitcnt vmcnt(0)")
        ST(10)
        if opts.get("dbgout") is not None:
            A(f"s_cmp_lg_u32 s2, {opts['dbgout']}")
            A("s_cbranch_scc1 L_nodbg")
            A("s_cmp_lg_u32 s19, 0")
            A("s_cbranch_scc1 L_nodbg")
            for i in range(1, 11):
                A(f"s_sub_u32 s36, s{50+i}, s50")
                A("v_mov_b32 v3, s36")
                A(f"buffer_store_dword v3, off, s[72:75], 0 offset:{4*i}")
            A.label("L_nodbg")
        A("s_lshl_b32 s36, s2, 2")
        A("s_add_u32 s36, s36, s19")
        A("s_lshl_b32 s36, s36, 6")
        A(f"s_add_u32 s36, s36, {64<<20}")
        A("s_mov_b32 s14, 0x8000000")
        for i in range(12):
            A(f"v_mov_b32 v3, s{50+i}")
            A(f"buffer_store_dword v3, off, s[12:15], s36 offset:{4*i}")
    A("s_endpgm")
    def ring_loader(tag, nslots, base, issue, pre):
        A(f"s_mov_b32 s23, {base}")
        A("s_mov_b32 s38, 0")
        A.label(f"{tag}_go2")
        issue()
        A("s_add_u32 s38, s38, 1")
        A(f"s_add_u32 s23, s23, {S3}")
        A(f"s_cmp_eq_u32 s23, {base + nslots*S3}")
        A(f"s_cselect_b32 s23, {base}, s23")
        A(f"s_cmp_eq_u32 s38, {pre}")
        A(f"s_cbranch_scc0 {tag}_l1")
        A(f"s_waitcnt vmcnt({min(63, 16*(pre-1))})")
        A("s_barrier")
        A.label(f"{tag}_l1")
        A(f"s_cmp_lt_u32 s38, {nslots}")
        A(f"s_cbranch_scc1 {tag}_go2")
        A(f"s_waitcnt vmcnt({min(63, 16*(nslots-2))})")
        A("s_barrier")
        A("s_cmp_lt_u32 s38, 16")
        A(f"s_cbranch_scc1 {tag}_go2")
        for j in range(nslots - 2):
            A(f"s_waitcnt vmcnt({min(63, 16*(nslots-3-j))})")
            A("s_barrier")
        if stamp:
            A("s_lshl_b32 s36, s2, 1")
            A("s_lshr_b32 s37, s19, 3")
            A("s_add_u32 s36, s36, s37")
            A("s_lshl_b32 s36, s36, 6")
            A(f"s_add_u32 s36, s36, {65<<20}")
            A("s_mov_b32 s14, 0x8000000")
            for i in range(3):
                A(f"v_mov_b32 v3, s{50+i}")
                A(f"buffer_store_dword v3, off, s[12:15], s36 offset:{4*i}")
        A("s_endpgm")
    A.label("P3_oload")
    A("s_lshl_b32 s36, s16, 22")
    A("s_lshl_b32 s37, s17, 18")
    A("s_add_u32 s36, s36, s37")
    A(f"s_add_u32 s36, s36, {WS_O}")
    A(f"s_add_u32 s4, s{P_WS}, s36")
    A(f"s_addc_u32 s5, s{P_WS+1}, 0")
    A("s_mov_b32 s6, 0x40000")
    A("s_lshl_b32 s21, s34, 13")
    poll("P3_o", 128, 32, 2)
    def o_issue():
        for t in range(4):
            A(f"s_add_u32 m0, s23, {t*4096}")
            A(f"s_add_u32 s20, s21, {t*65536}")
            for i in range(4): A(f"buffer_load_dwordx4 v1, s[4:7], s20 offen offset:{1024*i}{LD} lds")
        A("s_add_u32 s21, s21, 4096")
        A("s_and_b32 s21, s21, 0xffff")
    ring_loader("P3_o", NO, 0, o_issue, opts.get("opre", 2))

    A.label("P2_fallback")
    A("s_mov_b32 s24, 1")
    for x in range(2): A(f"v_mov_b32 v{MX[x]}, 0xff800000")
    A("s_mov_b32 s21, 0")
    A.label("P2_maxloop")
    A(f"buffer_load_dwordx4 {vr(KF,4)}, v31, s[4:7], s21 offen{LD}")
    A(f"buffer_load_dwordx4 {vr(KF+4,4)}, v31, s[4:7], s21 offen offset:256{LD}")
    A("s_waitcnt vmcnt(0)")
    for x in range(2): A(M32(SX[x], KF, Q[x], None))
    for x in range(2): A(M32(SX[x], KF+4, Q[x]+4, SX[x]))
    A("s_nop 7")
    A("s_nop 3")
    for x in range(2):
        for i in range(8): A(f"v_max3_f32 v{MX[x]}, v{SX[x]+2*i}, v{SX[x]+2*i+1}, v{MX[x]}")
    A("s_add_u32 s21, s21, 4096")
    A("s_cmp_lt_u32 s21, 0x40000")
    A("s_cbranch_scc1 P2_maxloop")
    for x in range(2):
        A(f"v_mov_b32 v6, v{MX[x]}")
        A("s_nop 1")
        A(f"v_permlane32_swap_b32 v{MX[x]}, v6")
        A("s_nop 1")
        A(f"v_max_f32 v{MX[x]}, v{MX[x]}, v6")
    A("s_barrier")
    A("s_branch P2_restart")

    A.label("P2_helpers")
    p2_ids()
    A("v_lshlrev_b32 v1, 4, v1")
    A("s_lshl_b32 s26, s16, 6")
    A("s_lshl_b32 s27, s17, 3")
    A("s_add_u32 s26, s26, s27")
    A("v_lshrrev_b32 v41, 4, v1")
    A("v_lshrrev_b32 v42, 3, v41")
    A("v_and_b32 v42, 1, v42")
    A("s_lshl_b32 s40, s17, 1")
    A("v_add_u32 v42, s40, v42")
    A("v_lshrrev_b32 v40, 3, v42")
    A("v_and_b32 v42, 7, v42")
    A("v_lshl_add_u32 v40, v42, 3, v40")
    A("v_and_b32 v42, 3, v41")
    A("v_lshl_add_u32 v40, v42, 6, v40")
    A("v_and_b32 v42, 4, v41")
    A("v_lshrrev_b32 v42, 1, v42")
    A("v_add_u32 v40, v40, v42")
    A("v_and_b32 v42, 16, v41")
    A("v_lshrrev_b32 v42, 2, v42")
    A("v_add_u32 v40, v40, v42")
    A("s_lshl_b32 s40, s16, 2")
    A(f"s_add_u32 s40, s40, {WS_F + 128}")
    A("v_lshlrev_b32 v40, 8, v40")
    A("v_add_u32 v40, s40, v40")
    A("s_cmp_eq_u32 s19, 9")
    A("s_cbranch_scc1 P2_aux")
    A("s_lshl_b32 s27, s26, 11")
    A("s_barrier")
    poll("P2_k", 0, 8, 2)
    A.label("P2_lstart")
    def l_stage():
        for g in range(4):
            A(f"s_add_u32 m0, s22, {g * 4096}")
            A(f"s_add_u32 s20, s21, {(g >> 1) * 131072 + (g & 1) * 4096}")
            for i in range(4):
                A(f"buffer_load_dwordx4 v1, s[4:7], s20 offen offset:{1024*i}{LD} lds")
        A("s_add_u32 s21, s21, 8192")
        A(f"s_add_u32 s22, s22, {STG}")
        A(f"s_cmp_eq_u32 s22, {RING}")
        A("s_cselect_b32 s22, 0, s22")
    for g in range(4):
        A(f"s_mov_b32 m0, {BREG + g * 4096}")
        A(f"s_add_u32 s20, s27, {g * 4096}")
        for i in range(4):
            A(f"buffer_load_dwordx4 v1, s[12:15], s20 offen offset:{1024*i}{LD} lds")
    A("s_mov_b32 s21, 0")
    A("s_mov_b32 s22, 0")
    A("s_mov_b32 s23, 0")
    KPRE = opts.get("kpre", 2)
    A.label("P2_lloop")
    l_stage()
    A("s_add_u32 s23, s23, 1")
    A(f"s_cmp_eq_u32 s23, {KPRE}")
    A("s_cbranch_scc0 P2_l1")
    A(f"s_waitcnt vmcnt({16*(KPRE-1)})")
    A("s_barrier")
    A.label("P2_l1")
    A("s_cmp_lt_u32 s23, 5")
    A("s_cbranch_scc1 P2_lloop")
    A("s_waitcnt vmcnt(48)")
    A("s_barrier")
    A("s_cmp_lt_u32 s23, 16")
    A("s_cbranch_scc1 P2_lloop")
    for n_ in (32, 16, 0):
        A(f"s_waitcnt vmcnt({n_})"); A("s_barrier")
    A("s_barrier")
    A("s_branch P2_htail")
    A.label("P2_aux")
    A("s_mul_i32 s26, s26, 6144")
    A(f"s_add_u32 s26, s26, {WS_B - 4096}")
    A("s_add_u32 s27, s26, 6144")
    A("s_cmp_eq_u32 s17, 0")
    A("s_cselect_b32 s27, s27, s26")
    poll_cnt("P2_c", 256, 2)
    A("v_mov_b32 v7, 0xff800000")
    for q in range(24):
        m = bmask(q, False) if q < 16 else bmask(q - 8, True)
        A(f"s_mov_b32 s40, {m & 0xffffffff}")
        A(f"s_mov_b32 s41, {m >> 32}")
        A(f"v_cndmask_b32 v{16+q}, v7, 0, s[40:41]")
    A(f"v_add_u32 v3, {MASKT}, v1")
    A("s_barrier")
    signal(10, 16, 2)
    for q in range(6): A(f"ds_write_b128 v3, {vr(16+4*q,4)} offset:{1024*q}")
    A("s_waitcnt lgkmcnt(0)")
    A.label("P2_astart")
    for i in range(9): A("s_barrier")
    poll("P2_b", 32, 8, 4)
    for grp in ((0, 4), (4, 8), (8, 11), (11, 13)):
        for g in range(*grp):
            A(f"s_mov_b32 m0, {BREG + g * 4096}")
            if g == 0: A("s_mov_b32 s20, s27")
            else: A(f"s_add_u32 s20, s26, {g * 4096}")
            for i in range(4):
                A(f"buffer_load_dwordx4 v1, s[12:15], s20 offen offset:{1024*i}{LD} lds")
        A("s_barrier")
    for i in range(3): A("s_barrier")
    A("s_waitcnt vmcnt(0)")
    A("s_barrier")
    A.label("P2_htail")
    A("s_barrier")
    A("s_cmp_lg_u32 s24, 0")
    A("s_cbranch_scc1 P2_hfin")
    read_flags(8)
    A("s_waitcnt lgkmcnt(0)")
    or_flags(8, 44)
    A("s_nop 3")
    A("s_cmp_eq_u32 s44, 0")
    A("s_cbranch_scc1 P2_hfin")
    A("s_mov_b32 s24, 1")
    A("s_barrier")
    A("s_cmp_eq_u32 s19, 9")
    A("s_cbranch_scc1 P2_astart")
    A("s_branch P2_lstart")
    A.label("P2_hfin")
    A("s_cmp_eq_u32 s19, 9")
    A("s_cbranch_scc0 P3_wload")
    A("s_barrier")
    signal(40, 32, 2)
    A("s_endpgm")
    A.label("P3_wload")
    p3_ids()
    A("v_lshrrev_b32 v1, 4, v1")
    A("s_lshl_b32 s39, s18, 8")
    A(f"s_sub_u32 s6, {1024*2048}, s39")
    A("v_lshrrev_b32 v3, 4, v1")
    A("v_lshlrev_b32 v4, 1, v3")
    A("v_and_b32 v5, 15, v1")
    A("v_xor_b32 v4, v4, v5")
    A("v_lshlrev_b32 v4, 4, v4")
    A("v_lshl_add_u32 v5, v3, 11, v4")
    A("v_xor_b32 v6, 128, v5")
    A(f"v_add_u32 v6, {8192-1024}, v6")
    A(f"v_add_u32 v7, {16384-2048}, v5")
    A(f"v_add_u32 v8, {16384-2048}, v6")
    A("s_cmp_eq_u32 s16, 0")
    A(f"s_cselect_b32 s4, s{P_AWO}, s{P_BWO}")
    A(f"s_cselect_b32 s5, s{P_AWO+1}, s{P_BWO+1}")
    A("s_add_u32 s4, s4, s39")
    A("s_addc_u32 s5, s5, 0")
    A("s_lshl_b32 s21, s34, 18")
    A("s_barrier")
    def w_issue():
        for q in range(4):
            A(f"s_add_u32 m0, s23, {q*4096}")
            A(f"s_add_u32 s20, s21, {q*32768}")
            for i in range(4): A(f"buffer_load_dwordx4 v{5+i}, s[4:7], s20 offen offset:{1024*i} lds")
        A("s_add_u32 s21, s21, 0x20000")
        A("s_and_b32 s21, s21, 0x1fffff")
    ring_loader("P3_w", NW, W3, w_issue, NW)
    A.label("L_done")
    A("s_endpgm")
    hdr = ("; concat_heads__mha_block__sliding_local_dilated__prompt : fused single-launch kernel (generated by gen/mega.py)\n"
           "; Kernarg: 0 A_x, 8 A_wqkv, 16 A_wo, 24 B_x, 32 B_wqkv, 40 B_wo, 48 out, 56 debug, 64 ws\n"
           f"; @launch grid=(256,1,1) block=(640,1,1) lds={LDS_BYTES}\n")
    return hdr + A.text() + '.section .rodata,"a"\n' + descriptor(NAME, 168, 102)

if __name__ == "__main__":
    opts = json.loads(sys.argv[2]) if len(sys.argv) > 2 else {}
    open(sys.argv[1], "w").write(gen(opts))
```

```python
import sys, os, json, struct, math
sys.path.insert(0, os.path.dirname(os.path.abspath(__file__)))
from asmlib import *

NAME = "concat_heads__mha_block__sliding_local_dilated__prompt_kernel"
WS_Q = 0
WS_KV = 4 << 20
WS_B = 12 << 20
WS_O = 24 << 20
WS_F = 32 << 20
WS_BYTES = (32 << 20) + 65536
QSCALE = (32 ** -0.5) * math.log2(math.e)
LDS_BYTES = 163840
def f32bits(x): return struct.unpack("<I", struct.pack("<f", x))[0]
def M32(d, a, b, c):
    cs = "0" if c is None else vr(c, 16)
    return f"v_mfma_f32_32x32x16_bf16 {vr(d,16)}, {vr(a,4)}, {vr(b,4)}, {cs}"
def M16(d, a, b, c):
    return f"v_mfma_f32_16x16x32_bf16 {vr(d,4)}, {vr(a,4)}, {vr(b,4)}, {vr(c,4)}"

P_AX, P_AW, P_AWO, P_BX, P_BW, P_BWO, P_OUT, P_DBG, P_WS = 76, 78, 80, 82, 84, 86, 88, 90, 92

def gen(opts=None):
    opts = opts or {}
    A = Asm()
    stamp = opts.get("stamp", False)
    SC = " sc1"
    LD = opts.get("ld_mod", " sc1")
    def ST(i):
        if stamp:
            A("s_memrealtime s[100:101]")
            A("s_waitcnt lgkmcnt(0)")
            A(f"s_mov_b32 s{50+i}, s100")
    def lane(dst):
        A(f"v_mbcnt_lo_u32_b32 v{dst}, -1, 0")
        A(f"v_mbcnt_hi_u32_b32 v{dst}, -1, v{dst}")
    def poll_cnt(tag, target, vtmp):
        A(f"s_mov_b32 s47, {opts.get('poll_max', 30000)}")
        A.label(f"{tag}_poll")
        A(f"buffer_load_dword v{vtmp}, off, s[72:75], 0 sc1")
        A("s_waitcnt vmcnt(0)")
        A(f"v_readfirstlane_b32 s46, v{vtmp}")
        A("s_sub_u32 s47, s47, 1")
        A("s_cmp_eq_u32 s47, 0")
        A(f"s_cbranch_scc1 {tag}_go")
        A(f"s_cmp_ge_u32 s46, {target}")
        A(f"s_cbranch_scc1 {tag}_go")
        A("s_sleep 8")
        A(f"s_branch {tag}_poll")
        A.label(f"{tag}_go")
    def poll(tag, off, nflags, vtmp):
        A(f"s_mov_b32 s47, {opts.get('poll_max', 30000)}")
        A("s_lshl_b32 s46, s2, 8")
        A(f"s_add_u32 s46, s46, {WS_F + off}")
        A(f"v_lshrrev_b32 v{vtmp+1}, 2, v1")
        A(f"v_and_b32 v{vtmp+1}, {4*nflags-1}, v{vtmp+1}")
        ST(0)
        A.label(f"{tag}_poll")
        A(f"buffer_load_dword v{vtmp}, v{vtmp+1}, s[12:15], s46 offen sc1")
        A("s_sub_u32 s47, s47, 1")
        A("s_waitcnt vmcnt(0)")
        A(f"v_cmp_eq_u32 vcc, 0, v{vtmp}")
        A("s_cmp_eq_u32 s47, 0")
        A(f"s_cbranch_scc1 {tag}_go")
        A("s_cmp_eq_u64 vcc, 0")
        A(f"s_cbranch_scc1 {tag}_go")
        if opts.get('poll_sleep', 1): A(f"s_sleep {opts.get('poll_sleep', 1)}")
        A(f"s_branch {tag}_poll")
        A.label(f"{tag}_go")
        ST(1)
        if stamp: A("s_mov_b32 s52, s47")
    def signal(vaddr, nl, vtmp):
        A(f"v_mov_b32 v{vtmp}, 1")
        A(f"s_mov_b64 exec, {(1 << nl) - 1}")
        A(f"buffer_store_dword v{vtmp}, v{vaddr}, s[12:15], 0 offen sc1")
        A("s_mov_b64 exec, -1")

    A('.amdgcn_target "amdgcn-amd-amdhsa--gfx950"')
    A(".text")
    kernel_begin(A, NAME)
    A("s_load_dwordx16 s[76:91], s[0:1], 0")
    A("s_load_dwordx2 s[92:93], s[0:1], 64")
    A("v_lshrrev_b32 v14, 6, v0")
    A("v_and_b32 v1, 63, v0")
    A("v_readfirstlane_b32 s19, v14")
    A("s_cmp_ge_u32 s2, 256")
    A("s_cbranch_scc1 L_done")
    XSLOT = 32768; WBASE = 3 * XSLOT; WSLOT = 12288; WEND = WBASE + 5 * WSLOT
    A("s_and_b32 s34, s2, 7")
    A("s_lshr_b32 s35, s2, 3")
    A("s_lshr_b32 s16, s34, 2")
    A("s_and_b32 s17, s34, 1")
    A("s_lshl_b32 s17, s17, 2")
    A("s_and_b32 s36, s35, 3")
    A("s_add_u32 s17, s17, s36")
    A("s_lshr_b32 s18, s34, 1")
    A("s_and_b32 s18, s18, 1")
    A("s_lshl_b32 s18, s18, 3")
    A("s_lshr_b32 s36, s35, 2")
    A("s_add_u32 s18, s18, s36")
    A(f"s_mov_b32 s14, {WS_BYTES}")
    A("s_mov_b32 s15, 0x20000")
    A("s_mov_b32 s74, 256")
    A("s_mov_b32 s75, 0x20000")
    A("s_mov_b32 s7, 0x20000")
    A("s_mov_b32 s11, 0x20000")
    def common_srds():
        A(f"s_mov_b32 s12, s{P_WS}")
        A(f"s_mov_b32 s13, s{P_WS+1}")
        A(f"s_mov_b32 s72, s{P_DBG}")
        A(f"s_mov_b32 s73, s{P_DBG+1}")
    A("s_cmp_lt_u32 s19, 8")
    A("s_cbranch_scc1 P1_compute")
    A("s_lshr_b32 s49, s34, 1")
    A("s_xor_b32 s49, s49, s34")
    A("s_and_b32 s49, s49, 1")
    A("s_lshl_b32 s49, s49, 10")
    A("s_lshl_b32 s23, s16, 9")
    A("s_add_u32 s49, s49, s23")
    A("s_and_b32 s23, s34, 1")
    A("s_lshl_b32 s23, s23, 8")
    A("s_add_u32 s49, s49, s23")
    A("s_add_u32 s48, s17, s18")
    A("s_and_b32 s48, s48, 1")
    A("v_lshrrev_b32 v15, 3, v1")
    A("v_lshrrev_b32 v16, 4, v1")
    A("v_and_b32 v18, 7, v1")
    A("s_mov_b32 s40, 0")
    A("s_cmp_eq_u32 s19, 8")
    A("s_cbranch_scc1 P1_xload")
    A("s_lshl_b32 s39, s18, 7")
    A(f"s_sub_u32 s6, {1024*6144}, s39")
    A("v_and_b32 v16, 1, v16")
    A("v_lshlrev_b32 v16, 1, v16")
    A("v_xor_b32 v16, v18, v16")
    A("v_lshlrev_b32 v16, 4, v16")
    A("v_mul_u32_u24 v17, 6144, v15")
    A("v_add_u32 v2, v17, v16")
    A("v_xor_b32 v16, 64, v16")
    A("v_add_u32 v3, v17, v16")
    A(f"v_add_u32 v3, {8*6144-1024}, v3")
    A(f"v_add_u32 v4, {16*6144-2048}, v2")
    A(f"v_add_u32 v5, {16*6144-2048}, v3")
    A("s_lshl_b32 s48, s48, 1")
    A(f"s_mov_b32 s22, {WBASE}")
    A("v_lshlrev_b32 v20, 2, v1")
    A("v_mov_b32 v21, 0")
    A("v_mov_b32 v22, 1")
    A("s_lshl_b32 s45, s2, 8")
    A(f"s_add_u32 s45, s45, {WS_F}")
    A("s_and_b32 s44, s35, 7")
    A("s_lshl_b32 s44, s44, 1")
    A("s_add_u32 s44, s44, 9")
    A("s_cmp_eq_u32 s16, 0")
    A("s_waitcnt lgkmcnt(0)")
    A(f"s_cselect_b32 s4, s{P_AW}, s{P_BW}")
    A(f"s_cselect_b32 s5, s{P_AW+1}, s{P_BW+1}")
    A("s_add_u32 s4, s4, s39")
    A("s_addc_u32 s5, s5, 0")
    common_srds()
    A("s_branch P1_wgo")
    A.label("P1_wclr")
    A("buffer_store_dword v21, v20, s[12:15], s45 offen sc1")
    A.label("P1_wwait")
    A("s_waitcnt vmcnt(12)")
    A("s_barrier")
    A("s_cmp_eq_u32 s40, s44")
    A("s_cbranch_scc0 P1_wgo")
    A("s_waitcnt vmcnt(0)")
    A("s_mov_b64 exec, 1")
    A("buffer_atomic_add v22, off, s[72:75], 0 sc1")
    A("s_mov_b64 exec, -1")
    A.label("P1_wgo")
    A("s_xor_b32 s23, s40, s48")
    A("s_lshl_b32 s23, s23, 6")
    A("s_add_u32 s23, s23, s49")
    A("s_and_b32 s23, s23, 2047")
    A("s_mul_i32 s20, s23, 3072")
    for ty in range(3):
        A(f"s_add_u32 m0, s22, {ty*4096}")
        if ty: A("s_add_u32 s20, s20, 2048")
        else: A("s_add_u32 s40, s40, 1")
        for i in range(4):
            A(f"buffer_load_dwordx4 v{2+i}, s[4:7], s20 offen offset:{1024*i} lds")
    A(f"s_add_u32 s22, s22, {WSLOT}")
    A(f"s_cmp_eq_u32 s22, {WEND}")
    A(f"s_cselect_b32 s22, {WBASE}, s22")
    WPRE = opts.get("wpre", 3)
    A(f"s_cmp_eq_u32 s40, {WPRE}")
    A("s_cbranch_scc0 P1_w1")
    A(f"s_waitcnt vmcnt({12*(WPRE-2)})")
    A("s_barrier")
    A.label("P1_w1")
    A("s_cmp_lt_u32 s40, 5")
    A("s_cbranch_scc1 P1_wgo")
    A("s_bitcmp0_b32 s40, 0")
    A("s_cbranch_scc1 P1_w2")
    A("s_cmp_eq_u32 s40, 5")
    A("s_cbranch_scc1 P1_wclr")
    A("s_branch P1_wwait")
    A.label("P1_w2")
    A("s_cmp_lt_u32 s40, 32")
    A("s_cbranch_scc1 P1_wgo")
    A("s_branch P1_ltail")
    A.label("P1_xload")
    A("s_mov_b32 s6, 0x80000")
    A("s_lshl_b32 s36, s17, 19")
    A("v_xor_b32 v17, v18, v16")
    A("v_lshlrev_b32 v17, 4, v17")
    A("v_lshl_add_u32 v2, v15, 11, v17")
    A("v_xor_b32 v3, 64, v2")
    A(f"v_add_u32 v3, {16384-1024}, v3")
    A(f"v_add_u32 v4, {32768-2048}, v2")
    A(f"v_add_u32 v5, {32768-2048}, v3")
    A("s_mov_b32 s22, 0")
    A("s_cmp_eq_u32 s16, 0")
    A("s_waitcnt lgkmcnt(0)")
    A(f"s_cselect_b32 s4, s{P_AX}, s{P_BX}")
    A(f"s_cselect_b32 s5, s{P_AX+1}, s{P_BX+1}")
    A("s_add_u32 s4, s4, s36")
    A("s_addc_u32 s5, s5, 0")
    A.label("P1_xgo")
    A("s_xor_b32 s21, s40, s48")
    A("s_lshl_b32 s21, s21, 7")
    A("s_add_u32 s21, s21, s49")
    A("s_and_b32 s21, s21, 2047")
    XB0 = opts.get("xb0", 4)
    for q in range(8):
        A(f"s_add_u32 m0, s22, {q*4096}")
        A(f"s_add_u32 s20, s21, {q*65536}")
        if q == XB0:
            A("s_cmp_eq_u32 s40, 1")
            A("s_cbranch_scc0 P1_x0")
            A(f"s_waitcnt vmcnt({4*XB0})")
            A("s_barrier")
            A.label("P1_x0")
        for i in range(4):
            A(f"buffer_load_dwordx4 v{2+i}, s[4:7], s20 offen offset:{1024*i} lds")
    A(f"s_add_u32 s22, s22, {XSLOT}")
    A(f"s_cmp_eq_u32 s22, {3*XSLOT}")
    A("s_cselect_b32 s22, 0, s22")
    A("s_add_u32 s40, s40, 1")
    A(f"s_cmp_lt_u32 s40, {2 if XB0 == 8 else 3}")
    A("s_cbranch_scc1 P1_xgo")
    A("s_waitcnt vmcnt(32)")
    A("s_barrier")
    A("s_cmp_lt_u32 s40, 16")
    A("s_cbranch_scc1 P1_xgo")
    A.label("P1_ltail")
    A("s_waitcnt vmcnt(0)")
    A("s_barrier")
    common_srds()
    A("v_lshrrev_b32 v10, 3, v1")
    A("s_lshl_b32 s45, s18, 1")
    A("v_add_u32 v10, s45, v10")
    A("v_and_b32 v11, 3, v10")
    A("v_lshrrev_b32 v10, 2, v10")
    A("v_lshl_add_u32 v10, v11, 3, v10")
    A("v_and_b32 v11, 7, v1")
    A("v_lshl_add_u32 v10, v11, 5, v10")
    A("s_lshl_b32 s45, s16, 3")
    A("s_add_u32 s45, s45, s17")
    A("s_lshl_b32 s45, s45, 2")
    A(f"s_add_u32 s45, s45, {WS_F}")
    A("v_lshlrev_b32 v10, 8, v10")
    A("v_add_u32 v10, s45, v10")
    A("s_barrier")
    A("s_branch P2_helpers")
    A.label("P1_compute")
    if opts.get("code_pf", 1):
        A("s_getpc_b64 s[40:41]")
        A("v_and_b32 v20, 127, v0")
        A("v_lshlrev_b32 v20, 7, v20")
        A("v_min_u32 v20, L_done-P1_compute-64, v20")
        A("s_cmp_lt_u32 s19, 2")
        A("s_cbranch_scc0 P1_nopf")
        A("global_load_dword v21, v20, s[40:41]")
        A.label("P1_nopf")
    ST(0)
    A("v_lshrrev_b32 v15, 1, v14")
    A("v_and_b32 v16, 15, v1")
    A("v_lshl_add_u32 v17, v15, 6, v16")
    A("v_lshlrev_b32 v17, 7, v17")
    A("v_lshrrev_b32 v16, 1, v16")
    A("v_lshrrev_b32 v18, 4, v1")
    A("v_xor_b32 v16, v16, v18")
    A("v_lshl_add_u32 v2, v16, 4, v17")
    A("v_xor_b32 v3, 64, v2")
    A("v_lshrrev_b32 v16, 2, v1")
    A("v_and_b32 v16, 3, v16")
    A("v_lshl_add_u32 v17, v18, 3, v16")
    A("v_lshlrev_b32 v17, 7, v17")
    A("v_lshrrev_b32 v16, 1, v16")
    A("v_and_b32 v19, 1, v18")
    A("v_lshl_add_u32 v16, v19, 1, v16")
    A("v_and_b32 v19, 1, v14")
    A("v_lshlrev_b32 v19, 1, v19")
    A("v_xor_b32 v16, v16, v19")
    A("v_lshl_add_u32 v17, v16, 5, v17")
    A("v_and_b32 v16, 3, v1")
    A("v_lshl_add_u32 v4, v16, 3, v17")
    A("v_xor_b32 v5, 32, v4")
    A("v_lshlrev_b32 v1, 4, v1")
    ACC = 72; XF = 8; WF = [24, 48]
    AX, AW0, AW1 = 0, 6, 7
    for i in range(0, 96, 2): A(f"v_mov_b64 v[{ACC+i}:{ACC+i+1}], 0")
    A("s_and_b32 s36, s19, 1")
    A("s_lshl_b32 s37, s18, 1")
    A("s_add_u32 s36, s36, s37")
    A("s_lshl_b32 s36, s36, 6")
    A("s_lshl_b32 s37, s17, 3")
    A("s_add_u32 s36, s36, s37")
    A("s_lshr_b32 s37, s19, 1")
    A("s_lshl_b32 s37, s37, 1")
    A("s_add_u32 s36, s36, s37")
    A("s_lshl_b32 s64, s36, 11")
    A("s_add_u32 s65, s64, 2048")
    A("s_lshl_b32 s66, s36, 12")
    A(f"s_add_u32 s66, s66, {WS_KV}")
    A("s_add_u32 s67, s66, 4096")
    A("s_add_u32 s68, s66, 2048")
    A("s_add_u32 s69, s66, 6144")
    A("s_mul_i32 s37, s36, 6144")
    A(f"s_add_u32 s37, s37, {WS_B}")
    A("s_cmp_eq_u32 s16, 0")
    A("s_cbranch_scc1 P1_ofs_done")
    for ty in range(3):
        for mt in range(2):
            A(f"s_add_u32 s{64+2*ty+mt}, s37, {ty*2048+mt*6144}")
    A.label("P1_ofs_done")
    A(f"s_mov_b32 s42, {f32bits(QSCALE)}")
    A(f"s_mov_b32 s43, {f32bits(QSCALE)}")
    barpos = opts.get("barpos", 4)
    def xf(st): return XF + 4*st
    def wf(s, n6): return WF[s] + 4*n6
    def acc(st, n6): return ACC + (st*6+n6)*4
    def xrd(st): return ('rd', f"ds_read_b128 {vr(xf(st),4)}, v{AX} offset:{st*2048}", f"x{st}")
    def wrds(s):
        L = []
        for i in range(6):
            ty, nt = i >> 1, i & 1
            for half in range(2):
                L.append(('rd', f"ds_read_b64_tr_b16 {vr(wf(s,i)+2*half,2)}, v{AW0+nt} offset:{ty*4096+half*512}", f"w{s}_{i}"))
        return L
    def mf(s, st, n6):
        d = acc(st, n6)
        t = M16(d, wf(s,n6), xf(st), d) if n6 < 4 else M16(d, xf(st), wf(s,n6), d)
        needs = [f"x{st}", f"w{s}_{n6}"]
        if st == 0 and n6 == 0: needs = ["x0", "x1", "x2"] + [f"w{s}_{i}" for i in range(6)]
        return ('op', t, needs)
    def nextW():
        return [f"s_add_u32 s46, s46, {WSLOT}", f"s_cmp_eq_u32 s46, {WEND}", f"s_cselect_b32 s46, {WBASE}, s46",
                f"v_add_u32 v{AW0}, s46, v4", f"v_add_u32 v{AW1}, s46, v5"]
    A("s_mov_b32 s44, 0")
    A(f"s_mov_b32 s46, {WBASE}")
    A("s_mov_b32 s40, 16")
    A(f"v_mov_b32 v{AX}, v2")
    A(f"v_add_u32 v{AW0}, s46, v4")
    A(f"v_add_u32 v{AW1}, s46, v5")
    A("s_waitcnt lgkmcnt(0)")
    common_srds()
    A("s_waitcnt vmcnt(0)")
    A("s_barrier")
    ST(1)
    items = []
    for sub in range(2):
        s = sub
        ms = [mf(s, st, (q if st % 2 == 0 else 5 - q)) for st in range(4) for q in range(6)]
        wr = wrds(s ^ 1)
        gaps = [[] for _ in range(24)]
        start = 0 if sub == 0 else barpos
        pre = nextW()
        if sub == 0:
            pre += [f"v_add_u32 v{AX}, s44, v3"]
        else:
            pre += [f"s_add_u32 s44, s44, {XSLOT}", f"s_cmp_eq_u32 s44, {3*XSLOT}", "s_cselect_b32 s44, 0, s44", f"v_add_u32 v{AX}, s44, v2",
                    "s_sub_u32 s40, s40, 1"]
        for i, l in enumerate(pre): gaps[min(i // 3, 2 if sub == 0 else barpos - 1)].append(('raw', l))
        if sub == 1: gaps[barpos - 1].append(('all', "s_barrier"))
        g = max(start, 2)
        for r in wr:
            if g in (5, 11, 17): g += 1
            gaps[g].append(r); g += 1
        assert g <= 23, g
        for st in range(4): gaps[6*st+5].append(xrd(st))
        if sub == 1: gaps[22].append(('raw', "s_cmp_lg_u32 s40, 0"))
        for i in range(24):
            items.append(ms[i]); items += gaps[i]
    pro = [it for it in items if it[0] == 'rd'][-16:]
    assert sorted(set(t[2] for t in pro)) == sorted([f"x{i}" for i in range(4)] + [f"w0_{i}" for i in range(6)])
    for it in pro: A(it[1])
    body1, _ = schedule_waits(items, passes=1, init_queue=[t[2] for t in pro])
    A(".p2align 6")
    A.label("P1_loop")
    for l in body1: A(l)
    A("s_cbranch_scc1 P1_loop")
    A("s_waitcnt lgkmcnt(0)")
    ST(2)
    A("s_nop 4")
    n = 0
    def pk():
        nonlocal n
        p = 8 + (n % 16) * 4; n += 1
        return p
    for ty in (1, 2, 0):
        if ty < 2:
            for st in range(4):
                p = pk()
                for nt in range(2):
                    d = acc(st, 2*ty+nt)
                    if ty == 0:
                        for r in (0, 2): A(f"v_pk_mul_f32 v[{d+r}:{d+r+1}], v[{d+r}:{d+r+1}], s[42:43]")
                    A(f"v_cvt_pk_bf16_f32 v{p+2*nt}, v{d}, v{d+1}")
                    A(f"v_cvt_pk_bf16_f32 v{p+2*nt+1}, v{d+2}, v{d+3}")
                A(f"buffer_store_dwordx4 {vr(p,4)}, v1, s[12:15], s{64+2*ty+(st>>1)} offen offset:{(st&1)*1024}{SC}")
        else:
            ps = []
            for mt in range(2):
                for nt in range(2):
                    p = pk(); ps.append((p, mt, nt))
                    for u in range(2):
                        d = acc(2*mt+u, 4+nt)
                        A(f"v_cvt_pk_bf16_f32 v{p+2*u}, v{d}, v{d+1}")
                        A(f"v_cvt_pk_bf16_f32 v{p+2*u+1}, v{d+2}, v{d+3}")
            A("s_nop 1")
            for p, mt, nt in ps:
                A(f"v_permlane16_swap_b32 v{p}, v{p+2}")
                A(f"v_permlane16_swap_b32 v{p+1}, v{p+3}")
                A(f"buffer_store_dwordx4 {vr(p,4)}, v1, s[12:15], s{68+mt} offen offset:{nt*1024}{SC}")
    A("s_waitcnt vmcnt(0)")
    A("s_barrier")
    ST(3)

    NS = 6; STG = 16384; RING = NS * STG; BREG = RING; FLAGS = BREG + 4096 + 8 * 6144; MASKT = FLAGS + 256; XCH = 0
    assert MASKT + 6144 <= LDS_BYTES
    IDX = 4; ONES = 8; KF = 12; VF = 20; MX = [28, 29]; SA = 32; SB = 48
    Q = [64, 72]; L = [80, 84]; O = [96, 112]; NEGM = [128, 144]
    QB = 128; KBP = 136; KBC = 144; VBC = 152; VBP = 12; PK = 16; OB = O[1]; LB = L[1]
    def S32(d, a, b): return f"v_smfmac_f32_32x32x32_bf16 {vr(d,16)}, {vr(a,4)}, {vr(b,8)}, v{IDX}"
    def S16(d, a, b): return f"v_smfmac_f32_16x16x64_bf16 {vr(d,4)}, {vr(a,4)}, {vr(b,8)}, v{IDX}"
    def E(r): return f"v_exp_f32 v{r}, v{r}"
    def key_of(r, hb): return 8 * (r >> 2) + 4 * hb + (r & 3)
    def bmask(r, prev):
        m = 0
        for l in range(64):
            d = (l & 31) - key_of(r, l >> 5) + (32 if prev else 0)
            if 0 <= d <= 14 and d % 2 == 0: m |= 1 << l
        return m
    def rowmax(regs, dst, tmp):
        regs = list(regs)
        A(f"v_max3_f32 v{dst}, v{regs[0]}, v{regs[1]}, v{regs[2]}")
        i = 3
        while i + 1 < len(regs):
            A(f"v_max3_f32 v{dst}, v{regs[i]}, v{regs[i+1]}, v{dst}"); i += 2
        if i < len(regs): A(f"v_max_f32 v{dst}, v{regs[i]}, v{dst}")
        A(f"v_mov_b32 v{tmp}, v{dst}")
        A("s_nop 1")
        A(f"v_permlane32_swap_b32 v{dst}, v{tmp}")
        A("s_nop 1")
        A(f"v_max_f32 v{dst}, v{dst}, v{tmp}")
    def read_flags(r):
        A(f"v_mov_b32 v7, {FLAGS}")
        A(f"ds_read_b128 {vr(r,4)}, v7")
        A(f"ds_read_b128 {vr(r+4,4)}, v7 offset:16")
    def or_flags(r, sdst):
        A(f"v_or3_b32 v{r}, v{r}, v{r+4}, v{r+5}")
        A(f"v_or3_b32 v{r}, v{r}, v{r+6}, v{r+7}")
        A(f"v_or3_b32 v{r}, v{r}, v{r+1}, v{r+2}")
        A(f"v_or_b32 v{r}, v{r}, v{r+3}")
        A("s_nop 0")
        A(f"v_readfirstlane_b32 s{sdst}, v{r}")
    def p2_ids():
        A("s_and_b32 s16, s35, 3")
        A("s_lshl_b32 s36, s34, 2")
        A("s_add_u32 s16, s16, s36")
        A("s_lshr_b32 s17, s35, 2")
        A("s_lshl_b32 s36, s16, 18")
        A(f"s_add_u32 s36, s36, {WS_KV}")
        A(f"s_add_u32 s4, s{P_WS}, s36")
        A(f"s_addc_u32 s5, s{P_WS+1}, 0")
        A("s_mov_b32 s6, 0x40000")
        A("s_mov_b32 s24, 0")
    p2_ids()
    A("v_lshrrev_b32 v6, 4, v1")
    A("s_lshr_b32 s18, s19, 2")
    A("s_and_b32 s20, s19, 3")
    A("s_lshl_b32 s20, s20, 1")
    A("s_add_u32 s20, s20, s18")
    A("s_lshl_b32 s26, s17, 3")
    A("s_add_u32 s26, s26, s20")
    A("s_lshl_b32 s39, s18, 13")
    A("v_and_b32 v31, 15, v6")
    A("v_lshlrev_b32 v31, 4, v31")
    A("v_and_b32 v5, 16, v6")
    A("v_lshl_add_u32 v31, v5, 6, v31")
    A("v_and_b32 v5, 32, v6")
    A("v_lshl_add_u32 v31, v5, 4, v31")
    A("s_lshl_b32 s31, s26, 5")
    A("s_add_u32 s31, s31, s16")
    A("s_lshl_b32 s31, s31, 11")
    A(f"s_add_u32 s31, s31, {WS_O}")
    A(f"v_mov_b32 v{IDX}, 0xdddd")
    A("v_and_b32 v5, 4, v6")
    A("v_cmp_eq_u32 vcc, 0, v5")
    A("v_mov_b32 v7, 0x3f803f80")
    A("v_add_u32 v30, s39, v31")
    A(f"v_cndmask_b32 v{ONES}, 0, v7, vcc")
    A(f"v_cndmask_b32 v{ONES+1}, 0, v7, vcc")
    A(f"v_sub_u32 v{ONES+2}, v7, v{ONES}")
    A(f"v_mov_b32 v{ONES+3}, v{ONES+2}")
    A("s_lshl_b32 s27, s20, 11")
    A(f"s_add_u32 s27, s27, {BREG}")
    A("v_add_u32 v5, s27, v31")
    A("v_xor_b32 v6, 2048, v5")
    A.label("P2_restart")
    for x in range(2):
        for i in range(0, 16, 2): A(f"v_mov_b64 v[{O[x]+i}:{O[x]+i+1}], 0")
        for i in range(0, 4, 2): A(f"v_mov_b64 v[{L[x]+i}:{L[x]+i+1}], 0")
    A("v_mov_b32 v2, v30")
    A(f"s_mov_b32 s25, {STG}")
    A(f"v_add_u32 v3, {STG}, v30")
    A("s_mov_b32 s23, 16")
    A("s_barrier")
    ST(4)
    SX = [SA, SB]
    A("s_cmp_lg_u32 s24, 0")
    A("s_cbranch_scc1 P2_main")
    A(f"ds_read_b128 {vr(VF,4)}, v31 offset:0")
    for x in range(2): A(f"ds_read_b128 {vr(Q[x],4)}, v{5+x}")
    A(f"ds_read_b128 {vr(VF+4,4)}, v31 offset:256")
    for x in range(2): A(f"ds_read_b128 {vr(Q[x]+4,4)}, v{5+x} offset:256")
    A("s_waitcnt lgkmcnt(3)")
    for x in range(2): A(M32(SX[x], VF, Q[x], None))
    A("s_waitcnt lgkmcnt(0)")
    for x in range(2): A(M32(SX[x], VF+4, Q[x]+4, SX[x]))
    A("s_nop 7")
    A("s_nop 2")
    for x in range(2): rowmax(range(SX[x], SX[x]+16), MX[x], 6)
    A.label("P2_main")
    A(f"ds_read_b128 {vr(KF,4)}, v2 offset:0")
    A(f"ds_read_b128 {vr(KF+4,4)}, v2 offset:256")
    A(f"ds_read_b128 {vr(VF,4)}, v2 offset:2048")
    def negm(x):
        A(f"v_sub_f32 v{NEGM[x]}, 0, v{MX[x]}")
        A(f"v_sub_f32 v{NEGM[x]+1}, 0, v{MX[x]}")
        for i in range(2, 16, 2): A(f"v_mov_b64 v[{NEGM[x]+i}:{NEGM[x]+i+1}], v[{NEGM[x]}:{NEGM[x]+1}]")
    negm(0)
    for i in (0, 2): A(f"v_mov_b64 v[{VF+4+i}:{VF+5+i}], 0")
    A("s_waitcnt lgkmcnt(1)")
    A(M32(SA, KF, Q[0], NEGM[0]))
    A(M32(SA, KF+4, Q[0]+4, SA))
    negm(1)
    for i in range(0, 8, 2): A(f"v_mov_b64 v[{SB+8+i}:{SB+9+i}], 0")
    A(E(SA))
    A(".p2align 6")
    A.label("P2_loop")
    def rd(dst, tile, off):
        a, t = ("v2", tile) if tile < 2 else ("v3", tile - 2)
        return f"ds_read_b128 {vr(dst,4)}, {a} offset:{t*4096+off}"
    for u in range(4):
        cur, nxt = (SA, SB) if u % 2 == 0 else (SB, SA)
        i = u // 2; xc = u % 2; xp = xn = xc ^ 1
        if xc == 0:
            w_pv1 = w_qka = w_qkb = None; w_pv0 = 3
            r_pv1 = [rd(VF+4, i, 2304)]; r_qka = [rd(KF, i+1, 0)]; r_qkb = [rd(KF+4, i+1, 256)]; r_pv0 = []
        else:
            w_pv1, w_qka, w_qkb, w_pv0 = 2, 1, 0, None
            r_pv1 = r_qka = r_qkb = []; r_pv0 = [rd(VF, i+1, 2048)]
        bar = (u == 1)
        last = (u == 3)
        def W(n):
            if n is not None: A(f"s_waitcnt lgkmcnt({n})")
        if w_pv1 is None: A("s_nop 0")
        W(w_pv1)
        A(S32(O[xp], VF+4, nxt+8))
        for l in r_pv1: A(l)
        A(E(cur+1)); A(E(cur+2)); A(E(cur+3))
        A(S16(L[xp], ONES, nxt+8))
        A(E(cur+4)); A(E(cur+5))
        W(w_qka)
        A(M32(nxt, KF, Q[xn], NEGM[xn]))
        for l in r_qka: A(l)
        A(E(cur+6)); A(E(cur+7)); A(E(cur+8))
        W(w_qkb)
        A(M32(nxt, KF+4, Q[xn]+4, nxt))
        if bar: A("s_barrier")
        for l in r_qkb: A(l)
        A(E(cur+9)); A(E(cur+10)); A(E(cur+11))
        W(w_pv0)
        A(S32(O[xc], VF, cur))
        for l in r_pv0: A(l)
        A(E(cur+12))
        if last: A(f"s_add_u32 s25, s25, {STG}")
        A(E(cur+13))
        if last: A(f"s_cmp_eq_u32 s25, {RING}")
        A(E(cur+14))
        if last: A("s_cselect_b32 s25, 0, s25")
        A(S16(L[xc], ONES, cur))
        if last:
            A("s_sub_u32 s23, s23, 1")
            A("v_mov_b32 v2, v3")
            A("v_add_u32 v3, s25, v30")
            A("s_cmp_lg_u32 s23, 0")
        else: A("s_nop 0")
        A(E(cur+15)); A(E(nxt))
        if last: A("s_cbranch_scc1 P2_loop")
    A("s_waitcnt lgkmcnt(0)")
    A(S32(O[1], VF+4, SB+8))
    A(S16(L[1], ONES, SB+8))
    ST(5)
    A("s_mul_i32 s36, s20, 6144")
    A(f"s_add_u32 s36, s36, {BREG}")
    A("v_add_u32 v2, s36, v31")
    A(f"v_add_u32 v3, {MASKT}, v1")
    for q in range(4): A(f"ds_read_b128 {vr(SA+4*q,4)}, v3 offset:{1024*q}")
    A(f"ds_read_b128 {vr(QB,4)}, v2 offset:4096")
    A(f"ds_read_b128 {vr(KBC,4)}, v2 offset:6144")
    for q in range(2): A(f"ds_read_b128 {vr(SB+8+4*q,4)}, v3 offset:{4096+1024*q}")
    A(f"ds_read_b128 {vr(KBP,4)}, v2 offset:0")
    A(f"ds_read_b128 {vr(QB+4,4)}, v2 offset:4352")
    A(f"ds_read_b128 {vr(KBC+4,4)}, v2 offset:6400")
    A(f"ds_read_b128 {vr(KBP+4,4)}, v2 offset:256")
    A(f"s_mov_b32 s44, {f32bits(2.0**56)}")
    A(f"v_mul_f32 v5, s44, v{L[0]}")
    for i in range(0, 16, 2): A(f"v_maximum3_f32 v5, |v{O[0]+i}|, |v{O[0]+i+1}|, v5")
    A(f"v_mul_f32 v6, s44, v{L[1]}")
    for i in range(0, 16, 2): A(f"v_maximum3_f32 v6, |v{O[1]+i}|, |v{O[1]+i+1}|, v6")
    A("s_mul_i32 s36, s19, 5120")
    A("v_add_u32 v7, s36, v1")
    A(f"s_mov_b32 s45, {f32bits(2.0**120)}")
    A("v_maximum3_f32 v5, v5, v6, v6")
    A("s_waitcnt lgkmcnt(0)")
    A("v_cmp_ngt_f32 vcc, s45, v5")
    A("s_cmp_lg_u32 s26, 0")
    A("s_cbranch_scc1 P2_t0done")
    A("v_mov_b32 v6, 0xff800000")
    for r in range(8, 16): A(f"v_mov_b32 v{SB+r}, v6")
    A("s_nop 1")
    A.label("P2_t0done")
    A(M32(SA, KBC, QB, SA))
    A(M32(SB, KBP, QB, SB))
    for i in range(4): A(f"ds_write_b128 v7, {vr(O[1]+4*i,4)} offset:{XCH+1024*i}")
    A(f"ds_write_b32 v7, v{L[1]} offset:{XCH+4096}")
    A(M32(SA, KBC+4, QB+4, SA))
    A(M32(SB, KBP+4, QB+4, SB))
    for m in range(2): A(f"ds_read_b128 {vr(VBC+4*m,4)}, v2 offset:{8192+256*m}")
    A(f"ds_read_b128 {vr(VBP,4)}, v2 offset:2304")
    if opts.get("force_fb"): A("s_mov_b64 vcc, -1")
    A("s_cmp_lg_u64 vcc, 0")
    A("s_cselect_b32 s44, 1, 0")
    A("v_mov_b32 v6, s44")
    A("s_lshl_b32 s45, s19, 2")
    A(f"s_add_u32 s45, s45, {FLAGS}")
    A("v_mov_b32 v7, s45")
    A("ds_write_b32 v7, v6")
    A("s_xor_b32 s36, s19, 4")
    A("s_mul_i32 s36, s36, 5120")
    A("v_add_u32 v3, s36, v1")
    A("s_cmp_lg_u32 s24, 0")
    A("s_cbranch_scc1 P2_xchg")
    bregs = list(range(SA, SA+16)) + list(range(SB+8, SB+16))
    rowmax(bregs, 6, 7)
    for r in bregs[::2]: A(f"v_pk_add_f32 v[{r}:{r+1}], v[{r}:{r+1}], v[6:7] op_sel_hi:[1,0] neg_lo:[0,1] neg_hi:[0,1]")
    A("s_waitcnt lgkmcnt(0)")
    for i in range(0, 16, 2): A(f"v_mov_b64 v[{OB+i}:{OB+i+1}], 0")
    for i in range(0, 4, 2): A(f"v_mov_b64 v[{LB+i}:{LB+i+1}], 0")
    for r in bregs[:10]: A(E(r))
    A(S32(OB, VBC, SA))
    for r in bregs[10:13]: A(E(r))
    A(S16(LB, ONES, SA))
    for r in bregs[13:18]: A(E(r))
    A(S32(OB, VBC+4, SA+8))
    for r in bregs[18:21]: A(E(r))
    A(S16(LB, ONES, SA+8))
    for r in bregs[21:24]: A(E(r))
    A("s_nop 1")
    A(S16(LB, ONES, SB+8))
    A(S32(OB, VBP, SB+8))
    A.label("P2_xchg")
    A("s_waitcnt lgkmcnt(0)")
    A("s_barrier")
    A(f"ds_read_b32 v5, v3 offset:{XCH+4096}")
    for i in range(4): A(f"ds_read_b128 {vr(SA+4*i,4)}, v3 offset:{XCH+1024*i}")
    read_flags(SB)
    A(f"s_add_u32 s45, s31, {4<<20}")
    A("s_cmp_lg_u32 s24, 0")
    A("s_cbranch_scc1 P2_nob")
    A(f"v_rcp_f32 v6, v{LB}")
    A("s_nop 2")
    for i in range(0, 16, 2): A(f"v_pk_mul_f32 v[{OB+i}:{OB+i+1}], v[{OB+i}:{OB+i+1}], v[6:7] op_sel_hi:[1,0]")
    for i in range(8): A(f"v_cvt_pk_bf16_f32 v{PK+i}, v{OB+2*i}, v{OB+2*i+1}")
    for m in range(2):
        A(f"buffer_store_dwordx4 {vr(PK+4*m,4)}, v1, s[12:15], s45 offen offset:{1024*m}{SC}")
    A.label("P2_nob")
    A("s_waitcnt lgkmcnt(2)")
    A(f"v_add_f32 v6, v5, v{L[0]}")
    A("v_rcp_f32 v6, v6")
    for i in range(0, 16, 2): A(f"v_pk_add_f32 v[{O[0]+i}:{O[0]+i+1}], v[{SA+i}:{SA+i+1}], v[{O[0]+i}:{O[0]+i+1}]")
    for i in range(0, 16, 2): A(f"v_pk_mul_f32 v[{O[0]+i}:{O[0]+i+1}], v[{O[0]+i}:{O[0]+i+1}], v[6:7] op_sel_hi:[1,0]")
    for i in range(8): A(f"v_cvt_pk_bf16_f32 v{SA+i}, v{O[0]+2*i}, v{O[0]+2*i+1}")
    for m in range(2):
        A(f"buffer_store_dwordx4 {vr(SA+4*m,4)}, v1, s[12:15], s31 offen offset:{1024*m}{SC}")
    A("s_cmp_lg_u32 s24, 0")
    A("s_cbranch_scc1 P2_fin")
    A("s_waitcnt lgkmcnt(0)")
    or_flags(SB, 44)
    A("s_nop 3")
    A("s_cmp_eq_u32 s44, 0")
    A("s_cbranch_scc0 P2_fallback")
    A.label("P2_fin")
    ST(6)
    A("s_waitcnt vmcnt(0)")
    A("s_barrier")
    ST(7)
    A("s_cmp_gt_u32 s19, 4")
    A("s_cbranch_scc1 L_done")

    NO = opts.get("no", 4); NW = 10 - NO; S3 = 16384; W3 = NO * S3
    def p3_ids():
        A("s_lshr_b32 s16, s34, 2")
        A("s_and_b32 s17, s34, 1")
        A("s_lshl_b32 s17, s17, 3")
        A("s_and_b32 s36, s35, 7")
        A("s_add_u32 s17, s17, s36")
        A("s_lshr_b32 s18, s34, 1")
        A("s_and_b32 s18, s18, 1")
        A("s_lshl_b32 s18, s18, 2")
        A("s_lshr_b32 s36, s35, 3")
        A("s_add_u32 s18, s18, s36")
    p3_ids()
    A("s_cmp_eq_u32 s19, 4")
    A("s_cbranch_scc1 P3_oload")
    A("v_lshrrev_b32 v1, 4, v1")
    A("s_lshr_b32 s36, s19, 1")
    A("s_and_b32 s37, s19, 1")
    A("v_lshrrev_b32 v18, 4, v1")
    A("v_and_b32 v17, 15, v1")
    A("v_lshlrev_b32 v2, 4, v17")
    A("v_lshl_add_u32 v2, v18, 9, v2")
    A("s_lshl_b32 s38, s36, 13")
    A("v_add_u32 v2, s38, v2")
    A("v_lshrrev_b32 v19, 2, v1")
    A("v_and_b32 v19, 7, v19")
    A("v_lshrrev_b32 v20, 5, v1")
    A("v_lshl_add_u32 v20, v20, 4, v19")
    A("v_lshlrev_b32 v20, 8, v20")
    A("s_lshl_b32 s38, s37, 2")
    A("v_xor_b32 v21, s38, v19")
    A("v_lshl_add_u32 v20, v21, 5, v20")
    A("v_and_b32 v21, 3, v1")
    A("v_lshl_add_u32 v3, v21, 3, v20")
    for a in range(1, 4): A(f"v_xor_b32 v{3+a}, {32*a}, v3")
    ACC3 = 88; FS = [24, 56]; AO = 8; AW = 9
    for i in range(0, 64, 2): A(f"v_mov_b64 v[{ACC3+i}:{ACC3+i+1}], 0")
    for i in range(0, 32, 2): A(f"v_mov_b64 v[{FS[1]+i}:{FS[1]+i+1}], 0")
    A("v_lshlrev_b32 v22, 12, v17")
    A("v_and_b32 v21, 1, v18")
    A("v_lshl_add_u32 v22, v21, 5, v22")
    A("v_lshrrev_b32 v21, 1, v18")
    A("v_lshl_add_u32 v22, v21, 4, v22")
    A("s_lshl_b32 s38, s17, 7")
    A("s_lshl_b32 s36, s36, 6")
    A("s_add_u32 s36, s36, s38")
    A("s_lshl_b32 s36, s36, 12")
    A("s_lshl_b32 s38, s16, 11")
    A("s_add_u32 s36, s36, s38")
    A("s_lshl_b32 s38, s18, 8")
    A("s_add_u32 s36, s36, s38")
    A("s_lshl_b32 s37, s37, 7")
    A("s_add_u32 s40, s36, s37")
    for st in range(1, 4): A(f"s_add_u32 s{40+st}, s40, {st*16*4096}")
    A(f"s_mov_b32 s8, s{P_OUT}")
    A(f"s_mov_b32 s9, s{P_OUT+1}")
    A(f"s_mov_b32 s10, {2048*4096}")
    def of(s, st): return FS[s] + 4*st
    def wf3(s, a): return FS[s] + 16 + 4*a
    def acc3(st, a): return ACC3 + (st*4+a)*4
    def rd_items(hh, s):
        L_ = [('rd', f"ds_read_b128 {vr(of(s,0),4)}, v{AO} offset:{hh*2048}", f"o{s}_0")]
        for i in range(4):
            for half in range(2):
                L_.append(('rd', f"ds_read_b64_tr_b16 {vr(wf3(s,i)+2*half,2)}, v{AW+i} offset:{hh*8192+half*2048}", f"w{s}_{i}"))
        for i in range(1, 4):
            L_.append(('rd', f"ds_read_b128 {vr(of(s,i),4)}, v{AO} offset:{(i>>1)*4096+hh*2048+(i&1)*256}", f"o{s}_{i}"))
        return L_
    def mf_items(s):
        L_ = []
        for st in range(4):
            for a in (range(4) if st % 2 == 0 else range(3, -1, -1)):
                needs = [f"o{s}_{st}", f"w{s}_{a}"]
                if st == 0 and a == 0: needs += [f"w{s}_{i}" for i in range(4)] + [f"o{s}_{i}" for i in range(4)]
                L_.append(('op', M16(acc3(st, a), wf3(s, a), of(s, st), acc3(st, a)), needs))
        return L_
    upd = [f"s_add_u32 s23, s23, {S3}", f"s_cmp_eq_u32 s23, {W3}", "s_cselect_b32 s23, 0, s23", f"v_add_u32 v{AO}, s23, v2",
           f"s_add_u32 s22, s22, {S3}", f"s_cmp_eq_u32 s22, {LDS_BYTES}", f"s_cselect_b32 s22, {W3}, s22", "s_sub_u32 s38, s38, 1"] + \
          [f"v_add_u32 v{AW+a}, s22, v{3+a}" for a in range(4)] + ["s_cmp_lg_u32 s38, 0"]
    upd = [('raw', u) for u in upd]
    items = [('all', "s_barrier")] + interleave(mf_items(1), rd_items(0, 0), [2] * 16)
    items += interleave(mf_items(0), rd_items(1, 1) + upd, [2] * 16)
    body, _ = schedule_waits(items, passes=2)
    A("s_mov_b32 s23, 0")
    A(f"s_mov_b32 s22, {W3}")
    A("s_mov_b32 s38, 16")
    A(f"v_mov_b32 v{AO}, v2")
    for a in range(4): A(f"v_add_u32 v{AW+a}, s22, v{3+a}")
    if stamp:
        A("s_barrier"); ST(8); A("s_branch P3_first")
    A(".p2align 6")
    A.label("P3_loop")
    for i, l in enumerate(body):
        A(l)
        if l == "s_barrier" and stamp: A.label("P3_first")
    A("s_cbranch_scc1 P3_loop")
    A("s_waitcnt lgkmcnt(0)")
    for it in mf_items(1): A(it[1])
    ST(9)
    n = 0
    for st in range(4):
        for pr in range(2):
            p = 24 + n * 4; n += 1
            for u in range(2):
                d = acc3(st, 2*pr+u)
                A(f"v_cvt_pk_bf16_f32 v{p+2*u}, v{d}, v{d+1}")
                A(f"v_cvt_pk_bf16_f32 v{p+2*u+1}, v{d+2}, v{d+3}")
        A("s_nop 1")
        for pr in range(2):
            p = 24 + (n - 2 + pr) * 4
            A(f"v_permlane16_swap_b32 v{p}, v{p+2}")
            A(f"v_permlane16_swap_b32 v{p+1}, v{p+3}")
            A(f"buffer_store_dwordx4 {vr(p,4)}, v22, s[8:11], s{40+st} offen offset:{pr*64}{SC}")
    if stamp:
        A("s_waitcnt vmcnt(0)")
        ST(10)
        A("s_lshl_b32 s36, s2, 2")
        A("s_add_u32 s36, s36, s19")
        A("s_lshl_b32 s36, s36, 6")
        A(f"s_add_u32 s36, s36, {64<<20}")
        A("s_mov_b32 s14, 0x8000000")
        for i in range(12):
            A(f"v_mov_b32 v3, s{50+i}")
            A(f"buffer_store_dword v3, off, s[12:15], s36 offset:{4*i}")
    A("s_endpgm")
    def ring_loader(tag, nslots, base, issue, pre):
        A(f"s_mov_b32 s23, {base}")
        A("s_mov_b32 s38, 0")
        A.label(f"{tag}_go2")
        issue()
        A("s_add_u32 s38, s38, 1")
        A(f"s_add_u32 s23, s23, {S3}")
        A(f"s_cmp_eq_u32 s23, {base + nslots*S3}")
        A(f"s_cselect_b32 s23, {base}, s23")
        A(f"s_cmp_eq_u32 s38, {pre}")
        A(f"s_cbranch_scc0 {tag}_l1")
        A(f"s_waitcnt vmcnt({min(63, 16*(pre-1))})")
        A("s_barrier")
        A.label(f"{tag}_l1")
        A(f"s_cmp_lt_u32 s38, {nslots}")
        A(f"s_cbranch_scc1 {tag}_go2")
        A(f"s_waitcnt vmcnt({min(63, 16*(nslots-2))})")
        A("s_barrier")
        A("s_cmp_lt_u32 s38, 16")
        A(f"s_cbranch_scc1 {tag}_go2")
        for j in range(nslots - 2):
            A(f"s_waitcnt vmcnt({min(63, 16*(nslots-3-j))})")
            A("s_barrier")
        if stamp:
            A("s_lshl_b32 s36, s2, 1")
            A("s_lshr_b32 s37, s19, 3")
            A("s_add_u32 s36, s36, s37")
            A("s_lshl_b32 s36, s36, 6")
            A(f"s_add_u32 s36, s36, {65<<20}")
            A("s_mov_b32 s14, 0x8000000")
            for i in range(3):
                A(f"v_mov_b32 v3, s{50+i}")
                A(f"buffer_store_dword v3, off, s[12:15], s36 offset:{4*i}")
        A("s_endpgm")
    A.label("P3_oload")
    A("s_lshl_b32 s36, s16, 22")
    A("s_lshl_b32 s37, s17, 18")
    A("s_add_u32 s36, s36, s37")
    A(f"s_add_u32 s36, s36, {WS_O}")
    A(f"s_add_u32 s4, s{P_WS}, s36")
    A(f"s_addc_u32 s5, s{P_WS+1}, 0")
    A("s_mov_b32 s6, 0x40000")
    A("s_lshl_b32 s21, s34, 13")
    poll("P3_o", 128, 32, 2)
    def o_issue():
        for t in range(4):
            A(f"s_add_u32 m0, s23, {t*4096}")
            A(f"s_add_u32 s20, s21, {t*65536}")
            for i in range(4): A(f"buffer_load_dwordx4 v1, s[4:7], s20 offen offset:{1024*i}{LD} lds")
        A("s_add_u32 s21, s21, 4096")
        A("s_and_b32 s21, s21, 0xffff")
    ring_loader("P3_o", NO, 0, o_issue, opts.get("opre", 2))

    A.label("P2_fallback")
    A("s_mov_b32 s24, 1")
    for x in range(2): A(f"v_mov_b32 v{MX[x]}, 0xff800000")
    A("s_mov_b32 s21, 0")
    A.label("P2_maxloop")
    A(f"buffer_load_dwordx4 {vr(KF,4)}, v31, s[4:7], s21 offen{LD}")
    A(f"buffer_load_dwordx4 {vr(KF+4,4)}, v31, s[4:7], s21 offen offset:256{LD}")
    A("s_waitcnt vmcnt(0)")
    for x in range(2): A(M32(SX[x], KF, Q[x], None))
    for x in range(2): A(M32(SX[x], KF+4, Q[x]+4, SX[x]))
    A("s_nop 7")
    A("s_nop 3")
    for x in range(2):
        for i in range(8): A(f"v_max3_f32 v{MX[x]}, v{SX[x]+2*i}, v{SX[x]+2*i+1}, v{MX[x]}")
    A("s_add_u32 s21, s21, 4096")
    A("s_cmp_lt_u32 s21, 0x40000")
    A("s_cbranch_scc1 P2_maxloop")
    for x in range(2):
        A(f"v_mov_b32 v6, v{MX[x]}")
        A("s_nop 1")
        A(f"v_permlane32_swap_b32 v{MX[x]}, v6")
        A("s_nop 1")
        A(f"v_max_f32 v{MX[x]}, v{MX[x]}, v6")
    A("s_barrier")
    A("s_branch P2_restart")

    A.label("P2_helpers")
    p2_ids()
    A("v_lshlrev_b32 v1, 4, v1")
    A("s_lshl_b32 s26, s16, 6")
    A("s_lshl_b32 s27, s17, 3")
    A("s_add_u32 s26, s26, s27")
    A("v_lshrrev_b32 v41, 4, v1")
    A("v_lshrrev_b32 v42, 3, v41")
    A("v_and_b32 v42, 1, v42")
    A("s_lshl_b32 s40, s17, 1")
    A("v_add_u32 v42, s40, v42")
    A("v_lshrrev_b32 v40, 3, v42")
    A("v_and_b32 v42, 7, v42")
    A("v_lshl_add_u32 v40, v42, 3, v40")
    A("v_and_b32 v42, 3, v41")
    A("v_lshl_add_u32 v40, v42, 6, v40")
    A("v_and_b32 v42, 4, v41")
    A("v_lshrrev_b32 v42, 1, v42")
    A("v_add_u32 v40, v40, v42")
    A("v_and_b32 v42, 16, v41")
    A("v_lshrrev_b32 v42, 2, v42")
    A("v_add_u32 v40, v40, v42")
    A("s_lshl_b32 s40, s16, 2")
    A(f"s_add_u32 s40, s40, {WS_F + 128}")
    A("v_lshlrev_b32 v40, 8, v40")
    A("v_add_u32 v40, s40, v40")
    A("s_cmp_eq_u32 s19, 9")
    A("s_cbranch_scc1 P2_aux")
    A("s_lshl_b32 s27, s26, 11")
    A("s_barrier")
    poll("P2_k", 0, 8, 2)
    A.label("P2_lstart")
    def l_stage():
        for g in range(4):
            A(f"s_add_u32 m0, s22, {g * 4096}")
            A(f"s_add_u32 s20, s21, {(g >> 1) * 131072 + (g & 1) * 4096}")
            for i in range(4):
                A(f"buffer_load_dwordx4 v1, s[4:7], s20 offen offset:{1024*i}{LD} lds")
        A("s_add_u32 s21, s21, 8192")
        A(f"s_add_u32 s22, s22, {STG}")
        A(f"s_cmp_eq_u32 s22, {RING}")
        A("s_cselect_b32 s22, 0, s22")
    for g in range(4):
        A(f"s_mov_b32 m0, {BREG + g * 4096}")
        A(f"s_add_u32 s20, s27, {g * 4096}")
        for i in range(4):
            A(f"buffer_load_dwordx4 v1, s[12:15], s20 offen offset:{1024*i}{LD} lds")
    A("s_mov_b32 s21, 0")
    A("s_mov_b32 s22, 0")
    A("s_mov_b32 s23, 0")
    KPRE = opts.get("kpre", 2)
    A.label("P2_lloop")
    l_stage()
    A("s_add_u32 s23, s23, 1")
    A(f"s_cmp_eq_u32 s23, {KPRE}")
    A("s_cbranch_scc0 P2_l1")
    A(f"s_waitcnt vmcnt({16*(KPRE-1)})")
    A("s_barrier")
    A.label("P2_l1")
    A("s_cmp_lt_u32 s23, 5")
    A("s_cbranch_scc1 P2_lloop")
    A("s_waitcnt vmcnt(48)")
    A("s_barrier")
    A("s_cmp_lt_u32 s23, 16")
    A("s_cbranch_scc1 P2_lloop")
    for n_ in (32, 16, 0):
        A(f"s_waitcnt vmcnt({n_})"); A("s_barrier")
    A("s_barrier")
    A("s_branch P2_htail")
    A.label("P2_aux")
    A("s_mul_i32 s26, s26, 6144")
    A(f"s_add_u32 s26, s26, {WS_B - 4096}")
    A("s_add_u32 s27, s26, 6144")
    A("s_cmp_eq_u32 s17, 0")
    A("s_cselect_b32 s27, s27, s26")
    poll_cnt("P2_c", 256, 2)
    A("v_mov_b32 v7, 0xff800000")
    for q in range(24):
        m = bmask(q, False) if q < 16 else bmask(q - 8, True)
        A(f"s_mov_b32 s40, {m & 0xffffffff}")
        A(f"s_mov_b32 s41, {m >> 32}")
        A(f"v_cndmask_b32 v{16+q}, v7, 0, s[40:41]")
    A(f"v_add_u32 v3, {MASKT}, v1")
    A("s_barrier")
    signal(10, 16, 2)
    for q in range(6): A(f"ds_write_b128 v3, {vr(16+4*q,4)} offset:{1024*q}")
    A("s_waitcnt lgkmcnt(0)")
    A.label("P2_astart")
    for i in range(9): A("s_barrier")
    poll("P2_b", 32, 8, 4)
    for grp in ((0, 4), (4, 8), (8, 11), (11, 13)):
        for g in range(*grp):
            A(f"s_mov_b32 m0, {BREG + g * 4096}")
            if g == 0: A("s_mov_b32 s20, s27")
            else: A(f"s_add_u32 s20, s26, {g * 4096}")
            for i in range(4):
                A(f"buffer_load_dwordx4 v1, s[12:15], s20 offen offset:{1024*i}{LD} lds")
        A("s_barrier")
    for i in range(3): A("s_barrier")
    A("s_waitcnt vmcnt(0)")
    A("s_barrier")
    A.label("P2_htail")
    A("s_barrier")
    A("s_cmp_lg_u32 s24, 0")
    A("s_cbranch_scc1 P2_hfin")
    read_flags(8)
    A("s_waitcnt lgkmcnt(0)")
    or_flags(8, 44)
    A("s_nop 3")
    A("s_cmp_eq_u32 s44, 0")
    A("s_cbranch_scc1 P2_hfin")
    A("s_mov_b32 s24, 1")
    A("s_barrier")
    A("s_cmp_eq_u32 s19, 9")
    A("s_cbranch_scc1 P2_astart")
    A("s_branch P2_lstart")
    A.label("P2_hfin")
    A("s_cmp_eq_u32 s19, 9")
    A("s_cbranch_scc0 P3_wload")
    A("s_barrier")
    signal(40, 32, 2)
    A("s_endpgm")
    A.label("P3_wload")
    p3_ids()
    A("v_lshrrev_b32 v1, 4, v1")
    A("s_lshl_b32 s39, s18, 8")
    A(f"s_sub_u32 s6, {1024*2048}, s39")
    A("v_lshrrev_b32 v3, 4, v1")
    A("v_lshlrev_b32 v4, 1, v3")
    A("v_and_b32 v5, 15, v1")
    A("v_xor_b32 v4, v4, v5")
    A("v_lshlrev_b32 v4, 4, v4")
    A("v_lshl_add_u32 v5, v3, 11, v4")
    A("v_xor_b32 v6, 128, v5")
    A(f"v_add_u32 v6, {8192-1024}, v6")
    A(f"v_add_u32 v7, {16384-2048}, v5")
    A(f"v_add_u32 v8, {16384-2048}, v6")
    A("s_cmp_eq_u32 s16, 0")
    A(f"s_cselect_b32 s4, s{P_AWO}, s{P_BWO}")
    A(f"s_cselect_b32 s5, s{P_AWO+1}, s{P_BWO+1}")
    A("s_add_u32 s4, s4, s39")
    A("s_addc_u32 s5, s5, 0")
    A("s_lshl_b32 s21, s34, 18")
    A("s_barrier")
    def w_issue():
        for q in range(4):
            A(f"s_add_u32 m0, s23, {q*4096}")
            A(f"s_add_u32 s20, s21, {q*32768}")
            for i in range(4): A(f"buffer_load_dwordx4 v{5+i}, s[4:7], s20 offen offset:{1024*i} lds")
        A("s_add_u32 s21, s21, 0x20000")
        A("s_and_b32 s21, s21, 0x1fffff")
    ring_loader("P3_w", NW, W3, w_issue, NW)
    A.label("L_done")
    A("s_endpgm")
    hdr = ("; concat_heads__mha_block__sliding_local_dilated__prompt : fused single-launch kernel (generated by gen/mega.py)\n"
           "; Kernarg: 0 A_x, 8 A_wqkv, 16 A_wo, 24 B_x, 32 B_wqkv, 40 B_wo, 48 out, 56 debug, 64 ws\n"
           f"; @launch grid=(256,1,1) block=(640,1,1) lds={LDS_BYTES}\n")
    return hdr + A.text() + '.section .rodata,"a"\n' + descriptor(NAME, 168, 102)

if __name__ == "__main__":
    opts = json.loads(sys.argv[2]) if len(sys.argv) > 2 else {}
    open(sys.argv[1], "w").write(gen(opts))
```

```python
import sys, os, json, struct, math
sys.path.insert(0, os.path.dirname(os.path.abspath(__file__)))
from asmlib import *

NAME = "concat_heads__mha_block__sliding_local_dilated__prompt_kernel"
WS_Q = 0
WS_KV = 4 << 20
WS_B = 12 << 20
WS_O = 24 << 20
WS_F = 32 << 20
WS_BYTES = (32 << 20) + 65536
QSCALE = (32 ** -0.5) * math.log2(math.e)
LDS_BYTES = 163840
def f32bits(x): return struct.unpack("<I", struct.pack("<f", x))[0]
def M32(d, a, b, c):
    cs = "0" if c is None else vr(c, 16)
    return f"v_mfma_f32_32x32x16_bf16 {vr(d,16)}, {vr(a,4)}, {vr(b,4)}, {cs}"
def M16(d, a, b, c):
    return f"v_mfma_f32_16x16x32_bf16 {vr(d,4)}, {vr(a,4)}, {vr(b,4)}, {vr(c,4)}"

P_AX, P_AW, P_AWO, P_BX, P_BW, P_BWO, P_OUT, P_DBG, P_WS = 76, 78, 80, 82, 84, 86, 88, 90, 92

def gen(opts=None):
    opts = opts or {}
    A = Asm()
    stamp = opts.get("stamp", False)
    SC = " sc1"
    LD = opts.get("ld_mod", " sc1")
    def ST(i):
        if stamp:
            A("s_memrealtime s[100:101]")
            A("s_waitcnt lgkmcnt(0)")
            A(f"s_mov_b32 s{50+i}, s100")
    def lane(dst):
        A(f"v_mbcnt_lo_u32_b32 v{dst}, -1, 0")
        A(f"v_mbcnt_hi_u32_b32 v{dst}, -1, v{dst}")
    def poll_cnt(tag, target, vtmp):
        A(f"s_mov_b32 s47, {opts.get('poll_max', 30000)}")
        A.label(f"{tag}_poll")
        A(f"buffer_load_dword v{vtmp}, off, s[72:75], 0 sc1")
        A("s_waitcnt vmcnt(0)")
        A(f"v_readfirstlane_b32 s46, v{vtmp}")
        A("s_sub_u32 s47, s47, 1")
        A("s_cmp_eq_u32 s47, 0")
        A(f"s_cbranch_scc1 {tag}_go")
        A(f"s_cmp_ge_u32 s46, {target}")
        A(f"s_cbranch_scc1 {tag}_go")
        A("s_sleep 8")
        A(f"s_branch {tag}_poll")
        A.label(f"{tag}_go")
    def poll(tag, off, nflags, vtmp):
        A(f"s_mov_b32 s47, {opts.get('poll_max', 30000)}")
        A("s_lshl_b32 s46, s2, 8")
        A(f"s_add_u32 s46, s46, {WS_F + off}")
        A(f"v_lshrrev_b32 v{vtmp+1}, 2, v1")
        A(f"v_and_b32 v{vtmp+1}, {4*nflags-1}, v{vtmp+1}")
        ST(0)
        A.label(f"{tag}_poll")
        A(f"buffer_load_dword v{vtmp}, v{vtmp+1}, s[12:15], s46 offen sc1")
        A("s_sub_u32 s47, s47, 1")
        A("s_waitcnt vmcnt(0)")
        A(f"v_cmp_eq_u32 vcc, 0, v{vtmp}")
        A("s_cmp_eq_u32 s47, 0")
        A(f"s_cbranch_scc1 {tag}_go")
        A("s_cmp_eq_u64 vcc, 0")
        A(f"s_cbranch_scc1 {tag}_go")
        if opts.get('poll_sleep', 1): A(f"s_sleep {opts.get('poll_sleep', 1)}")
        A(f"s_branch {tag}_poll")
        A.label(f"{tag}_go")
        ST(1)
        if stamp: A("s_mov_b32 s52, s47")
    def signal(vaddr, nl, vtmp):
        A(f"v_mov_b32 v{vtmp}, 1")
        A(f"s_mov_b64 exec, {(1 << nl) - 1}")
        A(f"buffer_store_dword v{vtmp}, v{vaddr}, s[12:15], 0 offen sc1")
        A("s_mov_b64 exec, -1")

    A('.amdgcn_target "amdgcn-amd-amdhsa--gfx950"')
    A(".text")
    kernel_begin(A, NAME)
    if opts.get("padto"):
        A("s_memrealtime s[98:99]")
    A("s_load_dwordx16 s[76:91], s[0:1], 0")
    A("s_load_dwordx2 s[92:93], s[0:1], 64")
    A("v_lshrrev_b32 v14, 6, v0")
    A("v_and_b32 v1, 63, v0")
    A("v_readfirstlane_b32 s19, v14")
    A("s_cmp_ge_u32 s2, 256")
    A("s_cbranch_scc1 L_done")
    XSLOT = 32768; WBASE = 3 * XSLOT; WSLOT = 12288; WEND = WBASE + 5 * WSLOT
    A("s_and_b32 s34, s2, 7")
    A("s_lshr_b32 s35, s2, 3")
    A("s_lshr_b32 s16, s34, 2")
    A("s_and_b32 s17, s34, 1")
    A("s_lshl_b32 s17, s17, 2")
    A("s_and_b32 s36, s35, 3")
    A("s_add_u32 s17, s17, s36")
    A("s_lshr_b32 s18, s34, 1")
    A("s_and_b32 s18, s18, 1")
    A("s_lshl_b32 s18, s18, 3")
    A("s_lshr_b32 s36, s35, 2")
    A("s_add_u32 s18, s18, s36")
    A(f"s_mov_b32 s14, {WS_BYTES}")
    A("s_mov_b32 s15, 0x20000")
    A("s_mov_b32 s74, 256")
    A("s_mov_b32 s75, 0x20000")
    A("s_mov_b32 s7, 0x20000")
    A("s_mov_b32 s11, 0x20000")
    def common_srds():
        A(f"s_mov_b32 s12, s{P_WS}")
        A(f"s_mov_b32 s13, s{P_WS+1}")
        A(f"s_mov_b32 s72, s{P_DBG}")
        A(f"s_mov_b32 s73, s{P_DBG+1}")
    A("s_cmp_lt_u32 s19, 8")
    A("s_cbranch_scc1 P1_compute")
    A("s_lshr_b32 s49, s34, 1")
    A("s_xor_b32 s49, s49, s34")
    A("s_and_b32 s49, s49, 1")
    A("s_lshl_b32 s49, s49, 10")
    A("s_lshl_b32 s23, s16, 9")
    A("s_add_u32 s49, s49, s23")
    A("s_and_b32 s23, s34, 1")
    A("s_lshl_b32 s23, s23, 8")
    A("s_add_u32 s49, s49, s23")
    A("s_add_u32 s48, s17, s18")
    A("s_and_b32 s48, s48, 1")
    A("v_lshrrev_b32 v15, 3, v1")
    A("v_lshrrev_b32 v16, 4, v1")
    A("v_and_b32 v18, 7, v1")
    A("s_mov_b32 s40, 0")
    A("s_cmp_eq_u32 s19, 8")
    A("s_cbranch_scc1 P1_xload")
    A("s_lshl_b32 s39, s18, 7")
    A(f"s_sub_u32 s6, {1024*6144}, s39")
    A("v_and_b32 v16, 1, v16")
    A("v_lshlrev_b32 v16, 1, v16")
    A("v_xor_b32 v16, v18, v16")
    A("v_lshlrev_b32 v16, 4, v16")
    A("v_mul_u32_u24 v17, 6144, v15")
    A("v_add_u32 v2, v17, v16")
    A("v_xor_b32 v16, 64, v16")
    A("v_add_u32 v3, v17, v16")
    A(f"v_add_u32 v3, {8*6144-1024}, v3")
    A(f"v_add_u32 v4, {16*6144-2048}, v2")
    A(f"v_add_u32 v5, {16*6144-2048}, v3")
    A("s_lshl_b32 s48, s48, 1")
    A(f"s_mov_b32 s22, {WBASE}")
    A("v_lshlrev_b32 v20, 2, v1")
    A("v_mov_b32 v21, 0")
    A("v_mov_b32 v22, 1")
    A("s_lshl_b32 s45, s2, 8")
    A(f"s_add_u32 s45, s45, {WS_F}")
    A("s_and_b32 s44, s35, 7")
    A("s_lshl_b32 s44, s44, 1")
    A("s_add_u32 s44, s44, 9")
    A("s_cmp_eq_u32 s16, 0")
    A("s_waitcnt lgkmcnt(0)")
    A(f"s_cselect_b32 s4, s{P_AW}, s{P_BW}")
    A(f"s_cselect_b32 s5, s{P_AW+1}, s{P_BW+1}")
    A("s_add_u32 s4, s4, s39")
    A("s_addc_u32 s5, s5, 0")
    common_srds()
    A("s_branch P1_wgo")
    A.label("P1_wclr")
    A("buffer_store_dword v21, v20, s[12:15], s45 offen sc1")
    A.label("P1_wwait")
    A("s_waitcnt vmcnt(12)")
    A("s_barrier")
    A("s_cmp_eq_u32 s40, s44")
    A("s_cbranch_scc0 P1_wgo")
    A("s_waitcnt vmcnt(0)")
    A("s_mov_b64 exec, 1")
    A("buffer_atomic_add v22, off, s[72:75], 0 sc1")
    A("s_mov_b64 exec, -1")
    A.label("P1_wgo")
    A("s_xor_b32 s23, s40, s48")
    A("s_lshl_b32 s23, s23, 6")
    A("s_add_u32 s23, s23, s49")
    A("s_and_b32 s23, s23, 2047")
    A("s_mul_i32 s20, s23, 3072")
    for ty in range(3):
        A(f"s_add_u32 m0, s22, {ty*4096}")
        if ty: A("s_add_u32 s20, s20, 2048")
        else: A("s_add_u32 s40, s40, 1")
        for i in range(4):
            A(f"buffer_load_dwordx4 v{2+i}, s[4:7], s20 offen offset:{1024*i} lds")
    A(f"s_add_u32 s22, s22, {WSLOT}")
    A(f"s_cmp_eq_u32 s22, {WEND}")
    A(f"s_cselect_b32 s22, {WBASE}, s22")
    WPRE = opts.get("wpre", 3)
    A(f"s_cmp_eq_u32 s40, {WPRE}")
    A("s_cbranch_scc0 P1_w1")
    A(f"s_waitcnt vmcnt({12*(WPRE-2)})")
    A("s_barrier")
    A.label("P1_w1")
    A("s_cmp_lt_u32 s40, 5")
    A("s_cbranch_scc1 P1_wgo")
    A("s_bitcmp0_b32 s40, 0")
    A("s_cbranch_scc1 P1_w2")
    A("s_cmp_eq_u32 s40, 5")
    A("s_cbranch_scc1 P1_wclr")
    A("s_branch P1_wwait")
    A.label("P1_w2")
    A("s_cmp_lt_u32 s40, 32")
    A("s_cbranch_scc1 P1_wgo")
    A("s_branch P1_ltail")
    A.label("P1_xload")
    A("s_mov_b32 s6, 0x80000")
    A("s_lshl_b32 s36, s17, 19")
    A("v_xor_b32 v17, v18, v16")
    A("v_lshlrev_b32 v17, 4, v17")
    A("v_lshl_add_u32 v2, v15, 11, v17")
    A("v_xor_b32 v3, 64, v2")
    A(f"v_add_u32 v3, {16384-1024}, v3")
    A(f"v_add_u32 v4, {32768-2048}, v2")
    A(f"v_add_u32 v5, {32768-2048}, v3")
    A("s_mov_b32 s22, 0")
    A("s_cmp_eq_u32 s16, 0")
    A("s_waitcnt lgkmcnt(0)")
    A(f"s_cselect_b32 s4, s{P_AX}, s{P_BX}")
    A(f"s_cselect_b32 s5, s{P_AX+1}, s{P_BX+1}")
    A("s_add_u32 s4, s4, s36")
    A("s_addc_u32 s5, s5, 0")
    A.label("P1_xgo")
    A("s_xor_b32 s21, s40, s48")
    A("s_lshl_b32 s21, s21, 7")
    A("s_add_u32 s21, s21, s49")
    A("s_and_b32 s21, s21, 2047")
    XB0 = opts.get("xb0", 4)
    for q in range(8):
        A(f"s_add_u32 m0, s22, {q*4096}")
        A(f"s_add_u32 s20, s21, {q*65536}")
        if q == XB0:
            A("s_cmp_eq_u32 s40, 1")
            A("s_cbranch_scc0 P1_x0")
            A(f"s_waitcnt vmcnt({4*XB0})")
            A("s_barrier")
            A.label("P1_x0")
        for i in range(4):
            A(f"buffer_load_dwordx4 v{2+i}, s[4:7], s20 offen offset:{1024*i} lds")
    A(f"s_add_u32 s22, s22, {XSLOT}")
    A(f"s_cmp_eq_u32 s22, {3*XSLOT}")
    A("s_cselect_b32 s22, 0, s22")
    A("s_add_u32 s40, s40, 1")
    A(f"s_cmp_lt_u32 s40, {2 if XB0 == 8 else 3}")
    A("s_cbranch_scc1 P1_xgo")
    A("s_waitcnt vmcnt(32)")
    A("s_barrier")
    A("s_cmp_lt_u32 s40, 16")
    A("s_cbranch_scc1 P1_xgo")
    A.label("P1_ltail")
    common_srds()
    if opts.get("cnt", 2) == 2:
        A("buffer_load_dword v23, off, s[72:75], 0")
    A("s_waitcnt vmcnt(0)")
    A("s_barrier")
    A("v_lshrrev_b32 v10, 3, v1")
    A("s_lshl_b32 s45, s18, 1")
    A("v_add_u32 v10, s45, v10")
    A("v_and_b32 v11, 3, v10")
    A("v_lshrrev_b32 v10, 2, v10")
    A("v_lshl_add_u32 v10, v11, 3, v10")
    A("v_and_b32 v11, 7, v1")
    A("v_lshl_add_u32 v10, v11, 5, v10")
    A("s_lshl_b32 s45, s16, 3")
    A("s_add_u32 s45, s45, s17")
    A("s_lshl_b32 s45, s45, 2")
    A(f"s_add_u32 s45, s45, {WS_F}")
    A("v_lshlrev_b32 v10, 8, v10")
    A("v_add_u32 v10, s45, v10")
    A("s_barrier")
    A("s_branch P2_helpers")
    A.label("P1_compute")
    if opts.get("code_pf", 1):
        A("s_getpc_b64 s[40:41]")
        A("v_and_b32 v20, 127, v0")
        A("v_lshlrev_b32 v20, 7, v20")
        A("v_min_u32 v20, L_done-P1_compute-64, v20")
        A("s_cmp_lt_u32 s19, 2")
        A("s_cbranch_scc0 P1_nopf")
        A("global_load_dword v21, v20, s[40:41]")
        A.label("P1_nopf")
    ST(0)
    A("v_lshrrev_b32 v15, 1, v14")
    A("v_and_b32 v16, 15, v1")
    A("v_lshl_add_u32 v17, v15, 6, v16")
    A("v_lshlrev_b32 v17, 7, v17")
    A("v_lshrrev_b32 v16, 1, v16")
    A("v_lshrrev_b32 v18, 4, v1")
    A("v_xor_b32 v16, v16, v18")
    A("v_lshl_add_u32 v2, v16, 4, v17")
    A("v_xor_b32 v3, 64, v2")
    A("v_lshrrev_b32 v16, 2, v1")
    A("v_and_b32 v16, 3, v16")
    A("v_lshl_add_u32 v17, v18, 3, v16")
    A("v_lshlrev_b32 v17, 7, v17")
    A("v_lshrrev_b32 v16, 1, v16")
    A("v_and_b32 v19, 1, v18")
    A("v_lshl_add_u32 v16, v19, 1, v16")
    A("v_and_b32 v19, 1, v14")
    A("v_lshlrev_b32 v19, 1, v19")
    A("v_xor_b32 v16, v16, v19")
    A("v_lshl_add_u32 v17, v16, 5, v17")
    A("v_and_b32 v16, 3, v1")
    A("v_lshl_add_u32 v4, v16, 3, v17")
    A("v_xor_b32 v5, 32, v4")
    A("v_lshlrev_b32 v1, 4, v1")
    ACC = 72; XF = 8; WF = [24, 48]
    AX, AW0, AW1 = 0, 6, 7
    for i in range(0, 96, 2): A(f"v_mov_b64 v[{ACC+i}:{ACC+i+1}], 0")
    A("s_and_b32 s36, s19, 1")
    A("s_lshl_b32 s37, s18, 1")
    A("s_add_u32 s36, s36, s37")
    A("s_lshl_b32 s36, s36, 6")
    A("s_lshl_b32 s37, s17, 3")
    A("s_add_u32 s36, s36, s37")
    A("s_lshr_b32 s37, s19, 1")
    A("s_lshl_b32 s37, s37, 1")
    A("s_add_u32 s36, s36, s37")
    A("s_lshl_b32 s64, s36, 11")
    A("s_add_u32 s65, s64, 2048")
    A("s_lshl_b32 s66, s36, 12")
    A(f"s_add_u32 s66, s66, {WS_KV}")
    A("s_add_u32 s67, s66, 4096")
    A("s_add_u32 s68, s66, 2048")
    A("s_add_u32 s69, s66, 6144")
    A("s_mul_i32 s37, s36, 6144")
    A(f"s_add_u32 s37, s37, {WS_B}")
    A("s_cmp_eq_u32 s16, 0")
    A("s_cbranch_scc1 P1_ofs_done")
    for ty in range(3):
        for mt in range(2):
            A(f"s_add_u32 s{64+2*ty+mt}, s37, {ty*2048+mt*6144}")
    A.label("P1_ofs_done")
    A(f"s_mov_b32 s42, {f32bits(QSCALE)}")
    A(f"s_mov_b32 s43, {f32bits(QSCALE)}")
    barpos = opts.get("barpos", 4)
    def xf(st): return XF + 4*st
    def wf(s, n6): return WF[s] + 4*n6
    def acc(st, n6): return ACC + (st*6+n6)*4
    def xrd(st): return ('rd', f"ds_read_b128 {vr(xf(st),4)}, v{AX} offset:{st*2048}", f"x{st}")
    def wrds(s):
        L = []
        for i in range(6):
            ty, nt = i >> 1, i & 1
            for half in range(2):
                L.append(('rd', f"ds_read_b64_tr_b16 {vr(wf(s,i)+2*half,2)}, v{AW0+nt} offset:{ty*4096+half*512}", f"w{s}_{i}"))
        return L
    def mf(s, st, n6):
        d = acc(st, n6)
        t = M16(d, wf(s,n6), xf(st), d) if n6 < 4 else M16(d, xf(st), wf(s,n6), d)
        needs = [f"x{st}", f"w{s}_{n6}"]
        if st == 0 and n6 == 0: needs = ["x0", "x1", "x2"] + [f"w{s}_{i}" for i in range(6)]
        return ('op', t, needs)
    def nextW():
        return [f"s_add_u32 s46, s46, {WSLOT}", f"s_cmp_eq_u32 s46, {WEND}", f"s_cselect_b32 s46, {WBASE}, s46",
                f"v_add_u32 v{AW0}, s46, v4", f"v_add_u32 v{AW1}, s46, v5"]
    A("s_mov_b32 s44, 0")
    A(f"s_mov_b32 s46, {WBASE}")
    A("s_mov_b32 s40, 16")
    A(f"v_mov_b32 v{AX}, v2")
    A(f"v_add_u32 v{AW0}, s46, v4")
    A(f"v_add_u32 v{AW1}, s46, v5")
    A("s_waitcnt lgkmcnt(0)")
    common_srds()
    A("s_waitcnt vmcnt(0)")
    A("s_barrier")
    ST(1)
    items = []
    for sub in range(2):
        s = sub
        ms = [mf(s, st, (q if st % 2 == 0 else 5 - q)) for st in range(4) for q in range(6)]
        wr = wrds(s ^ 1)
        gaps = [[] for _ in range(24)]
        start = 0 if sub == 0 else barpos
        pre = nextW()
        if sub == 0:
            pre += [f"v_add_u32 v{AX}, s44, v3"]
        else:
            pre += [f"s_add_u32 s44, s44, {XSLOT}", f"s_cmp_eq_u32 s44, {3*XSLOT}", "s_cselect_b32 s44, 0, s44", f"v_add_u32 v{AX}, s44, v2",
                    "s_sub_u32 s40, s40, 1"]
        for i, l in enumerate(pre): gaps[min(i // 3, 2 if sub == 0 else barpos - 1)].append(('raw', l))
        if sub == 1: gaps[barpos - 1].append(('all', "s_barrier"))
        g = max(start, 2)
        for r in wr:
            if g in (5, 11, 17): g += 1
            gaps[g].append(r); g += 1
        assert g <= 23, g
        for st in range(4): gaps[6*st+5].append(xrd(st))
        if sub == 1: gaps[22].append(('raw', "s_cmp_lg_u32 s40, 0"))
        for i in range(24):
            items.append(ms[i]); items += gaps[i]
    pro = [it for it in items if it[0] == 'rd'][-16:]
    assert sorted(set(t[2] for t in pro)) == sorted([f"x{i}" for i in range(4)] + [f"w0_{i}" for i in range(6)])
    for it in pro: A(it[1])
    body1, _ = schedule_waits(items, passes=1, init_queue=[t[2] for t in pro])
    A(".p2align 6")
    A.label("P1_loop")
    for l in body1: A(l)
    A("s_cbranch_scc1 P1_loop")
    A("s_waitcnt lgkmcnt(0)")
    ST(2)
    A("s_nop 4")
    n = 0
    def pk():
        nonlocal n
        p = 8 + (n % 16) * 4; n += 1
        return p
    for ty in (1, 2, 0):
        if ty < 2:
            for st in range(4):
                p = pk()
                for nt in range(2):
                    d = acc(st, 2*ty+nt)
                    if ty == 0:
                        for r in (0, 2): A(f"v_pk_mul_f32 v[{d+r}:{d+r+1}], v[{d+r}:{d+r+1}], s[42:43]")
                    A(f"v_cvt_pk_bf16_f32 v{p+2*nt}, v{d}, v{d+1}")
                    A(f"v_cvt_pk_bf16_f32 v{p+2*nt+1}, v{d+2}, v{d+3}")
                A(f"buffer_store_dwordx4 {vr(p,4)}, v1, s[12:15], s{64+2*ty+(st>>1)} offen offset:{(st&1)*1024}{SC}")
        else:
            ps = []
            for mt in range(2):
                for nt in range(2):
                    p = pk(); ps.append((p, mt, nt))
                    for u in range(2):
                        d = acc(2*mt+u, 4+nt)
                        A(f"v_cvt_pk_bf16_f32 v{p+2*u}, v{d}, v{d+1}")
                        A(f"v_cvt_pk_bf16_f32 v{p+2*u+1}, v{d+2}, v{d+3}")
            A("s_nop 1")
            for p, mt, nt in ps:
                A(f"v_permlane16_swap_b32 v{p}, v{p+2}")
                A(f"v_permlane16_swap_b32 v{p+1}, v{p+3}")
                A(f"buffer_store_dwordx4 {vr(p,4)}, v1, s[12:15], s{68+mt} offen offset:{nt*1024}{SC}")
    A("s_waitcnt vmcnt(0)")
    A("s_barrier")
    ST(3)

    NS = 6; STG = 16384; RING = NS * STG; BREG = RING; FLAGS = BREG + 4096 + 8 * 6144; MASKT = FLAGS + 256; XCH = 0
    assert MASKT + 6144 <= LDS_BYTES
    IDX = 4; ONES = 8; KF = 12; VF = 20; MX = [28, 29]; SA = 32; SB = 48
    Q = [64, 72]; L = [80, 84]; O = [96, 112]; NEGM = [128, 144]
    QB = 128; KBP = 136; KBC = 144; VBC = 152; VBP = 12; PK = 16; OB = O[1]; LB = L[1]
    def S32(d, a, b): return f"v_smfmac_f32_32x32x32_bf16 {vr(d,16)}, {vr(a,4)}, {vr(b,8)}, v{IDX}"
    def S16(d, a, b): return f"v_smfmac_f32_16x16x64_bf16 {vr(d,4)}, {vr(a,4)}, {vr(b,8)}, v{IDX}"
    def E(r): return f"v_exp_f32 v{r}, v{r}"
    def key_of(r, hb): return 8 * (r >> 2) + 4 * hb + (r & 3)
    def bmask(r, prev):
        m = 0
        for l in range(64):
            d = (l & 31) - key_of(r, l >> 5) + (32 if prev else 0)
            if 0 <= d <= 14 and d % 2 == 0: m |= 1 << l
        return m
    def rowmax(regs, dst, tmp):
        regs = list(regs)
        A(f"v_max3_f32 v{dst}, v{regs[0]}, v{regs[1]}, v{regs[2]}")
        i = 3
        while i + 1 < len(regs):
            A(f"v_max3_f32 v{dst}, v{regs[i]}, v{regs[i+1]}, v{dst}"); i += 2
        if i < len(regs): A(f"v_max_f32 v{dst}, v{regs[i]}, v{dst}")
        A(f"v_mov_b32 v{tmp}, v{dst}")
        A("s_nop 1")
        A(f"v_permlane32_swap_b32 v{dst}, v{tmp}")
        A("s_nop 1")
        A(f"v_max_f32 v{dst}, v{dst}, v{tmp}")
    def read_flags(r):
        A(f"v_mov_b32 v7, {FLAGS}")
        A(f"ds_read_b128 {vr(r,4)}, v7")
        A(f"ds_read_b128 {vr(r+4,4)}, v7 offset:16")
    def or_flags(r, sdst):
        A(f"v_or3_b32 v{r}, v{r}, v{r+4}, v{r+5}")
        A(f"v_or3_b32 v{r}, v{r}, v{r+6}, v{r+7}")
        A(f"v_or3_b32 v{r}, v{r}, v{r+1}, v{r+2}")
        A(f"v_or_b32 v{r}, v{r}, v{r+3}")
        A("s_nop 0")
        A(f"v_readfirstlane_b32 s{sdst}, v{r}")
    def p2_ids():
        A("s_and_b32 s16, s35, 3")
        A("s_lshl_b32 s36, s34, 2")
        A("s_add_u32 s16, s16, s36")
        A("s_lshr_b32 s17, s35, 2")
        A("s_lshl_b32 s36, s16, 18")
        A(f"s_add_u32 s36, s36, {WS_KV}")
        A(f"s_add_u32 s4, s{P_WS}, s36")
        A(f"s_addc_u32 s5, s{P_WS+1}, 0")
        A("s_mov_b32 s6, 0x40000")
        A("s_mov_b32 s24, 0")
    p2_ids()
    A("v_lshrrev_b32 v6, 4, v1")
    A("s_lshr_b32 s18, s19, 2")
    A("s_and_b32 s20, s19, 3")
    A("s_lshl_b32 s20, s20, 1")
    A("s_add_u32 s20, s20, s18")
    A("s_lshl_b32 s26, s17, 3")
    A("s_add_u32 s26, s26, s20")
    A("s_lshl_b32 s39, s18, 13")
    A("v_and_b32 v31, 15, v6")
    A("v_lshlrev_b32 v31, 4, v31")
    A("v_and_b32 v5, 16, v6")
    A("v_lshl_add_u32 v31, v5, 6, v31")
    A("v_and_b32 v5, 32, v6")
    A("v_lshl_add_u32 v31, v5, 4, v31")
    A("s_lshl_b32 s31, s26, 5")
    A("s_add_u32 s31, s31, s16")
    A("s_lshl_b32 s31, s31, 11")
    A(f"s_add_u32 s31, s31, {WS_O}")
    A(f"v_mov_b32 v{IDX}, 0xdddd")
    A("v_and_b32 v5, 4, v6")
    A("v_cmp_eq_u32 vcc, 0, v5")
    A("v_mov_b32 v7, 0x3f803f80")
    A("v_add_u32 v30, s39, v31")
    A(f"v_cndmask_b32 v{ONES}, 0, v7, vcc")
    A(f"v_cndmask_b32 v{ONES+1}, 0, v7, vcc")
    A(f"v_sub_u32 v{ONES+2}, v7, v{ONES}")
    A(f"v_mov_b32 v{ONES+3}, v{ONES+2}")
    A("s_lshl_b32 s27, s20, 11")
    A(f"s_add_u32 s27, s27, {BREG}")
    A("v_add_u32 v5, s27, v31")
    A("v_xor_b32 v6, 2048, v5")
    A.label("P2_restart")
    for x in range(2):
        for i in range(0, 16, 2): A(f"v_mov_b64 v[{O[x]+i}:{O[x]+i+1}], 0")
        for i in range(0, 4, 2): A(f"v_mov_b64 v[{L[x]+i}:{L[x]+i+1}], 0")
    A("v_mov_b32 v2, v30")
    A(f"s_mov_b32 s25, {STG}")
    A(f"v_add_u32 v3, {STG}, v30")
    A("s_mov_b32 s23, 16")
    A("s_barrier")
    ST(4)
    SX = [SA, SB]
    A("s_cmp_lg_u32 s24, 0")
    A("s_cbranch_scc1 P2_main")
    A(f"ds_read_b128 {vr(VF,4)}, v31 offset:0")
    for x in range(2): A(f"ds_read_b128 {vr(Q[x],4)}, v{5+x}")
    A(f"ds_read_b128 {vr(VF+4,4)}, v31 offset:256")
    for x in range(2): A(f"ds_read_b128 {vr(Q[x]+4,4)}, v{5+x} offset:256")
    A("s_waitcnt lgkmcnt(3)")
    for x in range(2): A(M32(SX[x], VF, Q[x], None))
    A("s_waitcnt lgkmcnt(0)")
    for x in range(2): A(M32(SX[x], VF+4, Q[x]+4, SX[x]))
    A("s_nop 7")
    A("s_nop 2")
    for x in range(2): rowmax(range(SX[x], SX[x]+16), MX[x], 6)
    A.label("P2_main")
    A(f"ds_read_b128 {vr(KF,4)}, v2 offset:0")
    A(f"ds_read_b128 {vr(KF+4,4)}, v2 offset:256")
    A(f"ds_read_b128 {vr(VF,4)}, v2 offset:2048")
    def negm(x):
        A(f"v_sub_f32 v{NEGM[x]}, 0, v{MX[x]}")
        A(f"v_sub_f32 v{NEGM[x]+1}, 0, v{MX[x]}")
        for i in range(2, 16, 2): A(f"v_mov_b64 v[{NEGM[x]+i}:{NEGM[x]+i+1}], v[{NEGM[x]}:{NEGM[x]+1}]")
    negm(0)
    for i in (0, 2): A(f"v_mov_b64 v[{VF+4+i}:{VF+5+i}], 0")
    A("s_waitcnt lgkmcnt(1)")
    A(M32(SA, KF, Q[0], NEGM[0]))
    A(M32(SA, KF+4, Q[0]+4, SA))
    negm(1)
    for i in range(0, 8, 2): A(f"v_mov_b64 v[{SB+8+i}:{SB+9+i}], 0")
    A(E(SA))
    A(".p2align 6")
    A.label("P2_loop")
    def rd(dst, tile, off):
        a, t = ("v2", tile) if tile < 2 else ("v3", tile - 2)
        return f"ds_read_b128 {vr(dst,4)}, {a} offset:{t*4096+off}"
    for u in range(4):
        cur, nxt = (SA, SB) if u % 2 == 0 else (SB, SA)
        i = u // 2; xc = u % 2; xp = xn = xc ^ 1
        if xc == 0:
            w_pv1 = w_qka = w_qkb = None; w_pv0 = 3
            r_pv1 = [rd(VF+4, i, 2304)]; r_qka = [rd(KF, i+1, 0)]; r_qkb = [rd(KF+4, i+1, 256)]; r_pv0 = []
        else:
            w_pv1, w_qka, w_qkb, w_pv0 = 2, 1, 0, None
            r_pv1 = r_qka = r_qkb = []; r_pv0 = [rd(VF, i+1, 2048)]
        bar = (u == 1)
        last = (u == 3)
        def W(n):
            if n is not None: A(f"s_waitcnt lgkmcnt({n})")
        if w_pv1 is None: A("s_nop 0")
        W(w_pv1)
        A(S32(O[xp], VF+4, nxt+8))
        for l in r_pv1: A(l)
        A(E(cur+1)); A(E(cur+2)); A(E(cur+3))
        A(S16(L[xp], ONES, nxt+8))
        A(E(cur+4)); A(E(cur+5))
        W(w_qka)
        A(M32(nxt, KF, Q[xn], NEGM[xn]))
        for l in r_qka: A(l)
        A(E(cur+6)); A(E(cur+7)); A(E(cur+8))
        W(w_qkb)
        A(M32(nxt, KF+4, Q[xn]+4, nxt))
        if bar: A("s_barrier")
        for l in r_qkb: A(l)
        A(E(cur+9)); A(E(cur+10)); A(E(cur+11))
        W(w_pv0)
        A(S32(O[xc], VF, cur))
        for l in r_pv0: A(l)
        A(E(cur+12))
        if last: A(f"s_add_u32 s25, s25, {STG}")
        A(E(cur+13))
        if last: A(f"s_cmp_eq_u32 s25, {RING}")
        A(E(cur+14))
        if last: A("s_cselect_b32 s25, 0, s25")
        A(S16(L[xc], ONES, cur))
        if last:
            A("s_sub_u32 s23, s23, 1")
            A("v_mov_b32 v2, v3")
            A("v_add_u32 v3, s25, v30")
            A("s_cmp_lg_u32 s23, 0")
        else: A("s_nop 0")
        A(E(cur+15)); A(E(nxt))
        if last: A("s_cbranch_scc1 P2_loop")
    A("s_waitcnt lgkmcnt(0)")
    A(S32(O[1], VF+4, SB+8))
    A(S16(L[1], ONES, SB+8))
    ST(5)
    A("s_mul_i32 s36, s20, 6144")
    A(f"s_add_u32 s36, s36, {BREG}")
    A("v_add_u32 v2, s36, v31")
    A(f"v_add_u32 v3, {MASKT}, v1")
    for q in range(4): A(f"ds_read_b128 {vr(SA+4*q,4)}, v3 offset:{1024*q}")
    A(f"ds_read_b128 {vr(QB,4)}, v2 offset:4096")
    A(f"ds_read_b128 {vr(KBC,4)}, v2 offset:6144")
    for q in range(2): A(f"ds_read_b128 {vr(SB+8+4*q,4)}, v3 offset:{4096+1024*q}")
    A(f"ds_read_b128 {vr(KBP,4)}, v2 offset:0")
    A(f"ds_read_b128 {vr(QB+4,4)}, v2 offset:4352")
    A(f"ds_read_b128 {vr(KBC+4,4)}, v2 offset:6400")
    A(f"ds_read_b128 {vr(KBP+4,4)}, v2 offset:256")
    A(f"s_mov_b32 s44, {f32bits(2.0**56)}")
    A(f"v_mul_f32 v5, s44, v{L[0]}")
    for i in range(0, 16, 2): A(f"v_maximum3_f32 v5, |v{O[0]+i}|, |v{O[0]+i+1}|, v5")
    A(f"v_mul_f32 v6, s44, v{L[1]}")
    for i in range(0, 16, 2): A(f"v_maximum3_f32 v6, |v{O[1]+i}|, |v{O[1]+i+1}|, v6")
    A("s_mul_i32 s36, s19, 5120")
    A("v_add_u32 v7, s36, v1")
    A(f"s_mov_b32 s45, {f32bits(2.0**120)}")
    A("v_maximum3_f32 v5, v5, v6, v6")
    A("s_waitcnt lgkmcnt(0)")
    A("v_cmp_ngt_f32 vcc, s45, v5")
    A("s_cmp_lg_u32 s26, 0")
    A("s_cbranch_scc1 P2_t0done")
    A("v_mov_b32 v6, 0xff800000")
    for r in range(8, 16): A(f"v_mov_b32 v{SB+r}, v6")
    A("s_nop 1")
    A.label("P2_t0done")
    A(M32(SA, KBC, QB, SA))
    A(M32(SB, KBP, QB, SB))
    for i in range(4): A(f"ds_write_b128 v7, {vr(O[1]+4*i,4)} offset:{XCH+1024*i}")
    A(f"ds_write_b32 v7, v{L[1]} offset:{XCH+4096}")
    A(M32(SA, KBC+4, QB+4, SA))
    A(M32(SB, KBP+4, QB+4, SB))
    for m in range(2): A(f"ds_read_b128 {vr(VBC+4*m,4)}, v2 offset:{8192+256*m}")
    A(f"ds_read_b128 {vr(VBP,4)}, v2 offset:2304")
    if opts.get("force_fb"): A("s_mov_b64 vcc, -1")
    A("s_cmp_lg_u64 vcc, 0")
    A("s_cselect_b32 s44, 1, 0")
    A("v_mov_b32 v6, s44")
    A("s_lshl_b32 s45, s19, 2")
    A(f"s_add_u32 s45, s45, {FLAGS}")
    A("v_mov_b32 v7, s45")
    A("ds_write_b32 v7, v6")
    A("s_xor_b32 s36, s19, 4")
    A("s_mul_i32 s36, s36, 5120")
    A("v_add_u32 v3, s36, v1")
    A("s_cmp_lg_u32 s24, 0")
    A("s_cbranch_scc1 P2_xchg")
    bregs = list(range(SA, SA+16)) + list(range(SB+8, SB+16))
    rowmax(bregs, 6, 7)
    for r in bregs[::2]: A(f"v_pk_add_f32 v[{r}:{r+1}], v[{r}:{r+1}], v[6:7] op_sel_hi:[1,0] neg_lo:[0,1] neg_hi:[0,1]")
    A("s_waitcnt lgkmcnt(0)")
    for i in range(0, 16, 2): A(f"v_mov_b64 v[{OB+i}:{OB+i+1}], 0")
    for i in range(0, 4, 2): A(f"v_mov_b64 v[{LB+i}:{LB+i+1}], 0")
    for r in bregs[:10]: A(E(r))
    A(S32(OB, VBC, SA))
    for r in bregs[10:13]: A(E(r))
    A(S16(LB, ONES, SA))
    for r in bregs[13:18]: A(E(r))
    A(S32(OB, VBC+4, SA+8))
    for r in bregs[18:21]: A(E(r))
    A(S16(LB, ONES, SA+8))
    for r in bregs[21:24]: A(E(r))
    A("s_nop 1")
    A(S16(LB, ONES, SB+8))
    A(S32(OB, VBP, SB+8))
    A.label("P2_xchg")
    A("s_waitcnt lgkmcnt(0)")
    A("s_barrier")
    A(f"ds_read_b32 v5, v3 offset:{XCH+4096}")
    for i in range(4): A(f"ds_read_b128 {vr(SA+4*i,4)}, v3 offset:{XCH+1024*i}")
    read_flags(SB)
    A(f"s_add_u32 s45, s31, {4<<20}")
    A("s_cmp_lg_u32 s24, 0")
    A("s_cbranch_scc1 P2_nob")
    A(f"v_rcp_f32 v6, v{LB}")
    A("s_nop 2")
    for i in range(0, 16, 2): A(f"v_pk_mul_f32 v[{OB+i}:{OB+i+1}], v[{OB+i}:{OB+i+1}], v[6:7] op_sel_hi:[1,0]")
    for i in range(8): A(f"v_cvt_pk_bf16_f32 v{PK+i}, v{OB+2*i}, v{OB+2*i+1}")
    for m in range(2):
        A(f"buffer_store_dwordx4 {vr(PK+4*m,4)}, v1, s[12:15], s45 offen offset:{1024*m}{SC}")
    A.label("P2_nob")
    A("s_waitcnt lgkmcnt(2)")
    A(f"v_add_f32 v6, v5, v{L[0]}")
    A("v_rcp_f32 v6, v6")
    for i in range(0, 16, 2): A(f"v_pk_add_f32 v[{O[0]+i}:{O[0]+i+1}], v[{SA+i}:{SA+i+1}], v[{O[0]+i}:{O[0]+i+1}]")
    for i in range(0, 16, 2): A(f"v_pk_mul_f32 v[{O[0]+i}:{O[0]+i+1}], v[{O[0]+i}:{O[0]+i+1}], v[6:7] op_sel_hi:[1,0]")
    for i in range(8): A(f"v_cvt_pk_bf16_f32 v{SA+i}, v{O[0]+2*i}, v{O[0]+2*i+1}")
    for m in range(2):
        A(f"buffer_store_dwordx4 {vr(SA+4*m,4)}, v1, s[12:15], s31 offen offset:{1024*m}{SC}")
    A("s_cmp_lg_u32 s24, 0")
    A("s_cbranch_scc1 P2_fin")
    A("s_waitcnt lgkmcnt(0)")
    or_flags(SB, 44)
    A("s_nop 3")
    A("s_cmp_eq_u32 s44, 0")
    A("s_cbranch_scc0 P2_fallback")
    A.label("P2_fin")
    ST(6)
    A("s_waitcnt vmcnt(0)")
    A("s_barrier")
    ST(7)
    A("s_cmp_gt_u32 s19, 4")
    A("s_cbranch_scc1 L_done")

    NO = opts.get("no", 4); NW = 10 - NO; S3 = 16384; W3 = NO * S3
    def p3_ids():
        A("s_lshr_b32 s16, s34, 2")
        A("s_and_b32 s17, s34, 1")
        A("s_lshl_b32 s17, s17, 3")
        A("s_and_b32 s36, s35, 7")
        A("s_add_u32 s17, s17, s36")
        A("s_lshr_b32 s18, s34, 1")
        A("s_and_b32 s18, s18, 1")
        A("s_lshl_b32 s18, s18, 2")
        A("s_lshr_b32 s36, s35, 3")
        A("s_add_u32 s18, s18, s36")
    p3_ids()
    A("s_cmp_eq_u32 s19, 4")
    A("s_cbranch_scc1 P3_oload")
    A("v_lshrrev_b32 v1, 4, v1")
    A("s_lshr_b32 s36, s19, 1")
    A("s_and_b32 s37, s19, 1")
    A("v_lshrrev_b32 v18, 4, v1")
    A("v_and_b32 v17, 15, v1")
    A("v_lshlrev_b32 v2, 4, v17")
    A("v_lshl_add_u32 v2, v18, 9, v2")
    A("s_lshl_b32 s38, s36, 13")
    A("v_add_u32 v2, s38, v2")
    A("v_lshrrev_b32 v19, 2, v1")
    A("v_and_b32 v19, 7, v19")
    A("v_lshrrev_b32 v20, 5, v1")
    A("v_lshl_add_u32 v20, v20, 4, v19")
    A("v_lshlrev_b32 v20, 8, v20")
    A("s_lshl_b32 s38, s37, 2")
    A("v_xor_b32 v21, s38, v19")
    A("v_lshl_add_u32 v20, v21, 5, v20")
    A("v_and_b32 v21, 3, v1")
    A("v_lshl_add_u32 v3, v21, 3, v20")
    for a in range(1, 4): A(f"v_xor_b32 v{3+a}, {32*a}, v3")
    ACC3 = 88; FS = [24, 56]; AO = 8; AW = 9
    for i in range(0, 64, 2): A(f"v_mov_b64 v[{ACC3+i}:{ACC3+i+1}], 0")
    for i in range(0, 32, 2): A(f"v_mov_b64 v[{FS[1]+i}:{FS[1]+i+1}], 0")
    A("v_lshlrev_b32 v22, 12, v17")
    A("v_and_b32 v21, 1, v18")
    A("v_lshl_add_u32 v22, v21, 5, v22")
    A("v_lshrrev_b32 v21, 1, v18")
    A("v_lshl_add_u32 v22, v21, 4, v22")
    A("s_lshl_b32 s38, s17, 7")
    A("s_lshl_b32 s36, s36, 6")
    A("s_add_u32 s36, s36, s38")
    A("s_lshl_b32 s36, s36, 12")
    A("s_lshl_b32 s38, s16, 11")
    A("s_add_u32 s36, s36, s38")
    A("s_lshl_b32 s38, s18, 8")
    A("s_add_u32 s36, s36, s38")
    A("s_lshl_b32 s37, s37, 7")
    A("s_add_u32 s40, s36, s37")
    for st in range(1, 4): A(f"s_add_u32 s{40+st}, s40, {st*16*4096}")
    A(f"s_mov_b32 s8, s{P_OUT}")
    A(f"s_mov_b32 s9, s{P_OUT+1}")
    A(f"s_mov_b32 s10, {2048*4096}")
    def of(s, st): return FS[s] + 4*st
    def wf3(s, a): return FS[s] + 16 + 4*a
    def acc3(st, a): return ACC3 + (st*4+a)*4
    def rd_items(hh, s):
        L_ = [('rd', f"ds_read_b128 {vr(of(s,0),4)}, v{AO} offset:{hh*2048}", f"o{s}_0")]
        for i in range(4):
            for half in range(2):
                L_.append(('rd', f"ds_read_b64_tr_b16 {vr(wf3(s,i)+2*half,2)}, v{AW+i} offset:{hh*8192+half*2048}", f"w{s}_{i}"))
        for i in range(1, 4):
            L_.append(('rd', f"ds_read_b128 {vr(of(s,i),4)}, v{AO} offset:{(i>>1)*4096+hh*2048+(i&1)*256}", f"o{s}_{i}"))
        return L_
    def mf_items(s):
        L_ = []
        for st in range(4):
            for a in (range(4) if st % 2 == 0 else range(3, -1, -1)):
                needs = [f"o{s}_{st}", f"w{s}_{a}"]
                if st == 0 and a == 0: needs += [f"w{s}_{i}" for i in range(4)] + [f"o{s}_{i}" for i in range(4)]
                L_.append(('op', M16(acc3(st, a), wf3(s, a), of(s, st), acc3(st, a)), needs))
        return L_
    upd = [f"s_add_u32 s23, s23, {S3}", f"s_cmp_eq_u32 s23, {W3}", "s_cselect_b32 s23, 0, s23", f"v_add_u32 v{AO}, s23, v2",
           f"s_add_u32 s22, s22, {S3}", f"s_cmp_eq_u32 s22, {LDS_BYTES}", f"s_cselect_b32 s22, {W3}, s22", "s_sub_u32 s38, s38, 1"] + \
          [f"v_add_u32 v{AW+a}, s22, v{3+a}" for a in range(4)] + ["s_cmp_lg_u32 s38, 0"]
    upd = [('raw', u) for u in upd]
    items = [('all', "s_barrier")] + interleave(mf_items(1), rd_items(0, 0), [2] * 16)
    items += interleave(mf_items(0), rd_items(1, 1) + upd, [2] * 16)
    body, _ = schedule_waits(items, passes=2)
    A("s_mov_b32 s23, 0")
    A(f"s_mov_b32 s22, {W3}")
    A("s_mov_b32 s38, 16")
    A(f"v_mov_b32 v{AO}, v2")
    for a in range(4): A(f"v_add_u32 v{AW+a}, s22, v{3+a}")
    if stamp:
        A("s_barrier"); ST(8); A("s_branch P3_first")
    A(".p2align 6")
    A.label("P3_loop")
    for i, l in enumerate(body):
        A(l)
        if l == "s_barrier" and stamp: A.label("P3_first")
    A("s_cbranch_scc1 P3_loop")
    A("s_waitcnt lgkmcnt(0)")
    for it in mf_items(1): A(it[1])
    ST(9)
    n = 0
    for st in range(4):
        for pr in range(2):
            p = 24 + n * 4; n += 1
            for u in range(2):
                d = acc3(st, 2*pr+u)
                A(f"v_cvt_pk_bf16_f32 v{p+2*u}, v{d}, v{d+1}")
                A(f"v_cvt_pk_bf16_f32 v{p+2*u+1}, v{d+2}, v{d+3}")
        A("s_nop 1")
        for pr in range(2):
            p = 24 + (n - 2 + pr) * 4
            A(f"v_permlane16_swap_b32 v{p}, v{p+2}")
            A(f"v_permlane16_swap_b32 v{p+1}, v{p+3}")
            A(f"buffer_store_dwordx4 {vr(p,4)}, v22, s[8:11], s{40+st} offen offset:{pr*64}{SC}")
    if opts.get("padto"):
        A("s_waitcnt vmcnt(0)")
        A(f"s_mov_b32 s37, {opts['padto']}")
        if opts.get("probe") is not None:
            ST(10)
            A(f"s_sub_u32 s37, s{50+opts['probe']}, s98")
            A(f"s_add_u32 s37, s37, {opts['padto']}")
        A.label("L_pad")
        A("s_memrealtime s[100:101]")
        A("s_waitcnt lgkmcnt(0)")
        A("s_sub_u32 s36, s100, s98")
        A("s_cmp_lt_u32 s36, s37")
        A("s_cbranch_scc1 L_pad")
        if opts.get("probe") is not None: A("s_endpgm")
    if stamp:
        A("s_waitcnt vmcnt(0)")
        ST(10)
        if opts.get("dbgout") is not None:
            A(f"s_cmp_lg_u32 s2, {opts['dbgout']}")
            A("s_cbranch_scc1 L_nodbg")
            A("s_cmp_lg_u32 s19, 0")
            A("s_cbranch_scc1 L_nodbg")
            for i in range(1, 11):
                A(f"s_sub_u32 s36, s{50+i}, s50")
                A("v_mov_b32 v3, s36")
                A(f"buffer_store_dword v3, off, s[72:75], 0 offset:{4*i}")
            A.label("L_nodbg")
        A("s_lshl_b32 s36, s2, 2")
        A("s_add_u32 s36, s36, s19")
        A("s_lshl_b32 s36, s36, 6")
        A(f"s_add_u32 s36, s36, {64<<20}")
        A("s_mov_b32 s14, 0x8000000")
        for i in range(12):
            A(f"v_mov_b32 v3, s{50+i}")
            A(f"buffer_store_dword v3, off, s[12:15], s36 offset:{4*i}")
    A("s_endpgm")
    def ring_loader(tag, nslots, base, issue, pre):
        A(f"s_mov_b32 s23, {base}")
        A("s_mov_b32 s38, 0")
        A.label(f"{tag}_go2")
        issue()
        A("s_add_u32 s38, s38, 1")
        A(f"s_add_u32 s23, s23, {S3}")
        A(f"s_cmp_eq_u32 s23, {base + nslots*S3}")
        A(f"s_cselect_b32 s23, {base}, s23")
        A(f"s_cmp_eq_u32 s38, {pre}")
        A(f"s_cbranch_scc0 {tag}_l1")
        A(f"s_waitcnt vmcnt({min(63, 16*(pre-1))})")
        A("s_barrier")
        A.label(f"{tag}_l1")
        A(f"s_cmp_lt_u32 s38, {nslots}")
        A(f"s_cbranch_scc1 {tag}_go2")
        A(f"s_waitcnt vmcnt({min(63, 16*(nslots-2))})")
        A("s_barrier")
        A("s_cmp_lt_u32 s38, 16")
        A(f"s_cbranch_scc1 {tag}_go2")
        for j in range(nslots - 2):
            A(f"s_waitcnt vmcnt({min(63, 16*(nslots-3-j))})")
            A("s_barrier")
        if stamp and opts.get("probe") is None:
            A("s_lshl_b32 s36, s2, 1")
            A("s_lshr_b32 s37, s19, 3")
            A("s_add_u32 s36, s36, s37")
            A("s_lshl_b32 s36, s36, 6")
            A(f"s_add_u32 s36, s36, {65<<20}")
            A("s_mov_b32 s14, 0x8000000")
            for i in range(3):
                A(f"v_mov_b32 v3, s{50+i}")
                A(f"buffer_store_dword v3, off, s[12:15], s36 offset:{4*i}")
        A("s_endpgm")
    A.label("P3_oload")
    A("s_lshl_b32 s36, s16, 22")
    A("s_lshl_b32 s37, s17, 18")
    A("s_add_u32 s36, s36, s37")
    A(f"s_add_u32 s36, s36, {WS_O}")
    A(f"s_add_u32 s4, s{P_WS}, s36")
    A(f"s_addc_u32 s5, s{P_WS+1}, 0")
    A("s_mov_b32 s6, 0x40000")
    A("s_lshl_b32 s21, s34, 13")
    poll("P3_o", 128, 32, 2)
    def o_issue():
        for t in range(4):
            A(f"s_add_u32 m0, s23, {t*4096}")
            A(f"s_add_u32 s20, s21, {t*65536}")
            for i in range(4): A(f"buffer_load_dwordx4 v1, s[4:7], s20 offen offset:{1024*i}{LD} lds")
        A("s_add_u32 s21, s21, 4096")
        A("s_and_b32 s21, s21, 0xffff")
    ring_loader("P3_o", NO, 0, o_issue, opts.get("opre", 2))

    A.label("P2_fallback")
    A("s_mov_b32 s24, 1")
    for x in range(2): A(f"v_mov_b32 v{MX[x]}, 0xff800000")
    A("s_mov_b32 s21, 0")
    A.label("P2_maxloop")
    A(f"buffer_load_dwordx4 {vr(KF,4)}, v31, s[4:7], s21 offen{LD}")
    A(f"buffer_load_dwordx4 {vr(KF+4,4)}, v31, s[4:7], s21 offen offset:256{LD}")
    A("s_waitcnt vmcnt(0)")
    for x in range(2): A(M32(SX[x], KF, Q[x], None))
    for x in range(2): A(M32(SX[x], KF+4, Q[x]+4, SX[x]))
    A("s_nop 7")
    A("s_nop 3")
    for x in range(2):
        for i in range(8): A(f"v_max3_f32 v{MX[x]}, v{SX[x]+2*i}, v{SX[x]+2*i+1}, v{MX[x]}")
    A("s_add_u32 s21, s21, 4096")
    A("s_cmp_lt_u32 s21, 0x40000")
    A("s_cbranch_scc1 P2_maxloop")
    for x in range(2):
        A(f"v_mov_b32 v6, v{MX[x]}")
        A("s_nop 1")
        A(f"v_permlane32_swap_b32 v{MX[x]}, v6")
        A("s_nop 1")
        A(f"v_max_f32 v{MX[x]}, v{MX[x]}, v6")
    A("s_barrier")
    A("s_branch P2_restart")

    A.label("P2_helpers")
    p2_ids()
    A("v_lshlrev_b32 v1, 4, v1")
    A("s_lshl_b32 s26, s16, 6")
    A("s_lshl_b32 s27, s17, 3")
    A("s_add_u32 s26, s26, s27")
    A("v_lshrrev_b32 v41, 4, v1")
    A("v_lshrrev_b32 v42, 3, v41")
    A("v_and_b32 v42, 1, v42")
    A("s_lshl_b32 s40, s17, 1")
    A("v_add_u32 v42, s40, v42")
    A("v_lshrrev_b32 v40, 3, v42")
    A("v_and_b32 v42, 7, v42")
    A("v_lshl_add_u32 v40, v42, 3, v40")
    A("v_and_b32 v42, 3, v41")
    A("v_lshl_add_u32 v40, v42, 6, v40")
    A("v_and_b32 v42, 4, v41")
    A("v_lshrrev_b32 v42, 1, v42")
    A("v_add_u32 v40, v40, v42")
    A("v_and_b32 v42, 16, v41")
    A("v_lshrrev_b32 v42, 2, v42")
    A("v_add_u32 v40, v40, v42")
    A("s_lshl_b32 s40, s16, 2")
    A(f"s_add_u32 s40, s40, {WS_F + 128}")
    A("v_lshlrev_b32 v40, 8, v40")
    A("v_add_u32 v40, s40, v40")
    A("s_cmp_eq_u32 s19, 9")
    A("s_cbranch_scc1 P2_aux")
    A("s_lshl_b32 s27, s26, 11")
    A("s_barrier")
    poll("P2_k", 0, 8, 2)
    A.label("P2_lstart")
    def l_stage():
        for g in range(4):
            A(f"s_add_u32 m0, s22, {g * 4096}")
            A(f"s_add_u32 s20, s21, {(g >> 1) * 131072 + (g & 1) * 4096}")
            for i in range(4):
                A(f"buffer_load_dwordx4 v1, s[4:7], s20 offen offset:{1024*i}{LD} lds")
        A("s_add_u32 s21, s21, 8192")
        A(f"s_add_u32 s22, s22, {STG}")
        A(f"s_cmp_eq_u32 s22, {RING}")
        A("s_cselect_b32 s22, 0, s22")
    for g in range(4):
        A(f"s_mov_b32 m0, {BREG + g * 4096}")
        A(f"s_add_u32 s20, s27, {g * 4096}")
        for i in range(4):
            A(f"buffer_load_dwordx4 v1, s[12:15], s20 offen offset:{1024*i}{LD} lds")
    A("s_mov_b32 s21, 0")
    A("s_mov_b32 s22, 0")
    A("s_mov_b32 s23, 0")
    KPRE = opts.get("kpre", 2)
    A.label("P2_lloop")
    l_stage()
    A("s_add_u32 s23, s23, 1")
    A(f"s_cmp_eq_u32 s23, {KPRE}")
    A("s_cbranch_scc0 P2_l1")
    A(f"s_waitcnt vmcnt({16*(KPRE-1)})")
    A("s_barrier")
    A.label("P2_l1")
    A("s_cmp_lt_u32 s23, 5")
    A("s_cbranch_scc1 P2_lloop")
    A("s_waitcnt vmcnt(48)")
    A("s_barrier")
    A("s_cmp_lt_u32 s23, 16")
    A("s_cbranch_scc1 P2_lloop")
    for n_ in (32, 16, 0):
        A(f"s_waitcnt vmcnt({n_})"); A("s_barrier")
    A("s_barrier")
    A("s_branch P2_htail")
    A.label("P2_aux")
    A("s_mul_i32 s26, s26, 6144")
    A(f"s_add_u32 s26, s26, {WS_B - 4096}")
    A("s_add_u32 s27, s26, 6144")
    A("s_cmp_eq_u32 s17, 0")
    A("s_cselect_b32 s27, s27, s26")
    if opts.get("cnt", 2) == 1: poll_cnt("P2_c", 256, 2)
    if opts.get("cnt", 2) == 2:
        A("v_readfirstlane_b32 s46, v23")
        A("s_nop 3")
        A("s_cmp_ge_u32 s46, 256")
        A("s_cbranch_scc1 P2_c_go")
        poll_cnt("P2_c", 256, 2)
    A("v_mov_b32 v7, 0xff800000")
    for q in range(24):
        m = bmask(q, False) if q < 16 else bmask(q - 8, True)
        A(f"s_mov_b32 s40, {m & 0xffffffff}")
        A(f"s_mov_b32 s41, {m >> 32}")
        A(f"v_cndmask_b32 v{16+q}, v7, 0, s[40:41]")
    A(f"v_add_u32 v3, {MASKT}, v1")
    A("s_barrier")
    signal(10, 16, 2)
    for q in range(6): A(f"ds_write_b128 v3, {vr(16+4*q,4)} offset:{1024*q}")
    A("s_waitcnt lgkmcnt(0)")
    A.label("P2_astart")
    for i in range(5): A("s_barrier")
    if opts.get("wo_pf", 1):
        A("s_mov_b32 s10, 0x200000")
        A("s_cmp_lt_u32 s34, 4")
        A(f"s_cselect_b32 s8, s{P_AWO}, s{P_BWO}")
        A(f"s_cselect_b32 s9, s{P_AWO+1}, s{P_BWO+1}")
        A("v_and_b32 v44, 0x70, v1")
        A("v_lshlrev_b32 v44, 3, v44")
        A("v_lshrrev_b32 v45, 7, v1")
        A("v_lshl_add_u32 v44, v45, 11, v44")
        A("s_lshl_b32 s40, s35, 16")
        A("s_and_b32 s41, s34, 2")
        A("s_lshl_b32 s41, s41, 9")
        A("s_add_u32 s40, s40, s41")
    for i in range(4):
        if opts.get("wo_pf", 1):
            A("buffer_load_dword v46, v44, s[8:11], s40 offen")
            A("s_add_u32 s40, s40, 16384")
        A("s_barrier")
    if opts.get("out_touch", 1):
        A(f"s_mov_b32 s8, s{P_OUT}")
        A(f"s_mov_b32 s9, s{P_OUT+1}")
        A(f"s_mov_b32 s10, {2048*4096}")
        A("s_and_b32 s40, s34, 1")
        A("s_lshl_b32 s40, s40, 3")
        A("s_and_b32 s41, s35, 7")
        A("s_add_u32 s40, s40, s41")
        A("s_lshl_b32 s40, s40, 19")
        A("buffer_load_dword v46, off, s[8:11], s40")
    poll("P2_b", 32, 8, 4)
    for grp in ((0, 4), (4, 8), (8, 11), (11, 13)):
        for g in range(*grp):
            A(f"s_mov_b32 m0, {BREG + g * 4096}")
            if g == 0: A("s_mov_b32 s20, s27")
            else: A(f"s_add_u32 s20, s26, {g * 4096}")
            for i in range(4):
                A(f"buffer_load_dwordx4 v1, s[12:15], s20 offen offset:{1024*i}{LD} lds")
        A("s_barrier")
    for i in range(3): A("s_barrier")
    A("s_waitcnt vmcnt(0)")
    A("s_barrier")
    A.label("P2_htail")
    A("s_barrier")
    A("s_cmp_lg_u32 s24, 0")
    A("s_cbranch_scc1 P2_hfin")
    read_flags(8)
    A("s_waitcnt lgkmcnt(0)")
    or_flags(8, 44)
    A("s_nop 3")
    A("s_cmp_eq_u32 s44, 0")
    A("s_cbranch_scc1 P2_hfin")
    A("s_mov_b32 s24, 1")
    A("s_barrier")
    A("s_cmp_eq_u32 s19, 9")
    A("s_cbranch_scc1 P2_astart")
    A("s_branch P2_lstart")
    A.label("P2_hfin")
    A("s_cmp_eq_u32 s19, 9")
    A("s_cbranch_scc0 P3_wload")
    A("s_barrier")
    signal(40, 32, 2)
    A("s_endpgm")
    A.label("P3_wload")
    p3_ids()
    A("v_lshrrev_b32 v1, 4, v1")
    A("s_lshl_b32 s39, s18, 8")
    A(f"s_sub_u32 s6, {1024*2048}, s39")
    A("v_lshrrev_b32 v3, 4, v1")
    A("v_lshlrev_b32 v4, 1, v3")
    A("v_and_b32 v5, 15, v1")
    A("v_xor_b32 v4, v4, v5")
    A("v_lshlrev_b32 v4, 4, v4")
    A("v_lshl_add_u32 v5, v3, 11, v4")
    A("v_xor_b32 v6, 128, v5")
    A(f"v_add_u32 v6, {8192-1024}, v6")
    A(f"v_add_u32 v7, {16384-2048}, v5")
    A(f"v_add_u32 v8, {16384-2048}, v6")
    A("s_cmp_eq_u32 s16, 0")
    A(f"s_cselect_b32 s4, s{P_AWO}, s{P_BWO}")
    A(f"s_cselect_b32 s5, s{P_AWO+1}, s{P_BWO+1}")
    A("s_add_u32 s4, s4, s39")
    A("s_addc_u32 s5, s5, 0")
    A("s_lshl_b32 s21, s34, 18")
    A("s_barrier")
    def w_issue():
        for q in range(4):
            A(f"s_add_u32 m0, s23, {q*4096}")
            A(f"s_add_u32 s20, s21, {q*32768}")
            for i in range(4): A(f"buffer_load_dwordx4 v{5+i}, s[4:7], s20 offen offset:{1024*i} lds")
        A("s_add_u32 s21, s21, 0x20000")
        A("s_and_b32 s21, s21, 0x1fffff")
    ring_loader("P3_w", NW, W3, w_issue, NW)
    A.label("L_done")
    A("s_endpgm")
    hdr = ("; concat_heads__mha_block__sliding_local_dilated__prompt : fused single-launch kernel (generated by gen/mega.py)\n"
           "; Kernarg: 0 A_x, 8 A_wqkv, 16 A_wo, 24 B_x, 32 B_wqkv, 40 B_wo, 48 out, 56 debug, 64 ws\n"
           f"; @launch grid=(256,1,1) block=(640,1,1) lds={LDS_BYTES}\n")
    return hdr + A.text() + '.section .rodata,"a"\n' + descriptor(NAME, 168, 102)

if __name__ == "__main__":
    opts = json.loads(sys.argv[2]) if len(sys.argv) > 2 else {}
    open(sys.argv[1], "w").write(gen(opts))
```

```python
import sys, os, json, struct, math
sys.path.insert(0, os.path.dirname(os.path.abspath(__file__)))
from asmlib import *

NAME = "concat_heads__mha_block__sliding_local_dilated__prompt_kernel"
WS_Q = 0
WS_KV = 4 << 20
WS_B = 12 << 20
WS_O = 24 << 20
WS_F = 32 << 20
WS_BYTES = (32 << 20) + 65536
QSCALE = (32 ** -0.5) * math.log2(math.e)
LDS_BYTES = 163840
def f32bits(x): return struct.unpack("<I", struct.pack("<f", x))[0]
def M32(d, a, b, c):
    cs = "0" if c is None else vr(c, 16)
    return f"v_mfma_f32_32x32x16_bf16 {vr(d,16)}, {vr(a,4)}, {vr(b,4)}, {cs}"
def M16(d, a, b, c):
    return f"v_mfma_f32_16x16x32_bf16 {vr(d,4)}, {vr(a,4)}, {vr(b,4)}, {vr(c,4)}"

P_AX, P_AW, P_AWO, P_BX, P_BW, P_BWO, P_OUT, P_DBG, P_WS = 76, 78, 80, 82, 84, 86, 88, 90, 92

def gen(opts=None):
    opts = opts or {}
    A = Asm()
    stamp = opts.get("stamp", False)
    SC = " sc1"
    LD = opts.get("ld_mod", " sc1")
    def ST(i):
        if stamp:
            A("s_memrealtime s[100:101]")
            A("s_waitcnt lgkmcnt(0)")
            A(f"s_mov_b32 s{50+i}, s100")
    def lane(dst):
        A(f"v_mbcnt_lo_u32_b32 v{dst}, -1, 0")
        A(f"v_mbcnt_hi_u32_b32 v{dst}, -1, v{dst}")
    def poll_cnt(tag, target, vtmp):
        A(f"s_mov_b32 s47, {opts.get('poll_max', 30000)}")
        A.label(f"{tag}_poll")
        A(f"buffer_load_dword v{vtmp}, off, s[72:75], 0 sc1")
        A("s_waitcnt vmcnt(0)")
        A(f"v_readfirstlane_b32 s46, v{vtmp}")
        A("s_sub_u32 s47, s47, 1")
        A("s_cmp_eq_u32 s47, 0")
        A(f"s_cbranch_scc1 {tag}_go")
        A(f"s_cmp_ge_u32 s46, {target}")
        A(f"s_cbranch_scc1 {tag}_go")
        A("s_sleep 8")
        A(f"s_branch {tag}_poll")
        A.label(f"{tag}_go")
    def poll(tag, off, nflags, vtmp):
        A(f"s_mov_b32 s47, {opts.get('poll_max', 30000)}")
        A("s_lshl_b32 s46, s2, 8")
        A(f"s_add_u32 s46, s46, {WS_F + off}")
        A(f"v_lshrrev_b32 v{vtmp+1}, 2, v1")
        A(f"v_and_b32 v{vtmp+1}, {4*nflags-1}, v{vtmp+1}")
        ST(0)
        A.label(f"{tag}_poll")
        A(f"buffer_load_dword v{vtmp}, v{vtmp+1}, s[12:15], s46 offen sc1")
        A("s_sub_u32 s47, s47, 1")
        A("s_waitcnt vmcnt(0)")
        A(f"v_cmp_eq_u32 vcc, 0, v{vtmp}")
        A("s_cmp_eq_u32 s47, 0")
        A(f"s_cbranch_scc1 {tag}_go")
        A("s_cmp_eq_u64 vcc, 0")
        A(f"s_cbranch_scc1 {tag}_go")
        if opts.get('poll_sleep', 1): A(f"s_sleep {opts.get('poll_sleep', 1)}")
        A(f"s_branch {tag}_poll")
        A.label(f"{tag}_go")
        ST(1)
        if stamp: A("s_mov_b32 s52, s47")
    def signal(vaddr, nl, vtmp):
        A(f"v_mov_b32 v{vtmp}, 1")
        A(f"s_mov_b64 exec, {(1 << nl) - 1}")
        A(f"buffer_store_dword v{vtmp}, v{vaddr}, s[12:15], 0 offen sc1")
        A("s_mov_b64 exec, -1")

    A('.amdgcn_target "amdgcn-amd-amdhsa--gfx950"')
    A(".text")
    kernel_begin(A, NAME)
    if opts.get("padto"):
        A("s_memrealtime s[98:99]")
    A("s_load_dwordx16 s[76:91], s[0:1], 0")
    A("s_load_dwordx2 s[92:93], s[0:1], 64")
    A("v_lshrrev_b32 v14, 6, v0")
    A("v_and_b32 v1, 63, v0")
    A("v_readfirstlane_b32 s19, v14")
    A("s_cmp_ge_u32 s2, 256")
    A("s_cbranch_scc1 L_done")
    XSLOT = 32768; WBASE = 3 * XSLOT; WSLOT = 12288; WEND = WBASE + 5 * WSLOT
    A("s_and_b32 s34, s2, 7")
    A("s_lshr_b32 s35, s2, 3")
    mix = opts.get("mix", 0)
    if mix:
        A("s_lshr_b32 s16, s35, 4")
        A("s_and_b32 s17, s34, 1")
        A("s_lshl_b32 s17, s17, 2")
        A("s_and_b32 s36, s35, 3")
        A("s_add_u32 s17, s17, s36")
        A("s_lshr_b32 s18, s34, 1")
        A("s_lshl_b32 s18, s18, 2")
        A("s_lshr_b32 s36, s35, 2")
        A("s_and_b32 s36, s36, 3")
        A("s_add_u32 s18, s18, s36")
    else:
        A("s_lshr_b32 s16, s34, 2")
        A("s_and_b32 s17, s34, 1")
        A("s_lshl_b32 s17, s17, 2")
        A("s_and_b32 s36, s35, 3")
        A("s_add_u32 s17, s17, s36")
        A("s_lshr_b32 s18, s34, 1")
        A("s_and_b32 s18, s18, 1")
        A("s_lshl_b32 s18, s18, 3")
        A("s_lshr_b32 s36, s35, 2")
        A("s_add_u32 s18, s18, s36")
    A(f"s_mov_b32 s14, {WS_BYTES}")
    A("s_mov_b32 s15, 0x20000")
    A("s_mov_b32 s74, 256")
    A("s_mov_b32 s75, 0x20000")
    A("s_mov_b32 s7, 0x20000")
    A("s_mov_b32 s11, 0x20000")
    def common_srds():
        A(f"s_mov_b32 s12, s{P_WS}")
        A(f"s_mov_b32 s13, s{P_WS+1}")
        A(f"s_mov_b32 s72, s{P_DBG}")
        A(f"s_mov_b32 s73, s{P_DBG+1}")
    A("s_cmp_lt_u32 s19, 8")
    A("s_cbranch_scc1 P1_compute")
    A("s_lshr_b32 s49, s34, 1")
    A("s_xor_b32 s49, s49, s34")
    A("s_and_b32 s49, s49, 1")
    A("s_lshl_b32 s49, s49, 10")
    A("s_lshl_b32 s23, s16, 9")
    A("s_add_u32 s49, s49, s23")
    A("s_and_b32 s23, s34, 1")
    A("s_lshl_b32 s23, s23, 8")
    A("s_add_u32 s49, s49, s23")
    A("s_add_u32 s48, s17, s18")
    A("s_and_b32 s48, s48, 1")
    A("v_lshrrev_b32 v15, 3, v1")
    A("v_lshrrev_b32 v16, 4, v1")
    A("v_and_b32 v18, 7, v1")
    A("s_mov_b32 s40, 0")
    A("s_cmp_eq_u32 s19, 8")
    A("s_cbranch_scc1 P1_xload")
    A("s_lshl_b32 s39, s18, 7")
    A(f"s_sub_u32 s6, {1024*6144}, s39")
    A("v_and_b32 v16, 1, v16")
    A("v_lshlrev_b32 v16, 1, v16")
    A("v_xor_b32 v16, v18, v16")
    A("v_lshlrev_b32 v16, 4, v16")
    A("v_mul_u32_u24 v17, 6144, v15")
    A("v_add_u32 v2, v17, v16")
    A("v_xor_b32 v16, 64, v16")
    A("v_add_u32 v3, v17, v16")
    A(f"v_add_u32 v3, {8*6144-1024}, v3")
    A(f"v_add_u32 v4, {16*6144-2048}, v2")
    A(f"v_add_u32 v5, {16*6144-2048}, v3")
    A("s_lshl_b32 s48, s48, 1")
    A(f"s_mov_b32 s22, {WBASE}")
    A("v_lshlrev_b32 v20, 2, v1")
    A("v_mov_b32 v21, 0")
    A("v_mov_b32 v22, 1")
    A("s_lshl_b32 s45, s2, 8")
    A(f"s_add_u32 s45, s45, {WS_F}")
    A("s_and_b32 s44, s35, 7")
    A("s_lshl_b32 s44, s44, 1")
    A("s_add_u32 s44, s44, 9")
    A("s_cmp_eq_u32 s16, 0")
    A("s_waitcnt lgkmcnt(0)")
    A(f"s_cselect_b32 s4, s{P_AW}, s{P_BW}")
    A(f"s_cselect_b32 s5, s{P_AW+1}, s{P_BW+1}")
    A("s_add_u32 s4, s4, s39")
    A("s_addc_u32 s5, s5, 0")
    common_srds()
    A("s_branch P1_wgo")
    A.label("P1_wclr")
    A("buffer_store_dword v21, v20, s[12:15], s45 offen sc1")
    A.label("P1_wwait")
    A("s_waitcnt vmcnt(12)")
    A("s_barrier")
    A("s_cmp_eq_u32 s40, s44")
    A("s_cbranch_scc0 P1_wgo")
    A("s_waitcnt vmcnt(0)")
    A("s_mov_b64 exec, 1")
    A("buffer_atomic_add v22, off, s[72:75], 0 sc1")
    if opts.get("padmin"):
        A("s_not_b32 s97, s98")
        A("v_mov_b32 v24, s97")
        A("buffer_atomic_umax v24, off, s[72:75], 0 offset:32 sc1")
    A("s_mov_b64 exec, -1")
    A.label("P1_wgo")
    A("s_xor_b32 s23, s40, s48")
    A("s_lshl_b32 s23, s23, 6")
    A("s_add_u32 s23, s23, s49")
    A("s_and_b32 s23, s23, 2047")
    A("s_mul_i32 s20, s23, 3072")
    for ty in range(3):
        A(f"s_add_u32 m0, s22, {ty*4096}")
        if ty: A("s_add_u32 s20, s20, 2048")
        else: A("s_add_u32 s40, s40, 1")
        for i in range(4):
            A(f"buffer_load_dwordx4 v{2+i}, s[4:7], s20 offen offset:{1024*i} lds")
    A(f"s_add_u32 s22, s22, {WSLOT}")
    A(f"s_cmp_eq_u32 s22, {WEND}")
    A(f"s_cselect_b32 s22, {WBASE}, s22")
    WPRE = opts.get("wpre", 3)
    A(f"s_cmp_eq_u32 s40, {WPRE}")
    A("s_cbranch_scc0 P1_w1")
    A(f"s_waitcnt vmcnt({12*(WPRE-2)})")
    A("s_barrier")
    A.label("P1_w1")
    A("s_cmp_lt_u32 s40, 5")
    A("s_cbranch_scc1 P1_wgo")
    A("s_bitcmp0_b32 s40, 0")
    A("s_cbranch_scc1 P1_w2")
    A("s_cmp_eq_u32 s40, 5")
    A("s_cbranch_scc1 P1_wclr")
    A("s_branch P1_wwait")
    A.label("P1_w2")
    A("s_cmp_lt_u32 s40, 32")
    A("s_cbranch_scc1 P1_wgo")
    A("s_branch P1_ltail")
    A.label("P1_xload")
    A("s_mov_b32 s6, 0x80000")
    A("s_lshl_b32 s36, s17, 19")
    A("v_xor_b32 v17, v18, v16")
    A("v_lshlrev_b32 v17, 4, v17")
    A("v_lshl_add_u32 v2, v15, 11, v17")
    A("v_xor_b32 v3, 64, v2")
    A(f"v_add_u32 v3, {16384-1024}, v3")
    A(f"v_add_u32 v4, {32768-2048}, v2")
    A(f"v_add_u32 v5, {32768-2048}, v3")
    A("s_mov_b32 s22, 0")
    A("s_cmp_eq_u32 s16, 0")
    A("s_waitcnt lgkmcnt(0)")
    A(f"s_cselect_b32 s4, s{P_AX}, s{P_BX}")
    A(f"s_cselect_b32 s5, s{P_AX+1}, s{P_BX+1}")
    A("s_add_u32 s4, s4, s36")
    A("s_addc_u32 s5, s5, 0")
    A.label("P1_xgo")
    A("s_xor_b32 s21, s40, s48")
    A("s_lshl_b32 s21, s21, 7")
    A("s_add_u32 s21, s21, s49")
    A("s_and_b32 s21, s21, 2047")
    XB0 = opts.get("xb0", 4)
    for q in range(8):
        A(f"s_add_u32 m0, s22, {q*4096}")
        A(f"s_add_u32 s20, s21, {q*65536}")
        if q == XB0:
            A("s_cmp_eq_u32 s40, 1")
            A("s_cbranch_scc0 P1_x0")
            A(f"s_waitcnt vmcnt({4*XB0})")
            A("s_barrier")
            A.label("P1_x0")
        for i in range(4):
            A(f"buffer_load_dwordx4 v{2+i}, s[4:7], s20 offen offset:{1024*i} lds")
    A(f"s_add_u32 s22, s22, {XSLOT}")
    A(f"s_cmp_eq_u32 s22, {3*XSLOT}")
    A("s_cselect_b32 s22, 0, s22")
    A("s_add_u32 s40, s40, 1")
    A(f"s_cmp_lt_u32 s40, {2 if XB0 == 8 else 3}")
    A("s_cbranch_scc1 P1_xgo")
    A("s_waitcnt vmcnt(32)")
    A("s_barrier")
    A("s_cmp_lt_u32 s40, 16")
    A("s_cbranch_scc1 P1_xgo")
    A.label("P1_ltail")
    common_srds()
    if opts.get("cnt", 2) == 2:
        A("buffer_load_dword v23, off, s[72:75], 0")
    A("s_waitcnt vmcnt(0)")
    A("s_barrier")
    A("v_lshrrev_b32 v10, 3, v1")
    A("s_lshl_b32 s45, s18, 1")
    A("v_add_u32 v10, s45, v10")
    A("v_and_b32 v11, 3, v10")
    A("v_lshrrev_b32 v10, 2, v10")
    A("v_lshl_add_u32 v10, v11, 3, v10")
    A("v_and_b32 v11, 7, v1")
    A("v_lshl_add_u32 v10, v11, 5, v10")
    A("s_lshl_b32 s45, s16, 3")
    A("s_add_u32 s45, s45, s17")
    A("s_lshl_b32 s45, s45, 2")
    A(f"s_add_u32 s45, s45, {WS_F}")
    A("v_lshlrev_b32 v10, 8, v10")
    A("v_add_u32 v10, s45, v10")
    A("s_barrier")
    A("s_branch P2_helpers")
    A.label("P1_compute")
    if opts.get("code_pf", 1):
        A("s_getpc_b64 s[40:41]")
        A("v_and_b32 v20, 127, v0")
        A("v_lshlrev_b32 v20, 7, v20")
        A("v_min_u32 v20, L_done-P1_compute-64, v20")
        A("s_cmp_lt_u32 s19, 2")
        A("s_cbranch_scc0 P1_nopf")
        A("global_load_dword v21, v20, s[40:41]")
        A.label("P1_nopf")
    ST(0)
    A("v_lshrrev_b32 v15, 1, v14")
    A("v_and_b32 v16, 15, v1")
    A("v_lshl_add_u32 v17, v15, 6, v16")
    A("v_lshlrev_b32 v17, 7, v17")
    A("v_lshrrev_b32 v16, 1, v16")
    A("v_lshrrev_b32 v18, 4, v1")
    A("v_xor_b32 v16, v16, v18")
    A("v_lshl_add_u32 v2, v16, 4, v17")
    A("v_xor_b32 v3, 64, v2")
    A("v_lshrrev_b32 v16, 2, v1")
    A("v_and_b32 v16, 3, v16")
    A("v_lshl_add_u32 v17, v18, 3, v16")
    A("v_lshlrev_b32 v17, 7, v17")
    A("v_lshrrev_b32 v16, 1, v16")
    A("v_and_b32 v19, 1, v18")
    A("v_lshl_add_u32 v16, v19, 1, v16")
    A("v_and_b32 v19, 1, v14")
    A("v_lshlrev_b32 v19, 1, v19")
    A("v_xor_b32 v16, v16, v19")
    A("v_lshl_add_u32 v17, v16, 5, v17")
    A("v_and_b32 v16, 3, v1")
    A("v_lshl_add_u32 v4, v16, 3, v17")
    A("v_xor_b32 v5, 32, v4")
    A("v_lshlrev_b32 v1, 4, v1")
    ACC = 72; XF = 8; WF = [24, 48]
    AX, AW0, AW1 = 0, 6, 7
    for i in range(0, 96, 2): A(f"v_mov_b64 v[{ACC+i}:{ACC+i+1}], 0")
    A("s_and_b32 s36, s19, 1")
    A("s_lshl_b32 s37, s18, 1")
    A("s_add_u32 s36, s36, s37")
    A("s_lshl_b32 s36, s36, 6")
    A("s_lshl_b32 s37, s17, 3")
    A("s_add_u32 s36, s36, s37")
    A("s_lshr_b32 s37, s19, 1")
    A("s_lshl_b32 s37, s37, 1")
    A("s_add_u32 s36, s36, s37")
    A("s_lshl_b32 s64, s36, 11")
    A("s_add_u32 s65, s64, 2048")
    A("s_lshl_b32 s66, s36, 12")
    A(f"s_add_u32 s66, s66, {WS_KV}")
    A("s_add_u32 s67, s66, 4096")
    A("s_add_u32 s68, s66, 2048")
    A("s_add_u32 s69, s66, 6144")
    A("s_mul_i32 s37, s36, 6144")
    A(f"s_add_u32 s37, s37, {WS_B}")
    A("s_cmp_eq_u32 s16, 0")
    A("s_cbranch_scc1 P1_ofs_done")
    for ty in range(3):
        for mt in range(2):
            A(f"s_add_u32 s{64+2*ty+mt}, s37, {ty*2048+mt*6144}")
    A.label("P1_ofs_done")
    A(f"s_mov_b32 s42, {f32bits(QSCALE)}")
    A(f"s_mov_b32 s43, {f32bits(QSCALE)}")
    barpos = opts.get("barpos", 4)
    def xf(st): return XF + 4*st
    def wf(s, n6): return WF[s] + 4*n6
    def acc(st, n6): return ACC + (st*6+n6)*4
    def xrd(st): return ('rd', f"ds_read_b128 {vr(xf(st),4)}, v{AX} offset:{st*2048}", f"x{st}")
    def wrds(s):
        L = []
        for i in range(6):
            ty, nt = i >> 1, i & 1
            for half in range(2):
                L.append(('rd', f"ds_read_b64_tr_b16 {vr(wf(s,i)+2*half,2)}, v{AW0+nt} offset:{ty*4096+half*512}", f"w{s}_{i}"))
        return L
    def mf(s, st, n6):
        d = acc(st, n6)
        t = M16(d, wf(s,n6), xf(st), d) if n6 < 4 else M16(d, xf(st), wf(s,n6), d)
        needs = [f"x{st}", f"w{s}_{n6}"]
        if st == 0 and n6 == 0: needs = ["x0", "x1", "x2"] + [f"w{s}_{i}" for i in range(6)]
        return ('op', t, needs)
    def nextW():
        return [f"s_add_u32 s46, s46, {WSLOT}", f"s_cmp_eq_u32 s46, {WEND}", f"s_cselect_b32 s46, {WBASE}, s46",
                f"v_add_u32 v{AW0}, s46, v4", f"v_add_u32 v{AW1}, s46, v5"]
    A("s_mov_b32 s44, 0")
    A(f"s_mov_b32 s46, {WBASE}")
    A("s_mov_b32 s40, 16")
    A(f"v_mov_b32 v{AX}, v2")
    A(f"v_add_u32 v{AW0}, s46, v4")
    A(f"v_add_u32 v{AW1}, s46, v5")
    A("s_waitcnt lgkmcnt(0)")
    common_srds()
    A("s_waitcnt vmcnt(0)")
    A("s_barrier")
    ST(1)
    items = []
    for sub in range(2):
        s = sub
        ms = [mf(s, st, (q if st % 2 == 0 else 5 - q)) for st in range(4) for q in range(6)]
        wr = wrds(s ^ 1)
        gaps = [[] for _ in range(24)]
        start = 0 if sub == 0 else barpos
        pre = nextW()
        if sub == 0:
            pre += [f"v_add_u32 v{AX}, s44, v3"]
        else:
            pre += [f"s_add_u32 s44, s44, {XSLOT}", f"s_cmp_eq_u32 s44, {3*XSLOT}", "s_cselect_b32 s44, 0, s44", f"v_add_u32 v{AX}, s44, v2",
                    "s_sub_u32 s40, s40, 1"]
        for i, l in enumerate(pre): gaps[min(i // 3, 2 if sub == 0 else barpos - 1)].append(('raw', l))
        if sub == 1: gaps[barpos - 1].append(('all', "s_barrier"))
        g = max(start, 2)
        for r in wr:
            if g in (5, 11, 17): g += 1
            gaps[g].append(r); g += 1
        assert g <= 23, g
        for st in range(4): gaps[6*st+5].append(xrd(st))
        if sub == 1: gaps[22].append(('raw', "s_cmp_lg_u32 s40, 0"))
        for i in range(24):
            items.append(ms[i]); items += gaps[i]
    pro = [it for it in items if it[0] == 'rd'][-16:]
    assert sorted(set(t[2] for t in pro)) == sorted([f"x{i}" for i in range(4)] + [f"w0_{i}" for i in range(6)])
    for it in pro: A(it[1])
    body1, _ = schedule_waits(items, passes=1, init_queue=[t[2] for t in pro])
    A(".p2align 6")
    A.label("P1_loop")
    for l in body1: A(l)
    A("s_cbranch_scc1 P1_loop")
    A("s_waitcnt lgkmcnt(0)")
    ST(2)
    A("s_nop 4")
    n = 0
    def pk():
        nonlocal n
        p = 8 + (n % 16) * 4; n += 1
        return p
    for ty in (1, 2, 0):
        if opts.get("skipb"):
            if ty == 1: A("s_cmp_eq_u32 s16, 0"); A("s_cselect_b32 s14, s14, 0")
            if ty == 0: A(f"s_mov_b32 s14, {WS_BYTES}")
        if ty < 2:
            for st in range(4):
                p = pk()
                for nt in range(2):
                    d = acc(st, 2*ty+nt)
                    if ty == 0:
                        for r in (0, 2): A(f"v_pk_mul_f32 v[{d+r}:{d+r+1}], v[{d+r}:{d+r+1}], s[42:43]")
                    A(f"v_cvt_pk_bf16_f32 v{p+2*nt}, v{d}, v{d+1}")
                    A(f"v_cvt_pk_bf16_f32 v{p+2*nt+1}, v{d+2}, v{d+3}")
                A(f"buffer_store_dwordx4 {vr(p,4)}, v1, s[12:15], s{64+2*ty+(st>>1)} offen offset:{(st&1)*1024}{SC}")
        else:
            ps = []
            for mt in range(2):
                for nt in range(2):
                    p = pk(); ps.append((p, mt, nt))
                    for u in range(2):
                        d = acc(2*mt+u, 4+nt)
                        A(f"v_cvt_pk_bf16_f32 v{p+2*u}, v{d}, v{d+1}")
                        A(f"v_cvt_pk_bf16_f32 v{p+2*u+1}, v{d+2}, v{d+3}")
            A("s_nop 1")
            for p, mt, nt in ps:
                A(f"v_permlane16_swap_b32 v{p}, v{p+2}")
                A(f"v_permlane16_swap_b32 v{p+1}, v{p+3}")
                A(f"buffer_store_dwordx4 {vr(p,4)}, v1, s[12:15], s{68+mt} offen offset:{nt*1024}{SC}")
    A("s_waitcnt vmcnt(0)")
    A("s_barrier")
    ST(3)

    NS = 6; STG = 16384; RING = NS * STG; BREG = RING; FLAGS = BREG + 4096 + 8 * 6144; MASKT = FLAGS + 256; XCH = 0
    assert MASKT + 6144 <= LDS_BYTES
    IDX = 4; ONES = 8; KF = 12; VF = 20; MX = [28, 29]; SA = 32; SB = 48
    Q = [64, 72]; L = [80, 84]; O = [96, 112]; NEGM = [128, 144]
    QB = 128; KBP = 136; KBC = 144; VBC = 152; VBP = 12; PK = 16; OB = O[1]; LB = L[1]
    def S32(d, a, b): return f"v_smfmac_f32_32x32x32_bf16 {vr(d,16)}, {vr(a,4)}, {vr(b,8)}, v{IDX}"
    def S16(d, a, b): return f"v_smfmac_f32_16x16x64_bf16 {vr(d,4)}, {vr(a,4)}, {vr(b,8)}, v{IDX}"
    def E(r): return f"v_exp_f32 v{r}, v{r}"
    def key_of(r, hb): return 8 * (r >> 2) + 4 * hb + (r & 3)
    def bmask(r, prev):
        m = 0
        for l in range(64):
            d = (l & 31) - key_of(r, l >> 5) + (32 if prev else 0)
            if 0 <= d <= 14 and d % 2 == 0: m |= 1 << l
        return m
    def rowmax(regs, dst, tmp):
        regs = list(regs)
        A(f"v_max3_f32 v{dst}, v{regs[0]}, v{regs[1]}, v{regs[2]}")
        i = 3
        while i + 1 < len(regs):
            A(f"v_max3_f32 v{dst}, v{regs[i]}, v{regs[i+1]}, v{dst}"); i += 2
        if i < len(regs): A(f"v_max_f32 v{dst}, v{regs[i]}, v{dst}")
        A(f"v_mov_b32 v{tmp}, v{dst}")
        A("s_nop 1")
        A(f"v_permlane32_swap_b32 v{dst}, v{tmp}")
        A("s_nop 1")
        A(f"v_max_f32 v{dst}, v{dst}, v{tmp}")
    def read_flags(r):
        A(f"v_mov_b32 v7, {FLAGS}")
        A(f"ds_read_b128 {vr(r,4)}, v7")
        A(f"ds_read_b128 {vr(r+4,4)}, v7 offset:16")
    def or_flags(r, sdst):
        A(f"v_or3_b32 v{r}, v{r}, v{r+4}, v{r+5}")
        A(f"v_or3_b32 v{r}, v{r}, v{r+6}, v{r+7}")
        A(f"v_or3_b32 v{r}, v{r}, v{r+1}, v{r+2}")
        A(f"v_or_b32 v{r}, v{r}, v{r+3}")
        A("s_nop 0")
        A(f"v_readfirstlane_b32 s{sdst}, v{r}")
    def p2_ids():
        A("s_and_b32 s16, s35, 3")
        A("s_lshl_b32 s36, s34, 2")
        A("s_add_u32 s16, s16, s36")
        A("s_lshr_b32 s17, s35, 2")
        A("s_lshl_b32 s36, s16, 18")
        A(f"s_add_u32 s36, s36, {WS_KV}")
        A(f"s_add_u32 s4, s{P_WS}, s36")
        A(f"s_addc_u32 s5, s{P_WS+1}, 0")
        A("s_mov_b32 s6, 0x40000")
        A("s_mov_b32 s24, 0")
    p2_ids()
    A("v_lshrrev_b32 v6, 4, v1")
    A("s_lshr_b32 s18, s19, 2")
    A("s_and_b32 s20, s19, 3")
    A("s_lshl_b32 s20, s20, 1")
    A("s_add_u32 s20, s20, s18")
    A("s_lshl_b32 s26, s17, 3")
    A("s_add_u32 s26, s26, s20")
    A("s_lshl_b32 s39, s18, 13")
    A("v_and_b32 v31, 15, v6")
    A("v_lshlrev_b32 v31, 4, v31")
    A("v_and_b32 v5, 16, v6")
    A("v_lshl_add_u32 v31, v5, 6, v31")
    A("v_and_b32 v5, 32, v6")
    A("v_lshl_add_u32 v31, v5, 4, v31")
    A("s_lshl_b32 s31, s26, 5")
    A("s_add_u32 s31, s31, s16")
    A("s_lshl_b32 s31, s31, 11")
    A(f"s_add_u32 s31, s31, {WS_O}")
    A(f"v_mov_b32 v{IDX}, 0xdddd")
    A("v_and_b32 v5, 4, v6")
    A("v_cmp_eq_u32 vcc, 0, v5")
    A("v_mov_b32 v7, 0x3f803f80")
    A("v_add_u32 v30, s39, v31")
    A(f"v_cndmask_b32 v{ONES}, 0, v7, vcc")
    A(f"v_cndmask_b32 v{ONES+1}, 0, v7, vcc")
    A(f"v_sub_u32 v{ONES+2}, v7, v{ONES}")
    A(f"v_mov_b32 v{ONES+3}, v{ONES+2}")
    A("s_lshl_b32 s27, s20, 11")
    A(f"s_add_u32 s27, s27, {BREG}")
    A("v_add_u32 v5, s27, v31")
    A("v_xor_b32 v6, 2048, v5")
    A.label("P2_restart")
    for x in range(2):
        for i in range(0, 16, 2): A(f"v_mov_b64 v[{O[x]+i}:{O[x]+i+1}], 0")
        for i in range(0, 4, 2): A(f"v_mov_b64 v[{L[x]+i}:{L[x]+i+1}], 0")
    A("v_mov_b32 v2, v30")
    A(f"s_mov_b32 s25, {STG}")
    A(f"v_add_u32 v3, {STG}, v30")
    A("s_mov_b32 s23, 16")
    A("s_barrier")
    ST(4)
    SX = [SA, SB]
    A("s_cmp_lg_u32 s24, 0")
    A("s_cbranch_scc1 P2_main")
    A(f"ds_read_b128 {vr(VF,4)}, v31 offset:0")
    for x in range(2): A(f"ds_read_b128 {vr(Q[x],4)}, v{5+x}")
    A(f"ds_read_b128 {vr(VF+4,4)}, v31 offset:256")
    for x in range(2): A(f"ds_read_b128 {vr(Q[x]+4,4)}, v{5+x} offset:256")
    A("s_waitcnt lgkmcnt(3)")
    for x in range(2): A(M32(SX[x], VF, Q[x], None))
    A("s_waitcnt lgkmcnt(0)")
    for x in range(2): A(M32(SX[x], VF+4, Q[x]+4, SX[x]))
    A("s_nop 7")
    A("s_nop 2")
    for x in range(2): rowmax(range(SX[x], SX[x]+16), MX[x], 6)
    A.label("P2_main")
    A(f"ds_read_b128 {vr(KF,4)}, v2 offset:0")
    A(f"ds_read_b128 {vr(KF+4,4)}, v2 offset:256")
    A(f"ds_read_b128 {vr(VF,4)}, v2 offset:2048")
    def negm(x):
        A(f"v_sub_f32 v{NEGM[x]}, 0, v{MX[x]}")
        A(f"v_sub_f32 v{NEGM[x]+1}, 0, v{MX[x]}")
        for i in range(2, 16, 2): A(f"v_mov_b64 v[{NEGM[x]+i}:{NEGM[x]+i+1}], v[{NEGM[x]}:{NEGM[x]+1}]")
    negm(0)
    for i in (0, 2): A(f"v_mov_b64 v[{VF+4+i}:{VF+5+i}], 0")
    A("s_waitcnt lgkmcnt(1)")
    A(M32(SA, KF, Q[0], NEGM[0]))
    A(M32(SA, KF+4, Q[0]+4, SA))
    negm(1)
    for i in range(0, 8, 2): A(f"v_mov_b64 v[{SB+8+i}:{SB+9+i}], 0")
    A(E(SA))
    A(".p2align 6")
    A.label("P2_loop")
    def rd(dst, tile, off):
        a, t = ("v2", tile) if tile < 2 else ("v3", tile - 2)
        return f"ds_read_b128 {vr(dst,4)}, {a} offset:{t*4096+off}"
    for u in range(4):
        cur, nxt = (SA, SB) if u % 2 == 0 else (SB, SA)
        i = u // 2; xc = u % 2; xp = xn = xc ^ 1
        if xc == 0:
            w_pv1 = w_qka = w_qkb = None; w_pv0 = 3
            r_pv1 = [rd(VF+4, i, 2304)]; r_qka = [rd(KF, i+1, 0)]; r_qkb = [rd(KF+4, i+1, 256)]; r_pv0 = []
        else:
            w_pv1, w_qka, w_qkb, w_pv0 = 2, 1, 0, None
            r_pv1 = r_qka = r_qkb = []; r_pv0 = [rd(VF, i+1, 2048)]
        bar = (u == 1)
        last = (u == 3)
        def W(n):
            if n is not None: A(f"s_waitcnt lgkmcnt({n})")
        if w_pv1 is None: A("s_nop 0")
        W(w_pv1)
        A(S32(O[xp], VF+4, nxt+8))
        for l in r_pv1: A(l)
        A(E(cur+1)); A(E(cur+2)); A(E(cur+3))
        A(S16(L[xp], ONES, nxt+8))
        A(E(cur+4)); A(E(cur+5))
        W(w_qka)
        A(M32(nxt, KF, Q[xn], NEGM[xn]))
        for l in r_qka: A(l)
        A(E(cur+6)); A(E(cur+7)); A(E(cur+8))
        W(w_qkb)
        A(M32(nxt, KF+4, Q[xn]+4, nxt))
        if bar: A("s_barrier")
        for l in r_qkb: A(l)
        A(E(cur+9)); A(E(cur+10)); A(E(cur+11))
        W(w_pv0)
        A(S32(O[xc], VF, cur))
        for l in r_pv0: A(l)
        A(E(cur+12))
        if last: A(f"s_add_u32 s25, s25, {STG}")
        A(E(cur+13))
        if last: A(f"s_cmp_eq_u32 s25, {RING}")
        A(E(cur+14))
        if last: A("s_cselect_b32 s25, 0, s25")
        A(S16(L[xc], ONES, cur))
        if last:
            A("s_sub_u32 s23, s23, 1")
            A("v_mov_b32 v2, v3")
            A("v_add_u32 v3, s25, v30")
            A("s_cmp_lg_u32 s23, 0")
        else: A("s_nop 0")
        A(E(cur+15)); A(E(nxt))
        if last: A("s_cbranch_scc1 P2_loop")
    A("s_waitcnt lgkmcnt(0)")
    A(S32(O[1], VF+4, SB+8))
    A(S16(L[1], ONES, SB+8))
    ST(5)
    A("s_mul_i32 s36, s20, 6144")
    A(f"s_add_u32 s36, s36, {BREG}")
    A("v_add_u32 v2, s36, v31")
    A(f"v_add_u32 v3, {MASKT}, v1")
    for q in range(4): A(f"ds_read_b128 {vr(SA+4*q,4)}, v3 offset:{1024*q}")
    A(f"ds_read_b128 {vr(QB,4)}, v2 offset:4096")
    A(f"ds_read_b128 {vr(KBC,4)}, v2 offset:6144")
    for q in range(2): A(f"ds_read_b128 {vr(SB+8+4*q,4)}, v3 offset:{4096+1024*q}")
    A(f"ds_read_b128 {vr(KBP,4)}, v2 offset:0")
    A(f"ds_read_b128 {vr(QB+4,4)}, v2 offset:4352")
    A(f"ds_read_b128 {vr(KBC+4,4)}, v2 offset:6400")
    A(f"ds_read_b128 {vr(KBP+4,4)}, v2 offset:256")
    A(f"s_mov_b32 s44, {f32bits(2.0**56)}")
    A(f"v_mul_f32 v5, s44, v{L[0]}")
    for i in range(0, 16, 2): A(f"v_maximum3_f32 v5, |v{O[0]+i}|, |v{O[0]+i+1}|, v5")
    A(f"v_mul_f32 v6, s44, v{L[1]}")
    for i in range(0, 16, 2): A(f"v_maximum3_f32 v6, |v{O[1]+i}|, |v{O[1]+i+1}|, v6")
    A("s_mul_i32 s36, s19, 5120")
    A("v_add_u32 v7, s36, v1")
    A(f"s_mov_b32 s45, {f32bits(2.0**120)}")
    A("v_maximum3_f32 v5, v5, v6, v6")
    A("s_waitcnt lgkmcnt(0)")
    A("v_cmp_ngt_f32 vcc, s45, v5")
    A("s_cmp_lg_u32 s26, 0")
    A("s_cbranch_scc1 P2_t0done")
    A("v_mov_b32 v6, 0xff800000")
    for r in range(8, 16): A(f"v_mov_b32 v{SB+r}, v6")
    A("s_nop 1")
    A.label("P2_t0done")
    A(M32(SA, KBC, QB, SA))
    A(M32(SB, KBP, QB, SB))
    for i in range(4): A(f"ds_write_b128 v7, {vr(O[1]+4*i,4)} offset:{XCH+1024*i}")
    A(f"ds_write_b32 v7, v{L[1]} offset:{XCH+4096}")
    A(M32(SA, KBC+4, QB+4, SA))
    A(M32(SB, KBP+4, QB+4, SB))
    for m in range(2): A(f"ds_read_b128 {vr(VBC+4*m,4)}, v2 offset:{8192+256*m}")
    A(f"ds_read_b128 {vr(VBP,4)}, v2 offset:2304")
    if opts.get("force_fb"): A("s_mov_b64 vcc, -1")
    A("s_cmp_lg_u64 vcc, 0")
    A("s_cselect_b32 s44, 1, 0")
    A("v_mov_b32 v6, s44")
    A("s_lshl_b32 s45, s19, 2")
    A(f"s_add_u32 s45, s45, {FLAGS}")
    A("v_mov_b32 v7, s45")
    A("ds_write_b32 v7, v6")
    A("s_xor_b32 s36, s19, 4")
    A("s_mul_i32 s36, s36, 5120")
    A("v_add_u32 v3, s36, v1")
    A("s_cmp_lg_u32 s24, 0")
    A("s_cbranch_scc1 P2_xchg")
    bregs = list(range(SA, SA+16)) + list(range(SB+8, SB+16))
    rowmax(bregs, 6, 7)
    for r in bregs[::2]: A(f"v_pk_add_f32 v[{r}:{r+1}], v[{r}:{r+1}], v[6:7] op_sel_hi:[1,0] neg_lo:[0,1] neg_hi:[0,1]")
    A("s_waitcnt lgkmcnt(0)")
    for i in range(0, 16, 2): A(f"v_mov_b64 v[{OB+i}:{OB+i+1}], 0")
    for i in range(0, 4, 2): A(f"v_mov_b64 v[{LB+i}:{LB+i+1}], 0")
    for r in bregs[:10]: A(E(r))
    A(S32(OB, VBC, SA))
    for r in bregs[10:13]: A(E(r))
    A(S16(LB, ONES, SA))
    for r in bregs[13:18]: A(E(r))
    A(S32(OB, VBC+4, SA+8))
    for r in bregs[18:21]: A(E(r))
    A(S16(LB, ONES, SA+8))
    for r in bregs[21:24]: A(E(r))
    A("s_nop 1")
    A(S16(LB, ONES, SB+8))
    A(S32(OB, VBP, SB+8))
    A.label("P2_xchg")
    A("s_waitcnt lgkmcnt(0)")
    A("s_barrier")
    A(f"ds_read_b32 v5, v3 offset:{XCH+4096}")
    for i in range(4): A(f"ds_read_b128 {vr(SA+4*i,4)}, v3 offset:{XCH+1024*i}")
    read_flags(SB)
    A(f"s_add_u32 s45, s31, {4<<20}")
    A("s_cmp_lg_u32 s24, 0")
    A("s_cbranch_scc1 P2_nob")
    A(f"v_rcp_f32 v6, v{LB}")
    A("s_nop 2")
    for i in range(0, 16, 2): A(f"v_pk_mul_f32 v[{OB+i}:{OB+i+1}], v[{OB+i}:{OB+i+1}], v[6:7] op_sel_hi:[1,0]")
    for i in range(8): A(f"v_cvt_pk_bf16_f32 v{PK+i}, v{OB+2*i}, v{OB+2*i+1}")
    for m in range(2):
        A(f"buffer_store_dwordx4 {vr(PK+4*m,4)}, v1, s[12:15], s45 offen offset:{1024*m}{SC}")
    A.label("P2_nob")
    A("s_waitcnt lgkmcnt(2)")
    A(f"v_add_f32 v6, v5, v{L[0]}")
    A("v_rcp_f32 v6, v6")
    for i in range(0, 16, 2): A(f"v_pk_add_f32 v[{O[0]+i}:{O[0]+i+1}], v[{SA+i}:{SA+i+1}], v[{O[0]+i}:{O[0]+i+1}]")
    for i in range(0, 16, 2): A(f"v_pk_mul_f32 v[{O[0]+i}:{O[0]+i+1}], v[{O[0]+i}:{O[0]+i+1}], v[6:7] op_sel_hi:[1,0]")
    for i in range(8): A(f"v_cvt_pk_bf16_f32 v{SA+i}, v{O[0]+2*i}, v{O[0]+2*i+1}")
    for m in range(2):
        A(f"buffer_store_dwordx4 {vr(SA+4*m,4)}, v1, s[12:15], s31 offen offset:{1024*m}{SC}")
    A("s_cmp_lg_u32 s24, 0")
    A("s_cbranch_scc1 P2_fin")
    A("s_waitcnt lgkmcnt(0)")
    or_flags(SB, 44)
    A("s_nop 3")
    A("s_cmp_eq_u32 s44, 0")
    A("s_cbranch_scc0 P2_fallback")
    A.label("P2_fin")
    ST(6)
    A("s_waitcnt vmcnt(0)")
    A("s_barrier")
    ST(7)
    A("s_cmp_gt_u32 s19, 4")
    A("s_cbranch_scc1 L_done")

    NO = opts.get("no", 4); NW = 10 - NO; S3 = 16384; W3 = NO * S3
    def p3_ids():
        A("s_lshr_b32 s16, s34, 2")
        A("s_and_b32 s17, s34, 1")
        A("s_lshl_b32 s17, s17, 3")
        A("s_and_b32 s36, s35, 7")
        A("s_add_u32 s17, s17, s36")
        A("s_lshr_b32 s18, s34, 1")
        A("s_and_b32 s18, s18, 1")
        A("s_lshl_b32 s18, s18, 2")
        A("s_lshr_b32 s36, s35, 3")
        A("s_add_u32 s18, s18, s36")
    p3_ids()
    A("s_cmp_eq_u32 s19, 4")
    A("s_cbranch_scc1 P3_oload")
    A("v_lshrrev_b32 v1, 4, v1")
    A("s_lshr_b32 s36, s19, 1")
    A("s_and_b32 s37, s19, 1")
    A("v_lshrrev_b32 v18, 4, v1")
    A("v_and_b32 v17, 15, v1")
    A("v_lshlrev_b32 v2, 4, v17")
    A("v_lshl_add_u32 v2, v18, 9, v2")
    A("s_lshl_b32 s38, s36, 13")
    A("v_add_u32 v2, s38, v2")
    A("v_lshrrev_b32 v19, 2, v1")
    A("v_and_b32 v19, 7, v19")
    A("v_lshrrev_b32 v20, 5, v1")
    A("v_lshl_add_u32 v20, v20, 4, v19")
    A("v_lshlrev_b32 v20, 8, v20")
    A("s_lshl_b32 s38, s37, 2")
    A("v_xor_b32 v21, s38, v19")
    A("v_lshl_add_u32 v20, v21, 5, v20")
    A("v_and_b32 v21, 3, v1")
    A("v_lshl_add_u32 v3, v21, 3, v20")
    for a in range(1, 4): A(f"v_xor_b32 v{3+a}, {32*a}, v3")
    ACC3 = 88; FS = [24, 56]; AO = 8; AW = 9
    for i in range(0, 64, 2): A(f"v_mov_b64 v[{ACC3+i}:{ACC3+i+1}], 0")
    for i in range(0, 32, 2): A(f"v_mov_b64 v[{FS[1]+i}:{FS[1]+i+1}], 0")
    A("v_lshlrev_b32 v22, 12, v17")
    A("v_and_b32 v21, 1, v18")
    A("v_lshl_add_u32 v22, v21, 5, v22")
    A("v_lshrrev_b32 v21, 1, v18")
    A("v_lshl_add_u32 v22, v21, 4, v22")
    A("s_lshl_b32 s38, s17, 7")
    A("s_lshl_b32 s36, s36, 6")
    A("s_add_u32 s36, s36, s38")
    A("s_lshl_b32 s36, s36, 12")
    A("s_lshl_b32 s38, s16, 11")
    A("s_add_u32 s36, s36, s38")
    A("s_lshl_b32 s38, s18, 8")
    A("s_add_u32 s36, s36, s38")
    A("s_lshl_b32 s37, s37, 7")
    A("s_add_u32 s40, s36, s37")
    for st in range(1, 4): A(f"s_add_u32 s{40+st}, s40, {st*16*4096}")
    A(f"s_mov_b32 s8, s{P_OUT}")
    A(f"s_mov_b32 s9, s{P_OUT+1}")
    A(f"s_mov_b32 s10, {2048*4096}")
    def of(s, st): return FS[s] + 4*st
    def wf3(s, a): return FS[s] + 16 + 4*a
    def acc3(st, a): return ACC3 + (st*4+a)*4
    def rd_items(hh, s):
        L_ = [('rd', f"ds_read_b128 {vr(of(s,0),4)}, v{AO} offset:{hh*2048}", f"o{s}_0")]
        for i in range(4):
            for half in range(2):
                L_.append(('rd', f"ds_read_b64_tr_b16 {vr(wf3(s,i)+2*half,2)}, v{AW+i} offset:{hh*8192+half*2048}", f"w{s}_{i}"))
        for i in range(1, 4):
            L_.append(('rd', f"ds_read_b128 {vr(of(s,i),4)}, v{AO} offset:{(i>>1)*4096+hh*2048+(i&1)*256}", f"o{s}_{i}"))
        return L_
    def mf_items(s):
        L_ = []
        for st in range(4):
            for a in (range(4) if st % 2 == 0 else range(3, -1, -1)):
                needs = [f"o{s}_{st}", f"w{s}_{a}"]
                if st == 0 and a == 0: needs += [f"w{s}_{i}" for i in range(4)] + [f"o{s}_{i}" for i in range(4)]
                L_.append(('op', M16(acc3(st, a), wf3(s, a), of(s, st), acc3(st, a)), needs))
        return L_
    upd = [f"s_add_u32 s23, s23, {S3}", f"s_cmp_eq_u32 s23, {W3}", "s_cselect_b32 s23, 0, s23", f"v_add_u32 v{AO}, s23, v2",
           f"s_add_u32 s22, s22, {S3}", f"s_cmp_eq_u32 s22, {LDS_BYTES}", f"s_cselect_b32 s22, {W3}, s22", "s_sub_u32 s38, s38, 1"] + \
          [f"v_add_u32 v{AW+a}, s22, v{3+a}" for a in range(4)] + ["s_cmp_lg_u32 s38, 0"]
    upd = [('raw', u) for u in upd]
    items = [('all', "s_barrier")] + interleave(mf_items(1), rd_items(0, 0), [2] * 16)
    items += interleave(mf_items(0), rd_items(1, 1) + upd, [2] * 16)
    body, _ = schedule_waits(items, passes=2)
    A("s_mov_b32 s23, 0")
    A(f"s_mov_b32 s22, {W3}")
    A("s_mov_b32 s38, 16")
    A(f"v_mov_b32 v{AO}, v2")
    for a in range(4): A(f"v_add_u32 v{AW+a}, s22, v{3+a}")
    if stamp:
        A("s_barrier"); ST(8); A("s_branch P3_first")
    A(".p2align 6")
    A.label("P3_loop")
    for i, l in enumerate(body):
        A(l)
        if l == "s_barrier" and stamp: A.label("P3_first")
    A("s_cbranch_scc1 P3_loop")
    A("s_waitcnt lgkmcnt(0)")
    for it in mf_items(1): A(it[1])
    ST(9)
    n = 0
    for st in range(4):
        for pr in range(2):
            p = 24 + n * 4; n += 1
            for u in range(2):
                d = acc3(st, 2*pr+u)
                A(f"v_cvt_pk_bf16_f32 v{p+2*u}, v{d}, v{d+1}")
                A(f"v_cvt_pk_bf16_f32 v{p+2*u+1}, v{d+2}, v{d+3}")
        A("s_nop 1")
        for pr in range(2):
            p = 24 + (n - 2 + pr) * 4
            A(f"v_permlane16_swap_b32 v{p}, v{p+2}")
            A(f"v_permlane16_swap_b32 v{p+1}, v{p+3}")
            A(f"buffer_store_dwordx4 {vr(p,4)}, v22, s[8:11], s{40+st} offen offset:{pr*64}{SC}")
    if opts.get("padto"):
        A("s_waitcnt vmcnt(0)")
        A(f"s_mov_b32 s37, {opts['padto']}")
        if opts.get("padmin"):
            A("buffer_load_dword v3, off, s[72:75], 0 offset:32 sc1")
            A("s_waitcnt vmcnt(0)")
            A("v_readfirstlane_b32 s98, v3")
            A("s_nop 3")
            A("s_not_b32 s98, s98")
        if opts.get("probe") is not None:
            ST(10)
            A(f"s_sub_u32 s37, s{50+opts['probe']}, s98")
            A(f"s_add_u32 s37, s37, {opts['padto']}")
        A.label("L_pad")
        A("s_memrealtime s[100:101]")
        A("s_waitcnt lgkmcnt(0)")
        A("s_sub_u32 s36, s100, s98")
        A("s_cmp_lt_u32 s36, s37")
        A("s_cbranch_scc1 L_pad")
        if opts.get("probe") is not None: A("s_endpgm")
    if stamp:
        A("s_waitcnt vmcnt(0)")
        ST(10)
        if opts.get("dbgout") is not None:
            A(f"s_cmp_lg_u32 s2, {opts['dbgout']}")
            A("s_cbranch_scc1 L_nodbg")
            A("s_cmp_lg_u32 s19, 0")
            A("s_cbranch_scc1 L_nodbg")
            for i in range(1, 11):
                A(f"s_sub_u32 s36, s{50+i}, s50")
                A("v_mov_b32 v3, s36")
                A(f"buffer_store_dword v3, off, s[72:75], 0 offset:{4*i}")
            A.label("L_nodbg")
        A("s_lshl_b32 s36, s2, 2")
        A("s_add_u32 s36, s36, s19")
        A("s_lshl_b32 s36, s36, 6")
        A(f"s_add_u32 s36, s36, {64<<20}")
        A("s_mov_b32 s14, 0x8000000")
        for i in range(12):
            A(f"v_mov_b32 v3, s{50+i}")
            A(f"buffer_store_dword v3, off, s[12:15], s36 offset:{4*i}")
    A("s_endpgm")
    def ring_loader(tag, nslots, base, issue, pre):
        A(f"s_mov_b32 s23, {base}")
        A("s_mov_b32 s38, 0")
        A.label(f"{tag}_go2")
        issue()
        A("s_add_u32 s38, s38, 1")
        A(f"s_add_u32 s23, s23, {S3}")
        A(f"s_cmp_eq_u32 s23, {base + nslots*S3}")
        A(f"s_cselect_b32 s23, {base}, s23")
        A(f"s_cmp_eq_u32 s38, {pre}")
        A(f"s_cbranch_scc0 {tag}_l1")
        A(f"s_waitcnt vmcnt({min(63, 16*(pre-1))})")
        A("s_barrier")
        A.label(f"{tag}_l1")
        A(f"s_cmp_lt_u32 s38, {nslots}")
        A(f"s_cbranch_scc1 {tag}_go2")
        A(f"s_waitcnt vmcnt({min(63, 16*(nslots-2))})")
        A("s_barrier")
        A("s_cmp_lt_u32 s38, 16")
        A(f"s_cbranch_scc1 {tag}_go2")
        for j in range(nslots - 2):
            A(f"s_waitcnt vmcnt({min(63, 16*(nslots-3-j))})")
            A("s_barrier")
        if stamp and opts.get("probe") is None:
            A("s_lshl_b32 s36, s2, 1")
            A("s_lshr_b32 s37, s19, 3")
            A("s_add_u32 s36, s36, s37")
            A("s_lshl_b32 s36, s36, 6")
            A(f"s_add_u32 s36, s36, {65<<20}")
            A("s_mov_b32 s14, 0x8000000")
            for i in range(3):
                A(f"v_mov_b32 v3, s{50+i}")
                A(f"buffer_store_dword v3, off, s[12:15], s36 offset:{4*i}")
        A("s_endpgm")
    A.label("P3_oload")
    A("s_lshl_b32 s36, s16, 22")
    A("s_lshl_b32 s37, s17, 18")
    A("s_add_u32 s36, s36, s37")
    A(f"s_add_u32 s36, s36, {WS_O}")
    A(f"s_add_u32 s4, s{P_WS}, s36")
    A(f"s_addc_u32 s5, s{P_WS+1}, 0")
    A("s_mov_b32 s6, 0x40000")
    A("s_lshl_b32 s21, s34, 13")
    poll("P3_o", 128, 32, 2)
    def o_issue():
        for t in range(4):
            A(f"s_add_u32 m0, s23, {t*4096}")
            A(f"s_add_u32 s20, s21, {t*65536}")
            for i in range(4): A(f"buffer_load_dwordx4 v1, s[4:7], s20 offen offset:{1024*i}{LD} lds")
        A("s_add_u32 s21, s21, 4096")
        A("s_and_b32 s21, s21, 0xffff")
    ring_loader("P3_o", NO, 0, o_issue, opts.get("opre", 2))

    A.label("P2_fallback")
    A("s_mov_b32 s24, 1")
    for x in range(2): A(f"v_mov_b32 v{MX[x]}, 0xff800000")
    A("s_mov_b32 s21, 0")
    A.label("P2_maxloop")
    A(f"buffer_load_dwordx4 {vr(KF,4)}, v31, s[4:7], s21 offen{LD}")
    A(f"buffer_load_dwordx4 {vr(KF+4,4)}, v31, s[4:7], s21 offen offset:256{LD}")
    A("s_waitcnt vmcnt(0)")
    for x in range(2): A(M32(SX[x], KF, Q[x], None))
    for x in range(2): A(M32(SX[x], KF+4, Q[x]+4, SX[x]))
    A("s_nop 7")
    A("s_nop 3")
    for x in range(2):
        for i in range(8): A(f"v_max3_f32 v{MX[x]}, v{SX[x]+2*i}, v{SX[x]+2*i+1}, v{MX[x]}")
    A("s_add_u32 s21, s21, 4096")
    A("s_cmp_lt_u32 s21, 0x40000")
    A("s_cbranch_scc1 P2_maxloop")
    for x in range(2):
        A(f"v_mov_b32 v6, v{MX[x]}")
        A("s_nop 1")
        A(f"v_permlane32_swap_b32 v{MX[x]}, v6")
        A("s_nop 1")
        A(f"v_max_f32 v{MX[x]}, v{MX[x]}, v6")
    A("s_barrier")
    A("s_branch P2_restart")

    A.label("P2_helpers")
    p2_ids()
    A("v_lshlrev_b32 v1, 4, v1")
    A("s_lshl_b32 s26, s16, 6")
    A("s_lshl_b32 s27, s17, 3")
    A("s_add_u32 s26, s26, s27")
    A("v_lshrrev_b32 v41, 4, v1")
    A("v_lshrrev_b32 v42, 3, v41")
    A("v_and_b32 v42, 1, v42")
    A("s_lshl_b32 s40, s17, 1")
    A("v_add_u32 v42, s40, v42")
    A("v_lshrrev_b32 v40, 3, v42")
    A("v_and_b32 v42, 7, v42")
    A("v_lshl_add_u32 v40, v42, 3, v40")
    A("v_and_b32 v42, 3, v41")
    A("v_lshl_add_u32 v40, v42, 6, v40")
    A("v_and_b32 v42, 4, v41")
    A("v_lshrrev_b32 v42, 1, v42")
    A("v_add_u32 v40, v40, v42")
    A("v_and_b32 v42, 16, v41")
    A("v_lshrrev_b32 v42, 2, v42")
    A("v_add_u32 v40, v40, v42")
    A("s_lshl_b32 s40, s16, 2")
    A(f"s_add_u32 s40, s40, {WS_F + 128}")
    A("v_lshlrev_b32 v40, 8, v40")
    A("v_add_u32 v40, s40, v40")
    A("s_cmp_eq_u32 s19, 9")
    A("s_cbranch_scc1 P2_aux")
    A("s_lshl_b32 s27, s26, 11")
    A("s_barrier")
    poll("P2_k", 0, 8, 2)
    A.label("P2_lstart")
    def l_stage():
        for g in range(4):
            A(f"s_add_u32 m0, s22, {g * 4096}")
            A(f"s_add_u32 s20, s21, {(g >> 1) * 131072 + (g & 1) * 4096}")
            for i in range(4):
                A(f"buffer_load_dwordx4 v1, s[4:7], s20 offen offset:{1024*i}{LD} lds")
        A("s_add_u32 s21, s21, 8192")
        A(f"s_add_u32 s22, s22, {STG}")
        A(f"s_cmp_eq_u32 s22, {RING}")
        A("s_cselect_b32 s22, 0, s22")
    for g in range(4):
        A(f"s_mov_b32 m0, {BREG + g * 4096}")
        A(f"s_add_u32 s20, s27, {g * 4096}")
        for i in range(4):
            A(f"buffer_load_dwordx4 v1, s[12:15], s20 offen offset:{1024*i}{LD} lds")
    A("s_mov_b32 s21, 0")
    A("s_mov_b32 s22, 0")
    A("s_mov_b32 s23, 0")
    KPRE = opts.get("kpre", 2)
    A.label("P2_lloop")
    l_stage()
    A("s_add_u32 s23, s23, 1")
    A(f"s_cmp_eq_u32 s23, {KPRE}")
    A("s_cbranch_scc0 P2_l1")
    A(f"s_waitcnt vmcnt({16*(KPRE-1)})")
    A("s_barrier")
    A.label("P2_l1")
    A("s_cmp_lt_u32 s23, 5")
    A("s_cbranch_scc1 P2_lloop")
    A("s_waitcnt vmcnt(48)")
    A("s_barrier")
    A("s_cmp_lt_u32 s23, 16")
    A("s_cbranch_scc1 P2_lloop")
    for n_ in (32, 16, 0):
        A(f"s_waitcnt vmcnt({n_})"); A("s_barrier")
    A("s_barrier")
    A("s_branch P2_htail")
    A.label("P2_aux")
    A("s_mul_i32 s26, s26, 6144")
    A(f"s_add_u32 s26, s26, {WS_B - 4096}")
    A("s_add_u32 s27, s26, 6144")
    A("s_cmp_eq_u32 s17, 0")
    A("s_cselect_b32 s27, s27, s26")
    if opts.get("cnt", 2) == 1: poll_cnt("P2_c", 256, 2)
    if opts.get("cnt", 2) == 2:
        A("v_readfirstlane_b32 s46, v23")
        A("s_nop 3")
        A("s_cmp_ge_u32 s46, 256")
        A("s_cbranch_scc1 P2_c_go")
        poll_cnt("P2_c", 256, 2)
    A("v_mov_b32 v7, 0xff800000")
    for q in range(24):
        m = bmask(q, False) if q < 16 else bmask(q - 8, True)
        A(f"s_mov_b32 s40, {m & 0xffffffff}")
        A(f"s_mov_b32 s41, {m >> 32}")
        A(f"v_cndmask_b32 v{16+q}, v7, 0, s[40:41]")
    A(f"v_add_u32 v3, {MASKT}, v1")
    A("s_barrier")
    signal(10, 16, 2)
    for q in range(6): A(f"ds_write_b128 v3, {vr(16+4*q,4)} offset:{1024*q}")
    A("s_waitcnt lgkmcnt(0)")
    A.label("P2_astart")
    for i in range(5): A("s_barrier")
    if opts.get("wo_pf", 1):
        A("s_mov_b32 s10, 0x200000")
        A("s_cmp_lt_u32 s34, 4")
        A(f"s_cselect_b32 s8, s{P_AWO}, s{P_BWO}")
        A(f"s_cselect_b32 s9, s{P_AWO+1}, s{P_BWO+1}")
        A("v_and_b32 v44, 0x70, v1")
        A("v_lshlrev_b32 v44, 3, v44")
        A("v_lshrrev_b32 v45, 7, v1")
        A("v_lshl_add_u32 v44, v45, 11, v44")
        A("s_lshl_b32 s40, s35, 16")
        A("s_and_b32 s41, s34, 2")
        A("s_lshl_b32 s41, s41, 9")
        A("s_add_u32 s40, s40, s41")
    for i in range(4):
        if opts.get("wo_pf", 1):
            A("buffer_load_dword v46, v44, s[8:11], s40 offen")
            A("s_add_u32 s40, s40, 16384")
        A("s_barrier")
    if opts.get("out_touch", 1):
        A(f"s_mov_b32 s8, s{P_OUT}")
        A(f"s_mov_b32 s9, s{P_OUT+1}")
        A(f"s_mov_b32 s10, {2048*4096}")
        A("s_and_b32 s40, s34, 1")
        A("s_lshl_b32 s40, s40, 3")
        A("s_and_b32 s41, s35, 7")
        A("s_add_u32 s40, s40, s41")
        A("s_lshl_b32 s40, s40, 19")
        A("buffer_load_dword v46, off, s[8:11], s40")
    poll("P2_b", 32, 8, 4)
    for grp in ((0, 4), (4, 8), (8, 11), (11, 13)):
        for g in range(*grp):
            A(f"s_mov_b32 m0, {BREG + g * 4096}")
            if g == 0: A("s_mov_b32 s20, s27")
            else: A(f"s_add_u32 s20, s26, {g * 4096}")
            for i in range(4):
                A(f"buffer_load_dwordx4 v1, s[12:15], s20 offen offset:{1024*i}{LD} lds")
        A("s_barrier")
    for i in range(3): A("s_barrier")
    A("s_waitcnt vmcnt(0)")
    A("s_barrier")
    A.label("P2_htail")
    A("s_barrier")
    A("s_cmp_lg_u32 s24, 0")
    A("s_cbranch_scc1 P2_hfin")
    read_flags(8)
    A("s_waitcnt lgkmcnt(0)")
    or_flags(8, 44)
    A("s_nop 3")
    A("s_cmp_eq_u32 s44, 0")
    A("s_cbranch_scc1 P2_hfin")
    A("s_mov_b32 s24, 1")
    A("s_barrier")
    A("s_cmp_eq_u32 s19, 9")
    A("s_cbranch_scc1 P2_astart")
    A("s_branch P2_lstart")
    A.label("P2_hfin")
    A("s_cmp_eq_u32 s19, 9")
    A("s_cbranch_scc0 P3_wload")
    A("s_barrier")
    signal(40, 32, 2)
    A("s_endpgm")
    A.label("P3_wload")
    p3_ids()
    A("v_lshrrev_b32 v1, 4, v1")
    A("s_lshl_b32 s39, s18, 8")
    A(f"s_sub_u32 s6, {1024*2048}, s39")
    A("v_lshrrev_b32 v3, 4, v1")
    A("v_lshlrev_b32 v4, 1, v3")
    A("v_and_b32 v5, 15, v1")
    A("v_xor_b32 v4, v4, v5")
    A("v_lshlrev_b32 v4, 4, v4")
    A("v_lshl_add_u32 v5, v3, 11, v4")
    A("v_xor_b32 v6, 128, v5")
    A(f"v_add_u32 v6, {8192-1024}, v6")
    A(f"v_add_u32 v7, {16384-2048}, v5")
    A(f"v_add_u32 v8, {16384-2048}, v6")
    A("s_cmp_eq_u32 s16, 0")
    A(f"s_cselect_b32 s4, s{P_AWO}, s{P_BWO}")
    A(f"s_cselect_b32 s5, s{P_AWO+1}, s{P_BWO+1}")
    A("s_add_u32 s4, s4, s39")
    A("s_addc_u32 s5, s5, 0")
    A("s_lshl_b32 s21, s34, 18")
    A("s_barrier")
    def w_issue():
        for q in range(4):
            A(f"s_add_u32 m0, s23, {q*4096}")
            A(f"s_add_u32 s20, s21, {q*32768}")
            for i in range(4): A(f"buffer_load_dwordx4 v{5+i}, s[4:7], s20 offen offset:{1024*i} lds")
        A("s_add_u32 s21, s21, 0x20000")
        A("s_and_b32 s21, s21, 0x1fffff")
    ring_loader("P3_w", NW, W3, w_issue, NW)
    A.label("L_done")
    A("s_endpgm")
    hdr = ("; concat_heads__mha_block__sliding_local_dilated__prompt : fused single-launch kernel (generated by gen/mega.py)\n"
           "; Kernarg: 0 A_x, 8 A_wqkv, 16 A_wo, 24 B_x, 32 B_wqkv, 40 B_wo, 48 out, 56 debug, 64 ws\n"
           f"; @launch grid=(256,1,1) block=(640,1,1) lds={LDS_BYTES}\n")
    return hdr + A.text() + '.section .rodata,"a"\n' + descriptor(NAME, 168, 102)

if __name__ == "__main__":
    opts = json.loads(sys.argv[2]) if len(sys.argv) > 2 else {}
    open(sys.argv[1], "w").write(gen(opts))
```

```python
import sys, os, json, struct, math
sys.path.insert(0, os.path.dirname(os.path.abspath(__file__)))
from asmlib import *

NAME = "concat_heads__mha_block__sliding_local_dilated__prompt_kernel"
WS_Q = 0
WS_KV = 4 << 20
WS_H = 12 << 20
WS_O = 24 << 20
WS_F = 32 << 20
WS_BYTES = (32 << 20) + 65536
QSCALE = (32 ** -0.5) * math.log2(math.e)
LDS_BYTES = 163840
def f32bits(x): return struct.unpack("<I", struct.pack("<f", x))[0]
def M32(d, a, b, c):
    cs = "0" if c is None else vr(c, 16)
    return f"v_mfma_f32_32x32x16_bf16 {vr(d,16)}, {vr(a,4)}, {vr(b,4)}, {cs}"
def M16(d, a, b, c):
    cs = "0" if c is None else vr(c, 4)
    return f"v_mfma_f32_16x16x32_bf16 {vr(d,4)}, {vr(a,4)}, {vr(b,4)}, {cs}"

P_AX, P_AW, P_AWO, P_BX, P_BW, P_BWO, P_OUT, P_DBG, P_WS = 76, 78, 80, 82, 84, 86, 88, 90, 92

def gen(opts=None):
    opts = opts or {}
    A = Asm()
    stamp = opts.get("stamp", False)
    SC = " sc1"
    LD = opts.get("ld_mod", " sc1")
    def ST(i):
        if stamp:
            A("s_memrealtime s[100:101]")
            A("s_waitcnt lgkmcnt(0)")
            A(f"s_mov_b32 s{50+i}, s100")
    def lane(dst):
        A(f"v_mbcnt_lo_u32_b32 v{dst}, -1, 0")
        A(f"v_mbcnt_hi_u32_b32 v{dst}, -1, v{dst}")
    def poll_cnt(tag, target, vtmp):
        A(f"s_mov_b32 s47, {opts.get('poll_max', 30000)}")
        A.label(f"{tag}_poll")
        A(f"buffer_load_dword v{vtmp}, off, s[72:75], 0 sc1")
        A("s_waitcnt vmcnt(0)")
        A(f"v_readfirstlane_b32 s46, v{vtmp}")
        A("s_sub_u32 s47, s47, 1")
        A("s_cmp_eq_u32 s47, 0")
        A(f"s_cbranch_scc1 {tag}_go")
        A(f"s_cmp_ge_u32 s46, {target}")
        A(f"s_cbranch_scc1 {tag}_go")
        A("s_sleep 8")
        A(f"s_branch {tag}_poll")
        A.label(f"{tag}_go")
    def poll(tag, off, nflags, vtmp):
        A(f"s_mov_b32 s47, {opts.get('poll_max', 30000)}")
        A("s_lshl_b32 s46, s2, 8")
        A(f"s_add_u32 s46, s46, {WS_F + off}")
        A(f"v_lshrrev_b32 v{vtmp+1}, 2, v1")
        A(f"v_and_b32 v{vtmp+1}, {4*nflags-1}, v{vtmp+1}")
        ST(0)
        A.label(f"{tag}_poll")
        A(f"buffer_load_dword v{vtmp}, v{vtmp+1}, s[12:15], s46 offen sc1")
        A("s_sub_u32 s47, s47, 1")
        A("s_waitcnt vmcnt(0)")
        A(f"v_cmp_eq_u32 vcc, 0, v{vtmp}")
        A("s_cmp_eq_u32 s47, 0")
        A(f"s_cbranch_scc1 {tag}_go")
        A("s_cmp_eq_u64 vcc, 0")
        A(f"s_cbranch_scc1 {tag}_go")
        if opts.get('poll_sleep', 1): A(f"s_sleep {opts.get('poll_sleep', 1)}")
        A(f"s_branch {tag}_poll")
        A.label(f"{tag}_go")
        ST(1)
        if stamp: A("s_mov_b32 s52, s47")
    def p3_targets(dst, tmp, vlane, sblk, xoff):
        A(f"v_lshrrev_b32 v{tmp}, 3, v{vlane}")
        A(f"v_and_b32 v{tmp}, 1, v{tmp}")
        A(f"s_lshl_b32 s40, {sblk}, 1")
        A(f"v_add_u32 v{tmp}, s40, v{tmp}")
        A(f"v_lshrrev_b32 v{dst}, 3, v{tmp}")
        A(f"v_and_b32 v{tmp}, 7, v{tmp}")
        A(f"v_lshl_add_u32 v{dst}, v{tmp}, 3, v{dst}")
        A(f"v_and_b32 v{tmp}, 3, v{vlane}")
        A(f"v_lshl_add_u32 v{dst}, v{tmp}, 6, v{dst}")
        A(f"v_and_b32 v{tmp}, 4, v{vlane}")
        A(f"v_lshrrev_b32 v{tmp}, 1, v{tmp}")
        A(f"v_add3_u32 v{dst}, v{dst}, v{tmp}, {xoff}")
        A(f"v_lshlrev_b32 v{dst}, 8, v{dst}")
    def signal(vaddr, nl, vtmp):
        A(f"v_mov_b32 v{vtmp}, 1")
        A(f"s_mov_b64 exec, {(1 << nl) - 1}")
        A(f"buffer_store_dword v{vtmp}, v{vaddr}, s[12:15], 0 offen sc1")
        A("s_mov_b64 exec, -1")

    A('.amdgcn_target "amdgcn-amd-amdhsa--gfx950"')
    A(".text")
    kernel_begin(A, NAME)
    if opts.get("padto"):
        A("s_memrealtime s[98:99]")
    A("s_load_dwordx16 s[76:91], s[0:1], 0")
    A("s_load_dwordx2 s[92:93], s[0:1], 64")
    A("v_lshrrev_b32 v14, 6, v0")
    A("v_and_b32 v1, 63, v0")
    A("v_readfirstlane_b32 s19, v14")
    A("s_cmp_ge_u32 s2, 256")
    A("s_cbranch_scc1 L_done")
    XSLOT = 32768; WBASE = 3 * XSLOT; WSLOT = 12288; WEND = WBASE + 5 * WSLOT
    A("s_and_b32 s34, s2, 7")
    A("s_lshr_b32 s35, s2, 3")
    mix = opts.get("mix", 0)
    if mix:
        A("s_lshr_b32 s16, s35, 4")
        A("s_and_b32 s17, s34, 1")
        A("s_lshl_b32 s17, s17, 2")
        A("s_and_b32 s36, s35, 3")
        A("s_add_u32 s17, s17, s36")
        A("s_lshr_b32 s18, s34, 1")
        A("s_lshl_b32 s18, s18, 2")
        A("s_lshr_b32 s36, s35, 2")
        A("s_and_b32 s36, s36, 3")
        A("s_add_u32 s18, s18, s36")
    else:
        A("s_lshr_b32 s16, s34, 2")
        A("s_and_b32 s17, s34, 1")
        A("s_lshl_b32 s17, s17, 2")
        A("s_and_b32 s36, s35, 3")
        A("s_add_u32 s17, s17, s36")
        A("s_lshr_b32 s18, s34, 1")
        A("s_and_b32 s18, s18, 1")
        A("s_lshl_b32 s18, s18, 3")
        A("s_lshr_b32 s36, s35, 2")
        A("s_add_u32 s18, s18, s36")
    A(f"s_mov_b32 s14, {WS_BYTES}")
    A("s_mov_b32 s15, 0x20000")
    A("s_mov_b32 s74, 256")
    A("s_mov_b32 s75, 0x20000")
    A("s_mov_b32 s7, 0x20000")
    A("s_mov_b32 s11, 0x20000")
    def common_srds():
        A(f"s_mov_b32 s12, s{P_WS}")
        A(f"s_mov_b32 s13, s{P_WS+1}")
        A(f"s_mov_b32 s72, s{P_DBG}")
        A(f"s_mov_b32 s73, s{P_DBG+1}")
    A("s_cmp_lt_u32 s19, 8")
    A("s_cbranch_scc1 P1_compute")
    A("s_lshr_b32 s49, s34, 1")
    A("s_xor_b32 s49, s49, s34")
    A("s_and_b32 s49, s49, 1")
    A("s_lshl_b32 s49, s49, 10")
    A("s_lshl_b32 s23, s16, 9")
    A("s_add_u32 s49, s49, s23")
    A("s_and_b32 s23, s34, 1")
    A("s_lshl_b32 s23, s23, 8")
    A("s_add_u32 s49, s49, s23")
    A("s_add_u32 s48, s17, s18")
    A("s_and_b32 s48, s48, 1")
    A("v_lshrrev_b32 v15, 3, v1")
    A("v_lshrrev_b32 v16, 4, v1")
    A("v_and_b32 v18, 7, v1")
    A("s_mov_b32 s40, 0")
    A("s_cmp_eq_u32 s19, 8")
    A("s_cbranch_scc1 P1_xload")
    A("s_lshl_b32 s39, s18, 7")
    A(f"s_sub_u32 s6, {1024*6144}, s39")
    A("v_and_b32 v16, 1, v16")
    A("v_lshlrev_b32 v16, 1, v16")
    A("v_xor_b32 v16, v18, v16")
    A("v_lshlrev_b32 v16, 4, v16")
    A("v_mul_u32_u24 v17, 6144, v15")
    A("v_add_u32 v2, v17, v16")
    A("v_xor_b32 v16, 64, v16")
    A("v_add_u32 v3, v17, v16")
    A(f"v_add_u32 v3, {8*6144-1024}, v3")
    A(f"v_add_u32 v4, {16*6144-2048}, v2")
    A(f"v_add_u32 v5, {16*6144-2048}, v3")
    A("s_lshl_b32 s48, s48, 1")
    A(f"s_mov_b32 s22, {WBASE}")
    A("v_lshlrev_b32 v20, 2, v1")
    A("v_mov_b32 v21, 0")
    A("v_mov_b32 v22, 1")
    A("s_lshl_b32 s45, s2, 8")
    A(f"s_add_u32 s45, s45, {WS_F}")
    A("s_and_b32 s44, s35, 7")
    A("s_lshl_b32 s44, s44, 1")
    A("s_add_u32 s44, s44, 9")
    A("s_cmp_eq_u32 s16, 0")
    A("s_waitcnt lgkmcnt(0)")
    A(f"s_cselect_b32 s4, s{P_AW}, s{P_BW}")
    A(f"s_cselect_b32 s5, s{P_AW+1}, s{P_BW+1}")
    A("s_add_u32 s4, s4, s39")
    A("s_addc_u32 s5, s5, 0")
    common_srds()
    A("s_branch P1_wgo")
    A.label("P1_wclr")
    A("buffer_store_dword v21, v20, s[12:15], s45 offen sc1")
    A.label("P1_wwait")
    A("s_waitcnt vmcnt(12)")
    A("s_barrier")
    A("s_cmp_eq_u32 s40, s44")
    A("s_cbranch_scc0 P1_wgo")
    A("s_waitcnt vmcnt(0)")
    A("s_mov_b64 exec, 1")
    A("buffer_atomic_add v22, off, s[72:75], 0 sc1")
    if opts.get("padmin"):
        A("s_not_b32 s97, s98")
        A("v_mov_b32 v24, s97")
        A("buffer_atomic_umax v24, off, s[72:75], 0 offset:32 sc1")
    A("s_mov_b64 exec, -1")
    A.label("P1_wgo")
    A("s_xor_b32 s23, s40, s48")
    A("s_lshl_b32 s23, s23, 6")
    A("s_add_u32 s23, s23, s49")
    A("s_and_b32 s23, s23, 2047")
    A("s_mul_i32 s20, s23, 3072")
    for ty in range(3):
        A(f"s_add_u32 m0, s22, {ty*4096}")
        if ty: A("s_add_u32 s20, s20, 2048")
        else: A("s_add_u32 s40, s40, 1")
        for i in range(4):
            A(f"buffer_load_dwordx4 v{2+i}, s[4:7], s20 offen offset:{1024*i} lds")
    A(f"s_add_u32 s22, s22, {WSLOT}")
    A(f"s_cmp_eq_u32 s22, {WEND}")
    A(f"s_cselect_b32 s22, {WBASE}, s22")
    WPRE = opts.get("wpre", 3)
    A(f"s_cmp_eq_u32 s40, {WPRE}")
    A("s_cbranch_scc0 P1_w1")
    A(f"s_waitcnt vmcnt({12*(WPRE-2)})")
    A("s_barrier")
    A.label("P1_w1")
    A("s_cmp_lt_u32 s40, 5")
    A("s_cbranch_scc1 P1_wgo")
    A("s_bitcmp0_b32 s40, 0")
    A("s_cbranch_scc1 P1_w2")
    A("s_cmp_eq_u32 s40, 5")
    A("s_cbranch_scc1 P1_wclr")
    A("s_branch P1_wwait")
    A.label("P1_w2")
    A("s_cmp_lt_u32 s40, 32")
    A("s_cbranch_scc1 P1_wgo")
    A("s_branch P1_ltail")
    A.label("P1_xload")
    A("s_mov_b32 s6, 0x80000")
    A("s_lshl_b32 s36, s17, 19")
    A("v_xor_b32 v17, v18, v16")
    A("v_lshlrev_b32 v17, 4, v17")
    A("v_lshl_add_u32 v2, v15, 11, v17")
    A("v_xor_b32 v3, 64, v2")
    A(f"v_add_u32 v3, {16384-1024}, v3")
    A(f"v_add_u32 v4, {32768-2048}, v2")
    A(f"v_add_u32 v5, {32768-2048}, v3")
    A("s_mov_b32 s22, 0")
    A("s_cmp_eq_u32 s16, 0")
    A("s_waitcnt lgkmcnt(0)")
    A(f"s_cselect_b32 s4, s{P_AX}, s{P_BX}")
    A(f"s_cselect_b32 s5, s{P_AX+1}, s{P_BX+1}")
    A("s_add_u32 s4, s4, s36")
    A("s_addc_u32 s5, s5, 0")
    A.label("P1_xgo")
    A("s_xor_b32 s21, s40, s48")
    A("s_lshl_b32 s21, s21, 7")
    A("s_add_u32 s21, s21, s49")
    A("s_and_b32 s21, s21, 2047")
    XB0 = opts.get("xb0", 4)
    for q in range(8):
        A(f"s_add_u32 m0, s22, {q*4096}")
        A(f"s_add_u32 s20, s21, {q*65536}")
        if q == XB0:
            A("s_cmp_eq_u32 s40, 1")
            A("s_cbranch_scc0 P1_x0")
            A(f"s_waitcnt vmcnt({4*XB0})")
            A("s_barrier")
            A.label("P1_x0")
        for i in range(4):
            A(f"buffer_load_dwordx4 v{2+i}, s[4:7], s20 offen offset:{1024*i} lds")
    A(f"s_add_u32 s22, s22, {XSLOT}")
    A(f"s_cmp_eq_u32 s22, {3*XSLOT}")
    A("s_cselect_b32 s22, 0, s22")
    A("s_add_u32 s40, s40, 1")
    A(f"s_cmp_lt_u32 s40, {2 if XB0 == 8 else 3}")
    A("s_cbranch_scc1 P1_xgo")
    A("s_waitcnt vmcnt(32)")
    A("s_barrier")
    A("s_cmp_lt_u32 s40, 16")
    A("s_cbranch_scc1 P1_xgo")
    A.label("P1_ltail")
    common_srds()
    if opts.get("cnt", 2) == 2:
        A("buffer_load_dword v23, off, s[72:75], 0")
    A("s_waitcnt vmcnt(0)")
    A("s_barrier")
    A("v_lshrrev_b32 v10, 3, v1")
    A("s_lshl_b32 s45, s18, 1")
    A("v_add_u32 v10, s45, v10")
    A("v_and_b32 v11, 3, v10")
    A("v_lshrrev_b32 v10, 2, v10")
    A("v_lshl_add_u32 v10, v11, 3, v10")
    A("v_and_b32 v11, 7, v1")
    A("v_lshl_add_u32 v10, v11, 5, v10")
    A("s_lshl_b32 s45, s17, 2")
    A(f"s_add_u32 s45, s45, {WS_F}")
    A("v_lshlrev_b32 v10, 8, v10")
    A("v_add_u32 v10, s45, v10")
    p3_targets(12, 13, 1, "s17", 4)
    A("v_lshrrev_b32 v13, 4, v1")
    A("v_and_b32 v13, 1, v13")
    A("v_lshl_add_u32 v12, v13, 2, v12")
    A("s_lshl_b32 s45, s18, 3")
    A(f"s_add_u32 s45, s45, {WS_F + 128}")
    A("v_add_u32 v12, s45, v12")
    A("s_mov_b32 s33, s16")
    A("s_barrier")
    A("s_branch P2_helpers")
    A.label("P1_compute")
    if opts.get("code_pf", 1):
        A("s_getpc_b64 s[40:41]")
        A("v_and_b32 v20, 127, v0")
        A("v_lshlrev_b32 v20, 7, v20")
        A("v_min_u32 v20, L_done-P1_compute-64, v20")
        A("s_cmp_lt_u32 s19, 2")
        A("s_cbranch_scc0 P1_nopf")
        A("global_load_dword v21, v20, s[40:41]")
        A.label("P1_nopf")
    ST(0)
    A("v_lshrrev_b32 v15, 1, v14")
    A("v_and_b32 v16, 15, v1")
    A("v_lshl_add_u32 v17, v15, 6, v16")
    A("v_lshlrev_b32 v17, 7, v17")
    A("v_lshrrev_b32 v16, 1, v16")
    A("v_lshrrev_b32 v18, 4, v1")
    A("v_xor_b32 v16, v16, v18")
    A("v_lshl_add_u32 v2, v16, 4, v17")
    A("v_xor_b32 v3, 64, v2")
    A("v_lshrrev_b32 v16, 2, v1")
    A("v_and_b32 v16, 3, v16")
    A("v_lshl_add_u32 v17, v18, 3, v16")
    A("v_lshlrev_b32 v17, 7, v17")
    A("v_lshrrev_b32 v16, 1, v16")
    A("v_and_b32 v19, 1, v18")
    A("v_lshl_add_u32 v16, v19, 1, v16")
    A("v_and_b32 v19, 1, v14")
    A("v_lshlrev_b32 v19, 1, v19")
    A("v_xor_b32 v16, v16, v19")
    A("v_lshl_add_u32 v17, v16, 5, v17")
    A("v_and_b32 v16, 3, v1")
    A("v_lshl_add_u32 v4, v16, 3, v17")
    A("v_xor_b32 v5, 32, v4")
    A("v_lshlrev_b32 v1, 4, v1")
    ACC = 72; XF = 8; WF = [24, 48]
    AX, AW0, AW1 = 0, 6, 7
    for i in range(0, 96, 2): A(f"v_mov_b64 v[{ACC+i}:{ACC+i+1}], 0")
    A("s_and_b32 s36, s19, 1")
    A("s_lshl_b32 s37, s18, 1")
    A("s_add_u32 s36, s36, s37")
    A("s_lshl_b32 s36, s36, 6")
    A("s_lshl_b32 s37, s17, 3")
    A("s_add_u32 s36, s36, s37")
    A("s_lshr_b32 s37, s19, 1")
    A("s_lshl_b32 s37, s37, 1")
    A("s_add_u32 s36, s36, s37")
    A("s_lshl_b32 s64, s36, 11")
    A("s_add_u32 s65, s64, 2048")
    A("s_lshl_b32 s66, s36, 12")
    A(f"s_add_u32 s66, s66, {WS_KV}")
    A("s_add_u32 s67, s66, 4096")
    A("s_add_u32 s68, s66, 2048")
    A("s_add_u32 s69, s66, 6144")
    A(f"s_mov_b32 s42, {f32bits(QSCALE)}")
    A(f"s_mov_b32 s43, {f32bits(QSCALE)}")
    barpos = opts.get("barpos", 4)
    def xf(st): return XF + 4*st
    def wf(s, n6): return WF[s] + 4*n6
    def acc(st, n6): return ACC + (st*6+n6)*4
    def xrd(st): return ('rd', f"ds_read_b128 {vr(xf(st),4)}, v{AX} offset:{st*2048}", f"x{st}")
    def wrds(s):
        L = []
        for i in range(6):
            ty, nt = i >> 1, i & 1
            for half in range(2):
                L.append(('rd', f"ds_read_b64_tr_b16 {vr(wf(s,i)+2*half,2)}, v{AW0+nt} offset:{ty*4096+half*512}", f"w{s}_{i}"))
        return L
    def mf(s, st, n6):
        d = acc(st, n6)
        t = M16(d, wf(s,n6), xf(st), d) if n6 < 4 else M16(d, xf(st), wf(s,n6), d)
        needs = [f"x{st}", f"w{s}_{n6}"]
        if st == 0 and n6 == 0: needs = ["x0", "x1", "x2"] + [f"w{s}_{i}" for i in range(6)]
        return ('op', t, needs)
    def nextW():
        return [f"s_add_u32 s46, s46, {WSLOT}", f"s_cmp_eq_u32 s46, {WEND}", f"s_cselect_b32 s46, {WBASE}, s46",
                f"v_add_u32 v{AW0}, s46, v4", f"v_add_u32 v{AW1}, s46, v5"]
    A("s_mov_b32 s44, 0")
    A(f"s_mov_b32 s46, {WBASE}")
    A("s_mov_b32 s40, 16")
    A(f"v_mov_b32 v{AX}, v2")
    A(f"v_add_u32 v{AW0}, s46, v4")
    A(f"v_add_u32 v{AW1}, s46, v5")
    A("s_waitcnt lgkmcnt(0)")
    common_srds()
    A("s_waitcnt vmcnt(0)")
    A("s_barrier")
    ST(1)
    items = []
    for sub in range(2):
        s = sub
        ms = [mf(s, st, (q if st % 2 == 0 else 5 - q)) for st in range(4) for q in range(6)]
        wr = wrds(s ^ 1)
        gaps = [[] for _ in range(24)]
        start = 0 if sub == 0 else barpos
        pre = nextW()
        if sub == 0:
            pre += [f"v_add_u32 v{AX}, s44, v3"]
        else:
            pre += [f"s_add_u32 s44, s44, {XSLOT}", f"s_cmp_eq_u32 s44, {3*XSLOT}", "s_cselect_b32 s44, 0, s44", f"v_add_u32 v{AX}, s44, v2",
                    "s_sub_u32 s40, s40, 1"]
        for i, l in enumerate(pre): gaps[min(i // 3, 2 if sub == 0 else barpos - 1)].append(('raw', l))
        if sub == 1: gaps[barpos - 1].append(('all', "s_barrier"))
        g = max(start, 2)
        for r in wr:
            if g in (5, 11, 17): g += 1
            gaps[g].append(r); g += 1
        assert g <= 23, g
        for st in range(4): gaps[6*st+5].append(xrd(st))
        if sub == 1: gaps[22].append(('raw', "s_cmp_lg_u32 s40, 0"))
        for i in range(24):
            items.append(ms[i]); items += gaps[i]
    pro = [it for it in items if it[0] == 'rd'][-16:]
    assert sorted(set(t[2] for t in pro)) == sorted([f"x{i}" for i in range(4)] + [f"w0_{i}" for i in range(6)])
    for it in pro: A(it[1])
    body1, _ = schedule_waits(items, passes=1, init_queue=[t[2] for t in pro])
    A(".p2align 6")
    A.label("P1_loop")
    for l in body1: A(l)
    A("s_cbranch_scc1 P1_loop")
    A("s_waitcnt lgkmcnt(0)")
    ST(2)
    A("s_cmp_lg_u32 s16, 0")
    A("s_cbranch_scc1 P1_bepi")
    A("s_nop 2")
    n = 0
    def pk():
        nonlocal n
        p = 8 + (n % 16) * 4; n += 1
        return p
    for ty in (1, 2, 0):
        if ty < 2:
            for st in range(4):
                p = pk()
                for nt in range(2):
                    d = acc(st, 2*ty+nt)
                    if ty == 0:
                        for r in (0, 2): A(f"v_pk_mul_f32 v[{d+r}:{d+r+1}], v[{d+r}:{d+r+1}], s[42:43]")
                    A(f"v_cvt_pk_bf16_f32 v{p+2*nt}, v{d}, v{d+1}")
                    A(f"v_cvt_pk_bf16_f32 v{p+2*nt+1}, v{d+2}, v{d+3}")
                A(f"buffer_store_dwordx4 {vr(p,4)}, v1, s[12:15], s{64+2*ty+(st>>1)} offen offset:{(st&1)*1024}{SC}")
        else:
            ps = []
            for mt in range(2):
                for nt in range(2):
                    p = pk(); ps.append((p, mt, nt))
                    for u in range(2):
                        d = acc(2*mt+u, 4+nt)
                        A(f"v_cvt_pk_bf16_f32 v{p+2*u}, v{d}, v{d+1}")
                        A(f"v_cvt_pk_bf16_f32 v{p+2*u+1}, v{d+2}, v{d+3}")
            A("s_nop 1")
            for p, mt, nt in ps:
                A(f"v_permlane16_swap_b32 v{p}, v{p+2}")
                A(f"v_permlane16_swap_b32 v{p+1}, v{p+3}")
                A(f"buffer_store_dwordx4 {vr(p,4)}, v1, s[12:15], s{68+mt} offen offset:{nt*1024}{SC}")
    A("s_waitcnt vmcnt(0)")
    A("s_barrier")
    A.label("P2_compute")
    ST(3)

    NS = 6; STG = 16384; RING = NS * STG; BREG = RING; FLAGS = BREG + 16384; XCH = 0; HX = LDS_BYTES - 16384
    IDX = 4; ONES = 8; KF = 12; VF = 20; MX = [28, 29]; SA = 32; SB = 48
    Q = [64, 72]; L = [80, 84]; O = [96, 112]; NEGM = [128, 144]
    QB = 128; KBP = 136; KBC = 144; VBC = 152; VBP = 12; PK = 16; OB = O[1]; LB = L[1]
    def S32(d, a, b): return f"v_smfmac_f32_32x32x32_bf16 {vr(d,16)}, {vr(a,4)}, {vr(b,8)}, v{IDX}"
    def S16(d, a, b): return f"v_smfmac_f32_16x16x64_bf16 {vr(d,4)}, {vr(a,4)}, {vr(b,8)}, v{IDX}"
    def E(r): return f"v_exp_f32 v{r}, v{r}"
    def key_of(r, hb): return 8 * (r >> 2) + 4 * hb + (r & 3)
    def bmask(r, prev):
        m = 0
        for l in range(64):
            d = (l & 31) - key_of(r, l >> 5) + (32 if prev else 0)
            if 0 <= d <= 14 and d % 2 == 0: m |= 1 << l
        return m
    def rowmax(regs, dst, tmp):
        regs = list(regs)
        A(f"v_max3_f32 v{dst}, v{regs[0]}, v{regs[1]}, v{regs[2]}")
        i = 3
        while i + 1 < len(regs):
            A(f"v_max3_f32 v{dst}, v{regs[i]}, v{regs[i+1]}, v{dst}"); i += 2
        if i < len(regs): A(f"v_max_f32 v{dst}, v{regs[i]}, v{dst}")
        A(f"v_mov_b32 v{tmp}, v{dst}")
        A("s_nop 1")
        A(f"v_permlane32_swap_b32 v{dst}, v{tmp}")
        A("s_nop 1")
        A(f"v_max_f32 v{dst}, v{dst}, v{tmp}")
    def read_flags(r):
        A(f"v_mov_b32 v7, {FLAGS}")
        A(f"ds_read_b128 {vr(r,4)}, v7")
        A(f"ds_read_b128 {vr(r+4,4)}, v7 offset:16")
    def or_flags(r, sdst):
        A(f"v_or3_b32 v{r}, v{r}, v{r+4}, v{r+5}")
        A(f"v_or3_b32 v{r}, v{r}, v{r+6}, v{r+7}")
        A(f"v_or3_b32 v{r}, v{r}, v{r+1}, v{r+2}")
        A(f"v_or_b32 v{r}, v{r}, v{r+3}")
        A("s_nop 0")
        A(f"v_readfirstlane_b32 s{sdst}, v{r}")
    def p2_ids():
        A("s_and_b32 s16, s35, 3")
        A("s_lshl_b32 s36, s34, 2")
        A("s_add_u32 s16, s16, s36")
        A("s_lshr_b32 s17, s35, 2")
        A("s_lshl_b32 s36, s16, 18")
        A(f"s_add_u32 s36, s36, {WS_KV}")
        A(f"s_add_u32 s4, s{P_WS}, s36")
        A(f"s_addc_u32 s5, s{P_WS+1}, 0")
        A("s_mov_b32 s6, 0x40000")
        A("s_mov_b32 s24, 0")
    p2_ids()
    A("v_lshrrev_b32 v6, 4, v1")
    A("s_lshr_b32 s18, s19, 2")
    A("s_and_b32 s20, s19, 3")
    A("s_lshl_b32 s20, s20, 1")
    A("s_add_u32 s20, s20, s18")
    A("s_lshl_b32 s26, s17, 3")
    A("s_add_u32 s26, s26, s20")
    A("s_lshl_b32 s39, s18, 13")
    A("v_and_b32 v31, 15, v6")
    A("v_lshlrev_b32 v31, 4, v31")
    A("v_and_b32 v5, 16, v6")
    A("v_lshl_add_u32 v31, v5, 6, v31")
    A("v_and_b32 v5, 32, v6")
    A("v_lshl_add_u32 v31, v5, 4, v31")
    A("s_lshl_b32 s31, s26, 5")
    A("s_add_u32 s31, s31, s16")
    A("s_lshl_b32 s31, s31, 11")
    A(f"s_add_u32 s31, s31, {WS_O}")
    A(f"v_mov_b32 v{IDX}, 0xdddd")
    A("v_and_b32 v5, 4, v6")
    A("v_cmp_eq_u32 vcc, 0, v5")
    A("v_mov_b32 v7, 0x3f803f80")
    A("v_add_u32 v30, s39, v31")
    A(f"v_cndmask_b32 v{ONES}, 0, v7, vcc")
    A(f"v_cndmask_b32 v{ONES+1}, 0, v7, vcc")
    A(f"v_sub_u32 v{ONES+2}, v7, v{ONES}")
    A(f"v_mov_b32 v{ONES+3}, v{ONES+2}")
    A("s_lshl_b32 s27, s20, 11")
    A(f"s_add_u32 s27, s27, {BREG}")
    A("v_add_u32 v5, s27, v31")
    A("v_xor_b32 v6, 2048, v5")
    A.label("P2_restart")
    for x in range(2):
        for i in range(0, 16, 2): A(f"v_mov_b64 v[{O[x]+i}:{O[x]+i+1}], 0")
        for i in range(0, 4, 2): A(f"v_mov_b64 v[{L[x]+i}:{L[x]+i+1}], 0")
    A("v_mov_b32 v2, v30")
    A(f"s_mov_b32 s25, {STG}")
    A(f"v_add_u32 v3, {STG}, v30")
    A("s_mov_b32 s23, 16")
    A("s_waitcnt vmcnt(0)")
    A("s_barrier")
    ST(4)
    SX = [SA, SB]
    A("s_cmp_lg_u32 s24, 0")
    A("s_cbranch_scc1 P2_main")
    A(f"ds_read_b128 {vr(VF,4)}, v31 offset:0")
    for x in range(2): A(f"ds_read_b128 {vr(Q[x],4)}, v{5+x}")
    A(f"ds_read_b128 {vr(VF+4,4)}, v31 offset:256")
    for x in range(2): A(f"ds_read_b128 {vr(Q[x]+4,4)}, v{5+x} offset:256")
    A("s_waitcnt lgkmcnt(3)")
    for x in range(2): A(M32(SX[x], VF, Q[x], None))
    A("s_waitcnt lgkmcnt(0)")
    for x in range(2): A(M32(SX[x], VF+4, Q[x]+4, SX[x]))
    A("s_nop 7")
    A("s_nop 2")
    for x in range(2): rowmax(range(SX[x], SX[x]+16), MX[x], 6)
    A.label("P2_main")
    A(f"ds_read_b128 {vr(KF,4)}, v2 offset:0")
    A(f"ds_read_b128 {vr(KF+4,4)}, v2 offset:256")
    A(f"ds_read_b128 {vr(VF,4)}, v2 offset:2048")
    def negm(x):
        A(f"v_sub_f32 v{NEGM[x]}, 0, v{MX[x]}")
        A(f"v_sub_f32 v{NEGM[x]+1}, 0, v{MX[x]}")
        for i in range(2, 16, 2): A(f"v_mov_b64 v[{NEGM[x]+i}:{NEGM[x]+i+1}], v[{NEGM[x]}:{NEGM[x]+1}]")
    negm(0)
    for i in (0, 2): A(f"v_mov_b64 v[{VF+4+i}:{VF+5+i}], 0")
    A("s_waitcnt lgkmcnt(1)")
    A(M32(SA, KF, Q[0], NEGM[0]))
    A(M32(SA, KF+4, Q[0]+4, SA))
    negm(1)
    for i in range(0, 8, 2): A(f"v_mov_b64 v[{SB+8+i}:{SB+9+i}], 0")
    A(E(SA))
    A(".p2align 6")
    A.label("P2_loop")
    def rd(dst, tile, off):
        a, t = ("v2", tile) if tile < 2 else ("v3", tile - 2)
        return f"ds_read_b128 {vr(dst,4)}, {a} offset:{t*4096+off}"
    for u in range(4):
        cur, nxt = (SA, SB) if u % 2 == 0 else (SB, SA)
        i = u // 2; xc = u % 2; xp = xn = xc ^ 1
        if xc == 0:
            w_pv1 = w_qka = w_qkb = None; w_pv0 = 3
            r_pv1 = [rd(VF+4, i, 2304)]; r_qka = [rd(KF, i+1, 0)]; r_qkb = [rd(KF+4, i+1, 256)]; r_pv0 = []
        else:
            w_pv1, w_qka, w_qkb, w_pv0 = 2, 1, 0, None
            r_pv1 = r_qka = r_qkb = []; r_pv0 = [rd(VF, i+1, 2048)]
        bar = (u == 1)
        last = (u == 3)
        def W(n):
            if n is not None: A(f"s_waitcnt lgkmcnt({n})")
        if w_pv1 is None: A("s_nop 0")
        W(w_pv1)
        A(S32(O[xp], VF+4, nxt+8))
        for l in r_pv1: A(l)
        A(E(cur+1)); A(E(cur+2)); A(E(cur+3))
        A(S16(L[xp], ONES, nxt+8))
        A(E(cur+4)); A(E(cur+5))
        W(w_qka)
        A(M32(nxt, KF, Q[xn], NEGM[xn]))
        for l in r_qka: A(l)
        A(E(cur+6)); A(E(cur+7)); A(E(cur+8))
        W(w_qkb)
        A(M32(nxt, KF+4, Q[xn]+4, nxt))
        if bar: A("s_barrier")
        for l in r_qkb: A(l)
        A(E(cur+9)); A(E(cur+10)); A(E(cur+11))
        W(w_pv0)
        A(S32(O[xc], VF, cur))
        for l in r_pv0: A(l)
        A(E(cur+12))
        if last: A(f"s_add_u32 s25, s25, {STG}")
        A(E(cur+13))
        if last: A(f"s_cmp_eq_u32 s25, {RING}")
        A(E(cur+14))
        if last: A("s_cselect_b32 s25, 0, s25")
        A(S16(L[xc], ONES, cur))
        if last:
            A("s_sub_u32 s23, s23, 1")
            A("v_mov_b32 v2, v3")
            A("v_add_u32 v3, s25, v30")
            A("s_cmp_lg_u32 s23, 0")
        else: A("s_nop 0")
        A(E(cur+15)); A(E(nxt))
        if last: A("s_cbranch_scc1 P2_loop")
    A("s_waitcnt lgkmcnt(0)")
    A(S32(O[1], VF+4, SB+8))
    A(S16(L[1], ONES, SB+8))
    ST(5)
    A(f"s_mov_b32 s44, {f32bits(2.0**56)}")
    A("s_mul_i32 s36, s19, 5120")
    A("v_add_u32 v7, s36, v1")
    A(f"v_mul_f32 v5, s44, v{L[0]}")
    for i in range(0, 16, 2): A(f"v_maximum3_f32 v5, |v{O[0]+i}|, |v{O[0]+i+1}|, v5")
    A(f"s_mov_b32 s45, {f32bits(2.0**120)}")
    for i in range(4): A(f"ds_write_b128 v7, {vr(O[1]+4*i,4)} offset:{XCH+1024*i}")
    A(f"ds_write_b32 v7, v{L[1]} offset:{XCH+4096}")
    A(f"v_mul_f32 v6, s44, v{L[1]}")
    for i in range(0, 16, 2): A(f"v_maximum3_f32 v6, |v{O[1]+i}|, |v{O[1]+i+1}|, v6")
    A("v_maximum3_f32 v5, v5, v6, v6")
    A("s_lshl_b32 s36, s19, 2")
    A(f"s_add_u32 s36, s36, {FLAGS}")
    A("v_cmp_ngt_f32 vcc, s45, v5")
    A("v_mov_b32 v7, s36")
    A("s_xor_b32 s36, s19, 4")
    A("s_mul_i32 s36, s36, 5120")
    A("v_add_u32 v3, s36, v1")
    if opts.get("force_fb"): A("s_mov_b64 vcc, -1")
    A("s_cmp_lg_u64 vcc, 0")
    A("s_cselect_b32 s44, 1, 0")
    A("v_mov_b32 v6, s44")
    A("ds_write_b32 v7, v6")
    A("s_waitcnt lgkmcnt(0)")
    A("s_barrier")
    A(f"ds_read_b32 v5, v3 offset:{XCH+4096}")
    for i in range(4): A(f"ds_read_b128 {vr(SA+4*i,4)}, v3 offset:{XCH+1024*i}")
    read_flags(SB)
    A("s_waitcnt lgkmcnt(2)")
    A(f"v_add_f32 v6, v5, v{L[0]}")
    A("v_rcp_f32 v6, v6")
    for i in range(0, 16, 2): A(f"v_pk_add_f32 v[{O[0]+i}:{O[0]+i+1}], v[{SA+i}:{SA+i+1}], v[{O[0]+i}:{O[0]+i+1}]")
    for i in range(0, 16, 2): A(f"v_pk_mul_f32 v[{O[0]+i}:{O[0]+i+1}], v[{O[0]+i}:{O[0]+i+1}], v[6:7] op_sel_hi:[1,0]")
    for i in range(8): A(f"v_cvt_pk_bf16_f32 v{SA+i}, v{O[0]+2*i}, v{O[0]+2*i+1}")
    for m in range(2):
        A(f"buffer_store_dwordx4 {vr(SA+4*m,4)}, v1, s[12:15], s31 offen offset:{1024*m}{SC}")
    A("s_cmp_lg_u32 s24, 0")
    A("s_cbranch_scc1 P2_fin")
    A("s_waitcnt lgkmcnt(0)")
    or_flags(SB, 44)
    A("s_nop 3")
    A("s_cmp_eq_u32 s44, 0")
    A("s_cbranch_scc0 P2_fallback")
    A.label("P2_fin")
    ST(6)
    A("s_waitcnt vmcnt(0)")
    A("s_barrier")
    ST(7)
    A("s_cmp_gt_u32 s19, 4")
    A("s_cbranch_scc1 L_done")

    NO = opts.get("no", 4); NW = 10 - NO; S3 = 16384; W3 = NO * S3
    def p3_ids():
        A("s_lshr_b32 s16, s34, 2")
        A("s_and_b32 s17, s34, 1")
        A("s_lshl_b32 s17, s17, 3")
        A("s_and_b32 s36, s35, 7")
        A("s_add_u32 s17, s17, s36")
        A("s_lshr_b32 s18, s34, 1")
        A("s_and_b32 s18, s18, 1")
        A("s_lshl_b32 s18, s18, 2")
        A("s_lshr_b32 s36, s35, 3")
        A("s_add_u32 s18, s18, s36")
    p3_ids()
    A("s_cmp_eq_u32 s19, 4")
    A("s_cbranch_scc1 P3_oload")
    A("v_lshrrev_b32 v1, 4, v1")
    A("s_lshr_b32 s36, s19, 1")
    A("s_and_b32 s37, s19, 1")
    A("v_lshrrev_b32 v18, 4, v1")
    A("v_and_b32 v17, 15, v1")
    A("v_lshlrev_b32 v2, 4, v17")
    A("v_lshl_add_u32 v2, v18, 9, v2")
    A("s_lshl_b32 s38, s36, 13")
    A("v_add_u32 v2, s38, v2")
    A("v_lshrrev_b32 v19, 2, v1")
    A("v_and_b32 v19, 7, v19")
    A("v_lshrrev_b32 v20, 5, v1")
    A("v_lshl_add_u32 v20, v20, 4, v19")
    A("v_lshlrev_b32 v20, 8, v20")
    A("s_lshl_b32 s38, s37, 2")
    A("v_xor_b32 v21, s38, v19")
    A("v_lshl_add_u32 v20, v21, 5, v20")
    A("v_and_b32 v21, 3, v1")
    A("v_lshl_add_u32 v3, v21, 3, v20")
    for a in range(1, 4): A(f"v_xor_b32 v{3+a}, {32*a}, v3")
    ACC3 = 88; FS = [24, 56]; AO = 8; AW = 9
    for i in range(0, 64, 2): A(f"v_mov_b64 v[{ACC3+i}:{ACC3+i+1}], 0")
    for i in range(0, 32, 2): A(f"v_mov_b64 v[{FS[1]+i}:{FS[1]+i+1}], 0")
    A("v_lshlrev_b32 v22, 12, v17")
    A("v_and_b32 v21, 1, v18")
    A("v_lshl_add_u32 v22, v21, 5, v22")
    A("v_lshrrev_b32 v21, 1, v18")
    A("v_lshl_add_u32 v22, v21, 4, v22")
    A("s_lshl_b32 s38, s17, 7")
    A("s_lshl_b32 s36, s36, 6")
    A("s_add_u32 s36, s36, s38")
    A("s_lshl_b32 s36, s36, 12")
    A("s_lshl_b32 s38, s16, 11")
    A("s_add_u32 s36, s36, s38")
    A("s_lshl_b32 s38, s18, 8")
    A("s_add_u32 s36, s36, s38")
    A("s_lshl_b32 s37, s37, 7")
    A("s_add_u32 s40, s36, s37")
    for st in range(1, 4): A(f"s_add_u32 s{40+st}, s40, {st*16*4096}")
    A(f"s_mov_b32 s8, s{P_OUT}")
    A(f"s_mov_b32 s9, s{P_OUT+1}")
    A(f"s_mov_b32 s10, {2048*4096}")
    def of(s, st): return FS[s] + 4*st
    def wf3(s, a): return FS[s] + 16 + 4*a
    def acc3(st, a): return ACC3 + (st*4+a)*4
    def rd_items(hh, s):
        L_ = [('rd', f"ds_read_b128 {vr(of(s,0),4)}, v{AO} offset:{hh*2048}", f"o{s}_0")]
        for i in range(4):
            for half in range(2):
                L_.append(('rd', f"ds_read_b64_tr_b16 {vr(wf3(s,i)+2*half,2)}, v{AW+i} offset:{hh*8192+half*2048}", f"w{s}_{i}"))
        for i in range(1, 4):
            L_.append(('rd', f"ds_read_b128 {vr(of(s,i),4)}, v{AO} offset:{(i>>1)*4096+hh*2048+(i&1)*256}", f"o{s}_{i}"))
        return L_
    def mf_items(s):
        L_ = []
        for st in range(4):
            for a in (range(4) if st % 2 == 0 else range(3, -1, -1)):
                needs = [f"o{s}_{st}", f"w{s}_{a}"]
                if st == 0 and a == 0: needs += [f"w{s}_{i}" for i in range(4)] + [f"o{s}_{i}" for i in range(4)]
                L_.append(('op', M16(acc3(st, a), wf3(s, a), of(s, st), acc3(st, a)), needs))
        return L_
    upd = [f"s_add_u32 s23, s23, {S3}", f"s_cmp_eq_u32 s23, {W3}", "s_cselect_b32 s23, 0, s23", f"v_add_u32 v{AO}, s23, v2",
           f"s_add_u32 s22, s22, {S3}", f"s_cmp_eq_u32 s22, {LDS_BYTES}", f"s_cselect_b32 s22, {W3}, s22", "s_sub_u32 s38, s38, 1"] + \
          [f"v_add_u32 v{AW+a}, s22, v{3+a}" for a in range(4)] + ["s_cmp_lg_u32 s38, 0"]
    upd = [('raw', u) for u in upd]
    items = [('all', "s_barrier")] + interleave(mf_items(1), rd_items(0, 0), [2] * 16)
    items += interleave(mf_items(0), rd_items(1, 1) + upd, [2] * 16)
    body, _ = schedule_waits(items, passes=2)
    A("s_mov_b32 s23, 0")
    A(f"s_mov_b32 s22, {W3}")
    A("s_mov_b32 s38, 16")
    A(f"v_mov_b32 v{AO}, v2")
    for a in range(4): A(f"v_add_u32 v{AW+a}, s22, v{3+a}")
    if stamp:
        A("s_barrier"); ST(8); A("s_branch P3_first")
    A(".p2align 6")
    A.label("P3_loop")
    for i, l in enumerate(body):
        A(l)
        if l == "s_barrier" and stamp: A.label("P3_first")
    A("s_cbranch_scc1 P3_loop")
    A("s_waitcnt lgkmcnt(0)")
    for it in mf_items(1): A(it[1])
    ST(9)
    n = 0
    for st in range(4):
        for pr in range(2):
            p = 24 + n * 4; n += 1
            for u in range(2):
                d = acc3(st, 2*pr+u)
                A(f"v_cvt_pk_bf16_f32 v{p+2*u}, v{d}, v{d+1}")
                A(f"v_cvt_pk_bf16_f32 v{p+2*u+1}, v{d+2}, v{d+3}")
        A("s_nop 1")
        for pr in range(2):
            p = 24 + (n - 2 + pr) * 4
            A(f"v_permlane16_swap_b32 v{p}, v{p+2}")
            A(f"v_permlane16_swap_b32 v{p+1}, v{p+3}")
            A(f"buffer_store_dwordx4 {vr(p,4)}, v22, s[8:11], s{40+st} offen offset:{pr*64}{SC}")
    if opts.get("padto"):
        A("s_waitcnt vmcnt(0)")
        A(f"s_mov_b32 s37, {opts['padto']}")
        if opts.get("padmin"):
            A("buffer_load_dword v3, off, s[72:75], 0 offset:32 sc1")
            A("s_waitcnt vmcnt(0)")
            A("v_readfirstlane_b32 s98, v3")
            A("s_nop 3")
            A("s_not_b32 s98, s98")
        if opts.get("probe") is not None:
            ST(10)
            A(f"s_sub_u32 s37, s{50+opts['probe']}, s98")
            A(f"s_add_u32 s37, s37, {opts['padto']}")
        A.label("L_pad")
        A("s_memrealtime s[100:101]")
        A("s_waitcnt lgkmcnt(0)")
        A("s_sub_u32 s36, s100, s98")
        A("s_cmp_lt_u32 s36, s37")
        A("s_cbranch_scc1 L_pad")
        if opts.get("probe") is not None: A("s_endpgm")
    if stamp:
        A("s_waitcnt vmcnt(0)")
        ST(10)
        if opts.get("dbgout") is not None:
            A(f"s_cmp_lg_u32 s2, {opts['dbgout']}")
            A("s_cbranch_scc1 L_nodbg")
            A("s_cmp_lg_u32 s19, 0")
            A("s_cbranch_scc1 L_nodbg")
            for i in range(1, 11):
                A(f"s_sub_u32 s36, s{50+i}, s50")
                A("v_mov_b32 v3, s36")
                A(f"buffer_store_dword v3, off, s[72:75], 0 offset:{4*i}")
            A.label("L_nodbg")
        A("s_lshl_b32 s36, s2, 2")
        A("s_add_u32 s36, s36, s19")
        A("s_lshl_b32 s36, s36, 6")
        A(f"s_add_u32 s36, s36, {64<<20}")
        A("s_mov_b32 s14, 0x8000000")
        for i in range(12):
            A(f"v_mov_b32 v3, s{50+i}")
            A(f"buffer_store_dword v3, off, s[12:15], s36 offset:{4*i}")
    A("s_endpgm")
    def ring_loader(tag, nslots, base, issue, pre):
        A(f"s_mov_b32 s23, {base}")
        A("s_mov_b32 s38, 0")
        A.label(f"{tag}_go2")
        issue()
        A("s_add_u32 s38, s38, 1")
        A(f"s_add_u32 s23, s23, {S3}")
        A(f"s_cmp_eq_u32 s23, {base + nslots*S3}")
        A(f"s_cselect_b32 s23, {base}, s23")
        A(f"s_cmp_eq_u32 s38, {pre}")
        A(f"s_cbranch_scc0 {tag}_l1")
        A(f"s_waitcnt vmcnt({min(63, 16*(pre-1))})")
        A("s_barrier")
        A.label(f"{tag}_l1")
        A(f"s_cmp_lt_u32 s38, {nslots}")
        A(f"s_cbranch_scc1 {tag}_go2")
        A(f"s_waitcnt vmcnt({min(63, 16*(nslots-2))})")
        A("s_barrier")
        A("s_cmp_lt_u32 s38, 16")
        A(f"s_cbranch_scc1 {tag}_go2")
        for j in range(nslots - 2):
            A(f"s_waitcnt vmcnt({min(63, 16*(nslots-3-j))})")
            A("s_barrier")
        if stamp and opts.get("probe") is None:
            A("s_lshl_b32 s36, s2, 1")
            A("s_lshr_b32 s37, s19, 3")
            A("s_add_u32 s36, s36, s37")
            A("s_lshl_b32 s36, s36, 6")
            A(f"s_add_u32 s36, s36, {65<<20}")
            A("s_mov_b32 s14, 0x8000000")
            for i in range(3):
                A(f"v_mov_b32 v3, s{50+i}")
                A(f"buffer_store_dword v3, off, s[12:15], s36 offset:{4*i}")
        A("s_endpgm")
    A.label("P3_oload")
    A("s_lshl_b32 s36, s16, 22")
    A("s_lshl_b32 s37, s17, 18")
    A("s_add_u32 s36, s36, s37")
    A(f"s_add_u32 s36, s36, {WS_O}")
    A(f"s_add_u32 s4, s{P_WS}, s36")
    A(f"s_addc_u32 s5, s{P_WS+1}, 0")
    A("s_mov_b32 s6, 0x40000")
    A("s_lshl_b32 s21, s34, 13")
    poll("P3_o", 128, 32, 2)
    def o_issue():
        for t in range(4):
            A(f"s_add_u32 m0, s23, {t*4096}")
            A(f"s_add_u32 s20, s21, {t*65536}")
            for i in range(4): A(f"buffer_load_dwordx4 v1, s[4:7], s20 offen offset:{1024*i}{LD} lds")
        A("s_add_u32 s21, s21, 4096")
        A("s_and_b32 s21, s21, 0xffff")
    ring_loader("P3_o", NO, 0, o_issue, opts.get("opre", 2))


    A.label("P1_bepi")
    def QP(st): return 8 + 4*st
    def KP(st): return 28 + 4*st
    def VW(nt, st): return 46 + 10*nt + 2*st
    MC, MP, ON = 64, 68, 2
    def SS(st): return 72 + 8*st
    def PB(st): return 104 + 4*st
    def OT(st, nt): return 120 + 8*st + 4*nt
    def LR(st): return 152 + 4*st
    def cv(d, a): A(f"v_cvt_pk_bf16_f32 v{d}, v{a}, v{a+1}")
    A("s_lshl_b32 s36, s19, 11")
    A(f"s_add_u32 s36, s36, {HX}")
    A("v_add_u32 v6, s36, v1")
    for st in (3, 0, 1, 2):
        for nt in range(2):
            cv(KP(st)+2*nt, acc(st, 2+nt)); cv(KP(st)+2*nt+1, acc(st, 2+nt)+2)
            cv(VW(nt, st), acc(st, 4+nt)); cv(VW(nt, st)+1, acc(st, 4+nt)+2)
        if st == 3:
            A(f"ds_write_b128 v6, {vr(KP(3),4)}")
            A(f"ds_write_b64 v6, {vr(VW(0,3),2)} offset:1024")
            A(f"ds_write_b64 v6, {vr(VW(1,3),2)} offset:1032")
            A("s_lshl_b32 s36, s18, 3")
            A("s_add_u32 s36, s36, s17")
            A("s_lshl_b32 s36, s36, 1")
            A("s_and_b32 s37, s19, 1")
            A("s_add_u32 s36, s36, s37")
            A("s_lshl_b32 s36, s36, 11")
            A(f"s_add_u32 s36, s36, {WS_H}")
            A("s_cmp_lt_u32 s19, 6")
            A("s_cbranch_scc1 P1_b1")
            A(f"buffer_store_dwordx4 {vr(KP(3),4)}, v1, s[12:15], s36 offen{SC}")
            A(f"buffer_store_dwordx2 {vr(VW(0,3),2)}, v1, s[12:15], s36 offen offset:1024{SC}")
            A(f"buffer_store_dwordx2 {vr(VW(1,3),2)}, v1, s[12:15], s36 offen offset:1032{SC}")
            A.label("P1_b1")
    A("s_waitcnt lgkmcnt(0)")
    A("s_barrier")
    A("v_subrev_u32 v6, 4096, v6")
    A(f"ds_read_b128 {vr(KP(-1),4)}, v6")
    A(f"ds_read_b64 {vr(VW(0,-1),2)}, v6 offset:1024")
    A(f"ds_read_b64 {vr(VW(1,-1),2)}, v6 offset:1032")
    for st in range(4):
        for nt in range(2):
            d = acc(st, nt)
            for r in (0, 2): A(f"v_pk_mul_f32 v[{d+r}:{d+r+1}], v[{d+r}:{d+r+1}], s[42:43]")
            cv(QP(st)+2*nt, d); cv(QP(st)+2*nt+1, d+2)
    A("s_cmp_lt_u32 s19, 6")
    A("s_cbranch_scc1 P1_b2")
    A("s_cmp_eq_u32 s17, 7")
    A("s_cbranch_scc1 P1_b2")
    A("s_add_u32 s38, s17, 1")
    A("s_lshr_b32 s39, s38, 2")
    A("s_and_b32 s38, s38, 3")
    A("s_lshl_b32 s38, s38, 3")
    A("s_add_u32 s38, s38, s39")
    A("s_and_b32 s39, s2, -26")
    A("s_add_u32 s38, s38, s39")
    A("s_lshl_b32 s38, s38, 8")
    A("s_lshl_b32 s39, s37, 2")
    A("s_add_u32 s38, s38, s39")
    A(f"s_add_u32 s38, s38, {WS_F + 32}")
    A("v_mov_b32 v7, 1")
    A("s_waitcnt vmcnt(0)")
    A("s_mov_b64 exec, 1")
    A("buffer_store_dword v7, off, s[12:15], s38 sc1")
    A("s_mov_b64 exec, -1")
    A.label("P1_b2")
    A("v_mov_b32 v7, 0xff800000")
    for prev in range(2):
        for r in range(4):
            m = 0
            for l in range(64):
                dl = (l & 15) - (4 * (l >> 4) + r) + 16 * prev
                if 0 <= dl <= 14 and dl % 2 == 0: m |= 1 << l
            A(f"s_mov_b32 s40, {m & 0xffffffff}")
            A(f"s_mov_b32 s41, {m >> 32}")
            A(f"v_cndmask_b32 v{(MP if prev else MC)+r}, v7, 0, s[40:41]")
    for r in range(4): A(f"v_mov_b32 v{ON+r}, 0x3f803f80")
    A("v_and_b32 v0, 0xf0, v1")
    A("v_and_b32 v6, 0x300, v1")
    A("v_lshl_add_u32 v0, v6, 1, v0")
    A("s_lshl_b32 s38, s17, 3")
    A("s_and_b32 s39, s19, 6")
    A("s_add_u32 s38, s38, s39")
    A("s_lshl_b32 s38, s38, 5")
    A("s_lshl_b32 s39, s18, 1")
    A("s_add_u32 s38, s38, s39")
    A("s_add_u32 s38, s38, s37")
    A("s_lshl_b32 s38, s38, 11")
    A(f"s_add_u32 s38, s38, {WS_O + (4 << 20)}")
    A("s_add_u32 s39, s38, 65536")
    def btiles(T):
        k = len(T)
        def pad(n):
            if n - (k - 1) > 0: A(f"s_nop {n - (k - 1) - 1}")
        for st in T:
            A(M16(SS(st), KP(st-1), QP(st), MP))
            A(M16(SS(st)+4, KP(st), QP(st), MC))
        A("s_nop 7")
        for i in range(4):
            for st in T:
                b_ = SS(st); m = LR(st)
                if i == 0: A(f"v_max3_f32 v{m}, v{b_}, v{b_+1}, v{b_+2}")
                elif i < 3: A(f"v_max3_f32 v{m}, v{b_+2*i+1}, v{b_+2*i+2}, v{m}")
                else: A(f"v_max_f32 v{m}, v{b_+7}, v{m}")
        for sw in ("v_permlane32_swap_b32", "v_permlane16_swap_b32"):
            for st in T: A(f"v_mov_b32 v{LR(st)+1}, v{LR(st)}")
            pad(2)
            for st in T: A(f"{sw} v{LR(st)}, v{LR(st)+1}")
            pad(2)
            for st in T: A(f"v_max_f32 v{LR(st)}, v{LR(st)}, v{LR(st)+1}")
        for st in T:
            for r in range(0, 8, 2):
                b_ = SS(st) + r
                A(f"v_pk_add_f32 v[{b_}:{b_+1}], v[{b_}:{b_+1}], v[{LR(st)}:{LR(st)+1}] op_sel_hi:[1,0] neg_lo:[0,1] neg_hi:[0,1]")
        for st in T:
            for r in range(8): A(f"v_exp_f32 v{SS(st)+r}, v{SS(st)+r}")
        A("s_nop 0")
        for st in T:
            for r in range(4): cv(PB(st)+r, SS(st)+2*r)
        A("s_nop 1")
        for st in T:
            A(M16(LR(st), ON, PB(st), None))
            for nt in range(2): A(M16(OT(st, nt), VW(nt, st-1), PB(st), None))
        A("s_nop 7")
        for st in T: A(f"v_rcp_f32 v{LR(st)}, v{LR(st)}")
        A("s_nop 0")
        for st in T:
            for r in range(0, 8, 2):
                b_ = OT(st, 0) + r
                A(f"v_pk_mul_f32 v[{b_}:{b_+1}], v[{b_}:{b_+1}], v[{LR(st)}:{LR(st)+1}] op_sel_hi:[1,0]")
            for r in range(4): cv(SS(st)+r, OT(st, 0)+2*r)
            A(f"buffer_store_dwordx4 {vr(SS(st),4)}, v0, s[12:15], s{38+(st>>1)} offen offset:{(st&1)*256}{SC}")
    btiles([1, 2, 3])
    A("s_waitcnt lgkmcnt(0)")
    A("s_cmp_gt_u32 s19, 1")
    A("s_cbranch_scc1 P1_b4")
    A("s_cmp_lg_u32 s17, 0")
    A("s_cbranch_scc1 P1_b3")
    for r in range(4): A(f"v_mov_b32 v{MP+r}, v7")
    for r in range(4): A(f"v_mov_b32 v{KP(-1)+r}, 0")
    for nt in range(2): A(f"v_mov_b64 {vr(VW(nt,-1),2)}, 0")
    A("s_branch P1_b4")
    A.label("P1_b3")
    A(f"s_mov_b32 s47, {opts.get('poll_max', 30000)}")
    A("s_lshl_b32 s46, s2, 8")
    A("s_lshl_b32 s40, s37, 2")
    A("s_add_u32 s46, s46, s40")
    A(f"s_add_u32 s46, s46, {WS_F + 32}")
    A.label("P1_bpoll")
    A("buffer_load_dword v6, off, s[12:15], s46 sc1")
    A("s_sub_u32 s47, s47, 1")
    A("s_waitcnt vmcnt(0)")
    A("v_cmp_eq_u32 vcc, 0, v6")
    A("s_cmp_eq_u32 s47, 0")
    A("s_cbranch_scc1 P1_bgo")
    A("s_cmp_eq_u64 vcc, 0")
    A("s_cbranch_scc0 P1_bpoll")
    A.label("P1_bgo")
    A("s_sub_u32 s36, s36, 4096")
    A(f"buffer_load_dwordx4 {vr(KP(-1),4)}, v1, s[12:15], s36 offen sc1")
    A(f"buffer_load_dwordx2 {vr(VW(0,-1),2)}, v1, s[12:15], s36 offen offset:1024 sc1")
    A(f"buffer_load_dwordx2 {vr(VW(1,-1),2)}, v1, s[12:15], s36 offen offset:1032 sc1")
    A("s_waitcnt vmcnt(0)")
    A.label("P1_b4")
    A("s_nop 1")
    btiles([0])
    A("s_nop 1")
    A("s_branch P2_compute")

    A.label("P2_fallback")
    A("s_mov_b32 s24, 1")
    for x in range(2): A(f"v_mov_b32 v{MX[x]}, 0xff800000")
    A("s_mov_b32 s21, 0")
    A.label("P2_maxloop")
    A(f"buffer_load_dwordx4 {vr(KF,4)}, v31, s[4:7], s21 offen{LD}")
    A(f"buffer_load_dwordx4 {vr(KF+4,4)}, v31, s[4:7], s21 offen offset:256{LD}")
    A("s_waitcnt vmcnt(0)")
    for x in range(2): A(M32(SX[x], KF, Q[x], None))
    for x in range(2): A(M32(SX[x], KF+4, Q[x]+4, SX[x]))
    A("s_nop 7")
    A("s_nop 3")
    for x in range(2):
        for i in range(8): A(f"v_max3_f32 v{MX[x]}, v{SX[x]+2*i}, v{SX[x]+2*i+1}, v{MX[x]}")
    A("s_add_u32 s21, s21, 4096")
    A("s_cmp_lt_u32 s21, 0x40000")
    A("s_cbranch_scc1 P2_maxloop")
    for x in range(2):
        A(f"v_mov_b32 v6, v{MX[x]}")
        A("s_nop 1")
        A(f"v_permlane32_swap_b32 v{MX[x]}, v6")
        A("s_nop 1")
        A(f"v_max_f32 v{MX[x]}, v{MX[x]}, v6")
    A("s_barrier")
    A("s_branch P2_restart")

    A.label("P2_helpers")
    p2_ids()
    A("v_lshlrev_b32 v1, 4, v1")
    A("s_lshl_b32 s26, s16, 6")
    A("s_lshl_b32 s27, s17, 3")
    A("s_add_u32 s26, s26, s27")
    A("v_lshrrev_b32 v41, 4, v1")
    p3_targets(40, 42, 41, "s17", 0)
    A("s_lshl_b32 s40, s16, 2")
    A(f"s_add_u32 s40, s40, {WS_F + 128}")
    A("v_add_u32 v40, s40, v40")
    A("s_cmp_eq_u32 s19, 9")
    A("s_cbranch_scc1 P2_aux")
    A("s_lshl_b32 s27, s26, 11")
    A("s_barrier")
    poll("P2_k", 0, 8, 2)
    A.label("P2_lstart")
    def l_stage():
        for g in range(4):
            A(f"s_add_u32 m0, s22, {g * 4096}")
            A(f"s_add_u32 s20, s21, {(g >> 1) * 131072 + (g & 1) * 4096}")
            for i in range(4):
                A(f"buffer_load_dwordx4 v1, s[4:7], s20 offen offset:{1024*i}{LD} lds")
        A("s_add_u32 s21, s21, 8192")
        A(f"s_add_u32 s22, s22, {STG}")
        A(f"s_cmp_eq_u32 s22, {RING}")
        A("s_cselect_b32 s22, 0, s22")
    for g in range(4):
        A(f"s_mov_b32 m0, {BREG + g * 4096}")
        A(f"s_add_u32 s20, s27, {g * 4096}")
        for i in range(4):
            A(f"buffer_load_dwordx4 v1, s[12:15], s20 offen offset:{1024*i}{LD} lds")
    A("s_mov_b32 s21, 0")
    A("s_mov_b32 s22, 0")
    A("s_mov_b32 s23, 0")
    KPRE = opts.get("kpre", 2)
    A.label("P2_lloop")
    l_stage()
    A("s_add_u32 s23, s23, 1")
    A(f"s_cmp_eq_u32 s23, {KPRE}")
    A("s_cbranch_scc0 P2_l1")
    A(f"s_waitcnt vmcnt({16*(KPRE-1)})")
    A("s_barrier")
    A.label("P2_l1")
    A("s_cmp_lt_u32 s23, 5")
    A("s_cbranch_scc1 P2_lloop")
    A("s_waitcnt vmcnt(48)")
    A("s_barrier")
    A("s_cmp_lt_u32 s23, 16")
    A("s_cbranch_scc1 P2_lloop")
    for n_ in (32, 16, 0):
        A(f"s_waitcnt vmcnt({n_})"); A("s_barrier")
    A("s_barrier")
    A("s_branch P2_htail")
    A.label("P2_aux")
    if opts.get("cnt", 2) == 1: poll_cnt("P2_c", 256, 2)
    if opts.get("cnt", 2) == 2:
        A("v_readfirstlane_b32 s46, v23")
        A("s_nop 3")
        A("s_cmp_ge_u32 s46, 256")
        A("s_cbranch_scc1 P2_c_go")
        poll_cnt("P2_c", 256, 2)
    A("s_barrier")
    A("s_cmp_lg_u32 s33, 0")
    A("s_cbranch_scc1 P2_auxb")
    signal(10, 16, 2)
    A("s_branch P2_astart")
    A.label("P2_auxb")
    A("s_barrier")
    signal(12, 32, 2)
    A("s_branch P2_a1")
    A.label("P2_astart")
    A("s_barrier")
    A.label("P2_a1")
    for i in range(4): A("s_barrier")
    if opts.get("wo_pf", 1):
        A("s_mov_b32 s10, 0x200000")
        A("s_cmp_lt_u32 s34, 4")
        A(f"s_cselect_b32 s8, s{P_AWO}, s{P_BWO}")
        A(f"s_cselect_b32 s9, s{P_AWO+1}, s{P_BWO+1}")
        A("v_and_b32 v44, 0x70, v1")
        A("v_lshlrev_b32 v44, 3, v44")
        A("v_lshrrev_b32 v45, 7, v1")
        A("v_lshl_add_u32 v44, v45, 11, v44")
        A("s_lshl_b32 s40, s35, 16")
        A("s_and_b32 s41, s34, 2")
        A("s_lshl_b32 s41, s41, 9")
        A("s_add_u32 s40, s40, s41")
    for i in range(4):
        if opts.get("wo_pf", 1):
            A("buffer_load_dword v46, v44, s[8:11], s40 offen")
            A("s_add_u32 s40, s40, 16384")
        A("s_barrier")
    if opts.get("out_touch", 1):
        A(f"s_mov_b32 s8, s{P_OUT}")
        A(f"s_mov_b32 s9, s{P_OUT+1}")
        A(f"s_mov_b32 s10, {2048*4096}")
        A("s_and_b32 s40, s34, 1")
        A("s_lshl_b32 s40, s40, 3")
        A("s_and_b32 s41, s35, 7")
        A("s_add_u32 s40, s40, s41")
        A("s_lshl_b32 s40, s40, 19")
        A("buffer_load_dword v46, off, s[8:11], s40")
    for i in range(8): A("s_barrier")
    A.label("P2_htail")
    A("s_barrier")
    A("s_cmp_lg_u32 s24, 0")
    A("s_cbranch_scc1 P2_hfin")
    read_flags(8)
    A("s_waitcnt lgkmcnt(0)")
    or_flags(8, 44)
    A("s_nop 3")
    A("s_cmp_eq_u32 s44, 0")
    A("s_cbranch_scc1 P2_hfin")
    A("s_mov_b32 s24, 1")
    A("s_barrier")
    A("s_cmp_eq_u32 s19, 9")
    A("s_cbranch_scc1 P2_astart")
    A("s_branch P2_lstart")
    A.label("P2_hfin")
    A("s_cmp_eq_u32 s19, 9")
    A("s_cbranch_scc0 P3_wload")
    A("s_barrier")
    signal(40, 16, 2)
    A("s_endpgm")
    A.label("P3_wload")
    p3_ids()
    A("v_lshrrev_b32 v1, 4, v1")
    A("s_lshl_b32 s39, s18, 8")
    A(f"s_sub_u32 s6, {1024*2048}, s39")
    A("v_lshrrev_b32 v3, 4, v1")
    A("v_lshlrev_b32 v4, 1, v3")
    A("v_and_b32 v5, 15, v1")
    A("v_xor_b32 v4, v4, v5")
    A("v_lshlrev_b32 v4, 4, v4")
    A("v_lshl_add_u32 v5, v3, 11, v4")
    A("v_xor_b32 v6, 128, v5")
    A(f"v_add_u32 v6, {8192-1024}, v6")
    A("s_lshl_b32 s40, 16384, s16")
    A("s_sub_u32 s40, s40, 2048")
    A("s_lshr_b32 s41, 32768, s16")
    A("s_cmp_eq_u32 s16, 0")
    A("v_add_u32 v7, s40, v5")
    A("v_add_u32 v8, s40, v6")
    A(f"s_cselect_b32 s4, s{P_AWO}, s{P_BWO}")
    A(f"s_cselect_b32 s5, s{P_AWO+1}, s{P_BWO+1}")
    A("s_add_u32 s4, s4, s39")
    A("s_addc_u32 s5, s5, 0")
    A("s_lshl_b32 s21, s34, 18")
    A("s_barrier")
    def w_issue():
        for q in range(4):
            A(f"s_add_u32 m0, s23, {q*4096}")
            if q & 1: A("s_add_u32 s20, s20, s41")
            else: A(f"s_add_u32 s20, s21, {q*32768}")
            for i in range(4): A(f"buffer_load_dwordx4 v{5+i}, s[4:7], s20 offen offset:{1024*i} lds")
        A("s_add_u32 s21, s21, 0x20000")
        A("s_and_b32 s21, s21, 0x1fffff")
    ring_loader("P3_w", NW, W3, w_issue, NW)
    A.label("L_done")
    A("s_endpgm")
    hdr = ("; concat_heads__mha_block__sliding_local_dilated__prompt : fused single-launch kernel (generated by gen/mega.py)\n"
           "; Kernarg: 0 A_x, 8 A_wqkv, 16 A_wo, 24 B_x, 32 B_wqkv, 40 B_wo, 48 out, 56 debug, 64 ws\n"
           f"; @launch grid=(256,1,1) block=(640,1,1) lds={LDS_BYTES}\n")
    return hdr + A.text() + '.section .rodata,"a"\n' + descriptor(NAME, 168, 102)

if __name__ == "__main__":
    opts = json.loads(sys.argv[2]) if len(sys.argv) > 2 else {}
    open(sys.argv[1], "w").write(gen(opts))
```

```python
import sys, os, json, struct, math
sys.path.insert(0, os.path.dirname(os.path.abspath(__file__)))
from asmlib import *

NAME = "concat_heads__mha_block__sliding_local_dilated__prompt_kernel"
WS_Q = 0
WS_KV = 4 << 20
WS_H = 12 << 20
WS_O = 24 << 20
WS_F = 32 << 20
WS_BYTES = (32 << 20) + 65536
QSCALE = (32 ** -0.5) * math.log2(math.e)
LDS_BYTES = 163840
def f32bits(x): return struct.unpack("<I", struct.pack("<f", x))[0]
def M32(d, a, b, c):
    cs = "0" if c is None else vr(c, 16)
    return f"v_mfma_f32_32x32x16_bf16 {vr(d,16)}, {vr(a,4)}, {vr(b,4)}, {cs}"
def M16(d, a, b, c):
    cs = "0" if c is None else vr(c, 4)
    return f"v_mfma_f32_16x16x32_bf16 {vr(d,4)}, {vr(a,4)}, {vr(b,4)}, {cs}"

P_AX, P_AW, P_AWO, P_BX, P_BW, P_BWO, P_OUT, P_DBG, P_WS = 76, 78, 80, 82, 84, 86, 88, 90, 92

def gen(opts=None):
    opts = opts or {}
    A = Asm()
    stamp = opts.get("stamp", False)
    SC = " sc1"
    SC1 = opts.get("p1st", " sc1")
    LD = opts.get("ld_mod", " sc1")
    def ST(i):
        if stamp:
            A("s_memrealtime s[100:101]")
            A("s_waitcnt lgkmcnt(0)")
            A(f"s_mov_b32 s{50+i}, s100")
    def lane(dst):
        A(f"v_mbcnt_lo_u32_b32 v{dst}, -1, 0")
        A(f"v_mbcnt_hi_u32_b32 v{dst}, -1, v{dst}")
    def poll_cnt(tag, target, vtmp):
        A(f"s_mov_b32 s47, {opts.get('poll_max', 30000)}")
        A.label(f"{tag}_poll")
        A(f"buffer_load_dword v{vtmp}, off, s[72:75], 0 sc1")
        A("s_waitcnt vmcnt(0)")
        A(f"v_readfirstlane_b32 s46, v{vtmp}")
        A("s_sub_u32 s47, s47, 1")
        A("s_cmp_eq_u32 s47, 0")
        A(f"s_cbranch_scc1 {tag}_go")
        A(f"s_cmp_ge_u32 s46, {target}")
        A(f"s_cbranch_scc1 {tag}_go")
        A("s_sleep 8")
        A(f"s_branch {tag}_poll")
        A.label(f"{tag}_go")
    def poll(tag, off, nflags, vtmp):
        A(f"s_mov_b32 s47, {opts.get('poll_max', 30000)}")
        A("s_lshl_b32 s46, s2, 8")
        A(f"s_add_u32 s46, s46, {WS_F + off}")
        A(f"v_lshrrev_b32 v{vtmp+1}, 2, v1")
        A(f"v_and_b32 v{vtmp+1}, {4*nflags-1}, v{vtmp+1}")
        ST(0)
        A.label(f"{tag}_poll")
        A(f"buffer_load_dword v{vtmp}, v{vtmp+1}, s[12:15], s46 offen sc1")
        A("s_sub_u32 s47, s47, 1")
        A("s_waitcnt vmcnt(0)")
        A(f"v_cmp_eq_u32 vcc, 0, v{vtmp}")
        A("s_cmp_eq_u32 s47, 0")
        A(f"s_cbranch_scc1 {tag}_go")
        A("s_cmp_eq_u64 vcc, 0")
        A(f"s_cbranch_scc1 {tag}_go")
        if opts.get('poll_sleep', 1): A(f"s_sleep {opts.get('poll_sleep', 1)}")
        A(f"s_branch {tag}_poll")
        A.label(f"{tag}_go")
        ST(1)
        if stamp: A("s_mov_b32 s52, s47")
    def p3_targets(dst, tmp, vlane, sblk, xoff):
        A(f"v_lshrrev_b32 v{tmp}, 3, v{vlane}")
        A(f"v_and_b32 v{tmp}, 1, v{tmp}")
        A(f"s_lshl_b32 s40, {sblk}, 1")
        A(f"v_add_u32 v{tmp}, s40, v{tmp}")
        if opts.get("mix3", 0):
            A(f"v_lshrrev_b32 v{dst}, 2, v{tmp}")
            A(f"v_and_b32 v{tmp}, 3, v{tmp}")
            A(f"v_lshl_add_u32 v{dst}, v{tmp}, 3, v{dst}")
            A(f"v_and_b32 v{tmp}, 3, v{vlane}")
            A(f"v_lshl_add_u32 v{dst}, v{tmp}, 5, v{dst}")
            A(f"v_and_b32 v{tmp}, 4, v{vlane}")
            A(f"v_add_u32 v{dst}, v{dst}, v{tmp}")
            if xoff: A(f"v_add_u32 v{dst}, 128, v{dst}")
        else:
            A(f"v_lshrrev_b32 v{dst}, 3, v{tmp}")
            A(f"v_and_b32 v{tmp}, 7, v{tmp}")
            A(f"v_lshl_add_u32 v{dst}, v{tmp}, 3, v{dst}")
            A(f"v_and_b32 v{tmp}, 3, v{vlane}")
            A(f"v_lshl_add_u32 v{dst}, v{tmp}, 6, v{dst}")
            A(f"v_and_b32 v{tmp}, 4, v{vlane}")
            A(f"v_lshrrev_b32 v{tmp}, 1, v{tmp}")
            A(f"v_add3_u32 v{dst}, v{dst}, v{tmp}, {xoff}")
        A(f"v_lshlrev_b32 v{dst}, 8, v{dst}")
    def signal(vaddr, nl, vtmp):
        A(f"v_mov_b32 v{vtmp}, 1")
        A(f"s_mov_b64 exec, {(1 << nl) - 1}")
        A(f"buffer_store_dword v{vtmp}, v{vaddr}, s[12:15], 0 offen sc1")
        A("s_mov_b64 exec, -1")

    A('.amdgcn_target "amdgcn-amd-amdhsa--gfx950"')
    A(".text")
    kernel_begin(A, NAME)
    if opts.get("padto"):
        A("s_memrealtime s[98:99]")
    A("s_load_dwordx16 s[76:91], s[0:1], 0")
    A("s_load_dwordx2 s[92:93], s[0:1], 64")
    A("v_lshrrev_b32 v14, 6, v0")
    A("v_and_b32 v1, 63, v0")
    A("v_readfirstlane_b32 s19, v14")
    A("s_cmp_ge_u32 s2, 256")
    A("s_cbranch_scc1 L_done")
    XSLOT = 32768; WBASE = 3 * XSLOT; WSLOT = 12288; WEND = WBASE + 5 * WSLOT
    A("s_and_b32 s34, s2, 7")
    A("s_lshr_b32 s35, s2, 3")
    mix = opts.get("mix", 0)
    if mix:
        A("s_lshr_b32 s16, s35, 4")
        A("s_and_b32 s17, s34, 1")
        A("s_lshl_b32 s17, s17, 2")
        A("s_and_b32 s36, s35, 3")
        A("s_add_u32 s17, s17, s36")
        A("s_lshr_b32 s18, s34, 1")
        A("s_lshl_b32 s18, s18, 2")
        A("s_lshr_b32 s36, s35, 2")
        A("s_and_b32 s36, s36, 3")
        A("s_add_u32 s18, s18, s36")
    else:
        A("s_lshr_b32 s16, s34, 2")
        A("s_and_b32 s17, s34, 1")
        A("s_lshl_b32 s17, s17, 2")
        A("s_and_b32 s36, s35, 3")
        A("s_add_u32 s17, s17, s36")
        A("s_lshr_b32 s18, s34, 1")
        A("s_and_b32 s18, s18, 1")
        A("s_lshl_b32 s18, s18, 3")
        A("s_lshr_b32 s36, s35, 2")
        A("s_add_u32 s18, s18, s36")
    A(f"s_mov_b32 s14, {WS_BYTES}")
    A("s_mov_b32 s15, 0x20000")
    A("s_mov_b32 s74, 256")
    A("s_mov_b32 s75, 0x20000")
    A("s_mov_b32 s7, 0x20000")
    A("s_mov_b32 s11, 0x20000")
    def common_srds():
        A(f"s_mov_b32 s12, s{P_WS}")
        A(f"s_mov_b32 s13, s{P_WS+1}")
        A(f"s_mov_b32 s72, s{P_DBG}")
        A(f"s_mov_b32 s73, s{P_DBG+1}")
    A("s_cmp_lt_u32 s19, 8")
    A("s_cbranch_scc1 P1_compute")
    if opts.get("lprio"): A(f"s_setprio {opts['lprio']}")
    A("s_lshr_b32 s49, s34, 1")
    A("s_xor_b32 s49, s49, s34")
    A("s_and_b32 s49, s49, 1")
    A("s_lshl_b32 s49, s49, 10")
    A("s_lshl_b32 s23, s16, 9")
    A("s_add_u32 s49, s49, s23")
    A("s_and_b32 s23, s34, 1")
    A("s_lshl_b32 s23, s23, 8")
    A("s_add_u32 s49, s49, s23")
    A("s_add_u32 s48, s17, s18")
    A("s_and_b32 s48, s48, 1")
    A("v_lshrrev_b32 v15, 3, v1")
    A("v_lshrrev_b32 v16, 4, v1")
    A("v_and_b32 v18, 7, v1")
    A("s_mov_b32 s40, 0")
    A("s_cmp_eq_u32 s19, 8")
    A("s_cbranch_scc1 P1_xload")
    A("s_lshl_b32 s39, s18, 7")
    A(f"s_sub_u32 s6, {1024*6144}, s39")
    A("v_and_b32 v16, 1, v16")
    A("v_lshlrev_b32 v16, 1, v16")
    A("v_xor_b32 v16, v18, v16")
    A("v_lshlrev_b32 v16, 4, v16")
    A("v_mul_u32_u24 v17, 6144, v15")
    A("v_add_u32 v2, v17, v16")
    A("v_xor_b32 v16, 64, v16")
    A("v_add_u32 v3, v17, v16")
    A(f"v_add_u32 v3, {8*6144-1024}, v3")
    A(f"v_add_u32 v4, {16*6144-2048}, v2")
    A(f"v_add_u32 v5, {16*6144-2048}, v3")
    A("s_lshl_b32 s48, s48, 1")
    A(f"s_mov_b32 s22, {WBASE}")
    A("v_lshlrev_b32 v20, 2, v1")
    A("v_mov_b32 v21, 0")
    A("v_mov_b32 v22, 1")
    A("s_lshl_b32 s45, s2, 8")
    A(f"s_add_u32 s45, s45, {WS_F}")
    A("s_and_b32 s44, s35, 7")
    A("s_lshl_b32 s44, s44, 1")
    A("s_add_u32 s44, s44, 9")
    A("s_cmp_eq_u32 s16, 0")
    A("s_waitcnt lgkmcnt(0)")
    A(f"s_cselect_b32 s4, s{P_AW}, s{P_BW}")
    A(f"s_cselect_b32 s5, s{P_AW+1}, s{P_BW+1}")
    A("s_add_u32 s4, s4, s39")
    A("s_addc_u32 s5, s5, 0")
    common_srds()
    A("s_branch P1_wgo")
    A.label("P1_wclr")
    A("buffer_store_dword v21, v20, s[12:15], s45 offen sc1")
    A.label("P1_wwait")
    A("s_waitcnt vmcnt(12)")
    A("s_barrier")
    A("s_cmp_eq_u32 s40, s44")
    A("s_cbranch_scc0 P1_wgo")
    A("s_waitcnt vmcnt(0)")
    A("s_mov_b64 exec, 1")
    A("buffer_atomic_add v22, off, s[72:75], 0 sc1")
    if opts.get("padmin"):
        A("s_not_b32 s97, s98")
        A("v_mov_b32 v24, s97")
        A("buffer_atomic_umax v24, off, s[72:75], 0 offset:32 sc1")
    A("s_mov_b64 exec, -1")
    A.label("P1_wgo")
    A("s_xor_b32 s23, s40, s48")
    A("s_lshl_b32 s23, s23, 6")
    A("s_add_u32 s23, s23, s49")
    A("s_and_b32 s23, s23, 2047")
    A("s_mul_i32 s20, s23, 3072")
    for ty in range(3):
        A(f"s_add_u32 m0, s22, {ty*4096}")
        if ty: A("s_add_u32 s20, s20, 2048")
        else: A("s_add_u32 s40, s40, 1")
        for i in range(4):
            A(f"buffer_load_dwordx4 v{2+i}, s[4:7], s20 offen offset:{1024*i} lds")
    A(f"s_add_u32 s22, s22, {WSLOT}")
    A(f"s_cmp_eq_u32 s22, {WEND}")
    A(f"s_cselect_b32 s22, {WBASE}, s22")
    WPRE = opts.get("wpre", 3)
    A(f"s_cmp_eq_u32 s40, {WPRE}")
    A("s_cbranch_scc0 P1_w1")
    A(f"s_waitcnt vmcnt({12*(WPRE-2)})")
    A("s_barrier")
    A.label("P1_w1")
    A("s_cmp_lt_u32 s40, 5")
    A("s_cbranch_scc1 P1_wgo")
    A("s_bitcmp0_b32 s40, 0")
    A("s_cbranch_scc1 P1_w2")
    A("s_cmp_eq_u32 s40, 5")
    A("s_cbranch_scc1 P1_wclr")
    A("s_branch P1_wwait")
    A.label("P1_w2")
    A("s_cmp_lt_u32 s40, 32")
    A("s_cbranch_scc1 P1_wgo")
    A("s_branch P1_ltail")
    A.label("P1_xload")
    A("s_mov_b32 s6, 0x80000")
    A("s_lshl_b32 s36, s17, 19")
    A("v_xor_b32 v17, v18, v16")
    A("v_lshlrev_b32 v17, 4, v17")
    A("v_lshl_add_u32 v2, v15, 11, v17")
    A("v_xor_b32 v3, 64, v2")
    A(f"v_add_u32 v3, {16384-1024}, v3")
    A(f"v_add_u32 v4, {32768-2048}, v2")
    A(f"v_add_u32 v5, {32768-2048}, v3")
    A("s_mov_b32 s22, 0")
    A("s_cmp_eq_u32 s16, 0")
    A("s_waitcnt lgkmcnt(0)")
    A(f"s_cselect_b32 s4, s{P_AX}, s{P_BX}")
    A(f"s_cselect_b32 s5, s{P_AX+1}, s{P_BX+1}")
    A("s_add_u32 s4, s4, s36")
    A("s_addc_u32 s5, s5, 0")
    A.label("P1_xgo")
    A("s_xor_b32 s21, s40, s48")
    A("s_lshl_b32 s21, s21, 7")
    A("s_add_u32 s21, s21, s49")
    A("s_and_b32 s21, s21, 2047")
    XB0 = opts.get("xb0", 4)
    for q in range(8):
        A(f"s_add_u32 m0, s22, {q*4096}")
        A(f"s_add_u32 s20, s21, {q*65536}")
        if q == XB0:
            A("s_cmp_eq_u32 s40, 1")
            A("s_cbranch_scc0 P1_x0")
            A(f"s_waitcnt vmcnt({4*XB0})")
            A("s_barrier")
            A.label("P1_x0")
        for i in range(4):
            A(f"buffer_load_dwordx4 v{2+i}, s[4:7], s20 offen offset:{1024*i} lds")
    A(f"s_add_u32 s22, s22, {XSLOT}")
    A(f"s_cmp_eq_u32 s22, {3*XSLOT}")
    A("s_cselect_b32 s22, 0, s22")
    A("s_add_u32 s40, s40, 1")
    A(f"s_cmp_lt_u32 s40, {2 if XB0 == 8 else 3}")
    A("s_cbranch_scc1 P1_xgo")
    A("s_waitcnt vmcnt(32)")
    A("s_barrier")
    A("s_cmp_lt_u32 s40, 16")
    A("s_cbranch_scc1 P1_xgo")
    A.label("P1_ltail")
    common_srds()
    if opts.get("cnt", 2) == 2:
        A("buffer_load_dword v23, off, s[72:75], 0")
    A("s_waitcnt vmcnt(0)")
    A("s_barrier")
    A("v_lshrrev_b32 v10, 3, v1")
    A("s_lshl_b32 s45, s18, 1")
    A("v_add_u32 v10, s45, v10")
    A("v_and_b32 v11, 3, v10")
    A("v_lshrrev_b32 v10, 2, v10")
    A("v_lshl_add_u32 v10, v11, 3, v10")
    A("v_and_b32 v11, 7, v1")
    A("v_lshl_add_u32 v10, v11, 5, v10")
    A("s_lshl_b32 s45, s17, 2")
    A(f"s_add_u32 s45, s45, {WS_F}")
    A("v_lshlrev_b32 v10, 8, v10")
    A("v_add_u32 v10, s45, v10")
    p3_targets(12, 13, 1, "s17", 4)
    A("v_lshrrev_b32 v13, 4, v1")
    A("v_and_b32 v13, 1, v13")
    A("v_lshl_add_u32 v12, v13, 2, v12")
    A("s_lshl_b32 s45, s18, 3")
    A(f"s_add_u32 s45, s45, {WS_F + 128}")
    A("v_add_u32 v12, s45, v12")
    A("s_mov_b32 s33, s16")
    A("s_mov_b32 s30, s17")
    A("s_mov_b32 s31, s18")
    A("s_barrier")
    A("s_branch P2_helpers")
    A.label("P1_compute")
    if opts.get("code_pf", 1):
        A("s_getpc_b64 s[40:41]")
        A("v_and_b32 v20, 127, v0")
        A("v_lshlrev_b32 v20, 7, v20")
        A("v_min_u32 v20, L_done-P1_compute-64, v20")
        A("s_cmp_lt_u32 s19, 2")
        A("s_cbranch_scc0 P1_nopf")
        A("global_load_dword v21, v20, s[40:41]")
        A.label("P1_nopf")
    if opts.get("apf"):
        A("s_cmp_eq_u32 s16, 0")
        A("s_cbranch_scc1 P1_noapf")
        A("s_lshl_b32 s36, s17, 4")
        A("s_add_u32 s36, s36, s18")
        A("s_lshl_b32 s36, s36, 3")
        A("s_add_u32 s36, s36, s19")
        A("v_lshlrev_b32 v20, 7, v1")
        A("s_mov_b32 s6, 0x400000")
        A("s_mov_b32 s10, 0x600000")
        A("s_lshl_b32 s37, s36, 12")
        A("s_mul_i32 s38, s36, 6144")
        A("s_waitcnt lgkmcnt(0)")
        A(f"s_mov_b32 s4, s{P_AX}")
        A(f"s_mov_b32 s5, s{P_AX+1}")
        A(f"s_mov_b32 s8, s{P_AW}")
        A(f"s_mov_b32 s9, s{P_AW+1}")
        if opts["apf"] & 1:
            A("s_mov_b64 exec, 0xffffffff")
            A("buffer_load_dword v22, v20, s[4:7], s37 offen")
        if opts["apf"] & 2:
            A("s_mov_b32 exec_lo, -1")
            A("s_mov_b32 exec_hi, 0xffff")
            A("buffer_load_dword v23, v20, s[8:11], s38 offen")
        A("s_mov_b64 exec, -1")
        A.label("P1_noapf")
    ST(0)
    A("v_lshrrev_b32 v15, 1, v14")
    A("v_and_b32 v16, 15, v1")
    A("v_lshl_add_u32 v17, v15, 6, v16")
    A("v_lshlrev_b32 v17, 7, v17")
    A("v_lshrrev_b32 v16, 1, v16")
    A("v_lshrrev_b32 v18, 4, v1")
    A("v_xor_b32 v16, v16, v18")
    A("v_lshl_add_u32 v2, v16, 4, v17")
    A("v_xor_b32 v3, 64, v2")
    A("v_lshrrev_b32 v16, 2, v1")
    A("v_and_b32 v16, 3, v16")
    A("v_lshl_add_u32 v17, v18, 3, v16")
    A("v_lshlrev_b32 v17, 7, v17")
    A("v_lshrrev_b32 v16, 1, v16")
    A("v_and_b32 v19, 1, v18")
    A("v_lshl_add_u32 v16, v19, 1, v16")
    A("v_and_b32 v19, 1, v14")
    A("v_lshlrev_b32 v19, 1, v19")
    A("v_xor_b32 v16, v16, v19")
    A("v_lshl_add_u32 v17, v16, 5, v17")
    A("v_and_b32 v16, 3, v1")
    A("v_lshl_add_u32 v4, v16, 3, v17")
    A("v_xor_b32 v5, 32, v4")
    A("v_lshlrev_b32 v1, 4, v1")
    ACC = 72; XF = 8; WF = [24, 48]
    AX, AW0, AW1 = 0, 6, 7
    for i in range(0, 96, 2): A(f"v_mov_b64 v[{ACC+i}:{ACC+i+1}], 0")
    A("s_and_b32 s36, s19, 1")
    A("s_lshl_b32 s37, s18, 1")
    A("s_add_u32 s36, s36, s37")
    A("s_lshl_b32 s36, s36, 6")
    A("s_lshl_b32 s37, s17, 3")
    A("s_add_u32 s36, s36, s37")
    A("s_lshr_b32 s37, s19, 1")
    A("s_lshl_b32 s37, s37, 1")
    A("s_add_u32 s36, s36, s37")
    A("s_lshl_b32 s64, s36, 11")
    A("s_add_u32 s65, s64, 2048")
    A("s_lshl_b32 s66, s36, 12")
    A(f"s_add_u32 s66, s66, {WS_KV}")
    A("s_add_u32 s67, s66, 4096")
    A("s_add_u32 s68, s66, 2048")
    A("s_add_u32 s69, s66, 6144")
    A(f"s_mov_b32 s42, {f32bits(QSCALE)}")
    A(f"s_mov_b32 s43, {f32bits(QSCALE)}")
    barpos = opts.get("barpos", 4)
    def xf(st): return XF + 4*st
    def wf(s, n6): return WF[s] + 4*n6
    def acc(st, n6): return ACC + (st*6+n6)*4
    def xrd(st): return ('rd', f"ds_read_b128 {vr(xf(st),4)}, v{AX} offset:{st*2048}", f"x{st}")
    def wrds(s):
        L = []
        for i in range(6):
            ty, nt = i >> 1, i & 1
            for half in range(2):
                L.append(('rd', f"ds_read_b64_tr_b16 {vr(wf(s,i)+2*half,2)}, v{AW0+nt} offset:{ty*4096+half*512}", f"w{s}_{i}"))
        return L
    def mf(s, st, n6):
        d = acc(st, n6)
        t = M16(d, wf(s,n6), xf(st), d) if n6 < 4 else M16(d, xf(st), wf(s,n6), d)
        needs = [f"x{st}", f"w{s}_{n6}"]
        if st == 0 and n6 == 0: needs = ["x0", "x1", "x2"] + [f"w{s}_{i}" for i in range(6)]
        return ('op', t, needs)
    def nextW():
        return [f"s_add_u32 s46, s46, {WSLOT}", f"s_cmp_eq_u32 s46, {WEND}", f"s_cselect_b32 s46, {WBASE}, s46",
                f"v_add_u32 v{AW0}, s46, v4", f"v_add_u32 v{AW1}, s46, v5"]
    A("s_mov_b32 s44, 0")
    A(f"s_mov_b32 s46, {WBASE}")
    A("s_mov_b32 s40, 16")
    A(f"v_mov_b32 v{AX}, v2")
    A(f"v_add_u32 v{AW0}, s46, v4")
    A(f"v_add_u32 v{AW1}, s46, v5")
    A("s_waitcnt lgkmcnt(0)")
    common_srds()
    A("s_waitcnt vmcnt(0)")
    A("s_barrier")
    ST(1)
    items = []
    for sub in range(2):
        s = sub
        ms = [mf(s, st, (q if st % 2 == 0 else 5 - q)) for st in range(4) for q in range(6)]
        wr = wrds(s ^ 1)
        gaps = [[] for _ in range(24)]
        start = 0 if sub == 0 else barpos
        pre = nextW()
        if sub == 0:
            pre += [f"v_add_u32 v{AX}, s44, v3"]
        else:
            pre += [f"s_add_u32 s44, s44, {XSLOT}", f"s_cmp_eq_u32 s44, {3*XSLOT}", "s_cselect_b32 s44, 0, s44", f"v_add_u32 v{AX}, s44, v2",
                    "s_sub_u32 s40, s40, 1"]
        for i, l in enumerate(pre): gaps[min(i // 3, 2 if sub == 0 else barpos - 1)].append(('raw', l))
        if sub == 1: gaps[barpos - 1].append(('all', "s_barrier"))
        g = max(start, 2)
        for r in wr:
            if g in (5, 11, 17): g += 1
            gaps[g].append(r); g += 1
        assert g <= 23, g
        for st in range(4): gaps[6*st+5].append(xrd(st))
        if sub == 1: gaps[22].append(('raw', "s_cmp_lg_u32 s40, 0"))
        for i in range(24):
            items.append(ms[i]); items += gaps[i]
    pro = [it for it in items if it[0] == 'rd'][-16:]
    assert sorted(set(t[2] for t in pro)) == sorted([f"x{i}" for i in range(4)] + [f"w0_{i}" for i in range(6)])
    for it in pro: A(it[1])
    body1, _ = schedule_waits(items, passes=1, init_queue=[t[2] for t in pro])
    A(".p2align 6")
    A.label("P1_loop")
    for l in body1: A(l)
    A("s_cbranch_scc1 P1_loop")
    A("s_waitcnt lgkmcnt(0)")
    ST(2)
    A("s_cmp_lg_u32 s16, 0")
    A("s_cbranch_scc1 P1_bepi")
    A("s_nop 2")
    n = 0
    def pk():
        nonlocal n
        p = 8 + (n % 16) * 4; n += 1
        return p
    for ty in (1, 2, 0):
        if ty < 2:
            for st in range(4):
                p = pk()
                for nt in range(2):
                    d = acc(st, 2*ty+nt)
                    if ty == 0:
                        for r in (0, 2): A(f"v_pk_mul_f32 v[{d+r}:{d+r+1}], v[{d+r}:{d+r+1}], s[42:43]")
                    A(f"v_cvt_pk_bf16_f32 v{p+2*nt}, v{d}, v{d+1}")
                    A(f"v_cvt_pk_bf16_f32 v{p+2*nt+1}, v{d+2}, v{d+3}")
                A(f"buffer_store_dwordx4 {vr(p,4)}, v1, s[12:15], s{64+2*ty+(st>>1)} offen offset:{(st&1)*1024}{SC1}")
        else:
            ps = []
            for mt in range(2):
                for nt in range(2):
                    p = pk(); ps.append((p, mt, nt))
                    for u in range(2):
                        d = acc(2*mt+u, 4+nt)
                        A(f"v_cvt_pk_bf16_f32 v{p+2*u}, v{d}, v{d+1}")
                        A(f"v_cvt_pk_bf16_f32 v{p+2*u+1}, v{d+2}, v{d+3}")
            A("s_nop 1")
            for p, mt, nt in ps:
                A(f"v_permlane16_swap_b32 v{p}, v{p+2}")
                A(f"v_permlane16_swap_b32 v{p+1}, v{p+3}")
                A(f"buffer_store_dwordx4 {vr(p,4)}, v1, s[12:15], s{68+mt} offen offset:{nt*1024}{SC1}")
    if opts.get("wbl2") == 1:
        A("s_waitcnt vmcnt(0)")
        A("buffer_wbl2 sc1")
    A("s_waitcnt vmcnt(0)")
    A("s_barrier")
    A.label("P2_compute")
    ST(3)

    NS = 6; STG = 16384; RING = NS * STG; BREG = RING; FLAGS = 40960; XCH = 0; HX = LDS_BYTES - 16384; STASH = HX - 8192
    IDX = 4; ONES = 8; KF = 12; VF = 20; MX = [28, 29]; SA = 32; SB = 48
    Q = [64, 72]; L = [80, 84]; O = [96, 112]; NEGM = [128, 144]
    QB = 128; KBP = 136; KBC = 144; VBC = 152; VBP = 12; PK = 16; OB = O[1]; LB = L[1]
    def S32(d, a, b): return f"v_smfmac_f32_32x32x32_bf16 {vr(d,16)}, {vr(a,4)}, {vr(b,8)}, v{IDX}"
    def S16(d, a, b): return f"v_smfmac_f32_16x16x64_bf16 {vr(d,4)}, {vr(a,4)}, {vr(b,8)}, v{IDX}"
    def E(r): return f"v_exp_f32 v{r}, v{r}"
    def key_of(r, hb): return 8 * (r >> 2) + 4 * hb + (r & 3)
    def bmask(r, prev):
        m = 0
        for l in range(64):
            d = (l & 31) - key_of(r, l >> 5) + (32 if prev else 0)
            if 0 <= d <= 14 and d % 2 == 0: m |= 1 << l
        return m
    def rowmax(regs, dst, tmp):
        regs = list(regs)
        A(f"v_max3_f32 v{dst}, v{regs[0]}, v{regs[1]}, v{regs[2]}")
        i = 3
        while i + 1 < len(regs):
            A(f"v_max3_f32 v{dst}, v{regs[i]}, v{regs[i+1]}, v{dst}"); i += 2
        if i < len(regs): A(f"v_max_f32 v{dst}, v{regs[i]}, v{dst}")
        A(f"v_mov_b32 v{tmp}, v{dst}")
        A("s_nop 1")
        A(f"v_permlane32_swap_b32 v{dst}, v{tmp}")
        A("s_nop 1")
        A(f"v_max_f32 v{dst}, v{dst}, v{tmp}")
    def read_flags(r):
        A(f"v_mov_b32 v7, {FLAGS}")
        A(f"ds_read_b128 {vr(r,4)}, v7")
        A(f"ds_read_b128 {vr(r+4,4)}, v7 offset:16")
    def or_flags(r, sdst):
        A(f"v_or3_b32 v{r}, v{r}, v{r+4}, v{r+5}")
        A(f"v_or3_b32 v{r}, v{r}, v{r+6}, v{r+7}")
        A(f"v_or3_b32 v{r}, v{r}, v{r+1}, v{r+2}")
        A(f"v_or_b32 v{r}, v{r}, v{r+3}")
        A("s_nop 0")
        A(f"v_readfirstlane_b32 s{sdst}, v{r}")
    def p2_ids():
        A("s_and_b32 s16, s35, 3")
        A("s_lshl_b32 s36, s34, 2")
        A("s_add_u32 s16, s16, s36")
        A("s_lshr_b32 s17, s35, 2")
        A("s_lshl_b32 s36, s16, 18")
        A(f"s_add_u32 s36, s36, {WS_KV}")
        A(f"s_add_u32 s4, s{P_WS}, s36")
        A(f"s_addc_u32 s5, s{P_WS+1}, 0")
        A("s_mov_b32 s6, 0x40000")
        A("s_mov_b32 s24, 0")
    p2_ids()
    A("v_lshrrev_b32 v6, 4, v1")
    A("s_lshr_b32 s18, s19, 2")
    A("s_and_b32 s20, s19, 3")
    A("s_lshl_b32 s20, s20, 1")
    A("s_add_u32 s20, s20, s18")
    A("s_lshl_b32 s26, s17, 3")
    A("s_add_u32 s26, s26, s20")
    A("s_lshl_b32 s39, s18, 13")
    A("v_and_b32 v31, 15, v6")
    A("v_lshlrev_b32 v31, 4, v31")
    A("v_and_b32 v5, 16, v6")
    A("v_lshl_add_u32 v31, v5, 6, v31")
    A("v_and_b32 v5, 32, v6")
    A("v_lshl_add_u32 v31, v5, 4, v31")
    A("s_lshl_b32 s31, s26, 5")
    A("s_add_u32 s31, s31, s16")
    A("s_lshl_b32 s31, s31, 11")
    A(f"s_add_u32 s31, s31, {WS_O}")
    A(f"v_mov_b32 v{IDX}, 0xdddd")
    A("v_and_b32 v5, 4, v6")
    A("v_cmp_eq_u32 vcc, 0, v5")
    A("v_mov_b32 v7, 0x3f803f80")
    A("v_add_u32 v30, s39, v31")
    A(f"v_cndmask_b32 v{ONES}, 0, v7, vcc")
    A(f"v_cndmask_b32 v{ONES+1}, 0, v7, vcc")
    A(f"v_sub_u32 v{ONES+2}, v7, v{ONES}")
    A(f"v_mov_b32 v{ONES+3}, v{ONES+2}")
    A("s_lshl_b32 s27, s20, 11")
    A(f"s_add_u32 s27, s27, {BREG}")
    A("v_add_u32 v5, s27, v31")
    A("v_xor_b32 v6, 2048, v5")
    A.label("P2_restart")
    for x in range(2):
        for i in range(0, 16, 2): A(f"v_mov_b64 v[{O[x]+i}:{O[x]+i+1}], 0")
        for i in range(0, 4, 2): A(f"v_mov_b64 v[{L[x]+i}:{L[x]+i+1}], 0")
    A("v_mov_b32 v2, v30")
    A(f"s_mov_b32 s25, {STG}")
    A(f"v_add_u32 v3, {STG}, v30")
    A("s_mov_b32 s23, 16")
    A("s_barrier")
    ST(4)
    SX = [SA, SB]
    A("s_cmp_lg_u32 s24, 0")
    A("s_cbranch_scc1 P2_main")
    A(f"ds_read_b128 {vr(VF,4)}, v31 offset:0")
    for x in range(2): A(f"ds_read_b128 {vr(Q[x],4)}, v{5+x}")
    A(f"ds_read_b128 {vr(VF+4,4)}, v31 offset:256")
    for x in range(2): A(f"ds_read_b128 {vr(Q[x]+4,4)}, v{5+x} offset:256")
    A("s_waitcnt lgkmcnt(3)")
    for x in range(2): A(M32(SX[x], VF, Q[x], None))
    A("s_waitcnt lgkmcnt(0)")
    for x in range(2): A(M32(SX[x], VF+4, Q[x]+4, SX[x]))
    A("s_nop 7")
    A("s_nop 2")
    for x in range(2): rowmax(range(SX[x], SX[x]+16), MX[x], 6)
    A.label("P2_main")
    A(f"ds_read_b128 {vr(KF,4)}, v2 offset:0")
    A(f"ds_read_b128 {vr(KF+4,4)}, v2 offset:256")
    A(f"ds_read_b128 {vr(VF,4)}, v2 offset:2048")
    def negm(x):
        A(f"v_sub_f32 v{NEGM[x]}, 0, v{MX[x]}")
        A(f"v_sub_f32 v{NEGM[x]+1}, 0, v{MX[x]}")
        for i in range(2, 16, 2): A(f"v_mov_b64 v[{NEGM[x]+i}:{NEGM[x]+i+1}], v[{NEGM[x]}:{NEGM[x]+1}]")
    negm(0)
    for i in (0, 2): A(f"v_mov_b64 v[{VF+4+i}:{VF+5+i}], 0")
    A("s_waitcnt lgkmcnt(1)")
    A(M32(SA, KF, Q[0], NEGM[0]))
    A(M32(SA, KF+4, Q[0]+4, SA))
    negm(1)
    for i in range(0, 8, 2): A(f"v_mov_b64 v[{SB+8+i}:{SB+9+i}], 0")
    A(E(SA))
    A("s_nop 0")
    A(".p2align 6")
    A.label("P2_loop")
    def rd(dst, tile, off):
        a, t = ("v2", tile) if tile < 2 else ("v3", tile - 2)
        return f"ds_read_b128 {vr(dst,4)}, {a} offset:{t*4096+off}"
    if opts.get("sched", 1) == 0:
        for u in range(4):
            cur, nxt = (SA, SB) if u % 2 == 0 else (SB, SA)
            i = u // 2; xc = u % 2; xp = xn = xc ^ 1
            if xc == 0:
                w_pv1 = w_qka = w_qkb = None; w_pv0 = 3
                r_pv1 = [rd(VF+4, i, 2304)]; r_qka = [rd(KF, i+1, 0)]; r_qkb = [rd(KF+4, i+1, 256)]; r_pv0 = []
            else:
                w_pv1, w_qka, w_qkb, w_pv0 = 2, 1, 0, None
                r_pv1 = r_qka = r_qkb = []; r_pv0 = [rd(VF, i+1, 2048)]
            bar = (u == 1)
            last = (u == 3)
            def W(n):
                if n is not None: A(f"s_waitcnt lgkmcnt({n})")
            if w_pv1 is None: A("s_nop 0")
            W(w_pv1)
            A(S32(O[xp], VF+4, nxt+8))
            for l in r_pv1: A(l)
            A(E(cur+1)); A(E(cur+2)); A(E(cur+3))
            A(S16(L[xp], ONES, nxt+8))
            A(E(cur+4)); A(E(cur+5))
            W(w_qka)
            A(M32(nxt, KF, Q[xn], NEGM[xn]))
            for l in r_qka: A(l)
            A(E(cur+6)); A(E(cur+7)); A(E(cur+8))
            W(w_qkb)
            A(M32(nxt, KF+4, Q[xn]+4, nxt))
            if bar: A("s_barrier")
            for l in r_qkb: A(l)
            A(E(cur+9)); A(E(cur+10)); A(E(cur+11))
            W(w_pv0)
            A(S32(O[xc], VF, cur))
            for l in r_pv0: A(l)
            A(E(cur+12))
            if last: A(f"s_add_u32 s25, s25, {STG}")
            A(E(cur+13))
            if last: A(f"s_cmp_eq_u32 s25, {RING}")
            A(E(cur+14))
            if last: A("s_cselect_b32 s25, 0, s25")
            A(S16(L[xc], ONES, cur))
            if last:
                A("s_sub_u32 s23, s23, 1")
                A("v_mov_b32 v2, v3")
                A("v_add_u32 v3, s25, v30")
                A("s_cmp_lg_u32 s23, 0")
            else: A("s_nop 0")
            A(E(cur+15)); A(E(nxt))
            if last: A("s_cbranch_scc1 P2_loop")
    else:
        barslot = (1, 0)
        for u in range(4):
            cur, nxt = (SA, SB) if u % 2 == 0 else (SB, SA)
            i = u // 2; xc = u % 2; xp = xn = xc ^ 1
            last = (u == 3)
            e = [E(cur+k) for k in range(1, 16)] + [E(nxt)]
            PV1 = S32(O[xp], VF+4, nxt+8); SM1 = S16(L[xp], ONES, nxt+8)
            QA = M32(nxt, KF, Q[xn], NEGM[xn]); QB_ = M32(nxt, KF+4, Q[xn]+4, nxt)
            PV0 = S32(O[xc], VF, cur); SM0 = S16(L[xc], ONES, cur)
            def F(k, dflt="s_nop 0"):
                if (u, k) == tuple(barslot): return ["s_barrier"]
                if (u, k) == (1, 2): return ["s_waitcnt vmcnt(0)"]
                return [dflt]
            W = lambda n: f"s_waitcnt lgkmcnt({n})"
            if xc == 0:
                seq = (F(2) if u else []) + [SM1] + e[0:2] + [PV1, rd(VF+4, i, 2304)] + e[2:5] + [QA, rd(KF, i+1, 0)] + e[5:8] + [QB_, rd(KF+4, i+1, 256)] + e[8:11] + [SM0] + e[11:13] + [W(3), PV0] + F(1) + e[13:16]
            elif not last:
                seq = F(2) + [SM1] + e[0:2] + [W(2), PV1] + e[2:5] + [W(0), QA] + e[5:8] + [QB_] + F(0) + e[8:11] + [SM0] + e[11:13] + [PV0, rd(VF, i+1, 2048)] + F(1) + e[13:16]
            else:
                seq = [f"s_add_u32 s25, s25, {STG}", SM1] + e[0:2] + [W(2), PV1, f"s_cmp_eq_u32 s25, {RING}"] + e[2:5] + [W(0), QA, "s_cselect_b32 s25, 0, s25"] + e[5:8] + \
                      [QB_, "s_sub_u32 s23, s23, 1"] + e[8:11] + [SM0, "s_cmp_lg_u32 s23, 0"] + e[11:13] + [PV0, rd(VF, i+1, 2048), "v_mov_b32 v2, v3", "v_add_u32 v3, s25, v30"] + e[13:16] + ["s_cbranch_scc1 P2_loop"]
            for l in seq: A(l)
    A("s_waitcnt lgkmcnt(0)")
    A(S32(O[1], VF+4, SB+8))
    A(S16(L[1], ONES, SB+8))
    ST(5)
    A(f"s_mov_b32 s44, {f32bits(2.0**56)}")
    A("s_mul_i32 s36, s19, 5120")
    A("v_add_u32 v7, s36, v1")
    A(f"v_mul_f32 v5, s44, v{L[0]}")
    for i in range(0, 16, 2): A(f"v_maximum3_f32 v5, |v{O[0]+i}|, |v{O[0]+i+1}|, v5")
    A(f"s_mov_b32 s45, {f32bits(2.0**120)}")
    for i in range(4): A(f"ds_write_b128 v7, {vr(O[1]+4*i,4)} offset:{XCH+1024*i}")
    A(f"ds_write_b32 v7, v{L[1]} offset:{XCH+4096}")
    A(f"v_mul_f32 v6, s44, v{L[1]}")
    for i in range(0, 16, 2): A(f"v_maximum3_f32 v6, |v{O[1]+i}|, |v{O[1]+i+1}|, v6")
    A("v_maximum3_f32 v5, v5, v6, v6")
    A("s_lshl_b32 s36, s19, 2")
    A(f"s_add_u32 s36, s36, {FLAGS}")
    A("v_cmp_ngt_f32 vcc, s45, v5")
    A("v_mov_b32 v7, s36")
    A("s_xor_b32 s36, s19, 4")
    A("s_mul_i32 s36, s36, 5120")
    A("v_add_u32 v3, s36, v1")
    if opts.get("force_fb"): A("s_mov_b64 vcc, -1")
    A("s_cmp_lg_u64 vcc, 0")
    A("s_cselect_b32 s44, 1, 0")
    A("v_mov_b32 v6, s44")
    A("ds_write_b32 v7, v6")
    A("s_waitcnt lgkmcnt(0)")
    A("s_barrier")
    A(f"ds_read_b32 v5, v3 offset:{XCH+4096}")
    for i in range(4): A(f"ds_read_b128 {vr(SA+4*i,4)}, v3 offset:{XCH+1024*i}")
    read_flags(SB)
    A("s_waitcnt lgkmcnt(2)")
    A(f"v_add_f32 v6, v5, v{L[0]}")
    A("v_rcp_f32 v6, v6")
    for i in range(0, 16, 2): A(f"v_pk_add_f32 v[{O[0]+i}:{O[0]+i+1}], v[{SA+i}:{SA+i+1}], v[{O[0]+i}:{O[0]+i+1}]")
    for i in range(0, 16, 2): A(f"v_pk_mul_f32 v[{O[0]+i}:{O[0]+i+1}], v[{O[0]+i}:{O[0]+i+1}], v[6:7] op_sel_hi:[1,0]")
    for i in range(8): A(f"v_cvt_pk_bf16_f32 v{SA+i}, v{O[0]+2*i}, v{O[0]+2*i+1}")
    for m in range(2):
        A(f"buffer_store_dwordx4 {vr(SA+4*m,4)}, v1, s[12:15], s31 offen offset:{1024*m}{SC}")
    A("s_cmp_lg_u32 s24, 0")
    A("s_cbranch_scc1 P2_fin")
    A("s_waitcnt lgkmcnt(0)")
    or_flags(SB, 44)
    A("s_nop 3")
    A("s_cmp_eq_u32 s44, 0")
    A("s_cbranch_scc0 P2_fallback")
    A.label("P2_fin")
    ST(6)
    A("s_waitcnt vmcnt(0)")
    A("s_barrier")
    ST(7)
    A("s_cmp_gt_u32 s19, 3")
    A("s_cbranch_scc1 L_done")

    NO = opts.get("no", 4); NW = 10 - NO; S3 = 16384; W3 = NO * S3
    def p3_ids():
        if opts.get("mix3", 0):
            A("s_lshr_b32 s16, s35, 4")
            A("s_and_b32 s17, s34, 3")
            A("s_lshl_b32 s17, s17, 2")
            A("s_and_b32 s36, s35, 3")
            A("s_add_u32 s17, s17, s36")
            A("s_and_b32 s18, s34, 4")
            A("s_lshr_b32 s36, s35, 2")
            A("s_and_b32 s36, s36, 3")
            A("s_add_u32 s18, s18, s36")
            return
        A("s_lshr_b32 s16, s34, 2")
        A("s_and_b32 s17, s34, 1")
        A("s_lshl_b32 s17, s17, 3")
        A("s_and_b32 s36, s35, 7")
        A("s_add_u32 s17, s17, s36")
        A("s_lshr_b32 s18, s34, 1")
        A("s_and_b32 s18, s18, 1")
        A("s_lshl_b32 s18, s18, 2")
        A("s_lshr_b32 s36, s35, 3")
        A("s_add_u32 s18, s18, s36")
    p3_ids()
    A("v_lshrrev_b32 v1, 4, v1")
    A("s_lshr_b32 s36, s19, 1")
    A("s_and_b32 s37, s19, 1")
    A("v_lshrrev_b32 v18, 4, v1")
    A("v_and_b32 v17, 15, v1")
    A("v_lshlrev_b32 v2, 4, v17")
    A("v_lshl_add_u32 v2, v18, 9, v2")
    A("s_lshl_b32 s38, s36, 13")
    A("v_add_u32 v2, s38, v2")
    A("v_lshrrev_b32 v19, 2, v1")
    A("v_and_b32 v19, 7, v19")
    A("v_lshrrev_b32 v20, 5, v1")
    A("v_lshl_add_u32 v20, v20, 4, v19")
    A("v_lshlrev_b32 v20, 8, v20")
    A("s_lshl_b32 s38, s37, 2")
    A("v_xor_b32 v21, s38, v19")
    A("v_lshl_add_u32 v20, v21, 5, v20")
    A("v_and_b32 v21, 3, v1")
    A("v_lshl_add_u32 v3, v21, 3, v20")
    for a in range(1, 4): A(f"v_xor_b32 v{3+a}, {32*a}, v3")
    ACC3 = 88; FS = [24, 56]; AO = 8; AW = 9
    for i in range(0, 64, 2): A(f"v_mov_b64 v[{ACC3+i}:{ACC3+i+1}], 0")
    for i in range(0, 32, 2): A(f"v_mov_b64 v[{FS[1]+i}:{FS[1]+i+1}], 0")
    A("v_lshlrev_b32 v22, 12, v17")
    A("v_and_b32 v21, 1, v18")
    A("v_lshl_add_u32 v22, v21, 5, v22")
    A("v_lshrrev_b32 v21, 1, v18")
    A("v_lshl_add_u32 v22, v21, 4, v22")
    A("s_lshl_b32 s38, s17, 7")
    A("s_lshl_b32 s36, s36, 6")
    A("s_add_u32 s36, s36, s38")
    A("s_lshl_b32 s36, s36, 12")
    A("s_lshl_b32 s38, s16, 11")
    A("s_add_u32 s36, s36, s38")
    A("s_lshl_b32 s38, s18, 8")
    A("s_add_u32 s36, s36, s38")
    A("s_lshl_b32 s37, s37, 7")
    A("s_add_u32 s40, s36, s37")
    for st in range(1, 4): A(f"s_add_u32 s{40+st}, s40, {st*16*4096}")
    A(f"s_mov_b32 s8, s{P_OUT}")
    A(f"s_mov_b32 s9, s{P_OUT+1}")
    A(f"s_mov_b32 s10, {2048*4096}")
    def of(s, st): return FS[s] + 4*st
    def wf3(s, a): return FS[s] + 16 + 4*a
    def acc3(st, a): return ACC3 + (st*4+a)*4
    def rd_items(hh, s):
        L_ = [('rd', f"ds_read_b128 {vr(of(s,0),4)}, v{AO} offset:{hh*2048}", f"o{s}_0")]
        for i in range(4):
            for half in range(2):
                L_.append(('rd', f"ds_read_b64_tr_b16 {vr(wf3(s,i)+2*half,2)}, v{AW+i} offset:{hh*8192+half*2048}", f"w{s}_{i}"))
        for i in range(1, 4):
            L_.append(('rd', f"ds_read_b128 {vr(of(s,i),4)}, v{AO} offset:{(i>>1)*4096+hh*2048+(i&1)*256}", f"o{s}_{i}"))
        return L_
    def mf_items(s):
        L_ = []
        for st in range(4):
            for a in (range(4) if st % 2 == 0 else range(3, -1, -1)):
                needs = [f"o{s}_{st}", f"w{s}_{a}"]
                if st == 0 and a == 0: needs += [f"w{s}_{i}" for i in range(4)] + [f"o{s}_{i}" for i in range(4)]
                L_.append(('op', M16(acc3(st, a), wf3(s, a), of(s, st), acc3(st, a)), needs))
        return L_
    upd = [f"s_add_u32 s23, s23, {S3}", f"s_cmp_eq_u32 s23, {W3}", "s_cselect_b32 s23, 0, s23", f"v_add_u32 v{AO}, s23, v2",
           f"s_add_u32 s22, s22, {S3}", f"s_cmp_eq_u32 s22, {LDS_BYTES}", f"s_cselect_b32 s22, {W3}, s22", "s_sub_u32 s38, s38, 1"] + \
          [f"v_add_u32 v{AW+a}, s22, v{3+a}" for a in range(4)] + ["s_cmp_lg_u32 s38, 0"]
    upd = [('raw', u) for u in upd]
    items = [('all', "s_barrier")] + interleave(mf_items(1), rd_items(0, 0), [2] * 16)
    items += interleave(mf_items(0), rd_items(1, 1) + upd, [2] * 16)
    body, _ = schedule_waits(items, passes=2)
    A("s_mov_b32 s23, 0")
    A(f"s_mov_b32 s22, {W3 + 2*S3}")
    A("s_mov_b32 s38, 16")
    A(f"v_mov_b32 v{AO}, v2")
    for a in range(4): A(f"v_add_u32 v{AW+a}, s22, v{3+a}")
    if stamp:
        A("s_barrier"); ST(8); A("s_branch P3_first")
    A(".p2align 6")
    A.label("P3_loop")
    for i, l in enumerate(body):
        A(l)
        if l == "s_barrier" and stamp: A.label("P3_first")
    A("s_cbranch_scc1 P3_loop")
    A("s_waitcnt lgkmcnt(0)")
    for it in mf_items(1): A(it[1])
    ST(9)
    n = 0
    for st in range(4):
        for pr in range(2):
            p = 24 + n * 4; n += 1
            for u in range(2):
                d = acc3(st, 2*pr+u)
                A(f"v_cvt_pk_bf16_f32 v{p+2*u}, v{d}, v{d+1}")
                A(f"v_cvt_pk_bf16_f32 v{p+2*u+1}, v{d+2}, v{d+3}")
        A("s_nop 1")
        for pr in range(2):
            p = 24 + (n - 2 + pr) * 4
            A(f"v_permlane16_swap_b32 v{p}, v{p+2}")
            A(f"v_permlane16_swap_b32 v{p+1}, v{p+3}")
            A(f"buffer_store_dwordx4 {vr(p,4)}, v22, s[8:11], s{40+st} offen offset:{pr*64}{SC}")
    if opts.get("padto"):
        A("s_waitcnt vmcnt(0)")
        A(f"s_mov_b32 s37, {opts['padto']}")
        if opts.get("padmin"):
            A("buffer_load_dword v3, off, s[72:75], 0 offset:32 sc1")
            A("s_waitcnt vmcnt(0)")
            A("v_readfirstlane_b32 s98, v3")
            A("s_nop 3")
            A("s_not_b32 s98, s98")
        if opts.get("probe") is not None:
            ST(10)
            A(f"s_sub_u32 s37, s{50+opts['probe']}, s98")
            A(f"s_add_u32 s37, s37, {opts['padto']}")
        A.label("L_pad")
        A("s_memrealtime s[100:101]")
        A("s_waitcnt lgkmcnt(0)")
        A("s_sub_u32 s36, s100, s98")
        A("s_cmp_lt_u32 s36, s37")
        A("s_cbranch_scc1 L_pad")
        if opts.get("probe") is not None: A("s_endpgm")
    if stamp:
        A("s_waitcnt vmcnt(0)")
        ST(10)
        if opts.get("dbgout") is not None:
            A(f"s_cmp_lg_u32 s2, {opts['dbgout']}")
            A("s_cbranch_scc1 L_nodbg")
            A("s_cmp_lg_u32 s19, 0")
            A("s_cbranch_scc1 L_nodbg")
            for i in range(1, 11):
                A(f"s_sub_u32 s36, s{50+i}, s50")
                A("v_mov_b32 v3, s36")
                A(f"buffer_store_dword v3, off, s[72:75], 0 offset:{4*i}")
            A.label("L_nodbg")
        A("s_lshl_b32 s36, s2, 2")
        A("s_add_u32 s36, s36, s19")
        A("s_lshl_b32 s36, s36, 6")
        A(f"s_add_u32 s36, s36, {64<<20}")
        A("s_mov_b32 s14, 0x8000000")
        for i in range(12):
            A(f"v_mov_b32 v3, s{50+i}")
            A(f"buffer_store_dword v3, off, s[12:15], s36 offset:{4*i}")
    A("s_endpgm")
    def ring_loader(tag, nslots, base, issue, pre):
        if pre is not None:
            A(f"s_mov_b32 s23, {base}")
            A("s_mov_b32 s38, 0")
        A.label(f"{tag}_go2")
        issue()
        A("s_add_u32 s38, s38, 1")
        A(f"s_add_u32 s23, s23, {S3}")
        A(f"s_cmp_eq_u32 s23, {base + nslots*S3}")
        A(f"s_cselect_b32 s23, {base}, s23")
        if pre is None:
            A(f"s_cmp_le_u32 s38, {nslots}")
            A("s_cbranch_scc1 P2_wback")
            A.label(f"{tag}_l1")
        else:
            A(f"s_cmp_eq_u32 s38, {pre}")
            A(f"s_cbranch_scc0 {tag}_l1")
            A(f"s_waitcnt vmcnt({min(63, 16*(pre-1))})")
            A("s_barrier")
            A.label(f"{tag}_l1")
            A(f"s_cmp_lt_u32 s38, {nslots}")
            A(f"s_cbranch_scc1 {tag}_go2")
        A(f"s_waitcnt vmcnt({min(63, 16*(nslots-2))})")
        A("s_barrier")
        A("s_cmp_lt_u32 s38, 16")
        A(f"s_cbranch_scc1 {tag}_go2")
        for j in range(nslots - 2):
            A(f"s_waitcnt vmcnt({min(63, 16*(nslots-3-j))})")
            A("s_barrier")
        if stamp and opts.get("probe") is None:
            A("s_lshl_b32 s36, s2, 1")
            A("s_and_b32 s37, s19, 1")
            A("s_add_u32 s36, s36, s37")
            A("s_lshl_b32 s36, s36, 6")
            A(f"s_add_u32 s36, s36, {65<<20}")
            A("s_mov_b32 s14, 0x8000000")
            for i in range(3):
                A(f"v_mov_b32 v3, s{50+i}")
                A(f"buffer_store_dword v3, off, s[12:15], s36 offset:{4*i}")
        A("s_endpgm")
    A.label("P3_oload")
    p3_ids()
    A("s_lshl_b32 s36, s16, 22")
    A("s_lshl_b32 s37, s17, 18")
    A("s_add_u32 s36, s36, s37")
    A(f"s_add_u32 s36, s36, {WS_O}")
    A(f"s_add_u32 s4, s{P_WS}, s36")
    A(f"s_addc_u32 s5, s{P_WS+1}, 0")
    A("s_mov_b32 s6, 0x40000")
    A("s_lshl_b32 s21, s34, 13")
    A("s_barrier")
    signal(40, 16, 2)
    poll("P3_o", 128, 32, 2)
    def o_issue():
        for t in range(4):
            A(f"s_add_u32 m0, s23, {t*4096}")
            A(f"s_add_u32 s20, s21, {t*65536}")
            if not opts.get("p3noload"):
                for i in range(4): A(f"buffer_load_dwordx4 v1, s[4:7], s20 offen offset:{1024*i}{LD} lds")
        A("s_add_u32 s21, s21, 4096")
        A("s_and_b32 s21, s21, 0xffff")
    ring_loader("P3_o", NO, 0, o_issue, opts.get("opre", 2))


    A.label("P1_bepi")
    def QP(st): return 8 + 4*st
    def KP(st): return 28 + 4*st
    def VW(nt, st): return 46 + 10*nt + 2*st
    MC, MP, ON = 64, 68, 2
    def SS(st): return 72 + 8*st
    def PB(st): return 104 + 4*st
    def OT(st, nt): return 120 + 8*st + 4*nt
    def LR(st): return 152 + 4*st
    def cv(d, a): A(f"v_cvt_pk_bf16_f32 v{d}, v{a}, v{a+1}")
    A("s_lshl_b32 s36, s19, 11")
    A(f"s_add_u32 s36, s36, {HX}")
    A("v_add_u32 v6, s36, v1")
    for st in (3, 0, 1, 2):
        for nt in range(2):
            cv(KP(st)+2*nt, acc(st, 2+nt)); cv(KP(st)+2*nt+1, acc(st, 2+nt)+2)
            cv(VW(nt, st), acc(st, 4+nt)); cv(VW(nt, st)+1, acc(st, 4+nt)+2)
        if st == 3:
            A(f"ds_write_b128 v6, {vr(KP(3),4)}")
            A(f"ds_write_b64 v6, {vr(VW(0,3),2)} offset:1024")
            A(f"ds_write_b64 v6, {vr(VW(1,3),2)} offset:1032")
            A("s_lshl_b32 s36, s18, 3")
            A("s_add_u32 s36, s36, s17")
            A("s_lshl_b32 s36, s36, 1")
            A("s_and_b32 s37, s19, 1")
            A("s_add_u32 s36, s36, s37")
            A("s_lshl_b32 s36, s36, 11")
            A(f"s_add_u32 s36, s36, {WS_H}")
            A("s_cmp_lt_u32 s19, 6")
            A("s_cbranch_scc1 P1_b1")
            A(f"buffer_store_dwordx4 {vr(KP(3),4)}, v1, s[12:15], s36 offen{SC}")
            A(f"buffer_store_dwordx2 {vr(VW(0,3),2)}, v1, s[12:15], s36 offen offset:1024{SC}")
            A(f"buffer_store_dwordx2 {vr(VW(1,3),2)}, v1, s[12:15], s36 offen offset:1032{SC}")
            A.label("P1_b1")
    A("s_waitcnt lgkmcnt(0)")
    A("s_barrier")
    A("v_subrev_u32 v6, 4096, v6")
    A(f"ds_read_b128 {vr(KP(-1),4)}, v6")
    A(f"ds_read_b64 {vr(VW(0,-1),2)}, v6 offset:1024")
    A(f"ds_read_b64 {vr(VW(1,-1),2)}, v6 offset:1032")
    for st in range(4):
        for nt in range(2):
            d = acc(st, nt)
            for r in (0, 2): A(f"v_pk_mul_f32 v[{d+r}:{d+r+1}], v[{d+r}:{d+r+1}], s[42:43]")
            cv(QP(st)+2*nt, d); cv(QP(st)+2*nt+1, d+2)
    def bconsts():
        A("v_mov_b32 v7, 0xff800000")
        for prev in range(2):
            for r in range(4):
                m = 0
                for l in range(64):
                    dl = (l & 15) - (4 * (l >> 4) + r) + 16 * prev
                    if 0 <= dl <= 14 and dl % 2 == 0: m |= 1 << l
                A(f"s_mov_b32 s40, {m & 0xffffffff}")
                A(f"s_mov_b32 s41, {m >> 32}")
                A(f"v_cndmask_b32 v{(MP if prev else MC)+r}, v7, 0, s[40:41]")
        for r in range(4): A(f"v_mov_b32 v{ON+r}, 0x3f803f80")
        A("v_and_b32 v0, 0xf0, v1")
        A("v_and_b32 v6, 0x300, v1")
        A("v_lshl_add_u32 v0, v6, 1, v0")
    bconsts()
    A("s_lshl_b32 s38, s17, 3")
    A("s_and_b32 s39, s19, 6")
    A("s_add_u32 s38, s38, s39")
    A("s_lshl_b32 s38, s38, 5")
    A("s_lshl_b32 s39, s18, 1")
    A("s_add_u32 s38, s38, s39")
    A("s_add_u32 s38, s38, s37")
    A("s_lshl_b32 s38, s38, 11")
    A(f"s_add_u32 s38, s38, {WS_O + (4 << 20)}")
    A("s_add_u32 s39, s38, 65536")
    def tile(st):
        return dict(q=QP(st), kp=KP(st-1), kc=KP(st), v=[VW(0, st-1), VW(1, st-1)], s=SS(st), p=PB(st), o=OT(st, 0), l=LR(st),
                    so=f"s{38+(st>>1)}", imm=(st&1)*256)
    def btiles(T):
        k = len(T)
        def pad(n):
            if n - (k - 1) > 0: A(f"s_nop {n - (k - 1) - 1}")
        for t in T:
            A(M16(t['s'], t['kp'], t['q'], t.get('mp', MP)))
            A(M16(t['s']+4, t['kc'], t['q'], MC))
        A("s_nop 7")
        for i in range(4):
            for t in T:
                b_ = t['s']; m = t['l']
                if i == 0: A(f"v_max3_f32 v{m}, v{b_}, v{b_+1}, v{b_+2}")
                elif i < 3: A(f"v_max3_f32 v{m}, v{b_+2*i+1}, v{b_+2*i+2}, v{m}")
                else: A(f"v_max_f32 v{m}, v{b_+7}, v{m}")
        for sw in ("v_permlane32_swap_b32", "v_permlane16_swap_b32"):
            for t in T: A(f"v_mov_b32 v{t['l']+1}, v{t['l']}")
            pad(2)
            for t in T: A(f"{sw} v{t['l']}, v{t['l']+1}")
            pad(2)
            for t in T: A(f"v_max_f32 v{t['l']}, v{t['l']}, v{t['l']+1}")
        for t in T:
            for r in range(0, 8, 2):
                b_ = t['s'] + r
                A(f"v_pk_add_f32 v[{b_}:{b_+1}], v[{b_}:{b_+1}], v[{t['l']}:{t['l']+1}] op_sel_hi:[1,0] neg_lo:[0,1] neg_hi:[0,1]")
        for t in T:
            for r in range(8): A(f"v_exp_f32 v{t['s']+r}, v{t['s']+r}")
        A("s_nop 0")
        for t in T:
            for r in range(4): cv(t['p']+r, t['s']+2*r)
        A("s_nop 1")
        for t in T:
            A(M16(t['l'], ON, t['p'], None))
            for nt in range(2): A(M16(t['o']+4*nt, t['v'][nt], t['p'], None))
        A("s_nop 7")
        for t in T: A(f"v_rcp_f32 v{t['l']}, v{t['l']}")
        A("s_nop 0")
        for t in T:
            for r in range(0, 8, 2):
                b_ = t['o'] + r
                A(f"v_pk_mul_f32 v[{b_}:{b_+1}], v[{b_}:{b_+1}], v[{t['l']}:{t['l']+1}] op_sel_hi:[1,0]")
            for r in range(4): cv(t['s']+r, t['o']+2*r)
            A(f"buffer_store_dwordx4 {vr(t['s'],4)}, v0, s[12:15], {t['so']} offen offset:{t['imm']}{SC}")
    MP0 = PB(3)
    for r in (0, 2): A(f"v_mov_b64 {vr(MP0+r,2)}, {vr(MP+r,2)}")
    A("s_waitcnt lgkmcnt(0)")
    A("s_cmp_gt_u32 s19, 1")
    A("s_cbranch_scc1 P1_b4")
    for r in range(4): A(f"v_mov_b32 v{MP0+r}, v7")
    for r in (0, 2): A(f"v_mov_b64 {vr(KP(-1)+r,2)}, 0")
    for nt in range(2): A(f"v_mov_b64 {vr(VW(nt,-1),2)}, 0")
    A("s_mul_i32 s40, s19, 3072")
    A(f"s_add_u32 s40, s40, {STASH}")
    A("v_add_u32 v6, s40, v1")
    A(f"ds_write_b128 v6, {vr(QP(0),4)}")
    A(f"ds_write_b128 v6, {vr(KP(0),4)} offset:1024")
    A(f"ds_write_b64 v6, {vr(VW(0,0),2)} offset:2048")
    A(f"ds_write_b64 v6, {vr(VW(1,0),2)} offset:2056")
    A.label("P1_b4")
    T = [tile(st) for st in range(4)]
    T[0]['mp'] = MP0
    btiles(T)
    A("s_waitcnt lgkmcnt(0)")
    A("s_branch P2_compute")
    def aux_halo_issue():
        poll("P2_h", 32, 1, 4)
        A("s_lshl_b32 s36, s31, 3")
        A("s_add_u32 s36, s36, s30")
        A("s_lshl_b32 s36, s36, 12")
        A(f"s_add_u32 s36, s36, {WS_H - 4096}")
        A(f"v_add_u32 v6, {STASH}, v1")
        for wc in range(2):
            r = 72 + 24 * wc + 48
            A(f"buffer_load_dwordx4 {vr(r+4,4)}, v1, s[12:15], s36 offen offset:{2048*wc} sc1")
            A(f"buffer_load_dwordx2 {vr(r+12,2)}, v1, s[12:15], s36 offen offset:{2048*wc+1024} sc1")
            A(f"buffer_load_dwordx2 {vr(r+16,2)}, v1, s[12:15], s36 offen offset:{2048*wc+1032} sc1")
            A(f"ds_read_b128 {vr(r,4)}, v6 offset:{3072*wc}")
            A(f"ds_read_b128 {vr(r+8,4)}, v6 offset:{3072*wc+1024}")
            A(f"ds_read_b64 {vr(r+14,2)}, v6 offset:{3072*wc+2048}")
            A(f"ds_read_b64 {vr(r+18,2)}, v6 offset:{3072*wc+2056}")
        bconsts()
        A("s_lshl_b32 s38, s30, 8")
        A("s_lshl_b32 s39, s31, 1")
        A("s_add_u32 s38, s38, s39")
        A("s_lshl_b32 s38, s38, 11")
        A(f"s_add_u32 s38, s38, {WS_O + (4 << 20)}")
    def aux_halo_compute():
        A("s_waitcnt vmcnt(0) lgkmcnt(0)")
        A("s_setprio 3")
        T = []
        for wc in range(2):
            r = 72 + 24 * wc + 48
            T.append(dict(q=r, kp=r+4, kc=r+8, v=[r+12, r+16], s=72+8*wc, p=88+4*wc, o=96+8*wc, l=112+4*wc, so="s38", imm=2048*wc))
        btiles(T)
        A(f"s_setprio {opts.get('lprio', 0)}")

    A.label("P2_fallback")
    A("s_mov_b32 s24, 1")
    for x in range(2): A(f"v_mov_b32 v{MX[x]}, 0xff800000")
    A("s_mov_b32 s21, 0")
    A.label("P2_maxloop")
    A(f"buffer_load_dwordx4 {vr(KF,4)}, v31, s[4:7], s21 offen{LD}")
    A(f"buffer_load_dwordx4 {vr(KF+4,4)}, v31, s[4:7], s21 offen offset:256{LD}")
    A("s_waitcnt vmcnt(0)")
    for x in range(2): A(M32(SX[x], KF, Q[x], None))
    for x in range(2): A(M32(SX[x], KF+4, Q[x]+4, SX[x]))
    A("s_nop 7")
    A("s_nop 3")
    for x in range(2):
        for i in range(8): A(f"v_max3_f32 v{MX[x]}, v{SX[x]+2*i}, v{SX[x]+2*i+1}, v{MX[x]}")
    A("s_add_u32 s21, s21, 4096")
    A("s_cmp_lt_u32 s21, 0x40000")
    A("s_cbranch_scc1 P2_maxloop")
    for x in range(2):
        A(f"v_mov_b32 v6, v{MX[x]}")
        A("s_nop 1")
        A(f"v_permlane32_swap_b32 v{MX[x]}, v6")
        A("s_nop 1")
        A(f"v_max_f32 v{MX[x]}, v{MX[x]}, v6")
    A("s_barrier")
    A("s_branch P2_restart")

    A.label("P2_helpers")
    p2_ids()
    A("v_mov_b64 v[48:49], 0")
    A("v_mov_b64 v[50:51], 0")
    A("v_lshlrev_b32 v1, 4, v1")
    A("s_lshl_b32 s26, s16, 6")
    A("s_lshl_b32 s27, s17, 3")
    A("s_add_u32 s26, s26, s27")
    A("v_lshrrev_b32 v41, 4, v1")
    p3_targets(40, 42, 41, "s17", 0)
    A("s_lshl_b32 s40, s16, 2")
    A(f"s_add_u32 s40, s40, {WS_F + 128}")
    A("v_add_u32 v40, s40, v40")
    A("s_cmp_eq_u32 s19, 9")
    A("s_cbranch_scc1 P2_aux")
    A("s_lshl_b32 s27, s26, 11")
    A("s_barrier")
    poll("P2_k", 0, 8, 2)
    A.label("P2_lstart")
    def l_stage():
        for g in range(4):
            A(f"s_add_u32 m0, s22, {g * 4096}")
            A(f"s_add_u32 s20, s21, {(g >> 1) * 131072 + (g & 1) * 4096}")
            for i in range(4):
                A(f"buffer_load_dwordx4 v1, s[4:7], s20 offen offset:{1024*i}{LD} lds")
        A("s_add_u32 s21, s21, 8192")
        A(f"s_add_u32 s22, s22, {STG}")
        A(f"s_cmp_eq_u32 s22, {RING}")
        A("s_cselect_b32 s22, 0, s22")
    for g in range(4):
        A(f"s_mov_b32 m0, {BREG + g * 4096}")
        A(f"s_add_u32 s20, s27, {g * 4096}")
        for i in range(4):
            A(f"buffer_load_dwordx4 v1, s[12:15], s20 offen offset:{1024*i}{LD} lds")
    A("s_mov_b32 s21, 0")
    A("s_mov_b32 s22, 0")
    A("s_mov_b32 s23, 0")
    KPRE = opts.get("kpre", 2)
    A.label("P2_lloop")
    l_stage()
    A("s_add_u32 s23, s23, 1")
    A(f"s_cmp_eq_u32 s23, {KPRE}")
    A("s_cbranch_scc0 P2_l1")
    A(f"s_waitcnt vmcnt({16*(KPRE-1)})")
    A("s_barrier")
    A.label("P2_l1")
    A("s_cmp_lt_u32 s23, 5")
    A("s_cbranch_scc1 P2_lloop")
    A("s_waitcnt vmcnt(48)")
    A("s_barrier")
    A("s_cmp_lt_u32 s23, 16")
    A("s_cbranch_scc1 P2_lloop")
    for n_ in (32, 16, 0):
        A(f"s_waitcnt vmcnt({n_})"); A("s_barrier")
    A("s_barrier")
    A("s_branch P2_htail")
    A.label("P2_aux")
    if opts.get("cnt", 2) == 1: poll_cnt("P2_c", 256, 2)
    if opts.get("cnt", 2) == 2:
        A("v_readfirstlane_b32 s46, v23")
        A("s_nop 3")
        A("s_cmp_ge_u32 s46, 256")
        A("s_cbranch_scc1 P2_c_go")
        poll_cnt("P2_c", 256, 2)
    A("s_barrier")
    A("s_cmp_lg_u32 s33, 0")
    A("s_cbranch_scc1 P2_auxb")
    if opts.get("wbl2") == 2:
        A("buffer_wbl2 sc1")
        A("s_waitcnt vmcnt(0)")
    signal(10, 16, 2)
    A("s_branch P2_astart")
    A.label("P2_auxb")
    A("s_add_u32 s38, s30, 1")
    A("s_lshr_b32 s39, s38, 2")
    A("s_and_b32 s38, s38, 3")
    A("s_lshl_b32 s38, s38, 3")
    A("s_add_u32 s38, s38, s39")
    A("s_and_b32 s39, s2, -26")
    A("s_add_u32 s38, s38, s39")
    A("s_lshl_b32 s38, s38, 8")
    A(f"s_add_u32 s38, s38, {WS_F + 32}")
    A("v_mov_b32 v14, s38")
    for i in range(2): A("s_barrier")
    A("s_cmp_eq_u32 s30, 7")
    A("s_cbranch_scc1 P2_auxb1")
    signal(14, 1, 2)
    A.label("P2_auxb1")
    for i in range(2): A("s_barrier")
    A("s_cmp_eq_u32 s30, 0")
    A("s_cbranch_scc1 P2_auxb2")
    aux_halo_issue()
    A("s_barrier")
    aux_halo_compute()
    A("s_branch P2_a1")
    A.label("P2_auxb2")
    A("s_barrier")
    A("s_branch P2_a1")
    A.label("P2_astart")
    for i in range(5): A("s_barrier")
    A.label("P2_a1")
    if opts.get("wo_pf", 1):
        m3 = opts.get("mix3", 0)
        A("s_mov_b32 s10, 0x200000")
        A("s_cmp_lt_u32 s35, 16" if m3 else "s_cmp_lt_u32 s34, 4")
        A(f"s_cselect_b32 s8, s{P_AWO}, s{P_BWO}")
        A(f"s_cselect_b32 s9, s{P_AWO+1}, s{P_BWO+1}")
        A("v_and_b32 v44, 0x70, v1")
        A("v_lshlrev_b32 v44, 3, v44")
        A("v_lshrrev_b32 v45, 7, v1")
        A("v_lshl_add_u32 v44, v45, 11, v44")
        if m3:
            A("s_and_b32 s40, s35, 15")
            A("s_lshl_b32 s40, s40, 17")
            A("s_and_b32 s41, s34, 4")
            A("s_lshl_b32 s41, s41, 8")
        else:
            A("s_lshl_b32 s40, s35, 16")
            A("s_and_b32 s41, s34, 2")
            A("s_lshl_b32 s41, s41, 9")
        A("s_add_u32 s40, s40, s41")
    for i in range(4):
        if opts.get("wo_pf", 1):
            for _ in range(2 if opts.get("mix3", 0) else 1):
                A("buffer_load_dword v46, v44, s[8:11], s40 offen")
                A("s_add_u32 s40, s40, 16384")
        A("s_barrier")
    A("s_cmp_eq_u32 s33, 0")
    A("s_cbranch_scc1 P2_a2")
    A("s_waitcnt vmcnt(0)")
    signal(12, 32, 2)
    A("s_mov_b32 s33, 0")
    A.label("P2_a2")
    p3_ids()
    if opts.get("out_touch", 1):
        A(f"s_mov_b32 s8, s{P_OUT}")
        A(f"s_mov_b32 s9, s{P_OUT+1}")
        A(f"s_mov_b32 s10, {2048*4096}")
        A("s_lshl_b32 s40, s17, 19")
        A("buffer_load_dword v46, off, s[8:11], s40")
    A("v_lshrrev_b32 v52, 4, v1")
    A("s_lshl_b32 s39, s18, 8")
    A(f"s_sub_u32 s6, {1024*2048}, s39")
    A("v_lshrrev_b32 v53, 4, v52")
    A("v_lshlrev_b32 v54, 1, v53")
    A("v_and_b32 v55, 15, v52")
    A("v_xor_b32 v54, v54, v55")
    A("v_lshlrev_b32 v54, 4, v54")
    A("v_lshl_add_u32 v48, v53, 11, v54")
    A("v_xor_b32 v49, 128, v48")
    A(f"v_add_u32 v49, {8192-1024}, v49")
    A("s_lshl_b32 s40, 16384, s16")
    A("s_sub_u32 s40, s40, 2048")
    A("s_lshr_b32 s41, 32768, s16")
    A("s_cmp_eq_u32 s16, 0")
    A("v_add_u32 v50, s40, v48")
    A("v_add_u32 v51, s40, v49")
    A(f"s_cselect_b32 s4, s{P_AWO}, s{P_BWO}")
    A(f"s_cselect_b32 s5, s{P_AWO+1}, s{P_BWO+1}")
    A("s_add_u32 s4, s4, s39")
    A("s_addc_u32 s5, s5, 0")
    A("s_lshl_b32 s21, s34, 18")
    A(f"s_mov_b32 s23, {W3 + 2*S3}")
    A("s_mov_b32 s38, 0")
    assert NW == 6
    def w_issue():
        for q in range(4):
            A(f"s_add_u32 m0, s23, {q*4096}")
            if q & 1: A("s_add_u32 s20, s20, s41")
            else: A(f"s_add_u32 s20, s21, {q*32768}")
            for i in range(4): A(f"buffer_load_dwordx4 v{48+i}, s[4:7], s20 offen offset:{1024*i} lds")
        A("s_add_u32 s21, s21, 0x20000")
        A("s_and_b32 s21, s21, 0x1fffff")
    ring_loader("P3_w", NW, W3, w_issue, None)
    A.label("P2_wback")
    A("s_barrier")
    A("s_cmp_lg_u32 s38, 4")
    A("s_cbranch_scc1 P2_wb1")
    A("s_barrier")
    A.label("P2_wb1")
    A("s_cmp_lt_u32 s38, 6")
    A("s_cbranch_scc1 P3_w_go2")
    A("s_barrier")
    A.label("P2_htail")
    A("s_barrier")
    A("s_cmp_lg_u32 s24, 0")
    A("s_cbranch_scc1 P2_hfin")
    read_flags(8)
    A("s_waitcnt lgkmcnt(0)")
    or_flags(8, 44)
    A("s_nop 3")
    A("s_cmp_eq_u32 s44, 0")
    A("s_cbranch_scc1 P2_hfin")
    A("s_mov_b32 s24, 1")
    A("s_waitcnt vmcnt(0)")
    A("s_barrier")
    A("s_cmp_eq_u32 s19, 9")
    A("s_cbranch_scc1 P2_astart")
    A("s_branch P2_lstart")
    A.label("P2_hfin")
    A("s_cmp_eq_u32 s19, 9")
    A("s_cbranch_scc0 P3_oload")
    A("s_barrier")
    A("s_waitcnt vmcnt(0)")
    A("s_barrier")
    pat = opts.get("wpat")
    if not pat:
        A("s_branch P3_w_l1")
    else:
        g = 24; issued = []
        for b in range(1, 16):
            need = [i for i, gg in enumerate(issued) if gg >> 2 <= b]
            if need: A(f"s_waitcnt vmcnt({min(63, 4 * (len(issued) - 1 - max(need)))})")
            assert g >> 2 > b or g == 64, (g, b)
            A("s_barrier")
            for _ in range(pat[(b - 1) % len(pat)]):
                if g == 64: break
                st_, q = g >> 2, g & 3
                assert st_ - 6 < b
                A(f"s_mov_b32 m0, {W3 + ((st_ + 2) % NW) * S3 + q * 4096}")
                if q & 1: A("s_add_u32 s20, s20, s41")
                else: A(f"s_add_u32 s20, s21, {q*32768}")
                if opts.get("p3noload", 0) < 2:
                    for i in range(4): A(f"buffer_load_dwordx4 v{48+i}, s[4:7], s20 offen offset:{1024*i} lds")
                if q == 3:
                    A("s_add_u32 s21, s21, 0x20000")
                    A("s_and_b32 s21, s21, 0x1fffff")
                issued.append(g); g += 1
        A("s_endpgm")
    A.label("L_done")
    A("s_endpgm")
    hdr = ("; concat_heads__mha_block__sliding_local_dilated__prompt : fused single-launch kernel (generated by gen/mega.py)\n"
           "; Kernarg: 0 A_x, 8 A_wqkv, 16 A_wo, 24 B_x, 32 B_wqkv, 40 B_wo, 48 out, 56 debug, 64 ws\n"
           f"; @launch grid=(256,1,1) block=(640,1,1) lds={LDS_BYTES}\n")
    return hdr + A.text() + '.section .rodata,"a"\n' + descriptor(NAME, 168, 102)

if __name__ == "__main__":
    opts = json.loads(sys.argv[2]) if len(sys.argv) > 2 else {}
    open(sys.argv[1], "w").write(gen(opts))
```

```python
import sys, os, json, struct, math
sys.path.insert(0, os.path.dirname(os.path.abspath(__file__)))
from asmlib import *

NAME = "concat_heads__mha_block__sliding_local_dilated__prompt_kernel"
WS_Q = 0
WS_KV = 4 << 20
WS_H = 12 << 20
WS_O = 24 << 20
WS_F = 32 << 20
WS_BYTES = (32 << 20) + 65536
QSCALE = (32 ** -0.5) * math.log2(math.e)
LDS_BYTES = 163840
def f32bits(x): return struct.unpack("<I", struct.pack("<f", x))[0]
def M32(d, a, b, c):
    cs = "0" if c is None else vr(c, 16)
    return f"v_mfma_f32_32x32x16_bf16 {vr(d,16)}, {vr(a,4)}, {vr(b,4)}, {cs}"
def M16(d, a, b, c):
    cs = "0" if c is None else vr(c, 4)
    return f"v_mfma_f32_16x16x32_bf16 {vr(d,4)}, {vr(a,4)}, {vr(b,4)}, {cs}"

P_AX, P_AW, P_AWO, P_BX, P_BW, P_BWO, P_OUT, P_DBG, P_WS = 76, 78, 80, 82, 84, 86, 88, 90, 92

def gen(opts=None):
    opts = opts or {}
    A = Asm()
    stamp = opts.get("stamp", False)
    SC = " sc1"
    SC1 = opts.get("p1st", " sc1")
    LD = opts.get("ld_mod", " sc1")
    def ST(i):
        if stamp:
            A("s_memrealtime s[100:101]")
            A("s_waitcnt lgkmcnt(0)")
            A(f"s_mov_b32 s{50+i}, s100")
    def lane(dst):
        A(f"v_mbcnt_lo_u32_b32 v{dst}, -1, 0")
        A(f"v_mbcnt_hi_u32_b32 v{dst}, -1, v{dst}")
    def poll_cnt(tag, target, vtmp):
        A(f"s_mov_b32 s47, {opts.get('poll_max', 30000)}")
        A.label(f"{tag}_poll")
        A(f"buffer_load_dword v{vtmp}, off, s[72:75], 0 sc1")
        A("s_waitcnt vmcnt(0)")
        A(f"v_readfirstlane_b32 s46, v{vtmp}")
        A("s_sub_u32 s47, s47, 1")
        A("s_cmp_eq_u32 s47, 0")
        A(f"s_cbranch_scc1 {tag}_go")
        A(f"s_cmp_ge_u32 s46, {target}")
        A(f"s_cbranch_scc1 {tag}_go")
        A("s_sleep 8")
        A(f"s_branch {tag}_poll")
        A.label(f"{tag}_go")
    def poll(tag, off, nflags, vtmp, st=True):
        A(f"s_mov_b32 s47, {opts.get('poll_max', 30000)}")
        A("s_lshl_b32 s46, s2, 8")
        A(f"s_add_u32 s46, s46, {WS_F + off}")
        A(f"v_lshrrev_b32 v{vtmp+1}, 2, v1")
        A(f"v_and_b32 v{vtmp+1}, {4*nflags-1}, v{vtmp+1}")
        if st: ST(0)
        A.label(f"{tag}_poll")
        A(f"buffer_load_dword v{vtmp}, v{vtmp+1}, s[12:15], s46 offen sc1")
        A("s_sub_u32 s47, s47, 1")
        A("s_waitcnt vmcnt(0)")
        A(f"v_cmp_eq_u32 vcc, 0, v{vtmp}")
        A("s_cmp_eq_u32 s47, 0")
        A(f"s_cbranch_scc1 {tag}_go")
        A("s_cmp_eq_u64 vcc, 0")
        A(f"s_cbranch_scc1 {tag}_go")
        if opts.get('poll_sleep', 1): A(f"s_sleep {opts.get('poll_sleep', 1)}")
        A(f"s_branch {tag}_poll")
        A.label(f"{tag}_go")
        if st: ST(1)
        if stamp and st: A("s_mov_b32 s52, s47")
    def p3_targets(dst, tmp, vlane, sblk, xoff):
        A(f"v_lshrrev_b32 v{tmp}, 3, v{vlane}")
        A(f"v_and_b32 v{tmp}, 1, v{tmp}")
        A(f"s_lshl_b32 s40, {sblk}, 1")
        A(f"v_add_u32 v{tmp}, s40, v{tmp}")
        if opts.get("mix3", 0):
            A(f"v_lshrrev_b32 v{dst}, 2, v{tmp}")
            A(f"v_and_b32 v{tmp}, 3, v{tmp}")
            A(f"v_lshl_add_u32 v{dst}, v{tmp}, 3, v{dst}")
            A(f"v_and_b32 v{tmp}, 3, v{vlane}")
            A(f"v_lshl_add_u32 v{dst}, v{tmp}, 5, v{dst}")
            A(f"v_and_b32 v{tmp}, 4, v{vlane}")
            A(f"v_add_u32 v{dst}, v{dst}, v{tmp}")
            if xoff: A(f"v_add_u32 v{dst}, 128, v{dst}")
        else:
            A(f"v_lshrrev_b32 v{dst}, 3, v{tmp}")
            A(f"v_and_b32 v{tmp}, 7, v{tmp}")
            A(f"v_lshl_add_u32 v{dst}, v{tmp}, 3, v{dst}")
            A(f"v_and_b32 v{tmp}, 3, v{vlane}")
            A(f"v_lshl_add_u32 v{dst}, v{tmp}, 6, v{dst}")
            A(f"v_and_b32 v{tmp}, 4, v{vlane}")
            A(f"v_lshrrev_b32 v{tmp}, 1, v{tmp}")
            A(f"v_add3_u32 v{dst}, v{dst}, v{tmp}, {xoff}")
        A(f"v_lshlrev_b32 v{dst}, 8, v{dst}")
    def signal(vaddr, nl, vtmp):
        A(f"v_mov_b32 v{vtmp}, 1")
        A(f"s_mov_b64 exec, {(1 << nl) - 1}")
        A(f"buffer_store_dword v{vtmp}, v{vaddr}, s[12:15], 0 offen sc1")
        A("s_mov_b64 exec, -1")

    A('.amdgcn_target "amdgcn-amd-amdhsa--gfx950"')
    A(".text")
    kernel_begin(A, NAME)
    if opts.get("padto") or opts.get("xst"):
        A("s_memrealtime s[98:99]")
    A("s_load_dwordx16 s[76:91], s[0:1], 0")
    A("s_load_dwordx2 s[92:93], s[0:1], 64")
    A("v_lshrrev_b32 v14, 6, v0")
    A("v_and_b32 v1, 63, v0")
    A("v_readfirstlane_b32 s19, v14")
    A("s_cmp_ge_u32 s2, 256")
    A("s_cbranch_scc1 L_done")
    XSLOT = 32768; WBASE = 3 * XSLOT; WSLOT = 12288; WEND = WBASE + 5 * WSLOT
    A("s_and_b32 s34, s2, 7")
    A("s_lshr_b32 s35, s2, 3")
    mix = opts.get("mix", 1)
    if mix:
        A("s_lshr_b32 s16, s35, 4")
        A("s_and_b32 s17, s34, 1")
        A("s_lshl_b32 s17, s17, 2")
        A("s_and_b32 s36, s35, 3")
        A("s_add_u32 s17, s17, s36")
        A("s_lshr_b32 s18, s34, 1")
        A("s_lshl_b32 s18, s18, 2")
        A("s_lshr_b32 s36, s35, 2")
        A("s_and_b32 s36, s36, 3")
        A("s_add_u32 s18, s18, s36")
    else:
        A("s_lshr_b32 s16, s34, 2")
        A("s_and_b32 s17, s34, 1")
        A("s_lshl_b32 s17, s17, 2")
        A("s_and_b32 s36, s35, 3")
        A("s_add_u32 s17, s17, s36")
        A("s_lshr_b32 s18, s34, 1")
        A("s_and_b32 s18, s18, 1")
        A("s_lshl_b32 s18, s18, 3")
        A("s_lshr_b32 s36, s35, 2")
        A("s_add_u32 s18, s18, s36")
    A(f"s_mov_b32 s14, {WS_BYTES}")
    A("s_mov_b32 s15, 0x20000")
    A("s_mov_b32 s74, 256")
    A("s_mov_b32 s75, 0x20000")
    A("s_mov_b32 s7, 0x20000")
    A("s_mov_b32 s11, 0x20000")
    def common_srds():
        A(f"s_mov_b32 s12, s{P_WS}")
        A(f"s_mov_b32 s13, s{P_WS+1}")
        A(f"s_mov_b32 s72, s{P_DBG}")
        A(f"s_mov_b32 s73, s{P_DBG+1}")
    A("s_cmp_lt_u32 s19, 8")
    A("s_cbranch_scc1 P1_compute")
    if opts.get("lprio"): A(f"s_setprio {opts['lprio']}")
    A("s_lshr_b32 s49, s34, 1")
    A("s_xor_b32 s49, s49, s34")
    A("s_and_b32 s49, s49, 1")
    A("s_lshl_b32 s49, s49, 10")
    A("s_lshl_b32 s23, s16, 9")
    A("s_add_u32 s49, s49, s23")
    A("s_and_b32 s23, s34, 1")
    A("s_lshl_b32 s23, s23, 8")
    A("s_add_u32 s49, s49, s23")
    A("s_add_u32 s48, s17, s18")
    A("s_and_b32 s48, s48, 1")
    A("v_lshrrev_b32 v15, 3, v1")
    A("v_lshrrev_b32 v16, 4, v1")
    A("v_and_b32 v18, 7, v1")
    A("s_mov_b32 s40, 0")
    A("s_cmp_eq_u32 s19, 8")
    A("s_cbranch_scc1 P1_xload")
    A("s_lshl_b32 s39, s18, 7")
    A(f"s_sub_u32 s6, {1024*6144}, s39")
    A("v_and_b32 v16, 1, v16")
    A("v_lshlrev_b32 v16, 1, v16")
    A("v_xor_b32 v16, v18, v16")
    A("v_lshlrev_b32 v16, 4, v16")
    A("v_mul_u32_u24 v17, 6144, v15")
    A("v_add_u32 v2, v17, v16")
    A("v_xor_b32 v16, 64, v16")
    A("v_add_u32 v3, v17, v16")
    A(f"v_add_u32 v3, {8*6144-1024}, v3")
    A(f"v_add_u32 v4, {16*6144-2048}, v2")
    A(f"v_add_u32 v5, {16*6144-2048}, v3")
    A("s_lshl_b32 s48, s48, 1")
    A(f"s_mov_b32 s22, {WBASE}")
    A("v_lshlrev_b32 v20, 2, v1")
    A("v_mov_b32 v21, 0")
    A("v_mov_b32 v22, 1")
    A("s_lshl_b32 s45, s2, 8")
    A(f"s_add_u32 s45, s45, {WS_F}")
    A("s_and_b32 s44, s35, 7")
    A("s_lshl_b32 s44, s44, 1")
    A("s_add_u32 s44, s44, 9")
    A("s_cmp_eq_u32 s16, 0")
    A("s_waitcnt lgkmcnt(0)")
    A(f"s_cselect_b32 s4, s{P_AW}, s{P_BW}")
    A(f"s_cselect_b32 s5, s{P_AW+1}, s{P_BW+1}")
    A("s_add_u32 s4, s4, s39")
    A("s_addc_u32 s5, s5, 0")
    common_srds()
    A("s_branch P1_wgo")
    A.label("P1_wclr")
    A("buffer_store_dword v21, v20, s[12:15], s45 offen sc1")
    A.label("P1_wwait")
    A("s_waitcnt vmcnt(12)")
    A("s_barrier")
    A("s_cmp_eq_u32 s40, s44")
    A("s_cbranch_scc0 P1_wgo")
    A("s_waitcnt vmcnt(0)")
    A("s_mov_b64 exec, 1")
    A("buffer_atomic_add v22, off, s[72:75], 0 sc1")
    if opts.get("padmin"):
        A("s_not_b32 s97, s98")
        A("v_mov_b32 v24, s97")
        A("buffer_atomic_umax v24, off, s[72:75], 0 offset:32 sc1")
    A("s_mov_b64 exec, -1")
    A.label("P1_wgo")
    if opts.get("abl") == "nodma":
        A("s_cmp_lt_u32 s40, 5"); A("s_cbranch_scc1 P1_wgo2"); A("s_add_u32 s40, s40, 1"); A("s_branch P1_w1"); A.label("P1_wgo2")
    A("s_xor_b32 s23, s40, s48")
    A("s_lshl_b32 s23, s23, 6")
    A("s_add_u32 s23, s23, s49")
    A("s_and_b32 s23, s23, 2047")
    A("s_mul_i32 s20, s23, 3072")
    for ty in range(3):
        A(f"s_add_u32 m0, s22, {ty*4096}")
        if ty: A("s_add_u32 s20, s20, 2048")
        else: A("s_add_u32 s40, s40, 1")
        for i in range(4):
            A(f"buffer_load_dwordx4 v{2+i}, s[4:7], s20 offen offset:{1024*i} lds")
    A(f"s_add_u32 s22, s22, {WSLOT}")
    A(f"s_cmp_eq_u32 s22, {WEND}")
    A(f"s_cselect_b32 s22, {WBASE}, s22")
    WPRE = opts.get("wpre", 3)
    A(f"s_cmp_eq_u32 s40, {WPRE}")
    A("s_cbranch_scc0 P1_w1")
    A(f"s_waitcnt vmcnt({12*(WPRE-2)})")
    A("s_barrier")
    A.label("P1_w1")
    A("s_cmp_lt_u32 s40, 5")
    A("s_cbranch_scc1 P1_wgo")
    A("s_bitcmp0_b32 s40, 0")
    A("s_cbranch_scc1 P1_w2")
    A("s_cmp_eq_u32 s40, 5")
    A("s_cbranch_scc1 P1_wclr")
    A("s_branch P1_wwait")
    A.label("P1_w2")
    A("s_cmp_lt_u32 s40, 32")
    A("s_cbranch_scc1 P1_wgo")
    A("s_branch P1_ltail")
    A.label("P1_xload")
    A("s_mov_b32 s6, 0x80000")
    A("s_lshl_b32 s36, s17, 19")
    A("v_xor_b32 v17, v18, v16")
    A("v_lshlrev_b32 v17, 4, v17")
    A("v_lshl_add_u32 v2, v15, 11, v17")
    A("v_xor_b32 v3, 64, v2")
    A(f"v_add_u32 v3, {16384-1024}, v3")
    A(f"v_add_u32 v4, {32768-2048}, v2")
    A(f"v_add_u32 v5, {32768-2048}, v3")
    A("s_mov_b32 s22, 0")
    A("s_cmp_eq_u32 s16, 0")
    A("s_waitcnt lgkmcnt(0)")
    A(f"s_cselect_b32 s4, s{P_AX}, s{P_BX}")
    A(f"s_cselect_b32 s5, s{P_AX+1}, s{P_BX+1}")
    A("s_add_u32 s4, s4, s36")
    A("s_addc_u32 s5, s5, 0")
    if opts.get("xst"): A("s_memrealtime s[96:97]")
    A.label("P1_xgo")
    if opts.get("abl") == "nodma":
        A("s_cmp_gt_u32 s40, 2"); A("s_cbranch_scc1 P1_xskip")
    A("s_xor_b32 s21, s40, s48")
    A("s_lshl_b32 s21, s21, 7")
    A("s_add_u32 s21, s21, s49")
    A("s_and_b32 s21, s21, 2047")
    XB0 = opts.get("xb0", 4)
    for q in range(8):
        A(f"s_add_u32 m0, s22, {q*4096}")
        A(f"s_add_u32 s20, s21, {q*65536}")
        if q == XB0:
            A("s_cmp_eq_u32 s40, 1")
            A("s_cbranch_scc0 P1_x0")
            if opts.get("xst"): A("s_memrealtime s[94:95]")
            A(f"s_waitcnt vmcnt({4*XB0})")
            if opts.get("xst"): A("s_memrealtime s[62:63]")
            A("s_barrier")
            if opts.get("xst"): A("s_memrealtime s[60:61]")
            A.label("P1_x0")
        for i in range(4):
            A(f"buffer_load_dwordx4 v{2+i}, s[4:7], s20 offen offset:{1024*i} lds")
    A.label("P1_xskip")
    A(f"s_add_u32 s22, s22, {XSLOT}")
    A(f"s_cmp_eq_u32 s22, {3*XSLOT}")
    A("s_cselect_b32 s22, 0, s22")
    A("s_add_u32 s40, s40, 1")
    A(f"s_cmp_lt_u32 s40, {2 if XB0 == 8 else 3}")
    A("s_cbranch_scc1 P1_xgo")
    A("s_waitcnt vmcnt(32)")
    A("s_barrier")
    A("s_cmp_lt_u32 s40, 16")
    A("s_cbranch_scc1 P1_xgo")
    if opts.get("xst"):
        common_srds()
        A("s_waitcnt lgkmcnt(0)")
        A("s_lshl_b32 s36, s2, 8")
        A(f"s_add_u32 s36, s36, {64<<20}")
        A("s_mov_b32 s14, 0x8000000")
        for w_ in range(4):
            for i, r in enumerate((98, 96, 94, 62, 60) + (60,) * 6):
                A(f"v_mov_b32 v30, s{r}")
                A(f"buffer_store_dword v30, off, s[12:15], s36 offset:{4*i+64*w_}")
        A(f"s_mov_b32 s14, {WS_BYTES}")
    A.label("P1_ltail")
    common_srds()
    if opts.get("cnt", 2) == 2:
        A("buffer_load_dword v23, off, s[72:75], 0")
    A("s_waitcnt vmcnt(0)")
    A("s_barrier")
    A("v_lshrrev_b32 v10, 3, v1")
    A("s_lshl_b32 s45, s18, 1")
    A("v_add_u32 v10, s45, v10")
    A("v_and_b32 v11, 3, v10")
    A("v_lshrrev_b32 v10, 2, v10")
    A("v_lshl_add_u32 v10, v11, 3, v10")
    A("v_and_b32 v11, 7, v1")
    A("v_lshl_add_u32 v10, v11, 5, v10")
    A("s_lshl_b32 s45, s17, 2")
    A(f"s_add_u32 s45, s45, {WS_F}")
    A("v_lshlrev_b32 v10, 8, v10")
    A("v_add_u32 v10, s45, v10")
    p3_targets(12, 13, 1, "s17", 4)
    A("v_lshrrev_b32 v13, 4, v1")
    A("v_and_b32 v13, 1, v13")
    A("v_lshl_add_u32 v12, v13, 2, v12")
    A("s_lshl_b32 s45, s18, 3")
    A(f"s_add_u32 s45, s45, {WS_F + 128}")
    A("v_add_u32 v12, s45, v12")
    A("s_mov_b32 s33, s16")
    A("s_mov_b32 s30, s17")
    A("s_mov_b32 s31, s18")
    A("s_barrier")
    A("s_branch P2_helpers")
    A.label("P1_compute")
    if opts.get("code_pf", 1):
        A("s_getpc_b64 s[40:41]")
        A("v_and_b32 v20, 127, v0")
        A("v_lshlrev_b32 v20, 7, v20")
        A("v_min_u32 v20, L_done-P1_compute-64, v20")
        A("s_cmp_lt_u32 s19, 2")
        A("s_cbranch_scc0 P1_nopf")
        A("global_load_dword v21, v20, s[40:41]")
        A.label("P1_nopf")
    if opts.get("apf"):
        A("s_cmp_eq_u32 s16, 0")
        A("s_cbranch_scc1 P1_noapf")
        A("s_lshl_b32 s36, s17, 4")
        A("s_add_u32 s36, s36, s18")
        A("s_lshl_b32 s36, s36, 3")
        A("s_add_u32 s36, s36, s19")
        A("v_lshlrev_b32 v20, 7, v1")
        A("s_mov_b32 s6, 0x400000")
        A("s_mov_b32 s10, 0x600000")
        A("s_lshl_b32 s37, s36, 12")
        A("s_mul_i32 s38, s36, 6144")
        A("s_waitcnt lgkmcnt(0)")
        A(f"s_mov_b32 s4, s{P_AX}")
        A(f"s_mov_b32 s5, s{P_AX+1}")
        A(f"s_mov_b32 s8, s{P_AW}")
        A(f"s_mov_b32 s9, s{P_AW+1}")
        if opts["apf"] & 1:
            A("s_mov_b64 exec, 0xffffffff")
            A("buffer_load_dword v22, v20, s[4:7], s37 offen")
        if opts["apf"] & 2:
            A("s_mov_b32 exec_lo, -1")
            A("s_mov_b32 exec_hi, 0xffff")
            A("buffer_load_dword v23, v20, s[8:11], s38 offen")
        A("s_mov_b64 exec, -1")
        A.label("P1_noapf")
    ST(0)
    A("v_lshrrev_b32 v15, 1, v14")
    A("v_and_b32 v16, 15, v1")
    A("v_lshl_add_u32 v17, v15, 6, v16")
    A("v_lshlrev_b32 v17, 7, v17")
    A("v_lshrrev_b32 v16, 1, v16")
    A("v_lshrrev_b32 v18, 4, v1")
    A("v_xor_b32 v16, v16, v18")
    A("v_lshl_add_u32 v2, v16, 4, v17")
    A("v_xor_b32 v3, 64, v2")
    A("v_lshrrev_b32 v16, 2, v1")
    A("v_and_b32 v16, 3, v16")
    A("v_lshl_add_u32 v17, v18, 3, v16")
    A("v_lshlrev_b32 v17, 7, v17")
    A("v_lshrrev_b32 v16, 1, v16")
    A("v_and_b32 v19, 1, v18")
    A("v_lshl_add_u32 v16, v19, 1, v16")
    A("v_and_b32 v19, 1, v14")
    A("v_lshlrev_b32 v19, 1, v19")
    A("v_xor_b32 v16, v16, v19")
    A("v_lshl_add_u32 v17, v16, 5, v17")
    A("v_and_b32 v16, 3, v1")
    A("v_lshl_add_u32 v4, v16, 3, v17")
    A("v_xor_b32 v5, 32, v4")
    A("v_lshlrev_b32 v1, 4, v1")
    ACC = 72; XF = 8; WF = [24, 48]
    AX, AW0, AW1 = 0, 6, 7
    for i in range(0, 96, 2): A(f"v_mov_b64 v[{ACC+i}:{ACC+i+1}], 0")
    A("s_and_b32 s36, s19, 1")
    A("s_lshl_b32 s37, s18, 1")
    A("s_add_u32 s36, s36, s37")
    A("s_lshl_b32 s36, s36, 6")
    A("s_lshl_b32 s37, s17, 3")
    A("s_add_u32 s36, s36, s37")
    A("s_lshr_b32 s37, s19, 1")
    A("s_lshl_b32 s37, s37, 1")
    A("s_add_u32 s36, s36, s37")
    A("s_lshl_b32 s64, s36, 11")
    A("s_add_u32 s65, s64, 2048")
    A("s_lshl_b32 s66, s36, 12")
    A(f"s_add_u32 s66, s66, {WS_KV}")
    A("s_add_u32 s67, s66, 4096")
    A("s_add_u32 s68, s66, 2048")
    A("s_add_u32 s69, s66, 6144")
    A(f"s_mov_b32 s42, {f32bits(QSCALE)}")
    A(f"s_mov_b32 s43, {f32bits(QSCALE)}")
    barpos = opts.get("barpos", 4)
    def xf(st): return XF + 4*st
    def wf(s, n6): return WF[s] + 4*n6
    def acc(st, n6): return ACC + (st*6+n6)*4
    def xrd(st): return ('rd', f"ds_read_b128 {vr(xf(st),4)}, v{AX} offset:{st*2048}", f"x{st}")
    def wrds(s):
        L = []
        for i in range(6):
            ty, nt = i >> 1, i & 1
            for half in range(2):
                L.append(('rd', f"ds_read_b64_tr_b16 {vr(wf(s,i)+2*half,2)}, v{AW0+nt} offset:{ty*4096+half*512}", f"w{s}_{i}"))
        return L
    def mf(s, st, n6):
        d = acc(st, n6)
        t = M16(d, wf(s,n6), xf(st), d) if n6 < 4 else M16(d, xf(st), wf(s,n6), d)
        needs = [f"x{st}", f"w{s}_{n6}"]
        if st == 0 and n6 == 0: needs = ["x0", "x1", "x2"] + [f"w{s}_{i}" for i in range(6)]
        return ('op', t, needs)
    def nextW():
        return [f"s_add_u32 s46, s46, {WSLOT}", f"s_cmp_eq_u32 s46, {WEND}", f"s_cselect_b32 s46, {WBASE}, s46",
                f"v_add_u32 v{AW0}, s46, v4", f"v_add_u32 v{AW1}, s46, v5"]
    A("s_mov_b32 s44, 0")
    A(f"s_mov_b32 s46, {WBASE}")
    A("s_mov_b32 s40, 16")
    A(f"v_mov_b32 v{AX}, v2")
    A(f"v_add_u32 v{AW0}, s46, v4")
    A(f"v_add_u32 v{AW1}, s46, v5")
    A("s_waitcnt lgkmcnt(0)")
    common_srds()
    A("s_waitcnt vmcnt(0)")
    A("s_barrier")
    ST(1)
    if opts.get("p1s", 1) == 0:
        items = []
        for sub in range(2):
            s = sub
            ms = [mf(s, st, (q if st % 2 == 0 else 5 - q)) for st in range(4) for q in range(6)]
            wr = wrds(s ^ 1)
            gaps = [[] for _ in range(24)]
            start = 0 if sub == 0 else barpos
            pre = nextW()
            if sub == 0:
                pre += [f"v_add_u32 v{AX}, s44, v3"]
            else:
                pre += [f"s_add_u32 s44, s44, {XSLOT}", f"s_cmp_eq_u32 s44, {3*XSLOT}", "s_cselect_b32 s44, 0, s44", f"v_add_u32 v{AX}, s44, v2",
                        "s_sub_u32 s40, s40, 1"]
            for i, l in enumerate(pre): gaps[min(i // 3, 2 if sub == 0 else barpos - 1)].append(('raw', l))
            if sub == 1: gaps[barpos - 1].append(('all', "s_barrier"))
            g = max(start, 2)
            for r in wr:
                if g in (5, 11, 17): g += 1
                gaps[g].append(r); g += 1
            assert g <= 23, g
            for st in range(4): gaps[6*st+5].append(xrd(st))
            if sub == 1: gaps[22].append(('raw', "s_cmp_lg_u32 s40, 0"))
            for i in range(24):
                items.append(ms[i]); items += gaps[i]
    else:
        items = []
        AXS = [1, 0]
        for sub in range(2):
            s = sub
            ms = [mf(s, st, (q if st % 2 == 0 else 5 - q)) for st in range(4) for q in range(6)]
            wr = wrds(s ^ 1)
            gaps = [[] for _ in range(24)]
            g = 0 if sub == 0 else barpos
            if sub == 1: gaps[barpos - 1].append(('all', "s_barrier"))
            for r in wr:
                if g in (5, 11, 17): g += 1
                gaps[g].append(r); g += 1
            lastw = g - 1
            for st in range(4):
                gaps[6*st+5].append(('rd', f"ds_read_b128 {vr(xf(st),4)}, v{AXS[sub]} offset:{st*2048}", f"x{st}"))
            nw = nextW()
            if sub == 0:
                sc = [f"s_add_u32 s44, s44, {XSLOT}", f"s_cmp_eq_u32 s44, {3*XSLOT}", "s_cselect_b32 s44, 0, s44", f"v_add_u32 v{AXS[1]}, s44, v2"]
            else:
                sc = [f"v_add_u32 v{AXS[0]}, s44, v3", "s_sub_u32 s40, s40, 1"]
            sc = sc + nw[:3]
            gg = 6
            for l in sc:
                gaps[gg].append(('raw', l)); gg += 1
            gaps[lastw + 1].append(('raw', nw[3])); gaps[lastw + 2].append(('raw', nw[4]))
            if sub == 1: gaps[22].append(('raw', "s_cmp_lg_u32 s40, 0"))
            for i in range(24):
                items.append(ms[i]); items += gaps[i]
    pro = [it for it in items if it[0] == 'rd'][-16:]
    assert sorted(set(t[2] for t in pro)) == sorted([f"x{i}" for i in range(4)] + [f"w0_{i}" for i in range(6)])
    for it in pro: A(it[1])
    if opts.get("p1s", 1):
        for l in nextW(): A(l)
        A("v_mov_b32 v1, v3")
    if opts.get("abl") == "nord":
        for it in wrds(1): A(it[1])
    body1, _ = schedule_waits(items, passes=1, init_queue=[t[2] for t in pro])
    A(".p2align 6")
    A.label("P1_loop")
    for l in body1:
        if opts.get("abl") == "nord" and l.startswith("ds_read") and "v[48:" not in l and False: continue
        if opts.get("abl") == "nord" and l.startswith("ds_read"): l = "s_nop 0"
        A(l)
    A("s_cbranch_scc1 P1_loop")
    if opts.get("p1s", 1):
        lane(1)
        A("v_lshlrev_b32 v1, 4, v1")
    A("s_waitcnt lgkmcnt(0)")
    ST(2)
    A("s_cmp_lg_u32 s16, 0")
    A("s_cbranch_scc1 P1_bepi")
    PARK = 114688
    A("s_and_b32 s36, s19, 1")
    A("s_mul_i32 s36, s36, 24576")
    A("s_lshr_b32 s37, s19, 1")
    A("s_lshl_b32 s37, s37, 13")
    A("s_add_u32 s36, s36, s37")
    A(f"s_add_u32 s36, s36, {PARK - 8192}")
    A("v_add_u32 v6, s36, v1")
    for st in range(4):
        p = 8 + 4 * st
        for nt in range(2):
            d = acc(st, nt)
            for r in (0, 2): A(f"v_pk_mul_f32 v[{d+r}:{d+r+1}], v[{d+r}:{d+r+1}], s[42:43]")
            A(f"v_cvt_pk_bf16_f32 v{p+2*nt}, v{d}, v{d+1}")
            A(f"v_cvt_pk_bf16_f32 v{p+2*nt+1}, v{d+2}, v{d+3}")
        A(f"buffer_store_dwordx4 {vr(p,4)}, v1, s[12:15], s{64+(st>>1)} offen offset:{(st&1)*1024}{SC}")
    kv = []
    for mt in range(2):
        for nt in range(2):
            p = 40 + 8 * mt + 4 * nt; kv.append((p, mt, 2048 + nt * 1024))
            for u in range(2):
                d = acc(2*mt+u, 4+nt)
                A(f"v_cvt_pk_bf16_f32 v{p+2*u}, v{d}, v{d+1}")
                A(f"v_cvt_pk_bf16_f32 v{p+2*u+1}, v{d+2}, v{d+3}")
    for st in range(4):
        p = 24 + 4 * st; kv.insert(st, (p, st >> 1, (st & 1) * 1024))
        for nt in range(2):
            d = acc(st, 2+nt)
            A(f"v_cvt_pk_bf16_f32 v{p+2*nt}, v{d}, v{d+1}")
            A(f"v_cvt_pk_bf16_f32 v{p+2*nt+1}, v{d+2}, v{d+3}")
    for p, mt, off in kv[4:]:
        A(f"v_permlane16_swap_b32 v{p}, v{p+2}")
        A(f"v_permlane16_swap_b32 v{p+1}, v{p+3}")
    A("s_cmp_gt_u32 s19, 1")
    A("s_cbranch_scc1 P1_park")
    for p, mt, off in kv: A(f"buffer_store_dwordx4 {vr(p,4)}, v1, s[12:15], s{66+mt} offen offset:{off}{SC}")
    A("s_branch P1_parked")
    A.label("P1_park")
    for p, mt, off in kv: A(f"ds_write_b128 v6, {vr(p,4)} offset:{mt*4096+off}")
    A.label("P1_parked")
    A("s_waitcnt vmcnt(0) lgkmcnt(0)")
    A("s_barrier")
    A.label("P2_compute")
    ST(3)

    NS = 6; STG = 16384; RING = NS * STG; BREG = RING; FLAGS = 40960; XCH = 0; HX = LDS_BYTES - 16384; OBS = BREG + 16384; STASH = 5 * STG
    IDX = 4; ONES = 8; KF = 12; VF = 20; MX = [28, 29]; SA = 32; SB = 48
    Q = [64, 72]; L = [80, 84]; O = [96, 112]; NEGM = [128, 144]
    QB = 128; KBP = 136; KBC = 144; VBC = 152; VBP = 12; PK = 16; OB = O[1]; LB = L[1]
    def S32(d, a, b): return f"v_smfmac_f32_32x32x32_bf16 {vr(d,16)}, {vr(a,4)}, {vr(b,8)}, v{IDX}"
    def S16(d, a, b): return f"v_smfmac_f32_16x16x64_bf16 {vr(d,4)}, {vr(a,4)}, {vr(b,8)}, v{IDX}"
    def E(r): return f"v_exp_f32 v{r}, v{r}"
    def key_of(r, hb): return 8 * (r >> 2) + 4 * hb + (r & 3)
    def bmask(r, prev):
        m = 0
        for l in range(64):
            d = (l & 31) - key_of(r, l >> 5) + (32 if prev else 0)
            if 0 <= d <= 14 and d % 2 == 0: m |= 1 << l
        return m
    def rowmax(regs, dst, tmp):
        regs = list(regs)
        A(f"v_max3_f32 v{dst}, v{regs[0]}, v{regs[1]}, v{regs[2]}")
        i = 3
        while i + 1 < len(regs):
            A(f"v_max3_f32 v{dst}, v{regs[i]}, v{regs[i+1]}, v{dst}"); i += 2
        if i < len(regs): A(f"v_max_f32 v{dst}, v{regs[i]}, v{dst}")
        A(f"v_mov_b32 v{tmp}, v{dst}")
        A("s_nop 1")
        A(f"v_permlane32_swap_b32 v{dst}, v{tmp}")
        A("s_nop 1")
        A(f"v_max_f32 v{dst}, v{dst}, v{tmp}")
    def read_flags(r):
        A(f"v_mov_b32 v7, {FLAGS}")
        A(f"ds_read_b128 {vr(r,4)}, v7")
        A(f"ds_read_b128 {vr(r+4,4)}, v7 offset:16")
    def or_flags(r, sdst):
        A(f"v_or3_b32 v{r}, v{r}, v{r+4}, v{r+5}")
        A(f"v_or3_b32 v{r}, v{r}, v{r+6}, v{r+7}")
        A(f"v_or3_b32 v{r}, v{r}, v{r+1}, v{r+2}")
        A(f"v_or_b32 v{r}, v{r}, v{r+3}")
        A("s_nop 0")
        A(f"v_readfirstlane_b32 s{sdst}, v{r}")
    def p2_ids():
        A("s_and_b32 s16, s35, 3")
        A("s_lshl_b32 s36, s34, 2")
        A("s_add_u32 s16, s16, s36")
        A("s_lshr_b32 s17, s35, 2")
        A("s_lshl_b32 s36, s16, 18")
        A(f"s_add_u32 s36, s36, {WS_KV}")
        A(f"s_add_u32 s4, s{P_WS}, s36")
        A(f"s_addc_u32 s5, s{P_WS+1}, 0")
        A("s_mov_b32 s6, 0x40000")
        A("s_mov_b32 s24, 0")
    p2_ids()
    A("v_lshrrev_b32 v6, 4, v1")
    A("s_lshr_b32 s18, s19, 2")
    A("s_and_b32 s20, s19, 3")
    A("s_lshl_b32 s20, s20, 1")
    A("s_add_u32 s20, s20, s18")
    A("s_lshl_b32 s26, s17, 3")
    A("s_add_u32 s26, s26, s20")
    A("s_lshl_b32 s39, s18, 13")
    A("v_and_b32 v31, 15, v6")
    A("v_lshlrev_b32 v31, 4, v31")
    A("v_and_b32 v5, 16, v6")
    A("v_lshl_add_u32 v31, v5, 6, v31")
    A("v_and_b32 v5, 32, v6")
    A("v_lshl_add_u32 v31, v5, 4, v31")
    A("s_lshl_b32 s31, s26, 5")
    A("s_add_u32 s31, s31, s16")
    A("s_lshl_b32 s31, s31, 11")
    A(f"s_add_u32 s31, s31, {WS_O}")
    A(f"v_mov_b32 v{IDX}, 0xdddd")
    A("v_and_b32 v5, 4, v6")
    A("v_cmp_eq_u32 vcc, 0, v5")
    A("v_mov_b32 v7, 0x3f803f80")
    A("v_add_u32 v30, s39, v31")
    A(f"v_cndmask_b32 v{ONES}, 0, v7, vcc")
    A(f"v_cndmask_b32 v{ONES+1}, 0, v7, vcc")
    A(f"v_sub_u32 v{ONES+2}, v7, v{ONES}")
    A(f"v_mov_b32 v{ONES+3}, v{ONES+2}")
    A("s_lshl_b32 s27, s20, 11")
    A(f"s_add_u32 s27, s27, {BREG}")
    A("v_add_u32 v5, s27, v31")
    A("v_xor_b32 v6, 2048, v5")
    A.label("P2_restart")
    for x in range(2):
        for i in range(0, 16, 2): A(f"v_mov_b64 v[{O[x]+i}:{O[x]+i+1}], 0")
        for i in range(0, 4, 2): A(f"v_mov_b64 v[{L[x]+i}:{L[x]+i+1}], 0")
    A("v_mov_b32 v2, v30")
    A(f"s_mov_b32 s25, {STG}")
    A(f"v_add_u32 v3, {STG}, v30")
    A("s_mov_b32 s23, 16")
    A("s_barrier")
    ST(4)
    SX = [SA, SB]
    A("s_cmp_lg_u32 s24, 0")
    A("s_cbranch_scc1 P2_main")
    A(f"ds_read_b128 {vr(VF,4)}, v31 offset:0")
    for x in range(2): A(f"ds_read_b128 {vr(Q[x],4)}, v{5+x}")
    A(f"ds_read_b128 {vr(VF+4,4)}, v31 offset:256")
    for x in range(2): A(f"ds_read_b128 {vr(Q[x]+4,4)}, v{5+x} offset:256")
    A("s_waitcnt lgkmcnt(3)")
    for x in range(2): A(M32(SX[x], VF, Q[x], None))
    A("s_waitcnt lgkmcnt(0)")
    for x in range(2): A(M32(SX[x], VF+4, Q[x]+4, SX[x]))
    A("s_nop 7")
    A("s_nop 2")
    for x in range(2): rowmax(range(SX[x], SX[x]+16), MX[x], 6)
    A.label("P2_main")
    A(f"ds_read_b128 {vr(KF,4)}, v2 offset:0")
    A(f"ds_read_b128 {vr(KF+4,4)}, v2 offset:256")
    A(f"ds_read_b128 {vr(VF,4)}, v2 offset:2048")
    def negm(x):
        A(f"v_sub_f32 v{NEGM[x]}, 0, v{MX[x]}")
        A(f"v_sub_f32 v{NEGM[x]+1}, 0, v{MX[x]}")
        for i in range(2, 16, 2): A(f"v_mov_b64 v[{NEGM[x]+i}:{NEGM[x]+i+1}], v[{NEGM[x]}:{NEGM[x]+1}]")
    negm(0)
    for i in (0, 2): A(f"v_mov_b64 v[{VF+4+i}:{VF+5+i}], 0")
    A("s_waitcnt lgkmcnt(1)")
    A(M32(SA, KF, Q[0], NEGM[0]))
    A(M32(SA, KF+4, Q[0]+4, SA))
    negm(1)
    for i in range(0, 8, 2): A(f"v_mov_b64 v[{SB+8+i}:{SB+9+i}], 0")
    A(E(SA))
    A("s_nop 0")
    A(".p2align 6")
    A.label("P2_loop")
    def rd(dst, tile, off):
        a, t = ("v2", tile) if tile < 2 else ("v3", tile - 2)
        return f"ds_read_b128 {vr(dst,4)}, {a} offset:{t*4096+off}"
    if opts.get("sched", 1) == 0:
        for u in range(4):
            cur, nxt = (SA, SB) if u % 2 == 0 else (SB, SA)
            i = u // 2; xc = u % 2; xp = xn = xc ^ 1
            if xc == 0:
                w_pv1 = w_qka = w_qkb = None; w_pv0 = 3
                r_pv1 = [rd(VF+4, i, 2304)]; r_qka = [rd(KF, i+1, 0)]; r_qkb = [rd(KF+4, i+1, 256)]; r_pv0 = []
            else:
                w_pv1, w_qka, w_qkb, w_pv0 = 2, 1, 0, None
                r_pv1 = r_qka = r_qkb = []; r_pv0 = [rd(VF, i+1, 2048)]
            bar = (u == 1)
            last = (u == 3)
            def W(n):
                if n is not None: A(f"s_waitcnt lgkmcnt({n})")
            if w_pv1 is None: A("s_nop 0")
            W(w_pv1)
            A(S32(O[xp], VF+4, nxt+8))
            for l in r_pv1: A(l)
            A(E(cur+1)); A(E(cur+2)); A(E(cur+3))
            A(S16(L[xp], ONES, nxt+8))
            A(E(cur+4)); A(E(cur+5))
            W(w_qka)
            A(M32(nxt, KF, Q[xn], NEGM[xn]))
            for l in r_qka: A(l)
            A(E(cur+6)); A(E(cur+7)); A(E(cur+8))
            W(w_qkb)
            A(M32(nxt, KF+4, Q[xn]+4, nxt))
            if bar: A("s_barrier")
            for l in r_qkb: A(l)
            A(E(cur+9)); A(E(cur+10)); A(E(cur+11))
            W(w_pv0)
            A(S32(O[xc], VF, cur))
            for l in r_pv0: A(l)
            A(E(cur+12))
            if last: A(f"s_add_u32 s25, s25, {STG}")
            A(E(cur+13))
            if last: A(f"s_cmp_eq_u32 s25, {RING}")
            A(E(cur+14))
            if last: A("s_cselect_b32 s25, 0, s25")
            A(S16(L[xc], ONES, cur))
            if last:
                A("s_sub_u32 s23, s23, 1")
                A("v_mov_b32 v2, v3")
                A("v_add_u32 v3, s25, v30")
                A("s_cmp_lg_u32 s23, 0")
            else: A("s_nop 0")
            A(E(cur+15)); A(E(nxt))
            if last: A("s_cbranch_scc1 P2_loop")
    else:
        barslot = (1, 0)
        for u in range(4):
            cur, nxt = (SA, SB) if u % 2 == 0 else (SB, SA)
            i = u // 2; xc = u % 2; xp = xn = xc ^ 1
            last = (u == 3)
            e = [E(cur+k) for k in range(1, 16)] + [E(nxt)]
            PV1 = S32(O[xp], VF+4, nxt+8); SM1 = S16(L[xp], ONES, nxt+8)
            QA = M32(nxt, KF, Q[xn], NEGM[xn]); QB_ = M32(nxt, KF+4, Q[xn]+4, nxt)
            PV0 = S32(O[xc], VF, cur); SM0 = S16(L[xc], ONES, cur)
            def F(k, dflt="s_nop 0"):
                if (u, k) == tuple(barslot): return ["s_barrier"]
                if (u, k) == (1, 2): return ["s_waitcnt vmcnt(0)"]
                return [dflt]
            W = lambda n: f"s_waitcnt lgkmcnt({n})"
            if xc == 0:
                seq = (F(2) if u else []) + [SM1] + e[0:2] + [PV1, rd(VF+4, i, 2304)] + e[2:5] + [QA, rd(KF, i+1, 0)] + e[5:8] + [QB_, rd(KF+4, i+1, 256)] + e[8:11] + [SM0] + e[11:13] + [W(3), PV0] + F(1) + e[13:16]
            elif not last:
                seq = F(2) + [SM1] + e[0:2] + [W(2), PV1] + e[2:5] + [W(0), QA] + e[5:8] + [QB_] + F(0) + e[8:11] + [SM0] + e[11:13] + [PV0, rd(VF, i+1, 2048)] + F(1) + e[13:16]
            else:
                seq = [f"s_add_u32 s25, s25, {STG}", SM1] + e[0:2] + [W(2), PV1, f"s_cmp_eq_u32 s25, {RING}"] + e[2:5] + [W(0), QA, "s_cselect_b32 s25, 0, s25"] + e[5:8] + \
                      [QB_, "s_sub_u32 s23, s23, 1"] + e[8:11] + [SM0, "s_cmp_lg_u32 s23, 0"] + e[11:13] + [PV0, rd(VF, i+1, 2048), "v_mov_b32 v2, v3", "v_add_u32 v3, s25, v30"] + e[13:16] + ["s_cbranch_scc1 P2_loop"]
            for l in seq: A(l)
    A("s_waitcnt lgkmcnt(0)")
    A(S32(O[1], VF+4, SB+8))
    A(S16(L[1], ONES, SB+8))
    ST(5)
    A(f"s_mov_b32 s44, {f32bits(2.0**56)}")
    A("s_mul_i32 s36, s19, 5120")
    A("v_add_u32 v7, s36, v1")
    A(f"v_mul_f32 v5, s44, v{L[0]}")
    for i in range(0, 16, 2): A(f"v_maximum3_f32 v5, |v{O[0]+i}|, |v{O[0]+i+1}|, v5")
    A(f"s_mov_b32 s45, {f32bits(2.0**120)}")
    for i in range(4): A(f"ds_write_b128 v7, {vr(O[1]+4*i,4)} offset:{XCH+1024*i}")
    A(f"ds_write_b32 v7, v{L[1]} offset:{XCH+4096}")
    A(f"v_mul_f32 v6, s44, v{L[1]}")
    for i in range(0, 16, 2): A(f"v_maximum3_f32 v6, |v{O[1]+i}|, |v{O[1]+i+1}|, v6")
    A("v_maximum3_f32 v5, v5, v6, v6")
    A("s_lshl_b32 s36, s19, 2")
    A(f"s_add_u32 s36, s36, {FLAGS}")
    A("v_cmp_ngt_f32 vcc, s45, v5")
    A("v_mov_b32 v7, s36")
    A("s_xor_b32 s36, s19, 4")
    A("s_mul_i32 s36, s36, 5120")
    A("v_add_u32 v3, s36, v1")
    if opts.get("force_fb"): A("s_mov_b64 vcc, -1")
    A("s_cmp_lg_u64 vcc, 0")
    A("s_cselect_b32 s44, 1, 0")
    A("v_mov_b32 v6, s44")
    A("ds_write_b32 v7, v6")
    A("s_waitcnt lgkmcnt(0)")
    A("s_barrier")
    A(f"ds_read_b32 v5, v3 offset:{XCH+4096}")
    for i in range(4): A(f"ds_read_b128 {vr(SA+4*i,4)}, v3 offset:{XCH+1024*i}")
    read_flags(SB)
    A("s_waitcnt lgkmcnt(2)")
    A(f"v_add_f32 v6, v5, v{L[0]}")
    A("v_rcp_f32 v6, v6")
    for i in range(0, 16, 2): A(f"v_pk_add_f32 v[{O[0]+i}:{O[0]+i+1}], v[{SA+i}:{SA+i+1}], v[{O[0]+i}:{O[0]+i+1}]")
    for i in range(0, 16, 2): A(f"v_pk_mul_f32 v[{O[0]+i}:{O[0]+i+1}], v[{O[0]+i}:{O[0]+i+1}], v[6:7] op_sel_hi:[1,0]")
    for i in range(8): A(f"v_cvt_pk_bf16_f32 v{SA+i}, v{O[0]+2*i}, v{O[0]+2*i+1}")
    for m in range(2):
        A(f"buffer_store_dwordx4 {vr(SA+4*m,4)}, v1, s[12:15], s31 offen offset:{1024*m}{SC}")
    A("s_cmp_lg_u32 s24, 0")
    A("s_cbranch_scc1 P2_fin")
    A("s_waitcnt lgkmcnt(0)")
    or_flags(SB, 44)
    A("s_nop 3")
    A("s_cmp_eq_u32 s44, 0")
    A("s_cbranch_scc0 P2_fallback")
    A.label("P2_fin")
    ST(6)
    A("s_waitcnt vmcnt(0)")
    A("s_barrier")
    ST(7)
    A("s_cmp_gt_u32 s19, 3")
    A("s_cbranch_scc1 L_done")

    NO = opts.get("no", 4); NW = 10 - NO; S3 = 16384; W3 = NO * S3
    def p3_ids():
        if opts.get("mix3", 0):
            A("s_lshr_b32 s16, s35, 4")
            A("s_and_b32 s17, s34, 3")
            A("s_lshl_b32 s17, s17, 2")
            A("s_and_b32 s36, s35, 3")
            A("s_add_u32 s17, s17, s36")
            A("s_and_b32 s18, s34, 4")
            A("s_lshr_b32 s36, s35, 2")
            A("s_and_b32 s36, s36, 3")
            A("s_add_u32 s18, s18, s36")
            return
        A("s_lshr_b32 s16, s34, 2")
        A("s_and_b32 s17, s34, 1")
        A("s_lshl_b32 s17, s17, 3")
        A("s_and_b32 s36, s35, 7")
        A("s_add_u32 s17, s17, s36")
        A("s_lshr_b32 s18, s34, 1")
        A("s_and_b32 s18, s18, 1")
        A("s_lshl_b32 s18, s18, 2")
        A("s_lshr_b32 s36, s35, 3")
        A("s_add_u32 s18, s18, s36")
    p3_ids()
    A("v_lshrrev_b32 v1, 4, v1")
    A("s_lshr_b32 s36, s19, 1")
    A("s_and_b32 s37, s19, 1")
    A("v_lshrrev_b32 v18, 4, v1")
    A("v_and_b32 v17, 15, v1")
    A("v_lshlrev_b32 v2, 4, v17")
    A("v_lshl_add_u32 v2, v18, 9, v2")
    A("s_lshl_b32 s38, s36, 13")
    A("v_add_u32 v2, s38, v2")
    A("v_lshrrev_b32 v19, 2, v1")
    A("v_and_b32 v19, 7, v19")
    A("v_lshrrev_b32 v20, 5, v1")
    A("v_lshl_add_u32 v20, v20, 4, v19")
    A("v_lshlrev_b32 v20, 8, v20")
    A("s_lshl_b32 s38, s37, 2")
    A("v_xor_b32 v21, s38, v19")
    A("v_lshl_add_u32 v20, v21, 5, v20")
    A("v_and_b32 v21, 3, v1")
    A("v_lshl_add_u32 v3, v21, 3, v20")
    for a in range(1, 4): A(f"v_xor_b32 v{3+a}, {32*a}, v3")
    ACC3 = 88; FS = [24, 56]; AO = 8; AW = 9
    for i in range(0, 64, 2): A(f"v_mov_b64 v[{ACC3+i}:{ACC3+i+1}], 0")
    for i in range(0, 32, 2): A(f"v_mov_b64 v[{FS[1]+i}:{FS[1]+i+1}], 0")
    A("v_lshlrev_b32 v22, 12, v17")
    A("v_and_b32 v21, 1, v18")
    A("v_lshl_add_u32 v22, v21, 5, v22")
    A("v_lshrrev_b32 v21, 1, v18")
    A("v_lshl_add_u32 v22, v21, 4, v22")
    A("s_lshl_b32 s38, s17, 7")
    A("s_lshl_b32 s36, s36, 6")
    A("s_add_u32 s36, s36, s38")
    A("s_lshl_b32 s36, s36, 12")
    A("s_lshl_b32 s38, s16, 11")
    A("s_add_u32 s36, s36, s38")
    A("s_lshl_b32 s38, s18, 8")
    A("s_add_u32 s36, s36, s38")
    A("s_lshl_b32 s37, s37, 7")
    A("s_add_u32 s40, s36, s37")
    for st in range(1, 4): A(f"s_add_u32 s{40+st}, s40, {st*16*4096}")
    A(f"s_mov_b32 s8, s{P_OUT}")
    A(f"s_mov_b32 s9, s{P_OUT+1}")
    A(f"s_mov_b32 s10, {2048*4096}")
    def of(s, st): return FS[s] + 4*st
    def wf3(s, a): return FS[s] + 16 + 4*a
    def acc3(st, a): return ACC3 + (st*4+a)*4
    def rd_items(hh, s):
        L_ = [('rd', f"ds_read_b128 {vr(of(s,0),4)}, v{AO} offset:{hh*2048}", f"o{s}_0")]
        for i in range(4):
            for half in range(2):
                L_.append(('rd', f"ds_read_b64_tr_b16 {vr(wf3(s,i)+2*half,2)}, v{AW+i} offset:{hh*8192+half*2048}", f"w{s}_{i}"))
        for i in range(1, 4):
            L_.append(('rd', f"ds_read_b128 {vr(of(s,i),4)}, v{AO} offset:{(i>>1)*4096+hh*2048+(i&1)*256}", f"o{s}_{i}"))
        return L_
    def mf_items(s):
        L_ = []
        for st in range(4):
            for a in (range(4) if st % 2 == 0 else range(3, -1, -1)):
                needs = [f"o{s}_{st}", f"w{s}_{a}"]
                if st == 0 and a == 0: needs += [f"w{s}_{i}" for i in range(4)] + [f"o{s}_{i}" for i in range(4)]
                L_.append(('op', M16(acc3(st, a), wf3(s, a), of(s, st), acc3(st, a)), needs))
        return L_
    upd = [f"s_add_u32 s23, s23, {S3}", f"s_cmp_eq_u32 s23, {W3}", "s_cselect_b32 s23, 0, s23", f"v_add_u32 v{AO}, s23, v2",
           f"s_add_u32 s22, s22, {S3}", f"s_cmp_eq_u32 s22, {LDS_BYTES}", f"s_cselect_b32 s22, {W3}, s22", "s_sub_u32 s38, s38, 1"] + \
          [f"v_add_u32 v{AW+a}, s22, v{3+a}" for a in range(4)] + ["s_cmp_lg_u32 s38, 0"]
    upd = [('raw', u) for u in upd]
    items = [('all', "s_barrier")] + interleave(mf_items(1), rd_items(0, 0), [2] * 16)
    items += interleave(mf_items(0), rd_items(1, 1) + upd, [2] * 16)
    body, _ = schedule_waits(items, passes=2)
    A("s_mov_b32 s23, 0")
    A(f"s_mov_b32 s22, {W3 + 2*S3}")
    A("s_mov_b32 s38, 16")
    A(f"v_mov_b32 v{AO}, v2")
    for a in range(4): A(f"v_add_u32 v{AW+a}, s22, v{3+a}")
    if stamp:
        A("s_barrier"); ST(8); A("s_branch P3_first")
    A(".p2align 6")
    A.label("P3_loop")
    for i, l in enumerate(body):
        A(l)
        if l == "s_barrier" and stamp: A.label("P3_first")
    A("s_cbranch_scc1 P3_loop")
    A("s_waitcnt lgkmcnt(0)")
    for it in mf_items(1): A(it[1])
    ST(9)
    n = 0
    for st in range(4):
        for pr in range(2):
            p = 24 + n * 4; n += 1
            for u in range(2):
                d = acc3(st, 2*pr+u)
                A(f"v_cvt_pk_bf16_f32 v{p+2*u}, v{d}, v{d+1}")
                A(f"v_cvt_pk_bf16_f32 v{p+2*u+1}, v{d+2}, v{d+3}")
        A("s_nop 1")
        for pr in range(2):
            p = 24 + (n - 2 + pr) * 4
            A(f"v_permlane16_swap_b32 v{p}, v{p+2}")
            A(f"v_permlane16_swap_b32 v{p+1}, v{p+3}")
            A(f"buffer_store_dwordx4 {vr(p,4)}, v22, s[8:11], s{40+st} offen offset:{pr*64}{SC}")
    if opts.get("padto"):
        A("s_waitcnt vmcnt(0)")
        A(f"s_mov_b32 s37, {opts['padto']}")
        if opts.get("padmin"):
            A("buffer_load_dword v3, off, s[72:75], 0 offset:32 sc1")
            A("s_waitcnt vmcnt(0)")
            A("v_readfirstlane_b32 s98, v3")
            A("s_nop 3")
            A("s_not_b32 s98, s98")
        if opts.get("probe") is not None:
            ST(10)
            A(f"s_sub_u32 s37, s{50+opts['probe']}, s98")
            A(f"s_add_u32 s37, s37, {opts['padto']}")
        A.label("L_pad")
        A("s_memrealtime s[100:101]")
        A("s_waitcnt lgkmcnt(0)")
        A("s_sub_u32 s36, s100, s98")
        A("s_cmp_lt_u32 s36, s37")
        A("s_cbranch_scc1 L_pad")
        if opts.get("probe") is not None: A("s_endpgm")
    if stamp:
        A("s_waitcnt vmcnt(0)")
        ST(10)
        if opts.get("dbgout") is not None:
            A(f"s_cmp_lg_u32 s2, {opts['dbgout']}")
            A("s_cbranch_scc1 L_nodbg")
            A("s_cmp_lg_u32 s19, 0")
            A("s_cbranch_scc1 L_nodbg")
            for i in range(1, 11):
                A(f"s_sub_u32 s36, s{50+i}, s50")
                A("v_mov_b32 v3, s36")
                A(f"buffer_store_dword v3, off, s[72:75], 0 offset:{4*i}")
            A.label("L_nodbg")
        A("s_lshl_b32 s36, s2, 2")
        A("s_add_u32 s36, s36, s19")
        A("s_lshl_b32 s36, s36, 6")
        A(f"s_add_u32 s36, s36, {64<<20}")
        A("s_mov_b32 s14, 0x8000000")
        for i in range(12):
            A(f"v_mov_b32 v3, s{50+i}")
            A(f"buffer_store_dword v3, off, s[12:15], s36 offset:{4*i}")
    A("s_endpgm")
    def ring_loader(tag, nslots, base, issue, pre):
        if pre is not None:
            A(f"s_mov_b32 s23, {base}")
            A("s_mov_b32 s38, 0")
        A.label(f"{tag}_go2")
        issue()
        A("s_add_u32 s38, s38, 1")
        A(f"s_add_u32 s23, s23, {S3}")
        A(f"s_cmp_eq_u32 s23, {base + nslots*S3}")
        A(f"s_cselect_b32 s23, {base}, s23")
        if pre is None:
            A(f"s_cmp_le_u32 s38, {nslots}")
            A("s_cbranch_scc1 P2_wback")
            A.label(f"{tag}_l1")
        else:
            A(f"s_cmp_eq_u32 s38, {pre}")
            A(f"s_cbranch_scc0 {tag}_l1")
            A(f"s_waitcnt vmcnt({min(63, 16*(pre-1))})")
            A("s_barrier")
            A.label(f"{tag}_l1")
            A(f"s_cmp_lt_u32 s38, {nslots}")
            A(f"s_cbranch_scc1 {tag}_go2")
        A(f"s_waitcnt vmcnt({min(63, 16*(nslots-2))})")
        A("s_barrier")
        A("s_cmp_lt_u32 s38, 16")
        A(f"s_cbranch_scc1 {tag}_go2")
        for j in range(nslots - 2):
            A(f"s_waitcnt vmcnt({min(63, 16*(nslots-3-j))})")
            A("s_barrier")
        if stamp and opts.get("probe") is None:
            A("s_lshl_b32 s36, s2, 1")
            A("s_and_b32 s37, s19, 1")
            A("s_add_u32 s36, s36, s37")
            A("s_lshl_b32 s36, s36, 6")
            A(f"s_add_u32 s36, s36, {65<<20}")
            A("s_mov_b32 s14, 0x8000000")
            for i in range(3):
                A(f"v_mov_b32 v3, s{50+i}")
                A(f"buffer_store_dword v3, off, s[12:15], s36 offset:{4*i}")
        A("s_endpgm")
    A.label("P3_oload")
    p3_ids()
    A("s_lshl_b32 s36, s16, 22")
    A("s_lshl_b32 s37, s17, 18")
    A("s_add_u32 s36, s36, s37")
    A(f"s_add_u32 s36, s36, {WS_O}")
    A(f"s_add_u32 s4, s{P_WS}, s36")
    A(f"s_addc_u32 s5, s{P_WS+1}, 0")
    A("s_mov_b32 s6, 0x40000")
    A("s_lshl_b32 s21, s34, 13")
    A("s_barrier")
    signal(40, 16, 2)
    poll("P3_o", 128, 32, 2)
    def o_issue():
        for t in range(4):
            A(f"s_add_u32 m0, s23, {t*4096}")
            A(f"s_add_u32 s20, s21, {t*65536}")
            if not opts.get("p3noload"):
                for i in range(4): A(f"buffer_load_dwordx4 v1, s[4:7], s20 offen offset:{1024*i}{LD} lds")
        A("s_add_u32 s21, s21, 4096")
        A("s_and_b32 s21, s21, 0xffff")
    ring_loader("P3_o", NO, 0, o_issue, opts.get("opre", 2))


    A.label("P1_bepi")
    def QP(st): return 8 + 4*st
    def KP(st): return 28 + 4*st
    def VW(nt, st): return 46 + 10*nt + 2*st
    MC, MP, ON = 64, 68, 2
    def SS(st): return 72 + 8*st
    def PB(st): return 104 + 4*st
    def OT(st, nt): return 120 + 8*st + 4*nt
    def LR(st): return 152 + 4*st
    def cv(d, a): A(f"v_cvt_pk_bf16_f32 v{d}, v{a}, v{a+1}")
    A("s_lshl_b32 s36, s19, 11")
    A(f"s_add_u32 s36, s36, {HX}")
    A("v_add_u32 v6, s36, v1")
    for st in (3, 0, 1, 2):
        for nt in range(2):
            cv(KP(st)+2*nt, acc(st, 2+nt)); cv(KP(st)+2*nt+1, acc(st, 2+nt)+2)
            cv(VW(nt, st), acc(st, 4+nt)); cv(VW(nt, st)+1, acc(st, 4+nt)+2)
        if st == 3:
            A(f"ds_write_b128 v6, {vr(KP(3),4)}")
            A(f"ds_write_b64 v6, {vr(VW(0,3),2)} offset:1024")
            A(f"ds_write_b64 v6, {vr(VW(1,3),2)} offset:1032")
            A("s_lshl_b32 s36, s18, 3")
            A("s_add_u32 s36, s36, s17")
            A("s_lshl_b32 s36, s36, 1")
            A("s_and_b32 s37, s19, 1")
            A("s_add_u32 s36, s36, s37")
            A("s_lshl_b32 s36, s36, 11")
            A(f"s_add_u32 s36, s36, {WS_H}")
            A("s_cmp_lt_u32 s19, 6")
            A("s_cbranch_scc1 P1_b1")
            A(f"buffer_store_dwordx4 {vr(KP(3),4)}, v1, s[12:15], s36 offen{SC}")
            A(f"buffer_store_dwordx2 {vr(VW(0,3),2)}, v1, s[12:15], s36 offen offset:1024{SC}")
            A(f"buffer_store_dwordx2 {vr(VW(1,3),2)}, v1, s[12:15], s36 offen offset:1032{SC}")
            A.label("P1_b1")
    A("s_waitcnt lgkmcnt(0)")
    A("s_barrier")
    A("v_subrev_u32 v6, 4096, v6")
    A(f"ds_read_b128 {vr(KP(-1),4)}, v6")
    A(f"ds_read_b64 {vr(VW(0,-1),2)}, v6 offset:1024")
    A(f"ds_read_b64 {vr(VW(1,-1),2)}, v6 offset:1032")
    for st in range(4):
        for nt in range(2):
            d = acc(st, nt)
            for r in (0, 2): A(f"v_pk_mul_f32 v[{d+r}:{d+r+1}], v[{d+r}:{d+r+1}], s[42:43]")
            cv(QP(st)+2*nt, d); cv(QP(st)+2*nt+1, d+2)
    def bconsts():
        A("v_mov_b32 v7, 0xff800000")
        for prev in range(2):
            for r in range(4):
                m = 0
                for l in range(64):
                    dl = (l & 15) - (4 * (l >> 4) + r) + 16 * prev
                    if 0 <= dl <= 14 and dl % 2 == 0: m |= 1 << l
                A(f"s_mov_b32 s40, {m & 0xffffffff}")
                A(f"s_mov_b32 s41, {m >> 32}")
                A(f"v_cndmask_b32 v{(MP if prev else MC)+r}, v7, 0, s[40:41]")
        for r in range(4): A(f"v_mov_b32 v{ON+r}, 0x3f803f80")
        A("v_and_b32 v0, 0xf0, v1")
        A("v_and_b32 v6, 0x300, v1")
        A("v_lshl_add_u32 v0, v6, 1, v0")
    bconsts()
    def tile(st):
        return dict(q=QP(st), kp=KP(st-1), kc=KP(st), v=[VW(0, st-1), VW(1, st-1)], s=SS(st), p=PB(st), o=OT(st, 0), l=LR(st),
                    so=f"s{38+(st>>1)}", imm=(st&1)*256)
    def btiles(T):
        k = len(T)
        def pad(n):
            if n - (k - 1) > 0: A(f"s_nop {n - (k - 1) - 1}")
        for t in T:
            A(M16(t['s'], t['kp'], t['q'], t.get('mp', MP)))
            A(M16(t['s']+4, t['kc'], t['q'], MC))
        A("s_nop 7")
        for i in range(4):
            for t in T:
                b_ = t['s']; m = t['l']
                if i == 0: A(f"v_max3_f32 v{m}, v{b_}, v{b_+1}, v{b_+2}")
                elif i < 3: A(f"v_max3_f32 v{m}, v{b_+2*i+1}, v{b_+2*i+2}, v{m}")
                else: A(f"v_max_f32 v{m}, v{b_+7}, v{m}")
        for sw in ("v_permlane32_swap_b32", "v_permlane16_swap_b32"):
            for t in T: A(f"v_mov_b32 v{t['l']+1}, v{t['l']}")
            pad(2)
            for t in T: A(f"{sw} v{t['l']}, v{t['l']+1}")
            pad(2)
            for t in T: A(f"v_max_f32 v{t['l']}, v{t['l']}, v{t['l']+1}")
        for t in T:
            for r in range(0, 8, 2):
                b_ = t['s'] + r
                A(f"v_pk_add_f32 v[{b_}:{b_+1}], v[{b_}:{b_+1}], v[{t['l']}:{t['l']+1}] op_sel_hi:[1,0] neg_lo:[0,1] neg_hi:[0,1]")
        for t in T:
            for r in range(8): A(f"v_exp_f32 v{t['s']+r}, v{t['s']+r}")
        A("s_nop 0")
        for t in T:
            for r in range(4): cv(t['p']+r, t['s']+2*r)
        A("s_nop 1")
        for t in T:
            A(M16(t['l'], ON, t['p'], None))
            for nt in range(2): A(M16(t['o']+4*nt, t['v'][nt], t['p'], None))
        A("s_nop 7")
        for t in T: A(f"v_rcp_f32 v{t['l']}, v{t['l']}")
        A("s_nop 0")
        for t in T:
            for r in range(0, 8, 2):
                b_ = t['o'] + r
                A(f"v_pk_mul_f32 v[{b_}:{b_+1}], v[{b_}:{b_+1}], v[{t['l']}:{t['l']+1}] op_sel_hi:[1,0]")
            for r in range(4): cv(t['s']+r, t['o']+2*r)
            if 'lds' in t: A(f"ds_write_b128 v6, {vr(t['s'],4)} offset:{t['lds']}")
            else: A(f"buffer_store_dwordx4 {vr(t['s'],4)}, v0, s[12:15], {t['so']} offen offset:{t['imm']}{SC}")
    MP0 = PB(3)
    for r in (0, 2): A(f"v_mov_b64 {vr(MP0+r,2)}, {vr(MP+r,2)}")
    A("s_waitcnt lgkmcnt(0)")
    A("s_cmp_gt_u32 s19, 1")
    A("s_cbranch_scc1 P1_b4")
    for r in range(4): A(f"v_mov_b32 v{MP0+r}, v7")
    for r in (0, 2): A(f"v_mov_b64 {vr(KP(-1)+r,2)}, 0")
    for nt in range(2): A(f"v_mov_b64 {vr(VW(nt,-1),2)}, 0")
    A("s_mul_i32 s40, s19, 3072")
    A(f"s_add_u32 s40, s40, {STASH}")
    A("v_add_u32 v6, s40, v1")
    A(f"ds_write_b128 v6, {vr(QP(0),4)}")
    A(f"ds_write_b128 v6, {vr(KP(0),4)} offset:1024")
    A(f"ds_write_b64 v6, {vr(VW(0,0),2)} offset:2048")
    A(f"ds_write_b64 v6, {vr(VW(1,0),2)} offset:2056")
    A.label("P1_b4")
    A("s_and_b32 s38, s19, 6")
    A("s_lshl_b32 s38, s38, 12")
    A("s_lshl_b32 s39, s37, 11")
    A("s_add_u32 s38, s38, s39")
    A(f"s_add_u32 s38, s38, {OBS}")
    A("v_add_u32 v6, s38, v0")
    T = [tile(st) for st in range(4)]
    for st in range(4): T[st]['lds'] = (st >> 1) * 4096 + (st & 1) * 256
    T[0]['mp'] = MP0
    btiles(T)
    A("s_waitcnt lgkmcnt(0)")
    A("s_branch P2_compute")
    def aux_stash():
        A(f"v_add_u32 v6, {STASH}, v1")
        for wc in range(2):
            r = 72 + 24 * wc + 48
            A(f"ds_read_b128 {vr(r,4)}, v6 offset:{3072*wc}")
            A(f"ds_read_b128 {vr(r+8,4)}, v6 offset:{3072*wc+1024}")
            A(f"ds_read_b64 {vr(r+14,2)}, v6 offset:{3072*wc+2048}")
            A(f"ds_read_b64 {vr(r+18,2)}, v6 offset:{3072*wc+2056}")
        A("s_lshl_b32 s38, s30, 8")
        A("s_lshl_b32 s39, s31, 1")
        A("s_add_u32 s38, s38, s39")
        A("s_lshl_b32 s38, s38, 11")
        A(f"s_add_u32 s38, s38, {WS_O + (4 << 20)}")
        A(f"v_add_u32 v15, {OBS}, v1")
        A("s_waitcnt lgkmcnt(0)")
    def aux_copy(b_):
        for i in range(8): A(f"ds_read_b128 {vr(72+4*i,4)}, v15 offset:{b_*8192+i*1024}")
        for i in range(8):
            if i % 4 == 0: A(f"s_add_u32 s39, s38, {(2*b_+i//4)*65536}")
            A(f"s_waitcnt lgkmcnt({7-i})")
            A(f"buffer_store_dwordx4 {vr(72+4*i,4)}, v1, s[12:15], s39 offen offset:{(i%4)*1024}{SC}")
    def aux_halo_issue():
        poll("P2_h", 32, 1, 4)
        A("s_lshl_b32 s36, s31, 3")
        A("s_add_u32 s36, s36, s30")
        A("s_lshl_b32 s36, s36, 12")
        A(f"s_add_u32 s36, s36, {WS_H - 4096}")
        for wc in range(2):
            r = 72 + 24 * wc + 48
            A(f"buffer_load_dwordx4 {vr(r+4,4)}, v1, s[12:15], s36 offen offset:{2048*wc} sc1")
            A(f"buffer_load_dwordx2 {vr(r+12,2)}, v1, s[12:15], s36 offen offset:{2048*wc+1024} sc1")
            A(f"buffer_load_dwordx2 {vr(r+16,2)}, v1, s[12:15], s36 offen offset:{2048*wc+1032} sc1")
        bconsts()
    def aux_halo_compute():
        A("s_waitcnt vmcnt(0) lgkmcnt(0)")
        A("s_setprio 3")
        T = []
        for wc in range(2):
            r = 72 + 24 * wc + 48
            T.append(dict(q=r, kp=r+4, kc=r+8, v=[r+12, r+16], s=72+8*wc, p=88+4*wc, o=96+8*wc, l=112+4*wc, so="s38", imm=2048*wc))
        btiles(T)
        A(f"s_setprio {opts.get('lprio', 0)}")

    A.label("P2_fallback")
    A("s_mov_b32 s24, 1")
    for x in range(2): A(f"v_mov_b32 v{MX[x]}, 0xff800000")
    A("s_mov_b32 s21, 0")
    A.label("P2_maxloop")
    A(f"buffer_load_dwordx4 {vr(KF,4)}, v31, s[4:7], s21 offen{LD}")
    A(f"buffer_load_dwordx4 {vr(KF+4,4)}, v31, s[4:7], s21 offen offset:256{LD}")
    A("s_waitcnt vmcnt(0)")
    for x in range(2): A(M32(SX[x], KF, Q[x], None))
    for x in range(2): A(M32(SX[x], KF+4, Q[x]+4, SX[x]))
    A("s_nop 7")
    A("s_nop 3")
    for x in range(2):
        for i in range(8): A(f"v_max3_f32 v{MX[x]}, v{SX[x]+2*i}, v{SX[x]+2*i+1}, v{MX[x]}")
    A("s_add_u32 s21, s21, 4096")
    A("s_cmp_lt_u32 s21, 0x40000")
    A("s_cbranch_scc1 P2_maxloop")
    for x in range(2):
        A(f"v_mov_b32 v6, v{MX[x]}")
        A("s_nop 1")
        A(f"v_permlane32_swap_b32 v{MX[x]}, v6")
        A("s_nop 1")
        A(f"v_max_f32 v{MX[x]}, v{MX[x]}, v6")
    A("s_barrier")
    A("s_branch P2_restart")

    A.label("P2_helpers")
    p2_ids()
    A("v_mov_b64 v[48:49], 0")
    A("v_mov_b64 v[50:51], 0")
    A("v_lshlrev_b32 v1, 4, v1")
    A("s_lshl_b32 s26, s16, 6")
    A("s_lshl_b32 s27, s17, 3")
    A("s_add_u32 s26, s26, s27")
    A("v_lshrrev_b32 v41, 4, v1")
    p3_targets(40, 42, 41, "s17", 0)
    A("s_lshl_b32 s40, s16, 2")
    A(f"s_add_u32 s40, s40, {WS_F + 128}")
    A("v_add_u32 v40, s40, v40")
    A("s_cmp_eq_u32 s19, 9")
    A("s_cbranch_scc1 P2_aux")
    A("s_lshl_b32 s27, s26, 11")
    A("s_barrier")
    poll("P2_k", 0, 8, 2)
    A.label("P2_lstart")
    def l_stage():
        A("s_and_b32 s21, s23, 3")
        A("s_lshl_b32 s21, s21, 15")
        A("s_lshr_b32 s20, s23, 2")
        A("s_lshl_b32 s20, s20, 13")
        A("s_add_u32 s21, s21, s20")
        for g in range(4):
            A(f"s_add_u32 m0, s22, {g * 4096}")
            A(f"s_add_u32 s20, s21, {(g >> 1) * 131072 + (g & 1) * 4096}")
            for i in range(4):
                A(f"buffer_load_dwordx4 v1, s[4:7], s20 offen offset:{1024*i}{LD} lds")
        A(f"s_add_u32 s22, s22, {STG}")
        A(f"s_cmp_eq_u32 s22, {RING}")
        A("s_cselect_b32 s22, 0, s22")
    for g in range(4):
        A(f"s_mov_b32 m0, {BREG + g * 4096}")
        A(f"s_add_u32 s20, s27, {g * 4096}")
        for i in range(4):
            A(f"buffer_load_dwordx4 v1, s[12:15], s20 offen offset:{1024*i}{LD} lds")
    A("s_mov_b32 s21, 0")
    A("s_mov_b32 s22, 0")
    A("s_mov_b32 s23, 0")
    KPRE = opts.get("kpre", 2)
    A.label("P2_lloop")
    l_stage()
    A("s_add_u32 s23, s23, 1")
    A(f"s_cmp_eq_u32 s23, {KPRE}")
    A("s_cbranch_scc0 P2_l1")
    A(f"s_waitcnt vmcnt({16*(KPRE-1)})")
    A("s_barrier")
    A.label("P2_l1")
    A("s_cmp_lg_u32 s23, 4")
    A("s_cbranch_scc1 P2_l2")
    L2AT = opts.get("l2at", 2)
    for i in range(L2AT):
        A(f"s_waitcnt vmcnt({32-16*i})")
        A("s_barrier")
    poll("P2_k2", 64, 8, 2, st=False)
    A.label("P2_l2")
    A(f"s_cmp_lt_u32 s23, {5+L2AT}")
    A("s_cbranch_scc1 P2_lloop")
    A("s_waitcnt vmcnt(48)")
    A("s_barrier")
    A("s_cmp_lt_u32 s23, 16")
    A("s_cbranch_scc1 P2_lloop")
    for n_ in (32, 16, 0):
        A(f"s_waitcnt vmcnt({n_})"); A("s_barrier")
    A("s_barrier")
    A("s_branch P2_htail")
    A.label("P2_aux")
    if opts.get("cnt", 2) == 1: poll_cnt("P2_c", 256, 2)
    if opts.get("cnt", 2) == 2:
        A("v_readfirstlane_b32 s46, v23")
        A("s_nop 3")
        A("s_cmp_ge_u32 s46, 256")
        A("s_cbranch_scc1 P2_c_go")
        poll_cnt("P2_c", 256, 2)
    A("s_barrier")
    A("s_cmp_lg_u32 s33, 0")
    A("s_cbranch_scc1 P2_auxb")
    signal(10, 16, 2)
    def park_copy(b_):
        wc, q = divmod(b_, 3)
        for i in range(8): A(f"ds_read_b128 {vr(72+4*i,4)}, v15 offset:{b_*8192+i*1024}")
        for i in range(8):
            if i % 4 == 0: A(f"s_add_u32 s39, s38, {wc*262144+q*8192+(i//4)*4096}")
            A(f"s_waitcnt lgkmcnt({7-i})")
            A(f"buffer_store_dwordx4 {vr(72+4*i,4)}, v1, s[12:15], s39 offen offset:{(i%4)*1024}{SC}")
    NB0 = opts.get("nb0", 2)
    A(f"v_add_u32 v15, {PARK}, v1")
    A("s_lshl_b32 s38, s31, 7")
    A("s_lshl_b32 s39, s30, 3")
    A("s_add_u32 s38, s38, s39")
    A("s_lshl_b32 s38, s38, 12")
    A(f"s_add_u32 s38, s38, {WS_KV + 8192}")
    for b_ in range(6):
        if b_ == NB0: A("s_barrier")
        park_copy(b_)
    if NB0 == 6: A("s_barrier")
    A("v_add_u32 v10, 64, v10")
    if opts.get("l2late", 0): A("s_barrier")
    A("s_waitcnt vmcnt(0)")
    signal(10, 16, 2)
    for i in range(3 if opts.get("l2late", 0) else 4): A("s_barrier")
    A("s_branch P2_a1")
    A.label("P2_auxb")
    A("s_add_u32 s38, s30, 1")
    A("s_lshr_b32 s39, s38, 2")
    A("s_and_b32 s38, s38, 3")
    A("s_lshl_b32 s38, s38, 3")
    A("s_add_u32 s38, s38, s39")
    A("s_and_b32 s39, s2, -26")
    A("s_add_u32 s38, s38, s39")
    A("s_lshl_b32 s38, s38, 8")
    A(f"s_add_u32 s38, s38, {WS_F + 32}")
    A("v_mov_b32 v14, s38")
    A("s_barrier")
    aux_stash()
    A("s_barrier")
    A("s_cmp_eq_u32 s30, 7")
    A("s_cbranch_scc1 P2_auxb1")
    signal(14, 1, 2)
    A.label("P2_auxb1")
    aux_copy(0); aux_copy(1)
    A("s_barrier")
    aux_copy(2); aux_copy(3)
    A("s_barrier")
    A("s_cmp_eq_u32 s30, 0")
    A("s_cbranch_scc1 P2_auxb2")
    aux_halo_issue()
    A("s_barrier")
    aux_halo_compute()
    A("s_branch P2_a1")
    A.label("P2_auxb2")
    A("s_barrier")
    A("s_branch P2_a1")
    A.label("P2_astart")
    for i in range(5): A("s_barrier")
    A.label("P2_a1")
    if opts.get("wo_pf", 1):
        m3 = opts.get("mix3", 0)
        A("s_mov_b32 s10, 0x200000")
        A("s_cmp_lt_u32 s35, 16" if m3 else "s_cmp_lt_u32 s34, 4")
        A(f"s_cselect_b32 s8, s{P_AWO}, s{P_BWO}")
        A(f"s_cselect_b32 s9, s{P_AWO+1}, s{P_BWO+1}")
        A("v_and_b32 v44, 0x70, v1")
        A("v_lshlrev_b32 v44, 3, v44")
        A("v_lshrrev_b32 v45, 7, v1")
        A("v_lshl_add_u32 v44, v45, 11, v44")
        if m3:
            A("s_and_b32 s40, s35, 15")
            A("s_lshl_b32 s40, s40, 17")
            A("s_and_b32 s41, s34, 4")
            A("s_lshl_b32 s41, s41, 8")
        else:
            A("s_lshl_b32 s40, s35, 16")
            A("s_and_b32 s41, s34, 2")
            A("s_lshl_b32 s41, s41, 9")
        A("s_add_u32 s40, s40, s41")
    for i in range(4):
        if opts.get("wo_pf", 1):
            for _ in range(2 if opts.get("mix3", 0) else 1):
                A("buffer_load_dword v46, v44, s[8:11], s40 offen")
                A("s_add_u32 s40, s40, 16384")
        A("s_barrier")
    A("s_cmp_eq_u32 s33, 0")
    A("s_cbranch_scc1 P2_a2")
    A("s_waitcnt vmcnt(0)")
    signal(12, 32, 2)
    A("s_mov_b32 s33, 0")
    A.label("P2_a2")
    p3_ids()
    if opts.get("out_touch", 1):
        A(f"s_mov_b32 s8, s{P_OUT}")
        A(f"s_mov_b32 s9, s{P_OUT+1}")
        A(f"s_mov_b32 s10, {2048*4096}")
        A("s_lshl_b32 s40, s17, 19")
        A("buffer_load_dword v46, off, s[8:11], s40")
    A("v_lshrrev_b32 v52, 4, v1")
    A("s_lshl_b32 s39, s18, 8")
    A(f"s_sub_u32 s6, {1024*2048}, s39")
    A("v_lshrrev_b32 v53, 4, v52")
    A("v_lshlrev_b32 v54, 1, v53")
    A("v_and_b32 v55, 15, v52")
    A("v_xor_b32 v54, v54, v55")
    A("v_lshlrev_b32 v54, 4, v54")
    A("v_lshl_add_u32 v48, v53, 11, v54")
    A("v_xor_b32 v49, 128, v48")
    A(f"v_add_u32 v49, {8192-1024}, v49")
    A("s_lshl_b32 s40, 16384, s16")
    A("s_sub_u32 s40, s40, 2048")
    A("s_lshr_b32 s41, 32768, s16")
    A("s_cmp_eq_u32 s16, 0")
    A("v_add_u32 v50, s40, v48")
    A("v_add_u32 v51, s40, v49")
    A(f"s_cselect_b32 s4, s{P_AWO}, s{P_BWO}")
    A(f"s_cselect_b32 s5, s{P_AWO+1}, s{P_BWO+1}")
    A("s_add_u32 s4, s4, s39")
    A("s_addc_u32 s5, s5, 0")
    A("s_lshl_b32 s21, s34, 18")
    A(f"s_mov_b32 s23, {W3 + 2*S3}")
    A("s_mov_b32 s38, 0")
    assert NW == 6
    def w_issue():
        for q in range(4):
            A(f"s_add_u32 m0, s23, {q*4096}")
            if q & 1: A("s_add_u32 s20, s20, s41")
            else: A(f"s_add_u32 s20, s21, {q*32768}")
            for i in range(4): A(f"buffer_load_dwordx4 v{48+i}, s[4:7], s20 offen offset:{1024*i} lds")
        A("s_add_u32 s21, s21, 0x20000")
        A("s_and_b32 s21, s21, 0x1fffff")
    ring_loader("P3_w", NW, W3, w_issue, None)
    A.label("P2_wback")
    A("s_barrier")
    A("s_cmp_lg_u32 s38, 4")
    A("s_cbranch_scc1 P2_wb1")
    A("s_barrier")
    A.label("P2_wb1")
    A("s_cmp_lt_u32 s38, 6")
    A("s_cbranch_scc1 P3_w_go2")
    A("s_barrier")
    A.label("P2_htail")
    A("s_barrier")
    A("s_cmp_lg_u32 s24, 0")
    A("s_cbranch_scc1 P2_hfin")
    read_flags(8)
    A("s_waitcnt lgkmcnt(0)")
    or_flags(8, 44)
    A("s_nop 3")
    A("s_cmp_eq_u32 s44, 0")
    A("s_cbranch_scc1 P2_hfin")
    A("s_mov_b32 s24, 1")
    A("s_waitcnt vmcnt(0)")
    A("s_barrier")
    A("s_cmp_eq_u32 s19, 9")
    A("s_cbranch_scc1 P2_astart")
    A("s_branch P2_lstart")
    A.label("P2_hfin")
    A("s_cmp_eq_u32 s19, 9")
    A("s_cbranch_scc0 P3_oload")
    A("s_barrier")
    A("s_waitcnt vmcnt(0)")
    A("s_barrier")
    pat = opts.get("wpat")
    if not pat:
        A("s_branch P3_w_l1")
    else:
        g = 24; issued = []
        for b in range(1, 16):
            need = [i for i, gg in enumerate(issued) if gg >> 2 <= b]
            if need: A(f"s_waitcnt vmcnt({min(63, 4 * (len(issued) - 1 - max(need)))})")
            assert g >> 2 > b or g == 64, (g, b)
            A("s_barrier")
            for _ in range(pat[(b - 1) % len(pat)]):
                if g == 64: break
                st_, q = g >> 2, g & 3
                assert st_ - 6 < b
                A(f"s_mov_b32 m0, {W3 + ((st_ + 2) % NW) * S3 + q * 4096}")
                if q & 1: A("s_add_u32 s20, s20, s41")
                else: A(f"s_add_u32 s20, s21, {q*32768}")
                if opts.get("p3noload", 0) < 2:
                    for i in range(4): A(f"buffer_load_dwordx4 v{48+i}, s[4:7], s20 offen offset:{1024*i} lds")
                if q == 3:
                    A("s_add_u32 s21, s21, 0x20000")
                    A("s_and_b32 s21, s21, 0x1fffff")
                issued.append(g); g += 1
        A("s_endpgm")
    A.label("L_done")
    A("s_endpgm")
    hdr = ("; concat_heads__mha_block__sliding_local_dilated__prompt : fused single-launch kernel (generated by gen/mega.py)\n"
           "; Kernarg: 0 A_x, 8 A_wqkv, 16 A_wo, 24 B_x, 32 B_wqkv, 40 B_wo, 48 out, 56 debug, 64 ws\n"
           f"; @launch grid=(256,1,1) block=(640,1,1) lds={LDS_BYTES}\n")
    return hdr + A.text() + '.section .rodata,"a"\n' + descriptor(NAME, 168, 102)

if __name__ == "__main__":
    opts = json.loads(sys.argv[2]) if len(sys.argv) > 2 else {}
    open(sys.argv[1], "w").write(gen(opts))
```

```python
import sys, os, json, struct, math
sys.path.insert(0, os.path.dirname(os.path.abspath(__file__)))
from asmlib import *

NAME = "concat_heads__mha_block__sliding_local_dilated__prompt_kernel"
WS_Q = 0
WS_KV = 4 << 20
WS_H = 12 << 20
WS_O = 24 << 20
WS_F = 32 << 20
WS_BYTES = (32 << 20) + 65536
QSCALE = (32 ** -0.5) * math.log2(math.e)
LDS_BYTES = 163840
def f32bits(x): return struct.unpack("<I", struct.pack("<f", x))[0]
def M32(d, a, b, c):
    cs = "0" if c is None else vr(c, 16)
    return f"v_mfma_f32_32x32x16_bf16 {vr(d,16)}, {vr(a,4)}, {vr(b,4)}, {cs}"
def M16(d, a, b, c):
    cs = "0" if c is None else vr(c, 4)
    return f"v_mfma_f32_16x16x32_bf16 {vr(d,4)}, {vr(a,4)}, {vr(b,4)}, {cs}"

P_AX, P_AW, P_AWO, P_BX, P_BW, P_BWO, P_OUT, P_DBG, P_WS = 76, 78, 80, 82, 84, 86, 88, 90, 92

def gen(opts=None):
    opts = opts or {}
    A = Asm()
    stamp = opts.get("stamp", False)
    SC = " sc1"
    QL = opts.get("qloc", 1)
    SC1 = opts.get("p1st", " sc1")
    LD = opts.get("ld_mod", " sc1")
    def ST(i):
        if stamp:
            A("s_memrealtime s[100:101]")
            A("s_waitcnt lgkmcnt(0)")
            A(f"s_mov_b32 s{50+i}, s100")
    def lane(dst):
        A(f"v_mbcnt_lo_u32_b32 v{dst}, -1, 0")
        A(f"v_mbcnt_hi_u32_b32 v{dst}, -1, v{dst}")
    def poll_cnt(tag, target, vtmp):
        A(f"s_mov_b32 s47, {opts.get('poll_max', 30000)}")
        A.label(f"{tag}_poll")
        A(f"buffer_load_dword v{vtmp}, off, s[72:75], 0 sc1")
        A("s_waitcnt vmcnt(0)")
        A(f"v_readfirstlane_b32 s46, v{vtmp}")
        A("s_sub_u32 s47, s47, 1")
        A("s_cmp_eq_u32 s47, 0")
        A(f"s_cbranch_scc1 {tag}_go")
        A(f"s_cmp_ge_u32 s46, {target}")
        A(f"s_cbranch_scc1 {tag}_go")
        A("s_sleep 8")
        A(f"s_branch {tag}_poll")
        A.label(f"{tag}_go")
    def poll(tag, off, nflags, vtmp, st=True):
        A(f"s_mov_b32 s47, {opts.get('poll_max', 30000)}")
        A("s_lshl_b32 s46, s2, 8")
        A(f"s_add_u32 s46, s46, {WS_F + off}")
        A(f"v_lshrrev_b32 v{vtmp+1}, 2, v1")
        A(f"v_and_b32 v{vtmp+1}, {4*nflags-1}, v{vtmp+1}")
        if opts.get("pp", 0) and st:
            if st: ST(0)
            A(f"buffer_load_dword v{vtmp}, v{vtmp+1}, s[12:15], s46 offen sc1")
            for _ in range(opts["pp"]): A("s_nop 15")
            A.label(f"{tag}_poll")
            for r_new, r_old in ((vtmp + 2, vtmp), (vtmp, vtmp + 2)):
                A(f"buffer_load_dword v{r_new}, v{vtmp+1}, s[12:15], s46 offen sc1")
                A("s_sub_u32 s47, s47, 1")
                A("s_waitcnt vmcnt(1)")
                A(f"v_cmp_eq_u32 vcc, 0, v{r_old}")
                A("s_cmp_eq_u32 s47, 0")
                A(f"s_cbranch_scc1 {tag}_go")
                A("s_cmp_eq_u64 vcc, 0")
                A(f"s_cbranch_scc1 {tag}_go")
            A(f"s_branch {tag}_poll")
        else:
            if st: ST(0)
            A.label(f"{tag}_poll")
            A(f"buffer_load_dword v{vtmp}, v{vtmp+1}, s[12:15], s46 offen sc1")
            A("s_sub_u32 s47, s47, 1")
            A("s_waitcnt vmcnt(0)")
            A(f"v_cmp_eq_u32 vcc, 0, v{vtmp}")
            A("s_cmp_eq_u32 s47, 0")
            A(f"s_cbranch_scc1 {tag}_go")
            A("s_cmp_eq_u64 vcc, 0")
            A(f"s_cbranch_scc1 {tag}_go")
            if opts.get('poll_sleep', 2): A(f"s_sleep {opts.get('poll_sleep', 2)}")
            A(f"s_branch {tag}_poll")
        A.label(f"{tag}_go")
        if st: ST(1)
        if stamp and st: A("s_mov_b32 s52, s47")
    def p3_targets(dst, tmp, vlane, sblk, xoff):
        A(f"v_lshrrev_b32 v{tmp}, 3, v{vlane}")
        A(f"v_and_b32 v{tmp}, 1, v{tmp}")
        A(f"s_lshl_b32 s40, {sblk}, 1")
        A(f"v_add_u32 v{tmp}, s40, v{tmp}")
        if opts.get("mix3", 0):
            A(f"v_lshrrev_b32 v{dst}, 2, v{tmp}")
            A(f"v_and_b32 v{tmp}, 3, v{tmp}")
            A(f"v_lshl_add_u32 v{dst}, v{tmp}, 3, v{dst}")
            A(f"v_and_b32 v{tmp}, 3, v{vlane}")
            A(f"v_lshl_add_u32 v{dst}, v{tmp}, 5, v{dst}")
            A(f"v_and_b32 v{tmp}, 4, v{vlane}")
            A(f"v_add_u32 v{dst}, v{dst}, v{tmp}")
            if xoff: A(f"v_add_u32 v{dst}, 128, v{dst}")
        else:
            A(f"v_lshrrev_b32 v{dst}, 3, v{tmp}")
            A(f"v_and_b32 v{tmp}, 7, v{tmp}")
            A(f"v_lshl_add_u32 v{dst}, v{tmp}, 3, v{dst}")
            A(f"v_and_b32 v{tmp}, 3, v{vlane}")
            A(f"v_lshl_add_u32 v{dst}, v{tmp}, 6, v{dst}")
            A(f"v_and_b32 v{tmp}, 4, v{vlane}")
            A(f"v_lshrrev_b32 v{tmp}, 1, v{tmp}")
            A(f"v_add3_u32 v{dst}, v{dst}, v{tmp}, {xoff}")
        A(f"v_lshlrev_b32 v{dst}, 8, v{dst}")
    def signal(vaddr, nl, vtmp):
        A(f"v_mov_b32 v{vtmp}, 1")
        A(f"s_mov_b64 exec, {(1 << nl) - 1}")
        A(f"buffer_store_dword v{vtmp}, v{vaddr}, s[12:15], 0 offen sc1")
        A("s_mov_b64 exec, -1")

    A('.amdgcn_target "amdgcn-amd-amdhsa--gfx950"')
    A(".text")
    kernel_begin(A, NAME)
    if opts.get("padto") or opts.get("xst"):
        A("s_memrealtime s[98:99]")
    A("s_load_dwordx16 s[76:91], s[0:1], 0")
    A("s_load_dwordx2 s[92:93], s[0:1], 64")
    A("v_lshrrev_b32 v14, 6, v0")
    A("v_and_b32 v1, 63, v0")
    A("v_readfirstlane_b32 s19, v14")
    A("s_cmp_ge_u32 s2, 256")
    A("s_cbranch_scc1 L_done")
    XSLOT = 32768; WBASE = 3 * XSLOT; WSLOT = 12288; WEND = WBASE + 5 * WSLOT
    A("s_and_b32 s34, s2, 7")
    A("s_lshr_b32 s35, s2, 3")
    mix = opts.get("mix", 1)
    if mix:
        A("s_lshr_b32 s16, s35, 4")
        A("s_and_b32 s17, s34, 1")
        A("s_lshl_b32 s17, s17, 2")
        A("s_and_b32 s36, s35, 3")
        A("s_add_u32 s17, s17, s36")
        A("s_lshr_b32 s18, s34, 1")
        A("s_lshl_b32 s18, s18, 2")
        A("s_lshr_b32 s36, s35, 2")
        A("s_and_b32 s36, s36, 3")
        A("s_add_u32 s18, s18, s36")
    else:
        A("s_lshr_b32 s16, s34, 2")
        A("s_and_b32 s17, s34, 1")
        A("s_lshl_b32 s17, s17, 2")
        A("s_and_b32 s36, s35, 3")
        A("s_add_u32 s17, s17, s36")
        A("s_lshr_b32 s18, s34, 1")
        A("s_and_b32 s18, s18, 1")
        A("s_lshl_b32 s18, s18, 3")
        A("s_lshr_b32 s36, s35, 2")
        A("s_add_u32 s18, s18, s36")
    A(f"s_mov_b32 s14, {WS_BYTES}")
    A("s_mov_b32 s15, 0x20000")
    A("s_mov_b32 s74, 256")
    A("s_mov_b32 s75, 0x20000")
    A("s_mov_b32 s7, 0x20000")
    A("s_mov_b32 s11, 0x20000")
    def common_srds():
        A(f"s_mov_b32 s12, s{P_WS}")
        A(f"s_mov_b32 s13, s{P_WS+1}")
        A(f"s_mov_b32 s72, s{P_DBG}")
        A(f"s_mov_b32 s73, s{P_DBG+1}")
    A("s_cmp_lt_u32 s19, 8")
    A("s_cbranch_scc1 P1_compute")
    if opts.get("lprio"): A(f"s_setprio {opts['lprio']}")
    A("s_lshr_b32 s49, s34, 1")
    A("s_xor_b32 s49, s49, s34")
    A("s_and_b32 s49, s49, 1")
    A("s_lshl_b32 s49, s49, 10")
    A("s_lshl_b32 s23, s16, 9")
    A("s_add_u32 s49, s49, s23")
    A("s_and_b32 s23, s34, 1")
    A("s_lshl_b32 s23, s23, 8")
    A("s_add_u32 s49, s49, s23")
    A("s_add_u32 s48, s17, s18")
    A("s_and_b32 s48, s48, 1")
    A("v_lshrrev_b32 v15, 3, v1")
    A("v_lshrrev_b32 v16, 4, v1")
    A("v_and_b32 v18, 7, v1")
    A("s_mov_b32 s40, 0")
    A("s_cmp_eq_u32 s19, 8")
    A("s_cbranch_scc1 P1_xload")
    A("s_lshl_b32 s39, s18, 7")
    A(f"s_sub_u32 s6, {1024*6144}, s39")
    A("v_and_b32 v16, 1, v16")
    A("v_lshlrev_b32 v16, 1, v16")
    A("v_xor_b32 v16, v18, v16")
    A("v_lshlrev_b32 v16, 4, v16")
    A("v_mul_u32_u24 v17, 6144, v15")
    A("v_add_u32 v2, v17, v16")
    A("v_xor_b32 v16, 64, v16")
    A("v_add_u32 v3, v17, v16")
    A(f"v_add_u32 v3, {8*6144-1024}, v3")
    A(f"v_add_u32 v4, {16*6144-2048}, v2")
    A(f"v_add_u32 v5, {16*6144-2048}, v3")
    A("s_lshl_b32 s48, s48, 1")
    A(f"s_mov_b32 s22, {WBASE}")
    A("v_lshlrev_b32 v20, 2, v1")
    A("v_mov_b32 v21, 0")
    A("v_mov_b32 v22, 1")
    A("s_lshl_b32 s45, s2, 8")
    A(f"s_add_u32 s45, s45, {WS_F}")
    A("s_and_b32 s44, s35, 7")
    A("s_lshl_b32 s44, s44, 1")
    A("s_add_u32 s44, s44, 9")
    A("s_cmp_eq_u32 s16, 0")
    A("s_waitcnt lgkmcnt(0)")
    A(f"s_cselect_b32 s4, s{P_AW}, s{P_BW}")
    A(f"s_cselect_b32 s5, s{P_AW+1}, s{P_BW+1}")
    A("s_add_u32 s4, s4, s39")
    A("s_addc_u32 s5, s5, 0")
    common_srds()
    A("s_branch P1_wgo")
    A.label("P1_wclr")
    A("buffer_store_dword v21, v20, s[12:15], s45 offen sc1")
    A.label("P1_wwait")
    A("s_waitcnt vmcnt(12)")
    A("s_barrier")
    A("s_cmp_eq_u32 s40, s44")
    A("s_cbranch_scc0 P1_wgo")
    A("s_waitcnt vmcnt(0)")
    A("s_mov_b64 exec, 1")
    A("buffer_atomic_add v22, off, s[72:75], 0 sc1")
    if opts.get("padmin"):
        A("s_not_b32 s97, s98")
        A("v_mov_b32 v24, s97")
        A("buffer_atomic_umax v24, off, s[72:75], 0 offset:32 sc1")
    A("s_mov_b64 exec, -1")
    A.label("P1_wgo")
    if opts.get("abl") == "nodma":
        A("s_cmp_lt_u32 s40, 5"); A("s_cbranch_scc1 P1_wgo2"); A("s_add_u32 s40, s40, 1"); A("s_branch P1_w1"); A.label("P1_wgo2")
    A("s_xor_b32 s23, s40, s48")
    A("s_lshl_b32 s23, s23, 6")
    A("s_add_u32 s23, s23, s49")
    A("s_and_b32 s23, s23, 2047")
    A("s_mul_i32 s20, s23, 3072")
    for ty in range(3):
        A(f"s_add_u32 m0, s22, {ty*4096}")
        if ty: A("s_add_u32 s20, s20, 2048")
        else: A("s_add_u32 s40, s40, 1")
        for i in range(4):
            A(f"buffer_load_dwordx4 v{2+i}, s[4:7], s20 offen offset:{1024*i} lds")
    A(f"s_add_u32 s22, s22, {WSLOT}")
    A(f"s_cmp_eq_u32 s22, {WEND}")
    A(f"s_cselect_b32 s22, {WBASE}, s22")
    WPRE = opts.get("wpre", 3)
    A(f"s_cmp_eq_u32 s40, {WPRE}")
    A("s_cbranch_scc0 P1_w1")
    A(f"s_waitcnt vmcnt({12*(WPRE-2)})")
    A("s_barrier")
    A.label("P1_w1")
    A("s_cmp_lt_u32 s40, 5")
    A("s_cbranch_scc1 P1_wgo")
    A("s_bitcmp0_b32 s40, 0")
    A("s_cbranch_scc1 P1_w2")
    A("s_cmp_eq_u32 s40, 5")
    A("s_cbranch_scc1 P1_wclr")
    A("s_branch P1_wwait")
    A.label("P1_w2")
    A("s_cmp_lt_u32 s40, 32")
    A("s_cbranch_scc1 P1_wgo")
    A("s_branch P1_ltail")
    A.label("P1_xload")
    A("s_mov_b32 s6, 0x80000")
    A("s_lshl_b32 s36, s17, 19")
    A("v_xor_b32 v17, v18, v16")
    A("v_lshlrev_b32 v17, 4, v17")
    A("v_lshl_add_u32 v2, v15, 11, v17")
    A("v_xor_b32 v3, 64, v2")
    A(f"v_add_u32 v3, {16384-1024}, v3")
    A(f"v_add_u32 v4, {32768-2048}, v2")
    A(f"v_add_u32 v5, {32768-2048}, v3")
    A("s_mov_b32 s22, 0")
    A("s_cmp_eq_u32 s16, 0")
    A("s_waitcnt lgkmcnt(0)")
    A(f"s_cselect_b32 s4, s{P_AX}, s{P_BX}")
    A(f"s_cselect_b32 s5, s{P_AX+1}, s{P_BX+1}")
    A("s_add_u32 s4, s4, s36")
    A("s_addc_u32 s5, s5, 0")
    if opts.get("xst"): A("s_memrealtime s[96:97]")
    A.label("P1_xgo")
    if opts.get("abl") == "nodma":
        A("s_cmp_gt_u32 s40, 2"); A("s_cbranch_scc1 P1_xskip")
    A("s_xor_b32 s21, s40, s48")
    A("s_lshl_b32 s21, s21, 7")
    A("s_add_u32 s21, s21, s49")
    A("s_and_b32 s21, s21, 2047")
    XB0 = opts.get("xb0", 4)
    for q in range(8):
        A(f"s_add_u32 m0, s22, {q*4096}")
        A(f"s_add_u32 s20, s21, {q*65536}")
        if q == XB0:
            A("s_cmp_eq_u32 s40, 1")
            A("s_cbranch_scc0 P1_x0")
            if opts.get("xst"): A("s_memrealtime s[94:95]")
            A(f"s_waitcnt vmcnt({4*XB0})")
            if opts.get("xst"): A("s_memrealtime s[62:63]")
            A("s_barrier")
            if opts.get("xst"): A("s_memrealtime s[60:61]")
            A.label("P1_x0")
        for i in range(4):
            A(f"buffer_load_dwordx4 v{2+i}, s[4:7], s20 offen offset:{1024*i} lds")
    A.label("P1_xskip")
    A(f"s_add_u32 s22, s22, {XSLOT}")
    A(f"s_cmp_eq_u32 s22, {3*XSLOT}")
    A("s_cselect_b32 s22, 0, s22")
    A("s_add_u32 s40, s40, 1")
    A(f"s_cmp_lt_u32 s40, {2 if XB0 == 8 else 3}")
    A("s_cbranch_scc1 P1_xgo")
    A("s_waitcnt vmcnt(32)")
    A("s_barrier")
    A("s_cmp_lt_u32 s40, 16")
    A("s_cbranch_scc1 P1_xgo")
    if opts.get("xst"):
        common_srds()
        A("s_waitcnt lgkmcnt(0)")
        A("s_lshl_b32 s36, s2, 8")
        A(f"s_add_u32 s36, s36, {64<<20}")
        A("s_mov_b32 s14, 0x8000000")
        for w_ in range(4):
            for i, r in enumerate((98, 96, 94, 62, 60) + (60,) * 6):
                A(f"v_mov_b32 v30, s{r}")
                A(f"buffer_store_dword v30, off, s[12:15], s36 offset:{4*i+64*w_}")
        A(f"s_mov_b32 s14, {WS_BYTES}")
    A.label("P1_ltail")
    common_srds()
    if opts.get("cnt", 2) == 2:
        A("buffer_load_dword v23, off, s[72:75], 0")
    A("s_waitcnt vmcnt(0)")
    A("s_barrier")
    if QL:
        assert mix
        A("v_and_b32 v10, 8, v1")
        A("v_lshlrev_b32 v10, 4, v10")
        A("v_and_b32 v11, 3, v1")
        A("v_lshl_add_u32 v10, v11, 3, v10")
        A("v_bfe_u32 v11, v1, 2, 1")
        A("s_and_b32 s45, s2, 0x66")
        A("v_add3_u32 v10, v10, v11, s45")
    else:
        A("v_lshrrev_b32 v10, 3, v1")
        A("s_lshl_b32 s45, s18, 1")
        A("v_add_u32 v10, s45, v10")
        A("v_and_b32 v11, 3, v10")
        A("v_lshrrev_b32 v10, 2, v10")
        A("v_lshl_add_u32 v10, v11, 3, v10")
        A("v_and_b32 v11, 7, v1")
        A("v_lshl_add_u32 v10, v11, 5, v10")
    A("s_lshl_b32 s45, s17, 2")
    A(f"s_add_u32 s45, s45, {WS_F}")
    A("v_lshlrev_b32 v10, 8, v10")
    A("v_add_u32 v10, s45, v10")
    p3_targets(12, 13, 1, "s17", 4)
    A("v_lshrrev_b32 v13, 4, v1")
    A("v_and_b32 v13, 1, v13")
    A("v_lshl_add_u32 v12, v13, 2, v12")
    A("s_lshl_b32 s45, s18, 3")
    A(f"s_add_u32 s45, s45, {WS_F + 128}")
    A("v_add_u32 v12, s45, v12")
    A("s_mov_b32 s33, s16")
    A("s_mov_b32 s30, s17")
    A("s_mov_b32 s31, s18")
    A("s_barrier")
    A("s_branch P2_helpers")
    A.label("P1_compute")
    if opts.get("code_pf", 1):
        A("s_getpc_b64 s[40:41]")
        A("v_and_b32 v20, 127, v0")
        A("v_lshlrev_b32 v20, 7, v20")
        A("v_min_u32 v20, L_done-P1_compute-64, v20")
        A("s_cmp_lt_u32 s19, 2")
        A("s_cbranch_scc0 P1_nopf")
        A("global_load_dword v21, v20, s[40:41]")
        A.label("P1_nopf")
    if opts.get("apf"):
        A("s_cmp_eq_u32 s16, 0")
        A("s_cbranch_scc1 P1_noapf")
        A("s_lshl_b32 s36, s17, 4")
        A("s_add_u32 s36, s36, s18")
        A("s_lshl_b32 s36, s36, 3")
        A("s_add_u32 s36, s36, s19")
        A("v_lshlrev_b32 v20, 7, v1")
        A("s_mov_b32 s6, 0x400000")
        A("s_mov_b32 s10, 0x600000")
        A("s_lshl_b32 s37, s36, 12")
        A("s_mul_i32 s38, s36, 6144")
        A("s_waitcnt lgkmcnt(0)")
        A(f"s_mov_b32 s4, s{P_AX}")
        A(f"s_mov_b32 s5, s{P_AX+1}")
        A(f"s_mov_b32 s8, s{P_AW}")
        A(f"s_mov_b32 s9, s{P_AW+1}")
        if opts["apf"] & 1:
            A("s_mov_b64 exec, 0xffffffff")
            A("buffer_load_dword v22, v20, s[4:7], s37 offen")
        if opts["apf"] & 2:
            A("s_mov_b32 exec_lo, -1")
            A("s_mov_b32 exec_hi, 0xffff")
            A("buffer_load_dword v23, v20, s[8:11], s38 offen")
        A("s_mov_b64 exec, -1")
        A.label("P1_noapf")
    ST(0)
    A("v_lshrrev_b32 v15, 1, v14")
    A("v_and_b32 v16, 15, v1")
    A("v_lshl_add_u32 v17, v15, 6, v16")
    A("v_lshlrev_b32 v17, 7, v17")
    A("v_lshrrev_b32 v16, 1, v16")
    A("v_lshrrev_b32 v18, 4, v1")
    A("v_xor_b32 v16, v16, v18")
    A("v_lshl_add_u32 v2, v16, 4, v17")
    A("v_xor_b32 v3, 64, v2")
    A("v_lshrrev_b32 v16, 2, v1")
    A("v_and_b32 v16, 3, v16")
    A("v_lshl_add_u32 v17, v18, 3, v16")
    A("v_lshlrev_b32 v17, 7, v17")
    A("v_lshrrev_b32 v16, 1, v16")
    A("v_and_b32 v19, 1, v18")
    A("v_lshl_add_u32 v16, v19, 1, v16")
    A("v_and_b32 v19, 1, v14")
    A("v_lshlrev_b32 v19, 1, v19")
    A("v_xor_b32 v16, v16, v19")
    A("v_lshl_add_u32 v17, v16, 5, v17")
    A("v_and_b32 v16, 3, v1")
    A("v_lshl_add_u32 v4, v16, 3, v17")
    A("v_xor_b32 v5, 32, v4")
    A("v_lshlrev_b32 v1, 4, v1")
    ACC = 72; XF = 8; WF = [24, 48]
    AX, AW0, AW1 = 0, 6, 7
    for i in range(0, 96, 2): A(f"v_mov_b64 v[{ACC+i}:{ACC+i+1}], 0")
    A("s_and_b32 s36, s19, 1")
    A("s_lshl_b32 s37, s18, 1")
    A("s_add_u32 s36, s36, s37")
    A("s_lshl_b32 s36, s36, 6")
    A("s_lshl_b32 s37, s17, 3")
    A("s_add_u32 s36, s36, s37")
    A("s_lshr_b32 s37, s19, 1")
    A("s_lshl_b32 s37, s37, 1")
    A("s_add_u32 s36, s36, s37")
    A("s_lshl_b32 s64, s36, 11")
    A("s_add_u32 s65, s64, 2048")
    A("s_lshl_b32 s66, s36, 12")
    A(f"s_add_u32 s66, s66, {WS_KV}")
    A("s_add_u32 s67, s66, 4096")
    A("s_add_u32 s68, s66, 2048")
    A("s_add_u32 s69, s66, 6144")
    A(f"s_mov_b32 s42, {f32bits(QSCALE)}")
    A(f"s_mov_b32 s43, {f32bits(QSCALE)}")
    barpos = opts.get("barpos", 4)
    def xf(st): return XF + 4*st
    def wf(s, n6): return WF[s] + 4*n6
    def acc(st, n6): return ACC + (st*6+n6)*4
    def xrd(st): return ('rd', f"ds_read_b128 {vr(xf(st),4)}, v{AX} offset:{st*2048}", f"x{st}")
    def wrds(s):
        L = []
        for i in range(6):
            ty, nt = i >> 1, i & 1
            for half in range(2):
                L.append(('rd', f"ds_read_b64_tr_b16 {vr(wf(s,i)+2*half,2)}, v{AW0+nt} offset:{ty*4096+half*512}", f"w{s}_{i}"))
        return L
    def mf(s, st, n6):
        d = acc(st, n6)
        t = M16(d, wf(s,n6), xf(st), d) if n6 < 4 else M16(d, xf(st), wf(s,n6), d)
        needs = [f"x{st}", f"w{s}_{n6}"]
        if st == 0 and n6 == 0: needs = ["x0", "x1", "x2"] + [f"w{s}_{i}" for i in range(6)]
        return ('op', t, needs)
    def nextW():
        return [f"s_add_u32 s46, s46, {WSLOT}", f"s_cmp_eq_u32 s46, {WEND}", f"s_cselect_b32 s46, {WBASE}, s46",
                f"v_add_u32 v{AW0}, s46, v4", f"v_add_u32 v{AW1}, s46, v5"]
    A("s_mov_b32 s44, 0")
    A(f"s_mov_b32 s46, {WBASE}")
    A("s_mov_b32 s40, 16")
    A(f"v_mov_b32 v{AX}, v2")
    A(f"v_add_u32 v{AW0}, s46, v4")
    A(f"v_add_u32 v{AW1}, s46, v5")
    A("s_waitcnt lgkmcnt(0)")
    common_srds()
    A("s_waitcnt vmcnt(0)")
    A("s_barrier")
    ST(1)
    if opts.get("p1s", 1) == 0:
        items = []
        for sub in range(2):
            s = sub
            ms = [mf(s, st, (q if st % 2 == 0 else 5 - q)) for st in range(4) for q in range(6)]
            wr = wrds(s ^ 1)
            gaps = [[] for _ in range(24)]
            start = 0 if sub == 0 else barpos
            pre = nextW()
            if sub == 0:
                pre += [f"v_add_u32 v{AX}, s44, v3"]
            else:
                pre += [f"s_add_u32 s44, s44, {XSLOT}", f"s_cmp_eq_u32 s44, {3*XSLOT}", "s_cselect_b32 s44, 0, s44", f"v_add_u32 v{AX}, s44, v2",
                        "s_sub_u32 s40, s40, 1"]
            for i, l in enumerate(pre): gaps[min(i // 3, 2 if sub == 0 else barpos - 1)].append(('raw', l))
            if sub == 1: gaps[barpos - 1].append(('all', "s_barrier"))
            g = max(start, 2)
            for r in wr:
                if g in (5, 11, 17): g += 1
                gaps[g].append(r); g += 1
            assert g <= 23, g
            for st in range(4): gaps[6*st+5].append(xrd(st))
            if sub == 1: gaps[22].append(('raw', "s_cmp_lg_u32 s40, 0"))
            for i in range(24):
                items.append(ms[i]); items += gaps[i]
    else:
        items = []
        AXS = [1, 0]
        for sub in range(2):
            s = sub
            ms = [mf(s, st, (q if st % 2 == 0 else 5 - q)) for st in range(4) for q in range(6)]
            wr = wrds(s ^ 1)
            gaps = [[] for _ in range(24)]
            g = 0 if sub == 0 else barpos
            if sub == 1: gaps[barpos - 1].append(('all', "s_barrier"))
            for r in wr:
                if g in (5, 11, 17): g += 1
                gaps[g].append(r); g += 1
            lastw = g - 1
            for st in range(4):
                gaps[6*st+5].append(('rd', f"ds_read_b128 {vr(xf(st),4)}, v{AXS[sub]} offset:{st*2048}", f"x{st}"))
            nw = nextW()
            if sub == 0:
                sc = [f"s_add_u32 s44, s44, {XSLOT}", f"s_cmp_eq_u32 s44, {3*XSLOT}", "s_cselect_b32 s44, 0, s44", f"v_add_u32 v{AXS[1]}, s44, v2"]
            else:
                sc = [f"v_add_u32 v{AXS[0]}, s44, v3", "s_sub_u32 s40, s40, 1"]
            sc = sc + nw[:3]
            gg = 6
            for l in sc:
                gaps[gg].append(('raw', l)); gg += 1
            gaps[lastw + 1].append(('raw', nw[3])); gaps[lastw + 2].append(('raw', nw[4]))
            if sub == 1: gaps[22].append(('raw', "s_cmp_lg_u32 s40, 0"))
            for i in range(24):
                items.append(ms[i]); items += gaps[i]
    pro = [it for it in items if it[0] == 'rd'][-16:]
    assert sorted(set(t[2] for t in pro)) == sorted([f"x{i}" for i in range(4)] + [f"w0_{i}" for i in range(6)])
    for it in pro: A(it[1])
    if opts.get("p1s", 1):
        for l in nextW(): A(l)
        A("v_mov_b32 v1, v3")
    if opts.get("abl") == "nord":
        for it in wrds(1): A(it[1])
    body1, _ = schedule_waits(items, passes=1, init_queue=[t[2] for t in pro])
    A(".p2align 6")
    A.label("P1_loop")
    for l in body1:
        if opts.get("abl") == "nord" and l.startswith("ds_read") and "v[48:" not in l and False: continue
        if opts.get("abl") == "nord" and l.startswith("ds_read"): l = "s_nop 0"
        A(l)
    A("s_cbranch_scc1 P1_loop")
    if opts.get("p1s", 1):
        lane(1)
        A("v_lshlrev_b32 v1, 4, v1")
    A("s_waitcnt lgkmcnt(0)")
    ST(2)
    A("s_cmp_lg_u32 s16, 0")
    A("s_cbranch_scc1 P1_bepi")
    PARK = 114688
    A("s_and_b32 s36, s19, 1")
    A("s_mul_i32 s36, s36, 24576")
    A("s_lshr_b32 s37, s19, 1")
    A("s_lshl_b32 s37, s37, 13")
    A("s_add_u32 s36, s36, s37")
    A(f"s_add_u32 s36, s36, {PARK - 8192}")
    A("v_add_u32 v6, s36, v1")
    A("s_lshl_b32 s37, s19, 11")
    A("s_and_b32 s37, s37, 0x3000")
    A("s_add_u32 s37, s37, 98304")
    A("v_add_u32 v7, s37, v1")
    if opts.get("eprio", 1):
        A("s_bitcmp1_b32 0xab, s19")
        A("s_cbranch_scc0 P1_np")
        A("s_setprio 2")
        A.label("P1_np")
    A("s_cmp_lt_u32 s19, 2")
    A("s_cbranch_scc1 P1_kv")
    A.label("P1_q")
    for st in range(4):
        p = 8 + 4 * st
        for nt in range(2):
            d = acc(st, nt)
            for r in (0, 2): A(f"v_pk_mul_f32 v[{d+r}:{d+r+1}], v[{d+r}:{d+r+1}], s[42:43]")
            A(f"v_cvt_pk_bf16_f32 v{p+2*nt}, v{d}, v{d+1}")
            A(f"v_cvt_pk_bf16_f32 v{p+2*nt+1}, v{d+2}, v{d+3}")
    if QL:
        A("s_bitcmp0_b32 s19, 0")
        A("s_cbranch_scc1 P1_ql")
    for st in range(4): A(f"buffer_store_dwordx4 {vr(8+4*st,4)}, v1, s[12:15], s{64+(st>>1)} offen offset:{(st&1)*1024}{SC}")
    if QL:
        A("s_branch P1_qd")
        A.label("P1_ql")
        for st in range(4): A(f"ds_write_b128 v7, {vr(8+4*st,4)} offset:{st*1024}")
        A.label("P1_qd")
    A("s_cmp_lt_u32 s19, 2")
    A("s_cbranch_scc1 P1_parked")
    A.label("P1_kv")
    kv = []
    for mt in range(2):
        for nt in range(2):
            p = 40 + 8 * mt + 4 * nt; kv.append((p, mt, 2048 + nt * 1024))
            for u in range(2):
                d = acc(2*mt+u, 4+nt)
                A(f"v_cvt_pk_bf16_f32 v{p+2*u}, v{d}, v{d+1}")
                A(f"v_cvt_pk_bf16_f32 v{p+2*u+1}, v{d+2}, v{d+3}")
    for st in range(4):
        p = 24 + 4 * st; kv.insert(st, (p, st >> 1, (st & 1) * 1024))
        for nt in range(2):
            d = acc(st, 2+nt)
            A(f"v_cvt_pk_bf16_f32 v{p+2*nt}, v{d}, v{d+1}")
            A(f"v_cvt_pk_bf16_f32 v{p+2*nt+1}, v{d+2}, v{d+3}")
    for p, mt, off in kv[4:]:
        A(f"v_permlane16_swap_b32 v{p}, v{p+2}")
        A(f"v_permlane16_swap_b32 v{p+1}, v{p+3}")
    A("s_cmp_gt_u32 s19, 1")
    A("s_cbranch_scc1 P1_park")
    for p, mt, off in kv: A(f"buffer_store_dwordx4 {vr(p,4)}, v1, s[12:15], s{66+mt} offen offset:{off}{SC}")
    A("s_branch P1_q")
    A.label("P1_park")
    for p, mt, off in kv: A(f"ds_write_b128 v6, {vr(p,4)} offset:{mt*4096+off}")
    A.label("P1_parked")
    if opts.get("eprio", 1): A("s_setprio 0")
    A("s_waitcnt vmcnt(0) lgkmcnt(0)")
    A("s_barrier")
    A.label("P2_compute")
    ST(3)

    NS = 6; STG = 16384; RING = NS * STG; BREG = RING; FLAGS = 40960; XCH = 0; HX = LDS_BYTES - 16384; OBS = BREG + 16384; STASH = 5 * STG
    IDX = 4; ONES = 8; KF = 12; VF = 20; MX = [28, 29]; SA = 32; SB = 48
    Q = [64, 72]; L = [80, 84]; O = [96, 112]; NEGM = [128, 144]
    QB = 128; KBP = 136; KBC = 144; VBC = 152; VBP = 12; PK = 16; OB = O[1]; LB = L[1]
    def S32(d, a, b): return f"v_smfmac_f32_32x32x32_bf16 {vr(d,16)}, {vr(a,4)}, {vr(b,8)}, v{IDX}"
    def S16(d, a, b): return f"v_smfmac_f32_16x16x64_bf16 {vr(d,4)}, {vr(a,4)}, {vr(b,8)}, v{IDX}"
    def E(r): return f"v_exp_f32 v{r}, v{r}"
    def key_of(r, hb): return 8 * (r >> 2) + 4 * hb + (r & 3)
    def bmask(r, prev):
        m = 0
        for l in range(64):
            d = (l & 31) - key_of(r, l >> 5) + (32 if prev else 0)
            if 0 <= d <= 14 and d % 2 == 0: m |= 1 << l
        return m
    def rowmax(regs, dst, tmp):
        regs = list(regs)
        A(f"v_max3_f32 v{dst}, v{regs[0]}, v{regs[1]}, v{regs[2]}")
        i = 3
        while i + 1 < len(regs):
            A(f"v_max3_f32 v{dst}, v{regs[i]}, v{regs[i+1]}, v{dst}"); i += 2
        if i < len(regs): A(f"v_max_f32 v{dst}, v{regs[i]}, v{dst}")
        A(f"v_mov_b32 v{tmp}, v{dst}")
        A("s_nop 1")
        A(f"v_permlane32_swap_b32 v{dst}, v{tmp}")
        A("s_nop 1")
        A(f"v_max_f32 v{dst}, v{dst}, v{tmp}")
    def read_flags(r):
        A(f"v_mov_b32 v7, {FLAGS}")
        A(f"ds_read_b128 {vr(r,4)}, v7")
        A(f"ds_read_b128 {vr(r+4,4)}, v7 offset:16")
    def or_flags(r, sdst):
        A(f"v_or3_b32 v{r}, v{r}, v{r+4}, v{r+5}")
        A(f"v_or3_b32 v{r}, v{r}, v{r+6}, v{r+7}")
        A(f"v_or3_b32 v{r}, v{r}, v{r+1}, v{r+2}")
        A(f"v_or_b32 v{r}, v{r}, v{r+3}")
        A("s_nop 0")
        A(f"v_readfirstlane_b32 s{sdst}, v{r}")
    def p2_ids():
        if QL:
            A("s_lshl_b32 s36, s18, 1")
            A("s_add_u32 s16, s16, s36")
        else:
            A("s_and_b32 s16, s35, 3")
            A("s_lshl_b32 s36, s34, 2")
            A("s_add_u32 s16, s16, s36")
            A("s_lshr_b32 s17, s35, 2")
        A("s_lshl_b32 s36, s16, 18")
        A(f"s_add_u32 s36, s36, {WS_KV}")
        A(f"s_add_u32 s4, s{P_WS}, s36")
        A(f"s_addc_u32 s5, s{P_WS+1}, 0")
        A("s_mov_b32 s6, 0x40000")
        A("s_mov_b32 s24, 0")
    p2_ids()
    A("v_lshrrev_b32 v6, 4, v1")
    A("s_lshr_b32 s18, s19, 2")
    A("s_and_b32 s20, s19, 3")
    A("s_lshl_b32 s20, s20, 1")
    A("s_add_u32 s20, s20, s18")
    A("s_lshl_b32 s26, s17, 3")
    A("s_add_u32 s26, s26, s20")
    A("s_lshl_b32 s39, s18, 13")
    A("v_and_b32 v31, 15, v6")
    A("v_lshlrev_b32 v31, 4, v31")
    A("v_and_b32 v5, 16, v6")
    A("v_lshl_add_u32 v31, v5, 6, v31")
    A("v_and_b32 v5, 32, v6")
    A("v_lshl_add_u32 v31, v5, 4, v31")
    A("s_lshl_b32 s31, s26, 5")
    A("s_add_u32 s31, s31, s16")
    A("s_lshl_b32 s31, s31, 11")
    A(f"s_add_u32 s31, s31, {WS_O}")
    A(f"v_mov_b32 v{IDX}, 0xdddd")
    A("v_and_b32 v5, 4, v6")
    A("v_cmp_eq_u32 vcc, 0, v5")
    A("v_mov_b32 v7, 0x3f803f80")
    A("v_add_u32 v30, s39, v31")
    A(f"v_cndmask_b32 v{ONES}, 0, v7, vcc")
    A(f"v_cndmask_b32 v{ONES+1}, 0, v7, vcc")
    A(f"v_sub_u32 v{ONES+2}, v7, v{ONES}")
    A(f"v_mov_b32 v{ONES+3}, v{ONES+2}")
    A("s_lshl_b32 s27, s20, 11")
    A(f"s_add_u32 s27, s27, {BREG}")
    A("v_add_u32 v5, s27, v31")
    A("v_xor_b32 v6, 2048, v5")
    A.label("P2_restart")
    for x in range(2):
        for i in range(0, 16, 2): A(f"v_mov_b64 v[{O[x]+i}:{O[x]+i+1}], 0")
        for i in range(0, 4, 2): A(f"v_mov_b64 v[{L[x]+i}:{L[x]+i+1}], 0")
    A("v_mov_b32 v2, v30")
    A(f"s_mov_b32 s25, {STG}")
    A(f"v_add_u32 v3, {STG}, v30")
    A("s_mov_b32 s23, 16")
    A("s_barrier")
    ST(4)
    SX = [SA, SB]
    A("s_cmp_lg_u32 s24, 0")
    A("s_cbranch_scc1 P2_main")
    A(f"ds_read_b128 {vr(VF,4)}, v31 offset:0")
    for x in range(2): A(f"ds_read_b128 {vr(Q[x],4)}, v{5+x}")
    A(f"ds_read_b128 {vr(VF+4,4)}, v31 offset:256")
    for x in range(2): A(f"ds_read_b128 {vr(Q[x]+4,4)}, v{5+x} offset:256")
    A("s_waitcnt lgkmcnt(3)")
    for x in range(2): A(M32(SX[x], VF, Q[x], None))
    A("s_waitcnt lgkmcnt(0)")
    for x in range(2): A(M32(SX[x], VF+4, Q[x]+4, SX[x]))
    A("s_nop 7")
    A("s_nop 2")
    for x in range(2): rowmax(range(SX[x], SX[x]+16), MX[x], 6)
    A.label("P2_main")
    A(f"ds_read_b128 {vr(KF,4)}, v2 offset:0")
    A(f"ds_read_b128 {vr(KF+4,4)}, v2 offset:256")
    A(f"ds_read_b128 {vr(VF,4)}, v2 offset:2048")
    def negm(x):
        A(f"v_sub_f32 v{NEGM[x]}, 0, v{MX[x]}")
        A(f"v_sub_f32 v{NEGM[x]+1}, 0, v{MX[x]}")
        for i in range(2, 16, 2): A(f"v_mov_b64 v[{NEGM[x]+i}:{NEGM[x]+i+1}], v[{NEGM[x]}:{NEGM[x]+1}]")
    negm(0)
    for i in (0, 2): A(f"v_mov_b64 v[{VF+4+i}:{VF+5+i}], 0")
    A("s_waitcnt lgkmcnt(1)")
    A(M32(SA, KF, Q[0], NEGM[0]))
    A(M32(SA, KF+4, Q[0]+4, SA))
    negm(1)
    for i in range(0, 8, 2): A(f"v_mov_b64 v[{SB+8+i}:{SB+9+i}], 0")
    A(E(SA))
    A("s_nop 0")
    A(".p2align 6")
    A.label("P2_loop")
    def rd(dst, tile, off):
        a, t = ("v2", tile) if tile < 2 else ("v3", tile - 2)
        return f"ds_read_b128 {vr(dst,4)}, {a} offset:{t*4096+off}"
    if opts.get("sched", 1) == 0:
        for u in range(4):
            cur, nxt = (SA, SB) if u % 2 == 0 else (SB, SA)
            i = u // 2; xc = u % 2; xp = xn = xc ^ 1
            if xc == 0:
                w_pv1 = w_qka = w_qkb = None; w_pv0 = 3
                r_pv1 = [rd(VF+4, i, 2304)]; r_qka = [rd(KF, i+1, 0)]; r_qkb = [rd(KF+4, i+1, 256)]; r_pv0 = []
            else:
                w_pv1, w_qka, w_qkb, w_pv0 = 2, 1, 0, None
                r_pv1 = r_qka = r_qkb = []; r_pv0 = [rd(VF, i+1, 2048)]
            bar = (u == 1)
            last = (u == 3)
            def W(n):
                if n is not None: A(f"s_waitcnt lgkmcnt({n})")
            if w_pv1 is None: A("s_nop 0")
            W(w_pv1)
            A(S32(O[xp], VF+4, nxt+8))
            for l in r_pv1: A(l)
            A(E(cur+1)); A(E(cur+2)); A(E(cur+3))
            A(S16(L[xp], ONES, nxt+8))
            A(E(cur+4)); A(E(cur+5))
            W(w_qka)
            A(M32(nxt, KF, Q[xn], NEGM[xn]))
            for l in r_qka: A(l)
            A(E(cur+6)); A(E(cur+7)); A(E(cur+8))
            W(w_qkb)
            A(M32(nxt, KF+4, Q[xn]+4, nxt))
            if bar: A("s_barrier")
            for l in r_qkb: A(l)
            A(E(cur+9)); A(E(cur+10)); A(E(cur+11))
            W(w_pv0)
            A(S32(O[xc], VF, cur))
            for l in r_pv0: A(l)
            A(E(cur+12))
            if last: A(f"s_add_u32 s25, s25, {STG}")
            A(E(cur+13))
            if last: A(f"s_cmp_eq_u32 s25, {RING}")
            A(E(cur+14))
            if last: A("s_cselect_b32 s25, 0, s25")
            A(S16(L[xc], ONES, cur))
            if last:
                A("s_sub_u32 s23, s23, 1")
                A("v_mov_b32 v2, v3")
                A("v_add_u32 v3, s25, v30")
                A("s_cmp_lg_u32 s23, 0")
            else: A("s_nop 0")
            A(E(cur+15)); A(E(nxt))
            if last: A("s_cbranch_scc1 P2_loop")
    else:
        barslot = (1, 0)
        for u in range(4):
            cur, nxt = (SA, SB) if u % 2 == 0 else (SB, SA)
            i = u // 2; xc = u % 2; xp = xn = xc ^ 1
            last = (u == 3)
            e = [E(cur+k) for k in range(1, 16)] + [E(nxt)]
            PV1 = S32(O[xp], VF+4, nxt+8); SM1 = S16(L[xp], ONES, nxt+8)
            QA = M32(nxt, KF, Q[xn], NEGM[xn]); QB_ = M32(nxt, KF+4, Q[xn]+4, nxt)
            PV0 = S32(O[xc], VF, cur); SM0 = S16(L[xc], ONES, cur)
            def F(k, dflt="s_nop 0"):
                if (u, k) == tuple(barslot): return ["s_barrier"]
                if (u, k) == (1, 2): return ["s_waitcnt vmcnt(0)"]
                return [dflt]
            W = lambda n: f"s_waitcnt lgkmcnt({n})"
            if xc == 0:
                seq = (F(2) if u else []) + [SM1] + e[0:2] + [PV1, rd(VF+4, i, 2304)] + e[2:5] + [QA, rd(KF, i+1, 0)] + e[5:8] + [QB_, rd(KF+4, i+1, 256)] + e[8:11] + [SM0] + e[11:13] + [W(3), PV0] + F(1) + e[13:16]
            elif not last:
                seq = F(2) + [SM1] + e[0:2] + [W(2), PV1] + e[2:5] + [W(0), QA] + e[5:8] + [QB_] + F(0) + e[8:11] + [SM0] + e[11:13] + [PV0, rd(VF, i+1, 2048)] + F(1) + e[13:16]
            else:
                seq = [f"s_add_u32 s25, s25, {STG}", SM1] + e[0:2] + [W(2), PV1, f"s_cmp_eq_u32 s25, {RING}"] + e[2:5] + [W(0), QA, "s_cselect_b32 s25, 0, s25"] + e[5:8] + \
                      [QB_, "s_sub_u32 s23, s23, 1"] + e[8:11] + [SM0, "s_cmp_lg_u32 s23, 0"] + e[11:13] + [PV0, rd(VF, i+1, 2048), "v_mov_b32 v2, v3", "v_add_u32 v3, s25, v30"] + e[13:16] + ["s_cbranch_scc1 P2_loop"]
            for l in seq: A(l)
    A("s_waitcnt lgkmcnt(0)")
    A(S32(O[1], VF+4, SB+8))
    A(S16(L[1], ONES, SB+8))
    ST(5)
    A(f"s_mov_b32 s44, {f32bits(2.0**56)}")
    A("s_mul_i32 s36, s19, 5120")
    A("v_add_u32 v7, s36, v1")
    A(f"v_mul_f32 v5, s44, v{L[0]}")
    for i in range(0, 16, 2): A(f"v_maximum3_f32 v5, |v{O[0]+i}|, |v{O[0]+i+1}|, v5")
    A(f"s_mov_b32 s45, {f32bits(2.0**120)}")
    for i in range(4): A(f"ds_write_b128 v7, {vr(O[1]+4*i,4)} offset:{XCH+1024*i}")
    A(f"ds_write_b32 v7, v{L[1]} offset:{XCH+4096}")
    A(f"v_mul_f32 v6, s44, v{L[1]}")
    for i in range(0, 16, 2): A(f"v_maximum3_f32 v6, |v{O[1]+i}|, |v{O[1]+i+1}|, v6")
    A("v_maximum3_f32 v5, v5, v6, v6")
    A("s_lshl_b32 s36, s19, 2")
    A(f"s_add_u32 s36, s36, {FLAGS}")
    A("v_cmp_ngt_f32 vcc, s45, v5")
    A("v_mov_b32 v7, s36")
    A("s_xor_b32 s36, s19, 4")
    A("s_mul_i32 s36, s36, 5120")
    A("v_add_u32 v3, s36, v1")
    if opts.get("force_fb"): A("s_mov_b64 vcc, -1")
    A("s_cmp_lg_u64 vcc, 0")
    A("s_cselect_b32 s44, 1, 0")
    A("v_mov_b32 v6, s44")
    A("ds_write_b32 v7, v6")
    A("s_waitcnt lgkmcnt(0)")
    A("s_barrier")
    A(f"ds_read_b32 v5, v3 offset:{XCH+4096}")
    for i in range(4): A(f"ds_read_b128 {vr(SA+4*i,4)}, v3 offset:{XCH+1024*i}")
    read_flags(SB)
    A("s_waitcnt lgkmcnt(2)")
    A(f"v_add_f32 v6, v5, v{L[0]}")
    A("v_rcp_f32 v6, v6")
    for i in range(0, 16, 2): A(f"v_pk_add_f32 v[{O[0]+i}:{O[0]+i+1}], v[{SA+i}:{SA+i+1}], v[{O[0]+i}:{O[0]+i+1}]")
    for i in range(0, 16, 2): A(f"v_pk_mul_f32 v[{O[0]+i}:{O[0]+i+1}], v[{O[0]+i}:{O[0]+i+1}], v[6:7] op_sel_hi:[1,0]")
    for i in range(8): A(f"v_cvt_pk_bf16_f32 v{SA+i}, v{O[0]+2*i}, v{O[0]+2*i+1}")
    for m in range(2):
        A(f"buffer_store_dwordx4 {vr(SA+4*m,4)}, v1, s[12:15], s31 offen offset:{1024*m}{SC}")
    A("s_cmp_lg_u32 s24, 0")
    A("s_cbranch_scc1 P2_fin")
    A("s_waitcnt lgkmcnt(0)")
    or_flags(SB, 44)
    A("s_nop 3")
    A("s_cmp_eq_u32 s44, 0")
    A("s_cbranch_scc0 P2_fallback")
    A.label("P2_fin")
    ST(6)
    A("s_waitcnt vmcnt(0)")
    A("s_barrier")
    ST(7)
    A("s_cmp_gt_u32 s19, 3")
    A("s_cbranch_scc1 L_done")

    NO = opts.get("no", 4); NW = 10 - NO; S3 = 16384; W3 = NO * S3
    def p3_ids():
        if opts.get("mix3", 0):
            A("s_lshr_b32 s16, s35, 4")
            A("s_and_b32 s17, s34, 3")
            A("s_lshl_b32 s17, s17, 2")
            A("s_and_b32 s36, s35, 3")
            A("s_add_u32 s17, s17, s36")
            A("s_and_b32 s18, s34, 4")
            A("s_lshr_b32 s36, s35, 2")
            A("s_and_b32 s36, s36, 3")
            A("s_add_u32 s18, s18, s36")
            return
        A("s_lshr_b32 s16, s34, 2")
        A("s_and_b32 s17, s34, 1")
        A("s_lshl_b32 s17, s17, 3")
        A("s_and_b32 s36, s35, 7")
        A("s_add_u32 s17, s17, s36")
        A("s_lshr_b32 s18, s34, 1")
        A("s_and_b32 s18, s18, 1")
        A("s_lshl_b32 s18, s18, 2")
        A("s_lshr_b32 s36, s35, 3")
        A("s_add_u32 s18, s18, s36")
    p3_ids()
    A("v_lshrrev_b32 v1, 4, v1")
    A("s_lshr_b32 s36, s19, 1")
    A("s_and_b32 s37, s19, 1")
    A("v_lshrrev_b32 v18, 4, v1")
    A("v_and_b32 v17, 15, v1")
    A("v_lshlrev_b32 v2, 4, v17")
    A("v_lshl_add_u32 v2, v18, 9, v2")
    A("s_lshl_b32 s38, s36, 13")
    A("v_add_u32 v2, s38, v2")
    A("v_lshrrev_b32 v19, 2, v1")
    A("v_and_b32 v19, 7, v19")
    A("v_lshrrev_b32 v20, 5, v1")
    A("v_lshl_add_u32 v20, v20, 4, v19")
    A("v_lshlrev_b32 v20, 8, v20")
    A("s_lshl_b32 s38, s37, 2")
    A("v_xor_b32 v21, s38, v19")
    A("v_lshl_add_u32 v20, v21, 5, v20")
    A("v_and_b32 v21, 3, v1")
    A("v_lshl_add_u32 v3, v21, 3, v20")
    for a in range(1, 4): A(f"v_xor_b32 v{3+a}, {32*a}, v3")
    ACC3 = 88; FS = [24, 56]; AO = 8; AW = 9
    for i in range(0, 64, 2): A(f"v_mov_b64 v[{ACC3+i}:{ACC3+i+1}], 0")
    for i in range(0, 32, 2): A(f"v_mov_b64 v[{FS[1]+i}:{FS[1]+i+1}], 0")
    A("v_lshlrev_b32 v22, 12, v17")
    A("v_and_b32 v21, 1, v18")
    A("v_lshl_add_u32 v22, v21, 5, v22")
    A("v_lshrrev_b32 v21, 1, v18")
    A("v_lshl_add_u32 v22, v21, 4, v22")
    if opts.get("fl", 1):
        A("v_and_b32 v22, 0x7fff, v22")
        A("v_and_b32 v21, 8, v1")
        A("v_lshl_add_u32 v22, v21, 3, v22")
        A("v_add_u32 v23, 32768, v22")
    A("s_lshl_b32 s38, s17, 7")
    A("s_lshl_b32 s36, s36, 6")
    A("s_add_u32 s36, s36, s38")
    A("s_lshl_b32 s36, s36, 12")
    A("s_lshl_b32 s38, s16, 11")
    A("s_add_u32 s36, s36, s38")
    A("s_lshl_b32 s38, s18, 8")
    A("s_add_u32 s36, s36, s38")
    A("s_lshl_b32 s37, s37, 7")
    A("s_add_u32 s40, s36, s37")
    for st in range(1, 4): A(f"s_add_u32 s{40+st}, s40, {st*16*4096}")
    A(f"s_mov_b32 s8, s{P_OUT}")
    A(f"s_mov_b32 s9, s{P_OUT+1}")
    A(f"s_mov_b32 s10, {2048*4096}")
    def of(s, st): return FS[s] + 4*st
    def wf3(s, a): return FS[s] + 16 + 4*a
    def acc3(st, a): return ACC3 + (st*4+a)*4
    def rd_items(hh, s):
        L_ = [('rd', f"ds_read_b128 {vr(of(s,0),4)}, v{AO} offset:{hh*2048}", f"o{s}_0")]
        for i in range(4):
            for half in range(2):
                L_.append(('rd', f"ds_read_b64_tr_b16 {vr(wf3(s,i)+2*half,2)}, v{AW+i} offset:{hh*8192+half*2048}", f"w{s}_{i}"))
        for i in range(1, 4):
            L_.append(('rd', f"ds_read_b128 {vr(of(s,i),4)}, v{AO} offset:{(i>>1)*4096+hh*2048+(i&1)*256}", f"o{s}_{i}"))
        return L_
    def mf_items(s):
        L_ = []
        for st in range(4):
            for a in (range(4) if st % 2 == 0 else range(3, -1, -1)):
                needs = [f"o{s}_{st}", f"w{s}_{a}"]
                if st == 0 and a == 0: needs += [f"w{s}_{i}" for i in range(4)] + [f"o{s}_{i}" for i in range(4)]
                L_.append(('op', M16(acc3(st, a), wf3(s, a), of(s, st), acc3(st, a)), needs))
        return L_
    upd = [f"s_add_u32 s23, s23, {S3}", f"s_cmp_eq_u32 s23, {W3}", "s_cselect_b32 s23, 0, s23", f"v_add_u32 v{AO}, s23, v2",
           f"s_add_u32 s22, s22, {S3}", f"s_cmp_eq_u32 s22, {LDS_BYTES}", f"s_cselect_b32 s22, {W3}, s22", "s_sub_u32 s38, s38, 1"] + \
          [f"v_add_u32 v{AW+a}, s22, v{3+a}" for a in range(4)] + ["s_cmp_lg_u32 s38, 0"]
    upd = [('raw', u) for u in upd]
    items = [('all', "s_barrier")] + interleave(mf_items(1), rd_items(0, 0), [2] * 16)
    items += interleave(mf_items(0), rd_items(1, 1) + upd, [2] * 16)
    body, _ = schedule_waits(items, passes=2)
    A("s_mov_b32 s23, 0")
    A(f"s_mov_b32 s22, {W3 + 2*S3}")
    A("s_mov_b32 s38, 16")
    A(f"v_mov_b32 v{AO}, v2")
    for a in range(4): A(f"v_add_u32 v{AW+a}, s22, v{3+a}")
    if stamp:
        A("s_barrier"); ST(8); A("s_branch P3_first")
    A(".p2align 6")
    A.label("P3_loop")
    for i, l in enumerate(body):
        A(l)
        if l == "s_barrier" and stamp: A.label("P3_first")
    A("s_cbranch_scc1 P3_loop")
    A("s_waitcnt lgkmcnt(0)")
    fin = [it[1] for it in mf_items(1)]
    if not opts.get("fl", 1):
        for l in fin: A(l)
    ST(9)
    if opts.get("fl", 1):
        def epi(st):
            E_ = []
            p0 = 24 + 8 * st; p1 = p0 + 4; t = 8 + 4 * (st & 1)
            for pr in range(2):
                for u in range(2):
                    d = acc3(st, 2*pr+u)
                    E_.append(f"v_cvt_pk_bf16_f32 v{p0+4*pr+2*u}, v{d}, v{d+1}")
                    E_.append(f"v_cvt_pk_bf16_f32 v{p0+4*pr+2*u+1}, v{d+2}, v{d+3}")
            for p in (p0, p1):
                E_.append(f"v_permlane16_swap_b32 v{p}, v{p+2}")
                E_.append(f"v_permlane16_swap_b32 v{p+1}, v{p+3}")
            E_.append(f"v_mov_b64 {vr(t,2)}, {vr(p0,2)}")
            E_.append(f"v_mov_b64 {vr(t+2,2)}, {vr(p0+2,2)}")
            for r in range(4): E_.append(f"v_mov_b32_dpp v{p0+r}, v{p1+r} row_ror:8 row_mask:0xf bank_mask:0xc")
            E_.append(f"buffer_store_dwordx4 {vr(p0,4)}, v22, s[8:11], s{40+st} offen{SC}")
            for r in range(4): E_.append(f"v_mov_b32_dpp v{p1+r}, v{t+r} row_ror:8 row_mask:0xf bank_mask:0x3")
            E_.append(f"buffer_store_dwordx4 {vr(p1,4)}, v23, s[8:11], s{40+st} offen{SC}")
            return E_
        lead = opts.get("lead", 9)
        for l in fin[:lead]: A(l)
        allE = epi(0) + epi(1) + epi(2) + epi(3)
        for l in interleave(fin[lead:], allE, [2] * 16): A(l)
    else:
        n = 0
        for st in range(4):
            for pr in range(2):
                p = 24 + n * 4; n += 1
                for u in range(2):
                    d = acc3(st, 2*pr+u)
                    A(f"v_cvt_pk_bf16_f32 v{p+2*u}, v{d}, v{d+1}")
                    A(f"v_cvt_pk_bf16_f32 v{p+2*u+1}, v{d+2}, v{d+3}")
            A("s_nop 1")
            for pr in range(2):
                p = 24 + (n - 2 + pr) * 4
                A(f"v_permlane16_swap_b32 v{p}, v{p+2}")
                A(f"v_permlane16_swap_b32 v{p+1}, v{p+3}")
                if opts.get("fl"): A(f"buffer_store_dwordx4 {vr(p,4)}, v{22+pr}, s[8:11], s{40+st} offen{opts.get('flmod', SC)}")
                else: A(f"buffer_store_dwordx4 {vr(p,4)}, v22, s[8:11], s{40+st} offen offset:{pr*64}{opts.get('flmod', SC)}")
    if opts.get("padto"):
        A("s_waitcnt vmcnt(0)")
        A(f"s_mov_b32 s37, {opts['padto']}")
        if opts.get("padmin"):
            A("buffer_load_dword v3, off, s[72:75], 0 offset:32 sc1")
            A("s_waitcnt vmcnt(0)")
            A("v_readfirstlane_b32 s98, v3")
            A("s_nop 3")
            A("s_not_b32 s98, s98")
        if opts.get("probe") is not None:
            ST(10)
            A(f"s_sub_u32 s37, s{50+opts['probe']}, s98")
            A(f"s_add_u32 s37, s37, {opts['padto']}")
        A.label("L_pad")
        A("s_memrealtime s[100:101]")
        A("s_waitcnt lgkmcnt(0)")
        A("s_sub_u32 s36, s100, s98")
        A("s_cmp_lt_u32 s36, s37")
        A("s_cbranch_scc1 L_pad")
        if opts.get("probe") is not None: A("s_endpgm")
    if stamp:
        A("s_waitcnt vmcnt(0)")
        ST(10)
        if opts.get("dbgout") is not None:
            A(f"s_cmp_lg_u32 s2, {opts['dbgout']}")
            A("s_cbranch_scc1 L_nodbg")
            A("s_cmp_lg_u32 s19, 0")
            A("s_cbranch_scc1 L_nodbg")
            for i in range(1, 11):
                A(f"s_sub_u32 s36, s{50+i}, s50")
                A("v_mov_b32 v3, s36")
                A(f"buffer_store_dword v3, off, s[72:75], 0 offset:{4*i}")
            A.label("L_nodbg")
        A("s_lshl_b32 s36, s2, 2")
        A("s_add_u32 s36, s36, s19")
        A("s_lshl_b32 s36, s36, 6")
        A(f"s_add_u32 s36, s36, {64<<20}")
        A("s_mov_b32 s14, 0x8000000")
        for i in range(12):
            A(f"v_mov_b32 v3, s{50+i}")
            A(f"buffer_store_dword v3, off, s[12:15], s36 offset:{4*i}")
    A("s_endpgm")
    def ring_loader(tag, nslots, base, issue, pre):
        if pre is not None:
            A(f"s_mov_b32 s23, {base}")
            A("s_mov_b32 s38, 0")
        A.label(f"{tag}_go2")
        issue()
        A("s_add_u32 s38, s38, 1")
        A(f"s_add_u32 s23, s23, {S3}")
        A(f"s_cmp_eq_u32 s23, {base + nslots*S3}")
        A(f"s_cselect_b32 s23, {base}, s23")
        if pre is None:
            A(f"s_cmp_le_u32 s38, {nslots}")
            A("s_cbranch_scc1 P2_wback")
            A.label(f"{tag}_l1")
        else:
            A(f"s_cmp_eq_u32 s38, {pre}")
            A(f"s_cbranch_scc0 {tag}_l1")
            A(f"s_waitcnt vmcnt({min(63, 16*(pre-1))})")
            A("s_barrier")
            A.label(f"{tag}_l1")
            A(f"s_cmp_lt_u32 s38, {nslots}")
            A(f"s_cbranch_scc1 {tag}_go2")
        A(f"s_waitcnt vmcnt({min(63, 16*(nslots-2))})")
        A("s_barrier")
        A("s_cmp_lt_u32 s38, 16")
        A(f"s_cbranch_scc1 {tag}_go2")
        for j in range(nslots - 2):
            A(f"s_waitcnt vmcnt({min(63, 16*(nslots-3-j))})")
            A("s_barrier")
        if stamp and opts.get("probe") is None:
            A("s_lshl_b32 s36, s2, 1")
            A("s_and_b32 s37, s19, 1")
            A("s_add_u32 s36, s36, s37")
            A("s_lshl_b32 s36, s36, 6")
            A(f"s_add_u32 s36, s36, {65<<20}")
            A("s_mov_b32 s14, 0x8000000")
            for i in range(3):
                A(f"v_mov_b32 v3, s{50+i}")
                A(f"buffer_store_dword v3, off, s[12:15], s36 offset:{4*i}")
        A("s_endpgm")
    A.label("P3_oload")
    p3_ids()
    A("s_lshl_b32 s36, s16, 22")
    A("s_lshl_b32 s37, s17, 18")
    A("s_add_u32 s36, s36, s37")
    A(f"s_add_u32 s36, s36, {WS_O}")
    A(f"s_add_u32 s4, s{P_WS}, s36")
    A(f"s_addc_u32 s5, s{P_WS+1}, 0")
    A("s_mov_b32 s6, 0x40000")
    A("s_lshl_b32 s21, s34, 13")
    A("s_barrier")
    signal(40, 16, 2)
    poll("P3_o", 128, 32, 2)
    def o_issue():
        for t in range(4):
            A(f"s_add_u32 m0, s23, {t*4096}")
            A(f"s_add_u32 s20, s21, {t*65536}")
            if not opts.get("p3noload"):
                for i in range(4): A(f"buffer_load_dwordx4 v1, s[4:7], s20 offen offset:{1024*i}{LD} lds")
        A("s_add_u32 s21, s21, 4096")
        A("s_and_b32 s21, s21, 0xffff")
    ring_loader("P3_o", NO, 0, o_issue, opts.get("opre", 2))


    A.label("P1_bepi")
    def QP(st): return 8 + 4*st
    def KP(st): return 28 + 4*st
    def VW(nt, st): return 46 + 10*nt + 2*st
    MC, MP, ON = 64, 68, 2
    def SS(st): return 72 + 8*st
    def PB(st): return 104 + 4*st
    def OT(st, nt): return 120 + 8*st + 4*nt
    def LR(st): return 152 + 4*st
    def cv(d, a): A(f"v_cvt_pk_bf16_f32 v{d}, v{a}, v{a+1}")
    A("s_lshl_b32 s36, s19, 11")
    A(f"s_add_u32 s36, s36, {HX}")
    A("v_add_u32 v6, s36, v1")
    for st in (3, 0, 1, 2):
        for nt in range(2):
            cv(KP(st)+2*nt, acc(st, 2+nt)); cv(KP(st)+2*nt+1, acc(st, 2+nt)+2)
            cv(VW(nt, st), acc(st, 4+nt)); cv(VW(nt, st)+1, acc(st, 4+nt)+2)
        if st == 3:
            A(f"ds_write_b128 v6, {vr(KP(3),4)}")
            A(f"ds_write_b64 v6, {vr(VW(0,3),2)} offset:1024")
            A(f"ds_write_b64 v6, {vr(VW(1,3),2)} offset:1032")
            A("s_lshl_b32 s36, s18, 3")
            A("s_add_u32 s36, s36, s17")
            A("s_lshl_b32 s36, s36, 1")
            A("s_and_b32 s37, s19, 1")
            A("s_add_u32 s36, s36, s37")
            A("s_lshl_b32 s36, s36, 11")
            A(f"s_add_u32 s36, s36, {WS_H}")
            A("s_cmp_lt_u32 s19, 6")
            A("s_cbranch_scc1 P1_b1")
            A(f"buffer_store_dwordx4 {vr(KP(3),4)}, v1, s[12:15], s36 offen{SC}")
            A(f"buffer_store_dwordx2 {vr(VW(0,3),2)}, v1, s[12:15], s36 offen offset:1024{SC}")
            A(f"buffer_store_dwordx2 {vr(VW(1,3),2)}, v1, s[12:15], s36 offen offset:1032{SC}")
            A.label("P1_b1")
    A("s_waitcnt lgkmcnt(0)")
    A("s_barrier")
    A("v_subrev_u32 v6, 4096, v6")
    A(f"ds_read_b128 {vr(KP(-1),4)}, v6")
    A(f"ds_read_b64 {vr(VW(0,-1),2)}, v6 offset:1024")
    A(f"ds_read_b64 {vr(VW(1,-1),2)}, v6 offset:1032")
    for st in range(4):
        for nt in range(2):
            d = acc(st, nt)
            for r in (0, 2): A(f"v_pk_mul_f32 v[{d+r}:{d+r+1}], v[{d+r}:{d+r+1}], s[42:43]")
            cv(QP(st)+2*nt, d); cv(QP(st)+2*nt+1, d+2)
    def bconsts():
        A("v_mov_b32 v7, 0xff800000")
        for prev in range(2):
            for r in range(4):
                m = 0
                for l in range(64):
                    dl = (l & 15) - (4 * (l >> 4) + r) + 16 * prev
                    if 0 <= dl <= 14 and dl % 2 == 0: m |= 1 << l
                A(f"s_mov_b32 s40, {m & 0xffffffff}")
                A(f"s_mov_b32 s41, {m >> 32}")
                A(f"v_cndmask_b32 v{(MP if prev else MC)+r}, v7, 0, s[40:41]")
        for r in range(4): A(f"v_mov_b32 v{ON+r}, 0x3f803f80")
        A("v_and_b32 v0, 0xf0, v1")
        A("v_and_b32 v6, 0x300, v1")
        A("v_lshl_add_u32 v0, v6, 1, v0")
    bconsts()
    def tile(st):
        return dict(q=QP(st), kp=KP(st-1), kc=KP(st), v=[VW(0, st-1), VW(1, st-1)], s=SS(st), p=PB(st), o=OT(st, 0), l=LR(st),
                    so=f"s{38+(st>>1)}", imm=(st&1)*256)
    def btiles(T):
        k = len(T)
        def pad(n):
            if n - (k - 1) > 0: A(f"s_nop {n - (k - 1) - 1}")
        for t in T:
            A(M16(t['s'], t['kp'], t['q'], t.get('mp', MP)))
            A(M16(t['s']+4, t['kc'], t['q'], MC))
        A("s_nop 7")
        for i in range(4):
            for t in T:
                b_ = t['s']; m = t['l']
                if i == 0: A(f"v_max3_f32 v{m}, v{b_}, v{b_+1}, v{b_+2}")
                elif i < 3: A(f"v_max3_f32 v{m}, v{b_+2*i+1}, v{b_+2*i+2}, v{m}")
                else: A(f"v_max_f32 v{m}, v{b_+7}, v{m}")
        for sw in ("v_permlane32_swap_b32", "v_permlane16_swap_b32"):
            for t in T: A(f"v_mov_b32 v{t['l']+1}, v{t['l']}")
            pad(2)
            for t in T: A(f"{sw} v{t['l']}, v{t['l']+1}")
            pad(2)
            for t in T: A(f"v_max_f32 v{t['l']}, v{t['l']}, v{t['l']+1}")
        for t in T:
            for r in range(0, 8, 2):
                b_ = t['s'] + r
                A(f"v_pk_add_f32 v[{b_}:{b_+1}], v[{b_}:{b_+1}], v[{t['l']}:{t['l']+1}] op_sel_hi:[1,0] neg_lo:[0,1] neg_hi:[0,1]")
        for t in T:
            for r in range(8): A(f"v_exp_f32 v{t['s']+r}, v{t['s']+r}")
        A("s_nop 0")
        for t in T:
            for r in range(4): cv(t['p']+r, t['s']+2*r)
        A("s_nop 1")
        for t in T:
            A(M16(t['l'], ON, t['p'], None))
            for nt in range(2): A(M16(t['o']+4*nt, t['v'][nt], t['p'], None))
        A("s_nop 7")
        for t in T: A(f"v_rcp_f32 v{t['l']}, v{t['l']}")
        A("s_nop 0")
        for t in T:
            for r in range(0, 8, 2):
                b_ = t['o'] + r
                A(f"v_pk_mul_f32 v[{b_}:{b_+1}], v[{b_}:{b_+1}], v[{t['l']}:{t['l']+1}] op_sel_hi:[1,0]")
            for r in range(4): cv(t['s']+r, t['o']+2*r)
            if 'lds' in t: A(f"ds_write_b128 v6, {vr(t['s'],4)} offset:{t['lds']}")
            else: A(f"buffer_store_dwordx4 {vr(t['s'],4)}, v0, s[12:15], {t['so']} offen offset:{t['imm']}{SC}")
    MP0 = PB(3)
    for r in (0, 2): A(f"v_mov_b64 {vr(MP0+r,2)}, {vr(MP+r,2)}")
    A("s_waitcnt lgkmcnt(0)")
    A("s_cmp_gt_u32 s19, 1")
    A("s_cbranch_scc1 P1_b4")
    for r in range(4): A(f"v_mov_b32 v{MP0+r}, v7")
    for r in (0, 2): A(f"v_mov_b64 {vr(KP(-1)+r,2)}, 0")
    for nt in range(2): A(f"v_mov_b64 {vr(VW(nt,-1),2)}, 0")
    A("s_mul_i32 s40, s19, 3072")
    A(f"s_add_u32 s40, s40, {STASH}")
    A("v_add_u32 v6, s40, v1")
    A(f"ds_write_b128 v6, {vr(QP(0),4)}")
    A(f"ds_write_b128 v6, {vr(KP(0),4)} offset:1024")
    A(f"ds_write_b64 v6, {vr(VW(0,0),2)} offset:2048")
    A(f"ds_write_b64 v6, {vr(VW(1,0),2)} offset:2056")
    A.label("P1_b4")
    A("s_and_b32 s38, s19, 6")
    A("s_lshl_b32 s38, s38, 12")
    A("s_lshl_b32 s39, s37, 11")
    A("s_add_u32 s38, s38, s39")
    A(f"s_add_u32 s38, s38, {OBS}")
    A("v_add_u32 v6, s38, v0")
    T = [tile(st) for st in range(4)]
    for st in range(4): T[st]['lds'] = (st >> 1) * 4096 + (st & 1) * 256
    T[0]['mp'] = MP0
    btiles(T)
    A("s_waitcnt lgkmcnt(0)")
    A("s_branch P2_compute")
    def aux_stash():
        A(f"v_add_u32 v6, {STASH}, v1")
        for wc in range(2):
            r = 72 + 24 * wc + 48
            A(f"ds_read_b128 {vr(r,4)}, v6 offset:{3072*wc}")
            A(f"ds_read_b128 {vr(r+8,4)}, v6 offset:{3072*wc+1024}")
            A(f"ds_read_b64 {vr(r+14,2)}, v6 offset:{3072*wc+2048}")
            A(f"ds_read_b64 {vr(r+18,2)}, v6 offset:{3072*wc+2056}")
        A("s_lshl_b32 s38, s30, 8")
        A("s_lshl_b32 s39, s31, 1")
        A("s_add_u32 s38, s38, s39")
        A("s_lshl_b32 s38, s38, 11")
        A(f"s_add_u32 s38, s38, {WS_O + (4 << 20)}")
        A(f"v_add_u32 v15, {OBS}, v1")
        A("s_waitcnt lgkmcnt(0)")
    def aux_copy(b_):
        for i in range(8): A(f"ds_read_b128 {vr(72+4*i,4)}, v15 offset:{b_*8192+i*1024}")
        for i in range(8):
            if i % 4 == 0: A(f"s_add_u32 s39, s38, {(2*b_+i//4)*65536}")
            A(f"s_waitcnt lgkmcnt({7-i})")
            A(f"buffer_store_dwordx4 {vr(72+4*i,4)}, v1, s[12:15], s39 offen offset:{(i%4)*1024}{SC}")
    def aux_halo_issue():
        poll("P2_h", 32, 1, 4, st=False)
        A("s_lshl_b32 s36, s31, 3")
        A("s_add_u32 s36, s36, s30")
        A("s_lshl_b32 s36, s36, 12")
        A(f"s_add_u32 s36, s36, {WS_H - 4096}")
        for wc in range(2):
            r = 72 + 24 * wc + 48
            A(f"buffer_load_dwordx4 {vr(r+4,4)}, v1, s[12:15], s36 offen offset:{2048*wc} sc1")
            A(f"buffer_load_dwordx2 {vr(r+12,2)}, v1, s[12:15], s36 offen offset:{2048*wc+1024} sc1")
            A(f"buffer_load_dwordx2 {vr(r+16,2)}, v1, s[12:15], s36 offen offset:{2048*wc+1032} sc1")
        bconsts()
    def aux_halo_compute():
        A("s_waitcnt vmcnt(0) lgkmcnt(0)")
        A("s_setprio 3")
        T = []
        for wc in range(2):
            r = 72 + 24 * wc + 48
            T.append(dict(q=r, kp=r+4, kc=r+8, v=[r+12, r+16], s=72+8*wc, p=88+4*wc, o=96+8*wc, l=112+4*wc, so="s38", imm=2048*wc))
        btiles(T)
        A(f"s_setprio {opts.get('lprio', 0)}")

    A.label("P2_fallback")
    A("s_mov_b32 s24, 1")
    for x in range(2): A(f"v_mov_b32 v{MX[x]}, 0xff800000")
    A("s_mov_b32 s21, 0")
    A.label("P2_maxloop")
    A(f"buffer_load_dwordx4 {vr(KF,4)}, v31, s[4:7], s21 offen{LD}")
    A(f"buffer_load_dwordx4 {vr(KF+4,4)}, v31, s[4:7], s21 offen offset:256{LD}")
    A("s_waitcnt vmcnt(0)")
    for x in range(2): A(M32(SX[x], KF, Q[x], None))
    for x in range(2): A(M32(SX[x], KF+4, Q[x]+4, SX[x]))
    A("s_nop 7")
    A("s_nop 3")
    for x in range(2):
        for i in range(8): A(f"v_max3_f32 v{MX[x]}, v{SX[x]+2*i}, v{SX[x]+2*i+1}, v{MX[x]}")
    A("s_add_u32 s21, s21, 4096")
    A("s_cmp_lt_u32 s21, 0x40000")
    A("s_cbranch_scc1 P2_maxloop")
    for x in range(2):
        A(f"v_mov_b32 v6, v{MX[x]}")
        A("s_nop 1")
        A(f"v_permlane32_swap_b32 v{MX[x]}, v6")
        A("s_nop 1")
        A(f"v_max_f32 v{MX[x]}, v{MX[x]}, v6")
    A("s_barrier")
    A("s_branch P2_restart")

    A.label("P2_helpers")
    p2_ids()
    A("v_mov_b64 v[48:49], 0")
    A("v_mov_b64 v[50:51], 0")
    A("v_lshlrev_b32 v1, 4, v1")
    A("s_lshl_b32 s26, s16, 6")
    A("s_lshl_b32 s27, s17, 3")
    A("s_add_u32 s26, s26, s27")
    A("v_lshrrev_b32 v41, 4, v1")
    p3_targets(40, 42, 41, "s17", 0)
    A("s_lshl_b32 s40, s16, 2")
    A(f"s_add_u32 s40, s40, {WS_F + 128}")
    A("v_add_u32 v40, s40, v40")
    A("s_cmp_eq_u32 s19, 9")
    A("s_cbranch_scc1 P2_aux")
    A("s_lshl_b32 s27, s26, 11")
    A("s_barrier")
    poll("P2_k", 0, 8, 2)
    A.label("P2_lstart")
    def l_stage():
        A("s_and_b32 s21, s23, 3")
        A("s_lshl_b32 s21, s21, 15")
        A("s_lshr_b32 s20, s23, 2")
        A("s_lshl_b32 s20, s20, 13")
        A("s_add_u32 s21, s21, s20")
        for g in range(4):
            A(f"s_add_u32 m0, s22, {g * 4096}")
            A(f"s_add_u32 s20, s21, {(g >> 1) * 131072 + (g & 1) * 4096}")
            for i in range(4):
                A(f"buffer_load_dwordx4 v1, s[4:7], s20 offen offset:{1024*i}{LD} lds")
        A(f"s_add_u32 s22, s22, {STG}")
        A(f"s_cmp_eq_u32 s22, {RING}")
        A("s_cselect_b32 s22, 0, s22")
    if QL:
        A("s_cmp_eq_u32 s33, 0")
        A("s_cbranch_scc1 P2_noq")
    for g in range(4):
        A(f"s_mov_b32 m0, {BREG + g * 4096}")
        A(f"s_add_u32 s20, s27, {g * 4096}")
        for i in range(4):
            A(f"buffer_load_dwordx4 v1, s[12:15], s20 offen offset:{1024*i}{LD} lds")
    A.label("P2_noq")
    A("s_mov_b32 s21, 0")
    A("s_mov_b32 s22, 0")
    A("s_mov_b32 s23, 0")
    sched = opts.get("ksched", "s s b s s b b p2 s s s b s b b b p3 s s s b s b s b s b s b s b b b b b").split()
    issued = 0; nb = -1
    for act in sched:
        if act == 's':
            assert issued < 16 and issued - 5 <= nb - 1 or issued < 6, (issued, nb)
            A("s_call_b64 s[28:29], P2_lsub"); issued += 1
        elif act == 'b':
            need = min(nb + 1, 15)
            assert issued > need
            A(f"s_waitcnt vmcnt({min(63, 16 * (issued - 1 - need))})")
            A("s_barrier"); nb += 1
        elif act == 'p2':
            assert issued == 4; poll("P2_k2", 64, 8, 2, st=False)
        elif act == 'p3':
            assert issued == 8; poll("P2_k3", 96, 8, 2, st=False)
    assert issued == 16 and nb == 16, (issued, nb)
    A("s_branch P2_htail")
    A.label("P2_lsub")
    l_stage()
    A("s_add_u32 s23, s23, 1")
    A("s_setpc_b64 s[28:29]")
    A.label("P2_aux")
    if opts.get("cnt", 2) == 1: poll_cnt("P2_c", 256, 2)
    if opts.get("cnt", 2) == 2:
        A("v_readfirstlane_b32 s46, v23")
        A("s_nop 3")
        A("s_cmp_ge_u32 s46, 256")
        A("s_cbranch_scc1 P2_c_go")
        poll_cnt("P2_c", 256, 2)
    A("s_barrier")
    A("s_cmp_lg_u32 s33, 0")
    A("s_cbranch_scc1 P2_auxb")
    signal(10, 16, 2)
    def park_copy(b_):
        wc, q = divmod(b_, 3)
        for i in range(8): A(f"ds_read_b128 {vr(72+4*i,4)}, v15 offset:{b_*8192+i*1024}")
        for i in range(8):
            if i % 4 == 0: A(f"s_add_u32 s39, s38, {wc*262144+q*8192+(i//4)*4096}")
            A(f"s_waitcnt lgkmcnt({7-i})")
            A(f"buffer_store_dwordx4 {vr(72+4*i,4)}, v1, s[12:15], s39 offen offset:{(i%4)*1024}{SC}")
    NB0 = opts.get("nb0", 2)
    A(f"v_add_u32 v15, {PARK}, v1")
    A("s_lshl_b32 s38, s31, 7")
    A("s_lshl_b32 s39, s30, 3")
    A("s_add_u32 s38, s38, s39")
    A("s_lshl_b32 s38, s38, 12")
    A(f"s_add_u32 s38, s38, {WS_KV + 8192}")
    asched = opts.get("asched", "b c0 c3 b w2 b c1 c4 b c2 c5 b b w3").split()
    nb_ = 0
    for act in asched:
        if act == 'b': A("s_barrier"); nb_ += 1
        elif act[0] == 'c': park_copy(int(act[1]))
        else:
            A(f"v_add_u32 v10, {64 if act == 'w2' else 32}, v10")
            A("s_waitcnt vmcnt(0)")
            signal(10, 16, 2)
    assert nb_ == 6
    A("s_branch P2_a1")
    A.label("P2_auxb")
    A("s_add_u32 s38, s30, 1")
    A("s_lshr_b32 s39, s38, 2")
    A("s_and_b32 s38, s38, 3")
    A("s_lshl_b32 s38, s38, 3")
    A("s_add_u32 s38, s38, s39")
    A("s_and_b32 s39, s2, -26")
    A("s_add_u32 s38, s38, s39")
    A("s_lshl_b32 s38, s38, 8")
    A(f"s_add_u32 s38, s38, {WS_F + 32}")
    A("v_mov_b32 v14, s38")
    A("s_barrier")
    aux_stash()
    A("s_barrier")
    A("s_cmp_eq_u32 s30, 7")
    A("s_cbranch_scc1 P2_auxb1")
    signal(14, 1, 2)
    A.label("P2_auxb1")
    aux_copy(0); aux_copy(1)
    A("s_barrier")
    aux_copy(2); aux_copy(3)
    A("s_barrier")
    A("s_cmp_eq_u32 s30, 0")
    A("s_cbranch_scc1 P2_auxb2")
    aux_halo_issue()
    A("s_barrier")
    aux_halo_compute()
    A("s_barrier")
    A("s_branch P2_a1")
    A.label("P2_auxb2")
    A("s_barrier")
    A("s_barrier")
    A("s_branch P2_a1")
    A.label("P2_astart")
    for i in range(6): A("s_barrier")
    A.label("P2_a1")
    if opts.get("wo_pf", 1):
        m3 = opts.get("mix3", 0)
        A("s_mov_b32 s10, 0x200000")
        A("s_cmp_lt_u32 s35, 16" if m3 else "s_cmp_lt_u32 s34, 4")
        A(f"s_cselect_b32 s8, s{P_AWO}, s{P_BWO}")
        A(f"s_cselect_b32 s9, s{P_AWO+1}, s{P_BWO+1}")
        A("v_and_b32 v44, 0x70, v1")
        A("v_lshlrev_b32 v44, 3, v44")
        A("v_lshrrev_b32 v45, 7, v1")
        A("v_lshl_add_u32 v44, v45, 11, v44")
        if m3:
            A("s_and_b32 s40, s35, 15")
            A("s_lshl_b32 s40, s40, 17")
            A("s_and_b32 s41, s34, 4")
            A("s_lshl_b32 s41, s41, 8")
        else:
            A("s_lshl_b32 s40, s35, 16")
            A("s_and_b32 s41, s34, 2")
            A("s_lshl_b32 s41, s41, 9")
        A("s_add_u32 s40, s40, s41")
    for i in range(4):
        if opts.get("wo_pf", 1):
            for _ in range(2 if opts.get("mix3", 0) else 1):
                A("buffer_load_dword v46, v44, s[8:11], s40 offen")
                A("s_add_u32 s40, s40, 16384")
        if i: A("s_barrier")
    A("s_cmp_eq_u32 s33, 0")
    A("s_cbranch_scc1 P2_a2")
    A("s_waitcnt vmcnt(0)")
    signal(12, 32, 2)
    A("s_mov_b32 s33, 0")
    A.label("P2_a2")
    p3_ids()
    if opts.get("out_touch", 1):
        A(f"s_mov_b32 s8, s{P_OUT}")
        A(f"s_mov_b32 s9, s{P_OUT+1}")
        A(f"s_mov_b32 s10, {2048*4096}")
        A("s_lshl_b32 s40, s17, 19")
        A("buffer_load_dword v46, off, s[8:11], s40")
    A("v_lshrrev_b32 v52, 4, v1")
    A("s_lshl_b32 s39, s18, 8")
    A(f"s_sub_u32 s6, {1024*2048}, s39")
    A("v_lshrrev_b32 v53, 4, v52")
    A("v_lshlrev_b32 v54, 1, v53")
    A("v_and_b32 v55, 15, v52")
    A("v_xor_b32 v54, v54, v55")
    A("v_lshlrev_b32 v54, 4, v54")
    A("v_lshl_add_u32 v48, v53, 11, v54")
    A("v_xor_b32 v49, 128, v48")
    A(f"v_add_u32 v49, {8192-1024}, v49")
    A("s_lshl_b32 s40, 16384, s16")
    A("s_sub_u32 s40, s40, 2048")
    A("s_lshr_b32 s41, 32768, s16")
    A("s_cmp_eq_u32 s16, 0")
    A("v_add_u32 v50, s40, v48")
    A("v_add_u32 v51, s40, v49")
    A(f"s_cselect_b32 s4, s{P_AWO}, s{P_BWO}")
    A(f"s_cselect_b32 s5, s{P_AWO+1}, s{P_BWO+1}")
    A("s_add_u32 s4, s4, s39")
    A("s_addc_u32 s5, s5, 0")
    A("s_lshl_b32 s21, s34, 18")
    A(f"s_mov_b32 s23, {W3 + 2*S3}")
    A("s_mov_b32 s38, 0")
    assert NW == 6
    def w_issue():
        for q in range(4):
            A(f"s_add_u32 m0, s23, {q*4096}")
            if q & 1: A("s_add_u32 s20, s20, s41")
            else: A(f"s_add_u32 s20, s21, {q*32768}")
            for i in range(4): A(f"buffer_load_dwordx4 v{48+i}, s[4:7], s20 offen offset:{1024*i} lds")
        A("s_add_u32 s21, s21, 0x20000")
        A("s_and_b32 s21, s21, 0x1fffff")
    ring_loader("P3_w", NW, W3, w_issue, None)
    A.label("P2_wback")
    A("s_barrier")
    A("s_cmp_lg_u32 s38, 4")
    A("s_cbranch_scc1 P2_wb1")
    A("s_barrier")
    A.label("P2_wb1")
    A("s_cmp_lt_u32 s38, 6")
    A("s_cbranch_scc1 P3_w_go2")
    A("s_barrier")
    A.label("P2_htail")
    A("s_barrier")
    A("s_cmp_lg_u32 s24, 0")
    A("s_cbranch_scc1 P2_hfin")
    read_flags(8)
    A("s_waitcnt lgkmcnt(0)")
    or_flags(8, 44)
    A("s_nop 3")
    A("s_cmp_eq_u32 s44, 0")
    A("s_cbranch_scc1 P2_hfin")
    A("s_mov_b32 s24, 1")
    A("s_waitcnt vmcnt(0)")
    A("s_barrier")
    A("s_cmp_eq_u32 s19, 9")
    A("s_cbranch_scc1 P2_astart")
    A("s_branch P2_lstart")
    A.label("P2_hfin")
    A("s_cmp_eq_u32 s19, 9")
    A("s_cbranch_scc0 P3_oload")
    A("s_barrier")
    A("s_waitcnt vmcnt(0)")
    A("s_barrier")
    pat = opts.get("wpat")
    if not pat:
        A("s_branch P3_w_l1")
    else:
        g = 24; issued = []
        for b in range(1, 16):
            need = [i for i, gg in enumerate(issued) if gg >> 2 <= b]
            if need: A(f"s_waitcnt vmcnt({min(63, 4 * (len(issued) - 1 - max(need)))})")
            assert g >> 2 > b or g == 64, (g, b)
            A("s_barrier")
            for _ in range(pat[(b - 1) % len(pat)]):
                if g == 64: break
                st_, q = g >> 2, g & 3
                assert st_ - 6 < b
                A(f"s_mov_b32 m0, {W3 + ((st_ + 2) % NW) * S3 + q * 4096}")
                if q & 1: A("s_add_u32 s20, s20, s41")
                else: A(f"s_add_u32 s20, s21, {q*32768}")
                if opts.get("p3noload", 0) < 2:
                    for i in range(4): A(f"buffer_load_dwordx4 v{48+i}, s[4:7], s20 offen offset:{1024*i} lds")
                if q == 3:
                    A("s_add_u32 s21, s21, 0x20000")
                    A("s_and_b32 s21, s21, 0x1fffff")
                issued.append(g); g += 1
        A("s_endpgm")
    A.label("L_done")
    A("s_endpgm")
    hdr = ("; concat_heads__mha_block__sliding_local_dilated__prompt : fused single-launch kernel (generated by gen/mega.py)\n"
           "; Kernarg: 0 A_x, 8 A_wqkv, 16 A_wo, 24 B_x, 32 B_wqkv, 40 B_wo, 48 out, 56 debug, 64 ws\n"
           f"; @launch grid=(256,1,1) block=(640,1,1) lds={LDS_BYTES}\n")
    return hdr + A.text() + '.section .rodata,"a"\n' + descriptor(NAME, 168, 102)

if __name__ == "__main__":
    opts = json.loads(sys.argv[2]) if len(sys.argv) > 2 else {}
    open(sys.argv[1], "w").write(gen(opts))
```

```python
import sys, os, json, struct, math
sys.path.insert(0, os.path.dirname(os.path.abspath(__file__)))
from asmlib import *

NAME = "concat_heads__mha_block__sliding_local_dilated__prompt_kernel"
WS_Q = 0
WS_KV = 4 << 20
WS_H = 12 << 20
WS_O = 24 << 20
WS_F = 32 << 20
WS_BYTES = (32 << 20) + 65536
QSCALE = (32 ** -0.5) * math.log2(math.e)
LDS_BYTES = 163840
def f32bits(x): return struct.unpack("<I", struct.pack("<f", x))[0]
def M32(d, a, b, c):
    cs = "0" if c is None else vr(c, 16)
    return f"v_mfma_f32_32x32x16_bf16 {vr(d,16)}, {vr(a,4)}, {vr(b,4)}, {cs}"
def M16(d, a, b, c):
    cs = "0" if c is None else vr(c, 4)
    return f"v_mfma_f32_16x16x32_bf16 {vr(d,4)}, {vr(a,4)}, {vr(b,4)}, {cs}"

P_AX, P_AW, P_AWO, P_BX, P_BW, P_BWO, P_OUT, P_DBG, P_WS = 76, 78, 80, 82, 84, 86, 88, 90, 92

def gen(opts=None):
    opts = opts or {}
    A = Asm()
    stamp = opts.get("stamp", False)
    SC = " sc1"
    QL = opts.get("qloc", 1)
    SC1 = opts.get("p1st", " sc1")
    LD = opts.get("ld_mod", " sc1")
    def ST(i):
        if stamp:
            A("s_memrealtime s[100:101]")
            A("s_waitcnt lgkmcnt(0)")
            A(f"s_mov_b32 s{50+i}, s100")
    def lane(dst):
        A(f"v_mbcnt_lo_u32_b32 v{dst}, -1, 0")
        A(f"v_mbcnt_hi_u32_b32 v{dst}, -1, v{dst}")
    def poll_cnt(tag, target, vtmp):
        A(f"s_mov_b32 s47, {opts.get('poll_max', 30000)}")
        A.label(f"{tag}_poll")
        A(f"buffer_load_dword v{vtmp}, off, s[72:75], 0 sc1")
        A("s_waitcnt vmcnt(0)")
        A(f"v_readfirstlane_b32 s46, v{vtmp}")
        A("s_sub_u32 s47, s47, 1")
        A("s_cmp_eq_u32 s47, 0")
        A(f"s_cbranch_scc1 {tag}_go")
        A(f"s_cmp_ge_u32 s46, {target}")
        A(f"s_cbranch_scc1 {tag}_go")
        A(f"s_branch {tag}_poll")
        A.label(f"{tag}_go")
    def poll(tag, off, nflags, vtmp, st=True):
        A(f"s_mov_b32 s47, {opts.get('poll_max', 30000)}")
        A("s_lshl_b32 s46, s2, 8")
        A(f"s_add_u32 s46, s46, {WS_F + off}")
        A(f"v_lshrrev_b32 v{vtmp+1}, 2, v1")
        A(f"v_and_b32 v{vtmp+1}, {4*nflags-1}, v{vtmp+1}")
        if opts.get("pp", 0) and st:
            if st: ST(0)
            A(f"buffer_load_dword v{vtmp}, v{vtmp+1}, s[12:15], s46 offen sc1")
            for _ in range(opts["pp"]): A("s_nop 15")
            A.label(f"{tag}_poll")
            for r_new, r_old in ((vtmp + 2, vtmp), (vtmp, vtmp + 2)):
                A(f"buffer_load_dword v{r_new}, v{vtmp+1}, s[12:15], s46 offen sc1")
                A("s_sub_u32 s47, s47, 1")
                A("s_waitcnt vmcnt(1)")
                A(f"v_cmp_eq_u32 vcc, 0, v{r_old}")
                A("s_cmp_eq_u32 s47, 0")
                A(f"s_cbranch_scc1 {tag}_go")
                A("s_cmp_eq_u64 vcc, 0")
                A(f"s_cbranch_scc1 {tag}_go")
            A(f"s_branch {tag}_poll")
        else:
            if st: ST(0)
            A.label(f"{tag}_poll")
            A(f"buffer_load_dword v{vtmp}, v{vtmp+1}, s[12:15], s46 offen sc1")
            A("s_sub_u32 s47, s47, 1")
            A("s_waitcnt vmcnt(0)")
            A(f"v_cmp_eq_u32 vcc, 0, v{vtmp}")
            A("s_cmp_eq_u32 s47, 0")
            A(f"s_cbranch_scc1 {tag}_go")
            A("s_cmp_eq_u64 vcc, 0")
            A(f"s_cbranch_scc1 {tag}_go")
            if opts.get('poll_sleep', 0): A(f"s_sleep {opts.get('poll_sleep', 0)}")
            A(f"s_branch {tag}_poll")
        A.label(f"{tag}_go")
        if st: ST(1)
        if stamp and st: A("s_mov_b32 s52, s47")
    def p3_targets(dst, tmp, vlane, sblk, xoff):
        A(f"v_lshrrev_b32 v{tmp}, 3, v{vlane}")
        A(f"v_and_b32 v{tmp}, 1, v{tmp}")
        A(f"s_lshl_b32 s40, {sblk}, 1")
        A(f"v_add_u32 v{tmp}, s40, v{tmp}")
        if opts.get("mix3", 0):
            A(f"v_lshrrev_b32 v{dst}, 2, v{tmp}")
            A(f"v_and_b32 v{tmp}, 3, v{tmp}")
            A(f"v_lshl_add_u32 v{dst}, v{tmp}, 3, v{dst}")
            A(f"v_and_b32 v{tmp}, 3, v{vlane}")
            A(f"v_lshl_add_u32 v{dst}, v{tmp}, 5, v{dst}")
            A(f"v_and_b32 v{tmp}, 4, v{vlane}")
            A(f"v_add_u32 v{dst}, v{dst}, v{tmp}")
            if xoff: A(f"v_add_u32 v{dst}, 128, v{dst}")
        else:
            A(f"v_lshrrev_b32 v{dst}, 3, v{tmp}")
            A(f"v_and_b32 v{tmp}, 7, v{tmp}")
            A(f"v_lshl_add_u32 v{dst}, v{tmp}, 3, v{dst}")
            A(f"v_and_b32 v{tmp}, 3, v{vlane}")
            A(f"v_lshl_add_u32 v{dst}, v{tmp}, 6, v{dst}")
            A(f"v_and_b32 v{tmp}, 4, v{vlane}")
            A(f"v_lshrrev_b32 v{tmp}, 1, v{tmp}")
            A(f"v_add3_u32 v{dst}, v{dst}, v{tmp}, {xoff}")
        A(f"v_lshlrev_b32 v{dst}, 8, v{dst}")
    def signal(vaddr, nl, vtmp):
        A(f"v_mov_b32 v{vtmp}, 1")
        A(f"s_mov_b64 exec, {(1 << nl) - 1}")
        A(f"buffer_store_dword v{vtmp}, v{vaddr}, s[12:15], 0 offen sc1")
        A("s_mov_b64 exec, -1")

    A('.amdgcn_target "amdgcn-amd-amdhsa--gfx950"')
    A(".text")
    kernel_begin(A, NAME)
    if opts.get("padto") or opts.get("xst"):
        A("s_memrealtime s[98:99]")
    A("s_load_dwordx16 s[76:91], s[0:1], 0")
    A("s_load_dwordx2 s[92:93], s[0:1], 64")
    A("v_lshrrev_b32 v14, 6, v0")
    A("v_and_b32 v1, 63, v0")
    A("v_readfirstlane_b32 s19, v14")
    A("s_cmp_ge_u32 s2, 256")
    A("s_cbranch_scc1 L_done")
    XSLOT = 32768; WBASE = 3 * XSLOT; WSLOT = 12288; WEND = WBASE + 5 * WSLOT
    A("s_and_b32 s34, s2, 7")
    A("s_lshr_b32 s35, s2, 3")
    mix = opts.get("mix", 1)
    if mix:
        A("s_lshr_b32 s16, s35, 4")
        A("s_and_b32 s17, s34, 1")
        A("s_lshl_b32 s17, s17, 2")
        A("s_and_b32 s36, s35, 3")
        A("s_add_u32 s17, s17, s36")
        A("s_lshr_b32 s18, s34, 1")
        A("s_lshl_b32 s18, s18, 2")
        A("s_lshr_b32 s36, s35, 2")
        A("s_and_b32 s36, s36, 3")
        A("s_add_u32 s18, s18, s36")
    else:
        A("s_lshr_b32 s16, s34, 2")
        A("s_and_b32 s17, s34, 1")
        A("s_lshl_b32 s17, s17, 2")
        A("s_and_b32 s36, s35, 3")
        A("s_add_u32 s17, s17, s36")
        A("s_lshr_b32 s18, s34, 1")
        A("s_and_b32 s18, s18, 1")
        A("s_lshl_b32 s18, s18, 3")
        A("s_lshr_b32 s36, s35, 2")
        A("s_add_u32 s18, s18, s36")
    A(f"s_mov_b32 s14, {WS_BYTES}")
    A("s_mov_b32 s15, 0x20000")
    A("s_mov_b32 s74, 256")
    A("s_mov_b32 s75, 0x20000")
    A("s_mov_b32 s7, 0x20000")
    A("s_mov_b32 s11, 0x20000")
    def common_srds():
        A(f"s_mov_b32 s12, s{P_WS}")
        A(f"s_mov_b32 s13, s{P_WS+1}")
        A(f"s_mov_b32 s72, s{P_DBG}")
        A(f"s_mov_b32 s73, s{P_DBG+1}")
    A("s_cmp_lt_u32 s19, 8")
    A("s_cbranch_scc1 P1_compute")
    if opts.get("lprio"): A(f"s_setprio {opts['lprio']}")
    rotv = opts.get("rotv", 2)
    if rotv == 1:
        A("s_lshr_b32 s49, s34, 1")
        A("s_lshl_b32 s49, s49, 9")
        A("s_and_b32 s23, s34, 1")
        A("s_lshl_b32 s23, s23, 10")
        A("s_add_u32 s49, s49, s23")
        A("s_lshl_b32 s23, s16, 8")
        A("s_add_u32 s49, s49, s23")
    elif rotv == 2:
        A(f"s_mul_i32 s49, s16, {128 * opts.get('brofs', 8)}")
    elif rotv == 3:
        A("s_lshl_b32 s49, s34, 8")
    else:
        A("s_lshr_b32 s49, s34, 1")
        A("s_xor_b32 s49, s49, s34")
        A("s_and_b32 s49, s49, 1")
        A("s_lshl_b32 s49, s49, 10")
        A("s_lshl_b32 s23, s16, 9")
        A("s_add_u32 s49, s49, s23")
        A("s_and_b32 s23, s34, 1")
        A("s_lshl_b32 s23, s23, 8")
        A("s_add_u32 s49, s49, s23")
    A("s_add_u32 s48, s17, s18")
    A(f"s_and_b32 s48, s48, {opts.get('grp', 1)}")
    if opts.get("gsh"): A(f"s_lshl_b32 s48, s48, {opts['gsh']}")
    if opts.get("xg"):
        A("s_lshr_b32 s23, s34, 1")
        A("s_xor_b32 s23, s23, s34")
        A("s_and_b32 s23, s23, 1")
        A("s_lshl_b32 s23, s23, 1")
        A("s_or_b32 s48, s48, s23")
    A("v_lshrrev_b32 v15, 3, v1")
    A("v_lshrrev_b32 v16, 4, v1")
    A("v_and_b32 v18, 7, v1")
    A("s_mov_b32 s40, 0")
    A("s_cmp_eq_u32 s19, 8")
    A("s_cbranch_scc1 P1_xload")
    A("s_lshl_b32 s39, s18, 7")
    A(f"s_sub_u32 s6, {1024*6144}, s39")
    A("v_and_b32 v16, 1, v16")
    A("v_lshlrev_b32 v16, 1, v16")
    A("v_xor_b32 v16, v18, v16")
    A("v_lshlrev_b32 v16, 4, v16")
    A("v_mul_u32_u24 v17, 6144, v15")
    A("v_add_u32 v2, v17, v16")
    A("v_xor_b32 v16, 64, v16")
    A("v_add_u32 v3, v17, v16")
    A(f"v_add_u32 v3, {8*6144-1024}, v3")
    A(f"v_add_u32 v4, {16*6144-2048}, v2")
    A(f"v_add_u32 v5, {16*6144-2048}, v3")
    A("s_lshl_b32 s48, s48, 1")
    A(f"s_mov_b32 s22, {WBASE}")
    A("v_lshlrev_b32 v20, 2, v1")
    A("v_mov_b32 v21, 0")
    A("v_mov_b32 v22, 1")
    A("s_lshl_b32 s45, s2, 8")
    A(f"s_add_u32 s45, s45, {WS_F}")
    A("s_and_b32 s44, s35, 7")
    A("s_lshl_b32 s44, s44, 1")
    A("s_add_u32 s44, s44, 9")
    A("s_cmp_eq_u32 s16, 0")
    A("s_waitcnt lgkmcnt(0)")
    A(f"s_cselect_b32 s4, s{P_AW}, s{P_BW}")
    A(f"s_cselect_b32 s5, s{P_AW+1}, s{P_BW+1}")
    A("s_add_u32 s4, s4, s39")
    A("s_addc_u32 s5, s5, 0")
    common_srds()
    A("s_branch P1_wgo")
    A.c("---- phase 1, wave 9: W stream (5 half-stage ring); clears the flag block and counts the arrival ----")
    A.label("P1_wclr")
    A("buffer_store_dword v21, v20, s[12:15], s45 offen sc1")
    A.label("P1_wwait")
    A("s_waitcnt vmcnt(12)")
    A("s_barrier")
    A("s_cmp_eq_u32 s40, s44")
    A("s_cbranch_scc0 P1_wgo")
    A("s_waitcnt vmcnt(0)")
    A("s_mov_b64 exec, 1")
    A("buffer_atomic_add v22, off, s[72:75], 0 sc1")
    if opts.get("padmin"):
        A("s_not_b32 s97, s98")
        A("v_mov_b32 v24, s97")
        A("buffer_atomic_umax v24, off, s[72:75], 0 offset:32 sc1")
    A("s_mov_b64 exec, -1")
    A.label("P1_wgo")
    if opts.get("abl") == "nodma":
        A("s_cmp_lt_u32 s40, 5"); A("s_cbranch_scc1 P1_wgo2"); A("s_add_u32 s40, s40, 1"); A("s_branch P1_w1"); A.label("P1_wgo2")
    A("s_xor_b32 s23, s40, s48")
    A("s_lshl_b32 s23, s23, 6")
    A("s_add_u32 s23, s23, s49")
    A("s_and_b32 s23, s23, 2047")
    A("s_mul_i32 s20, s23, 3072")
    for ty in range(3):
        A(f"s_add_u32 m0, s22, {ty*4096}")
        if ty: A("s_add_u32 s20, s20, 2048")
        else: A("s_add_u32 s40, s40, 1")
        for i in range(4):
            A(f"buffer_load_dwordx4 v{2+i}, s[4:7], s20 offen offset:{1024*i}{opts.get('ld1', '')} lds")
    A(f"s_add_u32 s22, s22, {WSLOT}")
    A(f"s_cmp_eq_u32 s22, {WEND}")
    A(f"s_cselect_b32 s22, {WBASE}, s22")
    WPRE = opts.get("wpre", 3)
    A(f"s_cmp_eq_u32 s40, {WPRE}")
    A("s_cbranch_scc0 P1_w1")
    A(f"s_waitcnt vmcnt({12*(WPRE-2)})")
    A("s_barrier")
    A.label("P1_w1")
    A("s_cmp_lt_u32 s40, 5")
    A("s_cbranch_scc1 P1_wgo")
    A("s_bitcmp0_b32 s40, 0")
    A("s_cbranch_scc1 P1_w2")
    A("s_cmp_eq_u32 s40, 5")
    A("s_cbranch_scc1 P1_wclr")
    A("s_branch P1_wwait")
    A.label("P1_w2")
    A("s_cmp_lt_u32 s40, 32")
    A("s_cbranch_scc1 P1_wgo")
    A("s_branch P1_ltail")
    A.c("---- phase 1, wave 8: X stream (3 stage ring) ----")
    A.label("P1_xload")
    A("s_mov_b32 s6, 0x80000")
    A("s_lshl_b32 s36, s17, 19")
    A("v_xor_b32 v17, v18, v16")
    A("v_lshlrev_b32 v17, 4, v17")
    A("v_lshl_add_u32 v2, v15, 11, v17")
    A("v_xor_b32 v3, 64, v2")
    A(f"v_add_u32 v3, {16384-1024}, v3")
    A(f"v_add_u32 v4, {32768-2048}, v2")
    A(f"v_add_u32 v5, {32768-2048}, v3")
    A("s_mov_b32 s22, 0")
    A("s_cmp_eq_u32 s16, 0")
    A("s_waitcnt lgkmcnt(0)")
    A(f"s_cselect_b32 s4, s{P_AX}, s{P_BX}")
    A(f"s_cselect_b32 s5, s{P_AX+1}, s{P_BX+1}")
    A("s_add_u32 s4, s4, s36")
    A("s_addc_u32 s5, s5, 0")
    if opts.get("xst"): A("s_memrealtime s[96:97]")
    A.label("P1_xgo")
    if opts.get("abl") == "nodma":
        A("s_cmp_gt_u32 s40, 2"); A("s_cbranch_scc1 P1_xskip")
    A("s_xor_b32 s21, s40, s48")
    A("s_lshl_b32 s21, s21, 7")
    A("s_add_u32 s21, s21, s49")
    A("s_and_b32 s21, s21, 2047")
    XB0 = opts.get("xb0", 4)
    for q in range(8):
        A(f"s_add_u32 m0, s22, {q*4096}")
        A(f"s_add_u32 s20, s21, {q*65536}")
        if q == XB0:
            A("s_cmp_eq_u32 s40, 1")
            A("s_cbranch_scc0 P1_x0")
            if opts.get("xst"): A("s_memrealtime s[94:95]")
            A(f"s_waitcnt vmcnt({4*XB0})")
            if opts.get("xst"): A("s_memrealtime s[62:63]")
            A("s_barrier")
            if opts.get("xst"): A("s_memrealtime s[60:61]")
            A.label("P1_x0")
        for i in range(4):
            A(f"buffer_load_dwordx4 v{2+i}, s[4:7], s20 offen offset:{1024*i}{opts.get('ld1', '')} lds")
    A.label("P1_xskip")
    A(f"s_add_u32 s22, s22, {XSLOT}")
    A(f"s_cmp_eq_u32 s22, {3*XSLOT}")
    A("s_cselect_b32 s22, 0, s22")
    A("s_add_u32 s40, s40, 1")
    A(f"s_cmp_lt_u32 s40, {2 if XB0 == 8 else 3}")
    A("s_cbranch_scc1 P1_xgo")
    A("s_waitcnt vmcnt(32)")
    A("s_barrier")
    A("s_cmp_lt_u32 s40, 16")
    A("s_cbranch_scc1 P1_xgo")
    if opts.get("xst"):
        common_srds()
        A("s_waitcnt lgkmcnt(0)")
        A("s_lshl_b32 s36, s2, 8")
        A(f"s_add_u32 s36, s36, {64<<20}")
        A("s_mov_b32 s14, 0x8000000")
        for w_ in range(4):
            for i, r in enumerate((98, 96, 94, 62, 60) + (60,) * 6):
                A(f"v_mov_b32 v30, s{r}")
                A(f"buffer_store_dword v30, off, s[12:15], s36 offset:{4*i+64*w_}")
        A(f"s_mov_b32 s14, {WS_BYTES}")
    A.label("P1_ltail")
    common_srds()
    if opts.get("cnt", 2) == 2:
        A("buffer_load_dword v23, off, s[72:75], 0")
    A("s_waitcnt vmcnt(0)")
    A("s_barrier")
    if QL:
        assert mix
        A("v_and_b32 v10, 8, v1")
        A("v_lshlrev_b32 v10, 4, v10")
        A("v_and_b32 v11, 3, v1")
        A("v_lshl_add_u32 v10, v11, 3, v10")
        A("v_bfe_u32 v11, v1, 2, 1")
        A("s_and_b32 s45, s2, 0x66")
        A("v_add3_u32 v10, v10, v11, s45")
    else:
        A("v_lshrrev_b32 v10, 3, v1")
        A("s_lshl_b32 s45, s18, 1")
        A("v_add_u32 v10, s45, v10")
        A("v_and_b32 v11, 3, v10")
        A("v_lshrrev_b32 v10, 2, v10")
        A("v_lshl_add_u32 v10, v11, 3, v10")
        A("v_and_b32 v11, 7, v1")
        A("v_lshl_add_u32 v10, v11, 5, v10")
    A("s_lshl_b32 s45, s17, 2")
    A(f"s_add_u32 s45, s45, {WS_F}")
    A("v_lshlrev_b32 v10, 8, v10")
    A("v_add_u32 v10, s45, v10")
    p3_targets(12, 13, 1, "s17", 4)
    A("v_lshrrev_b32 v13, 4, v1")
    A("v_and_b32 v13, 1, v13")
    A("v_lshl_add_u32 v12, v13, 2, v12")
    A("s_lshl_b32 s45, s18, 3")
    A(f"s_add_u32 s45, s45, {WS_F + 128}")
    A("v_add_u32 v12, s45, v12")
    A("s_mov_b32 s33, s16")
    A("s_mov_b32 s30, s17")
    A("s_mov_b32 s31, s18")
    A("s_barrier")
    A("s_branch P2_helpers")
    A.c("---- phase 1, waves 0-7: 64 x 96 tile per wave ----")
    A.label("P1_compute")
    if opts.get("code_pf", 1):
        A("s_getpc_b64 s[40:41]")
        A("v_and_b32 v20, 127, v0")
        A("v_lshlrev_b32 v20, 7, v20")
        A("v_min_u32 v20, L_done-P1_compute-64, v20")
        A("s_cmp_lt_u32 s19, 2")
        A("s_cbranch_scc0 P1_nopf")
        A("global_load_dword v21, v20, s[40:41]")
        A.label("P1_nopf")
    if opts.get("apf"):
        A("s_cmp_eq_u32 s16, 0")
        A("s_cbranch_scc1 P1_noapf")
        A("s_lshl_b32 s36, s17, 4")
        A("s_add_u32 s36, s36, s18")
        A("s_lshl_b32 s36, s36, 3")
        A("s_add_u32 s36, s36, s19")
        A("v_lshlrev_b32 v20, 7, v1")
        A("s_mov_b32 s6, 0x400000")
        A("s_mov_b32 s10, 0x600000")
        A("s_lshl_b32 s37, s36, 12")
        A("s_mul_i32 s38, s36, 6144")
        A("s_waitcnt lgkmcnt(0)")
        A(f"s_mov_b32 s4, s{P_AX}")
        A(f"s_mov_b32 s5, s{P_AX+1}")
        A(f"s_mov_b32 s8, s{P_AW}")
        A(f"s_mov_b32 s9, s{P_AW+1}")
        if opts["apf"] & 1:
            A("s_mov_b64 exec, 0xffffffff")
            A("buffer_load_dword v22, v20, s[4:7], s37 offen")
        if opts["apf"] & 2:
            A("s_mov_b32 exec_lo, -1")
            A("s_mov_b32 exec_hi, 0xffff")
            A("buffer_load_dword v23, v20, s[8:11], s38 offen")
        A("s_mov_b64 exec, -1")
        A.label("P1_noapf")
    ST(0)
    A("v_lshrrev_b32 v15, 1, v14")
    A("v_and_b32 v16, 15, v1")
    A("v_lshl_add_u32 v17, v15, 6, v16")
    A("v_lshlrev_b32 v17, 7, v17")
    A("v_lshrrev_b32 v16, 1, v16")
    A("v_lshrrev_b32 v18, 4, v1")
    A("v_xor_b32 v16, v16, v18")
    A("v_lshl_add_u32 v2, v16, 4, v17")
    A("v_xor_b32 v3, 64, v2")
    A("v_lshrrev_b32 v16, 2, v1")
    A("v_and_b32 v16, 3, v16")
    A("v_lshl_add_u32 v17, v18, 3, v16")
    A("v_lshlrev_b32 v17, 7, v17")
    A("v_lshrrev_b32 v16, 1, v16")
    A("v_and_b32 v19, 1, v18")
    A("v_lshl_add_u32 v16, v19, 1, v16")
    A("v_and_b32 v19, 1, v14")
    A("v_lshlrev_b32 v19, 1, v19")
    A("v_xor_b32 v16, v16, v19")
    A("v_lshl_add_u32 v17, v16, 5, v17")
    A("v_and_b32 v16, 3, v1")
    A("v_lshl_add_u32 v4, v16, 3, v17")
    A("v_xor_b32 v5, 32, v4")
    A("v_lshlrev_b32 v1, 4, v1")
    ACC = 72; XF = 8; WF = [24, 48]
    AX, AW0, AW1 = 0, 6, 7
    for i in range(0, 96, 2): A(f"v_mov_b64 v[{ACC+i}:{ACC+i+1}], 0")
    A("s_and_b32 s36, s19, 1")
    A("s_lshl_b32 s37, s18, 1")
    A("s_add_u32 s36, s36, s37")
    A("s_lshl_b32 s36, s36, 6")
    A("s_lshl_b32 s37, s17, 3")
    A("s_add_u32 s36, s36, s37")
    A("s_lshr_b32 s37, s19, 1")
    A("s_lshl_b32 s37, s37, 1")
    A("s_add_u32 s36, s36, s37")
    A("s_lshl_b32 s64, s36, 11")
    A("s_add_u32 s65, s64, 2048")
    A("s_lshl_b32 s66, s36, 12")
    A(f"s_add_u32 s66, s66, {WS_KV}")
    A("s_add_u32 s67, s66, 4096")
    A("s_add_u32 s68, s66, 2048")
    A("s_add_u32 s69, s66, 6144")
    A(f"s_mov_b32 s42, {f32bits(QSCALE)}")
    A(f"s_mov_b32 s43, {f32bits(QSCALE)}")
    barpos = opts.get("barpos", 4)
    def xf(st): return XF + 4*st
    def wf(s, n6): return WF[s] + 4*n6
    def acc(st, n6): return ACC + (st*6+n6)*4
    def xrd(st): return ('rd', f"ds_read_b128 {vr(xf(st),4)}, v{AX} offset:{st*2048}", f"x{st}")
    def wrds(s):
        L = []
        for i in range(6):
            ty, nt = i >> 1, i & 1
            for half in range(2):
                L.append(('rd', f"ds_read_b64_tr_b16 {vr(wf(s,i)+2*half,2)}, v{AW0+nt} offset:{ty*4096+half*512}", f"w{s}_{i}"))
        return L
    def mf(s, st, n6):
        d = acc(st, n6)
        t = M16(d, wf(s,n6), xf(st), d) if n6 < 4 else M16(d, xf(st), wf(s,n6), d)
        needs = [f"x{st}", f"w{s}_{n6}"]
        if st == 0 and n6 == 0: needs = ["x0", "x1", "x2"] + [f"w{s}_{i}" for i in range(6)]
        return ('op', t, needs)
    def nextW():
        return [f"s_add_u32 s46, s46, {WSLOT}", f"s_cmp_eq_u32 s46, {WEND}", f"s_cselect_b32 s46, {WBASE}, s46",
                f"v_add_u32 v{AW0}, s46, v4", f"v_add_u32 v{AW1}, s46, v5"]
    A("s_mov_b32 s44, 0")
    A(f"s_mov_b32 s46, {WBASE}")
    A("s_mov_b32 s40, 16")
    A(f"v_mov_b32 v{AX}, v2")
    A(f"v_add_u32 v{AW0}, s46, v4")
    A(f"v_add_u32 v{AW1}, s46, v5")
    A("s_waitcnt lgkmcnt(0)")
    common_srds()
    A("s_waitcnt vmcnt(0)")
    A("s_barrier")
    ST(1)
    if opts.get("p1s", 1) == 0:
        items = []
        for sub in range(2):
            s = sub
            ms = [mf(s, st, (q if st % 2 == 0 else 5 - q)) for st in range(4) for q in range(6)]
            wr = wrds(s ^ 1)
            gaps = [[] for _ in range(24)]
            start = 0 if sub == 0 else barpos
            pre = nextW()
            if sub == 0:
                pre += [f"v_add_u32 v{AX}, s44, v3"]
            else:
                pre += [f"s_add_u32 s44, s44, {XSLOT}", f"s_cmp_eq_u32 s44, {3*XSLOT}", "s_cselect_b32 s44, 0, s44", f"v_add_u32 v{AX}, s44, v2",
                        "s_sub_u32 s40, s40, 1"]
            for i, l in enumerate(pre): gaps[min(i // 3, 2 if sub == 0 else barpos - 1)].append(('raw', l))
            if sub == 1: gaps[barpos - 1].append(('all', "s_barrier"))
            g = max(start, 2)
            for r in wr:
                if g in (5, 11, 17): g += 1
                gaps[g].append(r); g += 1
            assert g <= 23, g
            for st in range(4): gaps[6*st+5].append(xrd(st))
            if sub == 1: gaps[22].append(('raw', "s_cmp_lg_u32 s40, 0"))
            for i in range(24):
                items.append(ms[i]); items += gaps[i]
    else:
        items = []
        AXS = [1, 0]
        for sub in range(2):
            s = sub
            ms = [mf(s, st, (q if st % 2 == 0 else 5 - q)) for st in range(4) for q in range(6)]
            wr = wrds(s ^ 1)
            gaps = [[] for _ in range(24)]
            g = 0 if sub == 0 else barpos
            if sub == 1: gaps[barpos - 1].append(('all', "s_barrier"))
            for r in wr:
                if g in (5, 11, 17): g += 1
                gaps[g].append(r); g += 1
            lastw = g - 1
            for st in range(4):
                gaps[6*st+5].append(('rd', f"ds_read_b128 {vr(xf(st),4)}, v{AXS[sub]} offset:{st*2048}", f"x{st}"))
            nw = nextW()
            if sub == 0:
                sc = [f"s_add_u32 s44, s44, {XSLOT}", f"s_cmp_eq_u32 s44, {3*XSLOT}", "s_cselect_b32 s44, 0, s44", f"v_add_u32 v{AXS[1]}, s44, v2"]
            else:
                sc = [f"v_add_u32 v{AXS[0]}, s44, v3", "s_sub_u32 s40, s40, 1"]
            sc = sc + nw[:3]
            gg = 6
            for l in sc:
                gaps[gg].append(('raw', l)); gg += 1
            gaps[lastw + 1].append(('raw', nw[3])); gaps[lastw + 2].append(('raw', nw[4]))
            if sub == 1: gaps[22].append(('raw', "s_cmp_lg_u32 s40, 0"))
            for i in range(24):
                items.append(ms[i]); items += gaps[i]
    pro = [it for it in items if it[0] == 'rd'][-16:]
    assert sorted(set(t[2] for t in pro)) == sorted([f"x{i}" for i in range(4)] + [f"w0_{i}" for i in range(6)])
    for it in pro: A(it[1])
    if opts.get("p1s", 1):
        for l in nextW(): A(l)
        A("v_mov_b32 v1, v3")
    if opts.get("abl") == "nord":
        for it in wrds(1): A(it[1])
    body1, _ = schedule_waits(items, passes=1, init_queue=[t[2] for t in pro])
    A(".p2align 6")
    A.label("P1_loop")
    for l in body1:
        if opts.get("abl") == "nord" and l.startswith("ds_read") and "v[48:" not in l and False: continue
        if opts.get("abl") == "nord" and l.startswith("ds_read"): l = "s_nop 0"
        A(l)
    A("s_cbranch_scc1 P1_loop")
    if opts.get("p1s", 1):
        lane(1)
        A("v_lshlrev_b32 v1, 4, v1")
    A("s_waitcnt lgkmcnt(0)")
    ST(2)
    A("s_cmp_lg_u32 s16, 0")
    A("s_cbranch_scc1 P1_bepi")
    PARK = 114688
    A("s_and_b32 s36, s19, 1")
    A("s_mul_i32 s36, s36, 24576")
    A("s_lshr_b32 s37, s19, 1")
    A("s_lshl_b32 s37, s37, 13")
    A("s_add_u32 s36, s36, s37")
    A(f"s_add_u32 s36, s36, {PARK - 8192}")
    A("v_add_u32 v6, s36, v1")
    A("s_lshl_b32 s37, s19, 11")
    A("s_and_b32 s37, s37, 0x3000")
    A("s_add_u32 s37, s37, 98304")
    A("v_add_u32 v7, s37, v1")
    if opts.get("eprio", 1):
        A("s_bitcmp1_b32 0xab, s19")
        A("s_cbranch_scc0 P1_np")
        A("s_setprio 2")
        A.label("P1_np")
    A("s_cmp_lt_u32 s19, 2")
    A("s_cbranch_scc1 P1_kv")
    A.c("---- phase 1 epilogue, branch A: pack and publish Q / K / V fragments ----")
    A.label("P1_q")
    for st in range(4):
        p = 8 + 4 * st
        for nt in range(2):
            d = acc(st, nt)
            for r in (0, 2): A(f"v_pk_mul_f32 v[{d+r}:{d+r+1}], v[{d+r}:{d+r+1}], s[42:43]")
            A(f"v_cvt_pk_bf16_f32 v{p+2*nt}, v{d}, v{d+1}")
            A(f"v_cvt_pk_bf16_f32 v{p+2*nt+1}, v{d+2}, v{d+3}")
    if QL:
        A("s_bitcmp0_b32 s19, 0")
        A("s_cbranch_scc1 P1_ql")
    for st in range(4): A(f"buffer_store_dwordx4 {vr(8+4*st,4)}, v1, s[12:15], s{64+(st>>1)} offen offset:{(st&1)*1024}{SC}")
    if QL:
        A("s_branch P1_qd")
        A.label("P1_ql")
        for st in range(4): A(f"ds_write_b128 v7, {vr(8+4*st,4)} offset:{st*1024}")
        A.label("P1_qd")
    A("s_cmp_lt_u32 s19, 2")
    A("s_cbranch_scc1 P1_parked")
    A.label("P1_kv")
    kv = []
    for mt in range(2):
        for nt in range(2):
            p = 40 + 8 * mt + 4 * nt; kv.append((p, mt, 2048 + nt * 1024))
            for u in range(2):
                d = acc(2*mt+u, 4+nt)
                A(f"v_cvt_pk_bf16_f32 v{p+2*u}, v{d}, v{d+1}")
                A(f"v_cvt_pk_bf16_f32 v{p+2*u+1}, v{d+2}, v{d+3}")
    for st in range(4):
        p = 24 + 4 * st; kv.insert(st, (p, st >> 1, (st & 1) * 1024))
        for nt in range(2):
            d = acc(st, 2+nt)
            A(f"v_cvt_pk_bf16_f32 v{p+2*nt}, v{d}, v{d+1}")
            A(f"v_cvt_pk_bf16_f32 v{p+2*nt+1}, v{d+2}, v{d+3}")
    for p, mt, off in kv[4:]:
        A(f"v_permlane16_swap_b32 v{p}, v{p+2}")
        A(f"v_permlane16_swap_b32 v{p+1}, v{p+3}")
    A("s_cmp_gt_u32 s19, 1")
    A("s_cbranch_scc1 P1_park")
    for p, mt, off in kv: A(f"buffer_store_dwordx4 {vr(p,4)}, v1, s[12:15], s{66+mt} offen offset:{off}{SC}")
    A("s_branch P1_q")
    A.label("P1_park")
    for p, mt, off in kv: A(f"ds_write_b128 v6, {vr(p,4)} offset:{mt*4096+off}")
    A.label("P1_parked")
    if opts.get("eprio", 1): A("s_setprio 0")
    A("s_waitcnt vmcnt(0) lgkmcnt(0)")
    A("s_barrier")
    A.c("---- phase 2, waves 0-7: attention, 64 queries x half of the keys per wave ----")
    A.label("P2_compute")
    ST(3)

    NS = 6; STG = 16384; RING = NS * STG; BREG = RING; FLAGS = 40960; XCH = 0; HX = LDS_BYTES - 16384; OBS = BREG + 16384; STASH = 5 * STG
    IDX = 4; ONES = 8; KF = 12; VF = 20; MX = [28, 29]; SA = 32; SB = 48
    Q = [64, 72]; L = [80, 84]; O = [96, 112]; NEGM = [128, 144]
    QB = 128; KBP = 136; KBC = 144; VBC = 152; VBP = 12; PK = 16; OB = O[1]; LB = L[1]
    def S32(d, a, b): return f"v_smfmac_f32_32x32x32_bf16 {vr(d,16)}, {vr(a,4)}, {vr(b,8)}, v{IDX}"
    def S16(d, a, b): return f"v_smfmac_f32_16x16x64_bf16 {vr(d,4)}, {vr(a,4)}, {vr(b,8)}, v{IDX}"
    def E(r): return f"v_exp_f32 v{r}, v{r}"
    def key_of(r, hb): return 8 * (r >> 2) + 4 * hb + (r & 3)
    def bmask(r, prev):
        m = 0
        for l in range(64):
            d = (l & 31) - key_of(r, l >> 5) + (32 if prev else 0)
            if 0 <= d <= 14 and d % 2 == 0: m |= 1 << l
        return m
    def rowmax(regs, dst, tmp):
        regs = list(regs)
        A(f"v_max3_f32 v{dst}, v{regs[0]}, v{regs[1]}, v{regs[2]}")
        i = 3
        while i + 1 < len(regs):
            A(f"v_max3_f32 v{dst}, v{regs[i]}, v{regs[i+1]}, v{dst}"); i += 2
        if i < len(regs): A(f"v_max_f32 v{dst}, v{regs[i]}, v{dst}")
        A(f"v_mov_b32 v{tmp}, v{dst}")
        A("s_nop 1")
        A(f"v_permlane32_swap_b32 v{dst}, v{tmp}")
        A("s_nop 1")
        A(f"v_max_f32 v{dst}, v{dst}, v{tmp}")
    def read_flags(r):
        A(f"v_mov_b32 v7, {FLAGS}")
        A(f"ds_read_b128 {vr(r,4)}, v7")
        A(f"ds_read_b128 {vr(r+4,4)}, v7 offset:16")
    def or_flags(r, sdst):
        A(f"v_or3_b32 v{r}, v{r}, v{r+4}, v{r+5}")
        A(f"v_or3_b32 v{r}, v{r}, v{r+6}, v{r+7}")
        A(f"v_or3_b32 v{r}, v{r}, v{r+1}, v{r+2}")
        A(f"v_or_b32 v{r}, v{r}, v{r+3}")
        A("s_nop 0")
        A(f"v_readfirstlane_b32 s{sdst}, v{r}")
    def p2_ids():
        if QL:
            A("s_lshl_b32 s36, s18, 1")
            A("s_add_u32 s16, s16, s36")
        else:
            A("s_and_b32 s16, s35, 3")
            A("s_lshl_b32 s36, s34, 2")
            A("s_add_u32 s16, s16, s36")
            A("s_lshr_b32 s17, s35, 2")
        A("s_lshl_b32 s36, s16, 18")
        A(f"s_add_u32 s36, s36, {WS_KV}")
        A(f"s_add_u32 s4, s{P_WS}, s36")
        A(f"s_addc_u32 s5, s{P_WS+1}, 0")
        A("s_mov_b32 s6, 0x40000")
        A("s_mov_b32 s24, 0")
    p2_ids()
    A("v_lshrrev_b32 v6, 4, v1")
    A("s_lshr_b32 s18, s19, 2")
    A("s_and_b32 s20, s19, 3")
    A("s_lshl_b32 s20, s20, 1")
    A("s_add_u32 s20, s20, s18")
    A("s_lshl_b32 s26, s17, 3")
    A("s_add_u32 s26, s26, s20")
    A("s_lshl_b32 s39, s18, 13")
    A("v_and_b32 v31, 15, v6")
    A("v_lshlrev_b32 v31, 4, v31")
    A("v_and_b32 v5, 16, v6")
    A("v_lshl_add_u32 v31, v5, 6, v31")
    A("v_and_b32 v5, 32, v6")
    A("v_lshl_add_u32 v31, v5, 4, v31")
    A("s_lshl_b32 s31, s26, 5")
    A("s_add_u32 s31, s31, s16")
    A("s_lshl_b32 s31, s31, 11")
    A(f"s_add_u32 s31, s31, {WS_O}")
    A(f"v_mov_b32 v{IDX}, 0xdddd")
    A("v_and_b32 v5, 4, v6")
    A("v_cmp_eq_u32 vcc, 0, v5")
    A("v_mov_b32 v7, 0x3f803f80")
    A("v_add_u32 v30, s39, v31")
    A(f"v_cndmask_b32 v{ONES}, 0, v7, vcc")
    A(f"v_cndmask_b32 v{ONES+1}, 0, v7, vcc")
    A(f"v_sub_u32 v{ONES+2}, v7, v{ONES}")
    A(f"v_mov_b32 v{ONES+3}, v{ONES+2}")
    A("s_lshl_b32 s27, s20, 11")
    A(f"s_add_u32 s27, s27, {BREG}")
    A("v_add_u32 v5, s27, v31")
    A("v_xor_b32 v6, 2048, v5")
    A.label("P2_restart")
    for x in range(2):
        for i in range(0, 16, 2): A(f"v_mov_b64 v[{O[x]+i}:{O[x]+i+1}], 0")
        for i in range(0, 4, 2): A(f"v_mov_b64 v[{L[x]+i}:{L[x]+i+1}], 0")
    A("v_mov_b32 v2, v30")
    A(f"s_mov_b32 s25, {STG}")
    A(f"v_add_u32 v3, {STG}, v30")
    A("s_mov_b32 s23, 16")
    A("s_barrier")
    ST(4)
    SX = [SA, SB]
    A("s_cmp_lg_u32 s24, 0")
    A("s_cbranch_scc1 P2_main")
    A(f"ds_read_b128 {vr(VF,4)}, v31 offset:0")
    for x in range(2): A(f"ds_read_b128 {vr(Q[x],4)}, v{5+x}")
    A(f"ds_read_b128 {vr(VF+4,4)}, v31 offset:256")
    for x in range(2): A(f"ds_read_b128 {vr(Q[x]+4,4)}, v{5+x} offset:256")
    A("s_waitcnt lgkmcnt(3)")
    for x in range(2): A(M32(SX[x], VF, Q[x], None))
    A("s_waitcnt lgkmcnt(0)")
    for x in range(2): A(M32(SX[x], VF+4, Q[x]+4, SX[x]))
    A("s_nop 7")
    A("s_nop 2")
    for x in range(2): rowmax(range(SX[x], SX[x]+16), MX[x], 6)
    A.c("---- negated max into the C operands, software pipeline prologue ----")
    A.label("P2_main")
    A(f"ds_read_b128 {vr(KF,4)}, v2 offset:0")
    A(f"ds_read_b128 {vr(KF+4,4)}, v2 offset:256")
    A(f"ds_read_b128 {vr(VF,4)}, v2 offset:2048")
    def negm(x):
        A(f"v_sub_f32 v{NEGM[x]}, 0, v{MX[x]}")
        A(f"v_sub_f32 v{NEGM[x]+1}, 0, v{MX[x]}")
        for i in range(2, 16, 2): A(f"v_mov_b64 v[{NEGM[x]+i}:{NEGM[x]+i+1}], v[{NEGM[x]}:{NEGM[x]+1}]")
    negm(0)
    for i in (0, 2): A(f"v_mov_b64 v[{VF+4+i}:{VF+5+i}], 0")
    A("s_waitcnt lgkmcnt(1)")
    A(M32(SA, KF, Q[0], NEGM[0]))
    A(M32(SA, KF+4, Q[0]+4, SA))
    negm(1)
    for i in range(0, 8, 2): A(f"v_mov_b64 v[{SB+8+i}:{SB+9+i}], 0")
    A(E(SA))
    A("s_nop 0")
    A(".p2align 6")
    A.label("P2_loop")
    def rd(dst, tile, off):
        a, t = ("v2", tile) if tile < 2 else ("v3", tile - 2)
        return f"ds_read_b128 {vr(dst,4)}, {a} offset:{t*4096+off}"
    if opts.get("sched", 1) == 0:
        for u in range(4):
            cur, nxt = (SA, SB) if u % 2 == 0 else (SB, SA)
            i = u // 2; xc = u % 2; xp = xn = xc ^ 1
            if xc == 0:
                w_pv1 = w_qka = w_qkb = None; w_pv0 = 3
                r_pv1 = [rd(VF+4, i, 2304)]; r_qka = [rd(KF, i+1, 0)]; r_qkb = [rd(KF+4, i+1, 256)]; r_pv0 = []
            else:
                w_pv1, w_qka, w_qkb, w_pv0 = 2, 1, 0, None
                r_pv1 = r_qka = r_qkb = []; r_pv0 = [rd(VF, i+1, 2048)]
            bar = (u == 1)
            last = (u == 3)
            def W(n):
                if n is not None: A(f"s_waitcnt lgkmcnt({n})")
            if w_pv1 is None: A("s_nop 0")
            W(w_pv1)
            A(S32(O[xp], VF+4, nxt+8))
            for l in r_pv1: A(l)
            A(E(cur+1)); A(E(cur+2)); A(E(cur+3))
            A(S16(L[xp], ONES, nxt+8))
            A(E(cur+4)); A(E(cur+5))
            W(w_qka)
            A(M32(nxt, KF, Q[xn], NEGM[xn]))
            for l in r_qka: A(l)
            A(E(cur+6)); A(E(cur+7)); A(E(cur+8))
            W(w_qkb)
            A(M32(nxt, KF+4, Q[xn]+4, nxt))
            if bar: A("s_barrier")
            for l in r_qkb: A(l)
            A(E(cur+9)); A(E(cur+10)); A(E(cur+11))
            W(w_pv0)
            A(S32(O[xc], VF, cur))
            for l in r_pv0: A(l)
            A(E(cur+12))
            if last: A(f"s_add_u32 s25, s25, {STG}")
            A(E(cur+13))
            if last: A(f"s_cmp_eq_u32 s25, {RING}")
            A(E(cur+14))
            if last: A("s_cselect_b32 s25, 0, s25")
            A(S16(L[xc], ONES, cur))
            if last:
                A("s_sub_u32 s23, s23, 1")
                A("v_mov_b32 v2, v3")
                A("v_add_u32 v3, s25, v30")
                A("s_cmp_lg_u32 s23, 0")
            else: A("s_nop 0")
            A(E(cur+15)); A(E(nxt))
            if last: A("s_cbranch_scc1 P2_loop")
    else:
        barslot = (1, 0)
        for u in range(4):
            cur, nxt = (SA, SB) if u % 2 == 0 else (SB, SA)
            i = u // 2; xc = u % 2; xp = xn = xc ^ 1
            last = (u == 3)
            e = [E(cur+k) for k in range(1, 16)] + [E(nxt)]
            PV1 = S32(O[xp], VF+4, nxt+8); SM1 = S16(L[xp], ONES, nxt+8)
            QA = M32(nxt, KF, Q[xn], NEGM[xn]); QB_ = M32(nxt, KF+4, Q[xn]+4, nxt)
            PV0 = S32(O[xc], VF, cur); SM0 = S16(L[xc], ONES, cur)
            def F(k, dflt="s_nop 0"):
                if (u, k) == tuple(barslot): return ["s_barrier"]
                if (u, k) == (1, 2): return ["s_waitcnt vmcnt(0)"]
                return [dflt]
            W = lambda n: f"s_waitcnt lgkmcnt({n})"
            if xc == 0:
                seq = (F(2) if u else []) + [SM1] + e[0:2] + [PV1, rd(VF+4, i, 2304)] + e[2:5] + [QA, rd(KF, i+1, 0)] + e[5:8] + [QB_, rd(KF+4, i+1, 256)] + e[8:11] + [SM0] + e[11:13] + [W(3), PV0] + F(1) + e[13:16]
            elif not last:
                seq = F(2) + [SM1] + e[0:2] + [W(2), PV1] + e[2:5] + [W(0), QA] + e[5:8] + [QB_] + F(0) + e[8:11] + [SM0] + e[11:13] + [PV0, rd(VF, i+1, 2048)] + F(1) + e[13:16]
            else:
                seq = [f"s_add_u32 s25, s25, {STG}", SM1] + e[0:2] + [W(2), PV1, f"s_cmp_eq_u32 s25, {RING}"] + e[2:5] + [W(0), QA, "s_cselect_b32 s25, 0, s25"] + e[5:8] + \
                      [QB_, "s_sub_u32 s23, s23, 1"] + e[8:11] + [SM0, "s_cmp_lg_u32 s23, 0"] + e[11:13] + [PV0, rd(VF, i+1, 2048), "v_mov_b32 v2, v3", "v_add_u32 v3, s25, v30"] + e[13:16] + ["s_cbranch_scc1 P2_loop"]
            for l in seq: A(l)
    A("s_waitcnt lgkmcnt(0)")
    A(S32(O[1], VF+4, SB+8))
    A(S16(L[1], ONES, SB+8))
    ST(5)
    A(f"s_mov_b32 s44, {f32bits(2.0**56)}")
    A("s_mul_i32 s36, s19, 5120")
    A("v_add_u32 v7, s36, v1")
    A(f"v_mul_f32 v5, s44, v{L[0]}")
    for i in range(0, 16, 2): A(f"v_maximum3_f32 v5, |v{O[0]+i}|, |v{O[0]+i+1}|, v5")
    A(f"s_mov_b32 s45, {f32bits(2.0**120)}")
    for i in range(4): A(f"ds_write_b128 v7, {vr(O[1]+4*i,4)} offset:{XCH+1024*i}")
    A(f"ds_write_b32 v7, v{L[1]} offset:{XCH+4096}")
    A(f"v_mul_f32 v6, s44, v{L[1]}")
    for i in range(0, 16, 2): A(f"v_maximum3_f32 v6, |v{O[1]+i}|, |v{O[1]+i+1}|, v6")
    A("v_maximum3_f32 v5, v5, v6, v6")
    A("s_lshl_b32 s36, s19, 2")
    A(f"s_add_u32 s36, s36, {FLAGS}")
    A("v_cmp_ngt_f32 vcc, s45, v5")
    A("v_mov_b32 v7, s36")
    A("s_xor_b32 s36, s19, 4")
    A("s_mul_i32 s36, s36, 5120")
    A("v_add_u32 v3, s36, v1")
    if opts.get("force_fb"): A("s_mov_b64 vcc, -1")
    A("s_cmp_lg_u64 vcc, 0")
    A("s_cselect_b32 s44, 1, 0")
    A("v_mov_b32 v6, s44")
    A("ds_write_b32 v7, v6")
    A("s_waitcnt lgkmcnt(0)")
    A("s_barrier")
    A(f"ds_read_b32 v5, v3 offset:{XCH+4096}")
    for i in range(4): A(f"ds_read_b128 {vr(SA+4*i,4)}, v3 offset:{XCH+1024*i}")
    read_flags(SB)
    A("s_waitcnt lgkmcnt(2)")
    A(f"v_add_f32 v6, v5, v{L[0]}")
    A("v_rcp_f32 v6, v6")
    for i in range(0, 16, 2): A(f"v_pk_add_f32 v[{O[0]+i}:{O[0]+i+1}], v[{SA+i}:{SA+i+1}], v[{O[0]+i}:{O[0]+i+1}]")
    for i in range(0, 16, 2): A(f"v_pk_mul_f32 v[{O[0]+i}:{O[0]+i+1}], v[{O[0]+i}:{O[0]+i+1}], v[6:7] op_sel_hi:[1,0]")
    for i in range(8): A(f"v_cvt_pk_bf16_f32 v{SA+i}, v{O[0]+2*i}, v{O[0]+2*i+1}")
    for m in range(2):
        A(f"buffer_store_dwordx4 {vr(SA+4*m,4)}, v1, s[12:15], s31 offen offset:{1024*m}{SC}")
    A("s_cmp_lg_u32 s24, 0")
    A("s_cbranch_scc1 P2_fin")
    A("s_waitcnt lgkmcnt(0)")
    or_flags(SB, 44)
    A("s_nop 3")
    A("s_cmp_eq_u32 s44, 0")
    A("s_cbranch_scc0 P2_fallback")
    A.c("---- phase 2 done; phase 3: waves 0-3 compute 64 x 64 each ----")
    A.label("P2_fin")
    ST(6)
    A("s_waitcnt vmcnt(0)")
    A("s_barrier")
    ST(7)
    A("s_cmp_gt_u32 s19, 3")
    A("s_cbranch_scc1 L_done")

    NO = opts.get("no", 4); NW = 10 - NO; S3 = 16384; W3 = NO * S3
    def p3_ids():
        if opts.get("mix3", 0):
            A("s_lshr_b32 s16, s35, 4")
            A("s_and_b32 s17, s34, 3")
            A("s_lshl_b32 s17, s17, 2")
            A("s_and_b32 s36, s35, 3")
            A("s_add_u32 s17, s17, s36")
            A("s_and_b32 s18, s34, 4")
            A("s_lshr_b32 s36, s35, 2")
            A("s_and_b32 s36, s36, 3")
            A("s_add_u32 s18, s18, s36")
            return
        A("s_lshr_b32 s16, s34, 2")
        A("s_and_b32 s17, s34, 1")
        A("s_lshl_b32 s17, s17, 3")
        A("s_and_b32 s36, s35, 7")
        A("s_add_u32 s17, s17, s36")
        A("s_lshr_b32 s18, s34, 1")
        A("s_and_b32 s18, s18, 1")
        A("s_lshl_b32 s18, s18, 2")
        A("s_lshr_b32 s36, s35, 3")
        A("s_add_u32 s18, s18, s36")
    p3_ids()
    A("v_lshrrev_b32 v1, 4, v1")
    A("s_lshr_b32 s36, s19, 1")
    A("s_and_b32 s37, s19, 1")
    A("v_lshrrev_b32 v18, 4, v1")
    A("v_and_b32 v17, 15, v1")
    A("v_lshlrev_b32 v2, 4, v17")
    A("v_lshl_add_u32 v2, v18, 9, v2")
    A("s_lshl_b32 s38, s36, 13")
    A("v_add_u32 v2, s38, v2")
    A("v_lshrrev_b32 v19, 2, v1")
    A("v_and_b32 v19, 7, v19")
    A("v_lshrrev_b32 v20, 5, v1")
    A("v_lshl_add_u32 v20, v20, 4, v19")
    A("v_lshlrev_b32 v20, 8, v20")
    A("s_lshl_b32 s38, s37, 2")
    A("v_xor_b32 v21, s38, v19")
    A("v_lshl_add_u32 v20, v21, 5, v20")
    A("v_and_b32 v21, 3, v1")
    A("v_lshl_add_u32 v3, v21, 3, v20")
    for a in range(1, 4): A(f"v_xor_b32 v{3+a}, {32*a}, v3")
    ACC3 = 88; FS = [24, 56]; AO = 8; AW = 9
    for i in range(0, 64, 2): A(f"v_mov_b64 v[{ACC3+i}:{ACC3+i+1}], 0")
    for i in range(0, 32, 2): A(f"v_mov_b64 v[{FS[1]+i}:{FS[1]+i+1}], 0")
    A("v_lshlrev_b32 v22, 12, v17")
    A("v_and_b32 v21, 1, v18")
    A("v_lshl_add_u32 v22, v21, 5, v22")
    A("v_lshrrev_b32 v21, 1, v18")
    A("v_lshl_add_u32 v22, v21, 4, v22")
    if opts.get("fl", 1):
        A("v_and_b32 v22, 0x7fff, v22")
        A("v_and_b32 v21, 8, v1")
        A("v_lshl_add_u32 v22, v21, 3, v22")
        A("v_add_u32 v23, 32768, v22")
    A("s_lshl_b32 s38, s17, 7")
    A("s_lshl_b32 s36, s36, 6")
    A("s_add_u32 s36, s36, s38")
    A("s_lshl_b32 s36, s36, 12")
    A("s_lshl_b32 s38, s16, 11")
    A("s_add_u32 s36, s36, s38")
    A("s_lshl_b32 s38, s18, 8")
    A("s_add_u32 s36, s36, s38")
    A("s_lshl_b32 s37, s37, 7")
    A("s_add_u32 s40, s36, s37")
    for st in range(1, 4): A(f"s_add_u32 s{40+st}, s40, {st*16*4096}")
    A(f"s_mov_b32 s8, s{P_OUT}")
    A(f"s_mov_b32 s9, s{P_OUT+1}")
    A(f"s_mov_b32 s10, {2048*4096}")
    def of(s, st): return FS[s] + 4*st
    def wf3(s, a): return FS[s] + 16 + 4*a
    def acc3(st, a): return ACC3 + (st*4+a)*4
    def rd_items(hh, s):
        L_ = [('rd', f"ds_read_b128 {vr(of(s,0),4)}, v{AO} offset:{hh*2048}", f"o{s}_0")]
        for i in range(4):
            for half in range(2):
                L_.append(('rd', f"ds_read_b64_tr_b16 {vr(wf3(s,i)+2*half,2)}, v{AW+i} offset:{hh*8192+half*2048}", f"w{s}_{i}"))
        for i in range(1, 4):
            L_.append(('rd', f"ds_read_b128 {vr(of(s,i),4)}, v{AO} offset:{(i>>1)*4096+hh*2048+(i&1)*256}", f"o{s}_{i}"))
        return L_
    def mf_items(s):
        L_ = []
        for st in range(4):
            for a in (range(4) if st % 2 == 0 else range(3, -1, -1)):
                needs = [f"o{s}_{st}", f"w{s}_{a}"]
                if st == 0 and a == 0: needs += [f"w{s}_{i}" for i in range(4)] + [f"o{s}_{i}" for i in range(4)]
                L_.append(('op', M16(acc3(st, a), wf3(s, a), of(s, st), acc3(st, a)), needs))
        return L_
    upd = [f"s_add_u32 s23, s23, {S3}", f"s_cmp_eq_u32 s23, {W3}", "s_cselect_b32 s23, 0, s23", f"v_add_u32 v{AO}, s23, v2",
           f"s_add_u32 s22, s22, {S3}", f"s_cmp_eq_u32 s22, {LDS_BYTES}", f"s_cselect_b32 s22, {W3}, s22", "s_sub_u32 s38, s38, 1"] + \
          [f"v_add_u32 v{AW+a}, s22, v{3+a}" for a in range(4)] + ["s_cmp_lg_u32 s38, 0"]
    upd = [('raw', u) for u in upd]
    items = [('all', "s_barrier")] + interleave(mf_items(1), rd_items(0, 0), [2] * 16)
    items += interleave(mf_items(0), rd_items(1, 1) + upd, [2] * 16)
    body, _ = schedule_waits(items, passes=2)
    A("s_mov_b32 s23, 0")
    A(f"s_mov_b32 s22, {W3 + 2*S3}")
    A("s_mov_b32 s38, 16")
    A(f"v_mov_b32 v{AO}, v2")
    for a in range(4): A(f"v_add_u32 v{AW+a}, s22, v{3+a}")
    if stamp:
        A("s_barrier"); ST(8); A("s_branch P3_first")
    A(".p2align 6")
    A.label("P3_loop")
    for i, l in enumerate(body):
        A(l)
        if l == "s_barrier" and stamp: A.label("P3_first")
    A("s_cbranch_scc1 P3_loop")
    A("s_waitcnt lgkmcnt(0)")
    fin = [it[1] for it in mf_items(1)]
    if not opts.get("fl", 1):
        for l in fin: A(l)
    ST(9)
    if opts.get("fl", 1):
        def epi(st):
            E_ = []
            p0 = 24 + 8 * st; p1 = p0 + 4; t = 8 + 4 * (st & 1)
            for pr in range(2):
                for u in range(2):
                    d = acc3(st, 2*pr+u)
                    E_.append(f"v_cvt_pk_bf16_f32 v{p0+4*pr+2*u}, v{d}, v{d+1}")
                    E_.append(f"v_cvt_pk_bf16_f32 v{p0+4*pr+2*u+1}, v{d+2}, v{d+3}")
            for p in (p0, p1):
                E_.append(f"v_permlane16_swap_b32 v{p}, v{p+2}")
                E_.append(f"v_permlane16_swap_b32 v{p+1}, v{p+3}")
            E_.append(f"v_mov_b64 {vr(t,2)}, {vr(p0,2)}")
            E_.append(f"v_mov_b64 {vr(t+2,2)}, {vr(p0+2,2)}")
            for r in range(4): E_.append(f"v_mov_b32_dpp v{p0+r}, v{p1+r} row_ror:8 row_mask:0xf bank_mask:0xc")
            E_.append(f"buffer_store_dwordx4 {vr(p0,4)}, v22, s[8:11], s{40+st} offen{SC}")
            for r in range(4): E_.append(f"v_mov_b32_dpp v{p1+r}, v{t+r} row_ror:8 row_mask:0xf bank_mask:0x3")
            E_.append(f"buffer_store_dwordx4 {vr(p1,4)}, v23, s[8:11], s{40+st} offen{SC}")
            return E_
        lead = opts.get("lead", 9)
        for l in fin[:lead]: A(l)
        allE = epi(0) + epi(1) + epi(2) + epi(3)
        for l in interleave(fin[lead:], allE, [2] * 16): A(l)
    else:
        n = 0
        for st in range(4):
            for pr in range(2):
                p = 24 + n * 4; n += 1
                for u in range(2):
                    d = acc3(st, 2*pr+u)
                    A(f"v_cvt_pk_bf16_f32 v{p+2*u}, v{d}, v{d+1}")
                    A(f"v_cvt_pk_bf16_f32 v{p+2*u+1}, v{d+2}, v{d+3}")
            A("s_nop 1")
            for pr in range(2):
                p = 24 + (n - 2 + pr) * 4
                A(f"v_permlane16_swap_b32 v{p}, v{p+2}")
                A(f"v_permlane16_swap_b32 v{p+1}, v{p+3}")
                if opts.get("fl"): A(f"buffer_store_dwordx4 {vr(p,4)}, v{22+pr}, s[8:11], s{40+st} offen{opts.get('flmod', SC)}")
                else: A(f"buffer_store_dwordx4 {vr(p,4)}, v22, s[8:11], s{40+st} offen offset:{pr*64}{opts.get('flmod', SC)}")
    if opts.get("padto"):
        A("s_waitcnt vmcnt(0)")
        A(f"s_mov_b32 s37, {opts['padto']}")
        if opts.get("padmin"):
            A("buffer_load_dword v3, off, s[72:75], 0 offset:32 sc1")
            A("s_waitcnt vmcnt(0)")
            A("v_readfirstlane_b32 s98, v3")
            A("s_nop 3")
            A("s_not_b32 s98, s98")
        if opts.get("probe") is not None:
            ST(10)
            A(f"s_sub_u32 s37, s{50+opts['probe']}, s98")
            A(f"s_add_u32 s37, s37, {opts['padto']}")
        A.label("L_pad")
        A("s_memrealtime s[100:101]")
        A("s_waitcnt lgkmcnt(0)")
        A("s_sub_u32 s36, s100, s98")
        A("s_cmp_lt_u32 s36, s37")
        A("s_cbranch_scc1 L_pad")
        if opts.get("probe") is not None: A("s_endpgm")
    if stamp:
        A("s_waitcnt vmcnt(0)")
        ST(10)
        if opts.get("dbgout") is not None:
            A(f"s_cmp_lg_u32 s2, {opts['dbgout']}")
            A("s_cbranch_scc1 L_nodbg")
            A("s_cmp_lg_u32 s19, 0")
            A("s_cbranch_scc1 L_nodbg")
            for i in range(1, 11):
                A(f"s_sub_u32 s36, s{50+i}, s50")
                A("v_mov_b32 v3, s36")
                A(f"buffer_store_dword v3, off, s[72:75], 0 offset:{4*i}")
            A.label("L_nodbg")
        A("s_lshl_b32 s36, s2, 2")
        A("s_add_u32 s36, s36, s19")
        A("s_lshl_b32 s36, s36, 6")
        A(f"s_add_u32 s36, s36, {64<<20}")
        A("s_mov_b32 s14, 0x8000000")
        for i in range(12):
            A(f"v_mov_b32 v3, s{50+i}")
            A(f"buffer_store_dword v3, off, s[12:15], s36 offset:{4*i}")
    A("s_endpgm")
    def ring_loader(tag, nslots, base, issue, pre):
        if pre is not None:
            A(f"s_mov_b32 s23, {base}")
            A("s_mov_b32 s38, 0")
        A.label(f"{tag}_go2")
        issue()
        A("s_add_u32 s38, s38, 1")
        A(f"s_add_u32 s23, s23, {S3}")
        A(f"s_cmp_eq_u32 s23, {base + nslots*S3}")
        A(f"s_cselect_b32 s23, {base}, s23")
        if pre is None:
            A(f"s_cmp_le_u32 s38, {nslots}")
            A("s_cbranch_scc1 P2_wback")
            A.label(f"{tag}_l1")
        else:
            A(f"s_cmp_eq_u32 s38, {pre}")
            A(f"s_cbranch_scc0 {tag}_l1")
            A(f"s_waitcnt vmcnt({min(63, 16*(pre-1))})")
            A("s_barrier")
            A.label(f"{tag}_l1")
            A(f"s_cmp_lt_u32 s38, {nslots}")
            A(f"s_cbranch_scc1 {tag}_go2")
        A(f"s_waitcnt vmcnt({min(63, 16*(nslots-2))})")
        A("s_barrier")
        A("s_cmp_lt_u32 s38, 16")
        A(f"s_cbranch_scc1 {tag}_go2")
        for j in range(nslots - 2):
            A(f"s_waitcnt vmcnt({min(63, 16*(nslots-3-j))})")
            A("s_barrier")
        if stamp and opts.get("probe") is None:
            A("s_lshl_b32 s36, s2, 1")
            A("s_and_b32 s37, s19, 1")
            A("s_add_u32 s36, s36, s37")
            A("s_lshl_b32 s36, s36, 6")
            A(f"s_add_u32 s36, s36, {65<<20}")
            A("s_mov_b32 s14, 0x8000000")
            for i in range(3):
                A(f"v_mov_b32 v3, s{50+i}")
                A(f"buffer_store_dword v3, off, s[12:15], s36 offset:{4*i}")
        A("s_endpgm")
    A.c("---- phase 3, wave 8: publish O, wait for all heads, stream O ----")
    A.label("P3_oload")
    p3_ids()
    A("s_lshl_b32 s36, s16, 22")
    A("s_lshl_b32 s37, s17, 18")
    A("s_add_u32 s36, s36, s37")
    A(f"s_add_u32 s36, s36, {WS_O}")
    A(f"s_add_u32 s4, s{P_WS}, s36")
    A(f"s_addc_u32 s5, s{P_WS+1}, 0")
    A("s_mov_b32 s6, 0x40000")
    r3 = opts.get("rot3", 1)
    if r3 == 1: A("s_lshl_b32 s21, s34, 13")
    elif r3 == 0: A("s_mov_b32 s21, 0")
    else:
        A("s_add_u32 s21, s17, s18"); A("s_and_b32 s21, s21, 1"); A(f"s_mul_i32 s21, s21, {4096 * r3}")
    A("s_barrier")
    signal(40, 16, 2)
    poll("P3_o", 128, 32, 2)
    def o_issue():
        for t in range(4):
            A(f"s_add_u32 m0, s23, {t*4096}")
            A(f"s_add_u32 s20, s21, {t*65536}")
            if not opts.get("p3noload"):
                for i in range(4): A(f"buffer_load_dwordx4 v1, s[4:7], s20 offen offset:{1024*i}{LD} lds")
        A("s_add_u32 s21, s21, 4096")
        A("s_and_b32 s21, s21, 0xffff")
    ring_loader("P3_o", NO, 0, o_issue, opts.get("opre", 2))


    A.c("---- phase 1 epilogue, branch B: windowed attention from the accumulators ----")
    A.label("P1_bepi")
    def QP(st): return 8 + 4*st
    def KP(st): return 28 + 4*st
    def VW(nt, st): return 46 + 10*nt + 2*st
    MC, MP, ON = 64, 68, 2
    def SS(st): return 72 + 8*st
    def PB(st): return 104 + 4*st
    def OT(st, nt): return 120 + 8*st + 4*nt
    def LR(st): return 152 + 4*st
    def cv(d, a): A(f"v_cvt_pk_bf16_f32 v{d}, v{a}, v{a+1}")
    A("s_lshl_b32 s36, s19, 11")
    A(f"s_add_u32 s36, s36, {HX}")
    A("v_add_u32 v6, s36, v1")
    for st in (3, 0, 1, 2):
        for nt in range(2):
            cv(KP(st)+2*nt, acc(st, 2+nt)); cv(KP(st)+2*nt+1, acc(st, 2+nt)+2)
            cv(VW(nt, st), acc(st, 4+nt)); cv(VW(nt, st)+1, acc(st, 4+nt)+2)
        if st == 3:
            A(f"ds_write_b128 v6, {vr(KP(3),4)}")
            A(f"ds_write_b64 v6, {vr(VW(0,3),2)} offset:1024")
            A(f"ds_write_b64 v6, {vr(VW(1,3),2)} offset:1032")
            A("s_lshl_b32 s36, s18, 3")
            A("s_add_u32 s36, s36, s17")
            A("s_lshl_b32 s36, s36, 1")
            A("s_and_b32 s37, s19, 1")
            A("s_add_u32 s36, s36, s37")
            A("s_lshl_b32 s36, s36, 11")
            A(f"s_add_u32 s36, s36, {WS_H}")
            A("s_cmp_lt_u32 s19, 6")
            A("s_cbranch_scc1 P1_b1")
            A(f"buffer_store_dwordx4 {vr(KP(3),4)}, v1, s[12:15], s36 offen{SC}")
            A(f"buffer_store_dwordx2 {vr(VW(0,3),2)}, v1, s[12:15], s36 offen offset:1024{SC}")
            A(f"buffer_store_dwordx2 {vr(VW(1,3),2)}, v1, s[12:15], s36 offen offset:1032{SC}")
            A.label("P1_b1")
    A("s_waitcnt lgkmcnt(0)")
    A("s_barrier")
    A("v_subrev_u32 v6, 4096, v6")
    A(f"ds_read_b128 {vr(KP(-1),4)}, v6")
    A(f"ds_read_b64 {vr(VW(0,-1),2)}, v6 offset:1024")
    A(f"ds_read_b64 {vr(VW(1,-1),2)}, v6 offset:1032")
    for st in range(4):
        for nt in range(2):
            d = acc(st, nt)
            for r in (0, 2): A(f"v_pk_mul_f32 v[{d+r}:{d+r+1}], v[{d+r}:{d+r+1}], s[42:43]")
            cv(QP(st)+2*nt, d); cv(QP(st)+2*nt+1, d+2)
    def bconsts():
        A("v_mov_b32 v7, 0xff800000")
        for prev in range(2):
            for r in range(4):
                m = 0
                for l in range(64):
                    dl = (l & 15) - (4 * (l >> 4) + r) + 16 * prev
                    if 0 <= dl <= 14 and dl % 2 == 0: m |= 1 << l
                A(f"s_mov_b32 s40, {m & 0xffffffff}")
                A(f"s_mov_b32 s41, {m >> 32}")
                A(f"v_cndmask_b32 v{(MP if prev else MC)+r}, v7, 0, s[40:41]")
        for r in range(4): A(f"v_mov_b32 v{ON+r}, 0x3f803f80")
        A("v_and_b32 v0, 0xf0, v1")
        A("v_and_b32 v6, 0x300, v1")
        A("v_lshl_add_u32 v0, v6, 1, v0")
    bconsts()
    def tile(st):
        return dict(q=QP(st), kp=KP(st-1), kc=KP(st), v=[VW(0, st-1), VW(1, st-1)], s=SS(st), p=PB(st), o=OT(st, 0), l=LR(st),
                    so=f"s{38+(st>>1)}", imm=(st&1)*256)
    def btiles(T):
        k = len(T)
        def pad(n):
            if n - (k - 1) > 0: A(f"s_nop {n - (k - 1) - 1}")
        for t in T:
            A(M16(t['s'], t['kp'], t['q'], t.get('mp', MP)))
            A(M16(t['s']+4, t['kc'], t['q'], MC))
        A("s_nop 7")
        for i in range(4):
            for t in T:
                b_ = t['s']; m = t['l']
                if i == 0: A(f"v_max3_f32 v{m}, v{b_}, v{b_+1}, v{b_+2}")
                elif i < 3: A(f"v_max3_f32 v{m}, v{b_+2*i+1}, v{b_+2*i+2}, v{m}")
                else: A(f"v_max_f32 v{m}, v{b_+7}, v{m}")
        for sw in ("v_permlane32_swap_b32", "v_permlane16_swap_b32"):
            for t in T: A(f"v_mov_b32 v{t['l']+1}, v{t['l']}")
            pad(2)
            for t in T: A(f"{sw} v{t['l']}, v{t['l']+1}")
            pad(2)
            for t in T: A(f"v_max_f32 v{t['l']}, v{t['l']}, v{t['l']+1}")
        for t in T:
            for r in range(0, 8, 2):
                b_ = t['s'] + r
                A(f"v_pk_add_f32 v[{b_}:{b_+1}], v[{b_}:{b_+1}], v[{t['l']}:{t['l']+1}] op_sel_hi:[1,0] neg_lo:[0,1] neg_hi:[0,1]")
        for t in T:
            for r in range(8): A(f"v_exp_f32 v{t['s']+r}, v{t['s']+r}")
        A("s_nop 0")
        for t in T:
            for r in range(4): cv(t['p']+r, t['s']+2*r)
        A("s_nop 1")
        for t in T:
            A(M16(t['l'], ON, t['p'], None))
            for nt in range(2): A(M16(t['o']+4*nt, t['v'][nt], t['p'], None))
        A("s_nop 7")
        for t in T: A(f"v_rcp_f32 v{t['l']}, v{t['l']}")
        A("s_nop 0")
        for t in T:
            for r in range(0, 8, 2):
                b_ = t['o'] + r
                A(f"v_pk_mul_f32 v[{b_}:{b_+1}], v[{b_}:{b_+1}], v[{t['l']}:{t['l']+1}] op_sel_hi:[1,0]")
            for r in range(4): cv(t['s']+r, t['o']+2*r)
            if 'lds' in t: A(f"ds_write_b128 v6, {vr(t['s'],4)} offset:{t['lds']}")
            else: A(f"buffer_store_dwordx4 {vr(t['s'],4)}, v0, s[12:15], {t['so']} offen offset:{t['imm']}{SC}")
    MP0 = PB(3)
    for r in (0, 2): A(f"v_mov_b64 {vr(MP0+r,2)}, {vr(MP+r,2)}")
    A("s_waitcnt lgkmcnt(0)")
    A("s_cmp_gt_u32 s19, 1")
    A("s_cbranch_scc1 P1_b4")
    for r in range(4): A(f"v_mov_b32 v{MP0+r}, v7")
    for r in (0, 2): A(f"v_mov_b64 {vr(KP(-1)+r,2)}, 0")
    for nt in range(2): A(f"v_mov_b64 {vr(VW(nt,-1),2)}, 0")
    A("s_mul_i32 s40, s19, 3072")
    A(f"s_add_u32 s40, s40, {STASH}")
    A("v_add_u32 v6, s40, v1")
    A(f"ds_write_b128 v6, {vr(QP(0),4)}")
    A(f"ds_write_b128 v6, {vr(KP(0),4)} offset:1024")
    A(f"ds_write_b64 v6, {vr(VW(0,0),2)} offset:2048")
    A(f"ds_write_b64 v6, {vr(VW(1,0),2)} offset:2056")
    A.label("P1_b4")
    A("s_and_b32 s38, s19, 6")
    A("s_lshl_b32 s38, s38, 12")
    A("s_lshl_b32 s39, s37, 11")
    A("s_add_u32 s38, s38, s39")
    A(f"s_add_u32 s38, s38, {OBS}")
    A("v_add_u32 v6, s38, v0")
    T = [tile(st) for st in range(4)]
    for st in range(4): T[st]['lds'] = (st >> 1) * 4096 + (st & 1) * 256
    T[0]['mp'] = MP0
    btiles(T)
    A("s_waitcnt lgkmcnt(0)")
    A("s_branch P2_compute")
    def aux_stash():
        A(f"v_add_u32 v6, {STASH}, v1")
        for wc in range(2):
            r = 72 + 24 * wc + 48
            A(f"ds_read_b128 {vr(r,4)}, v6 offset:{3072*wc}")
            A(f"ds_read_b128 {vr(r+8,4)}, v6 offset:{3072*wc+1024}")
            A(f"ds_read_b64 {vr(r+14,2)}, v6 offset:{3072*wc+2048}")
            A(f"ds_read_b64 {vr(r+18,2)}, v6 offset:{3072*wc+2056}")
        A("s_lshl_b32 s38, s30, 8")
        A("s_lshl_b32 s39, s31, 1")
        A("s_add_u32 s38, s38, s39")
        A("s_lshl_b32 s38, s38, 11")
        A(f"s_add_u32 s38, s38, {WS_O + (4 << 20)}")
        A(f"v_add_u32 v15, {OBS}, v1")
        A("s_waitcnt lgkmcnt(0)")
    def aux_copy(b_):
        for i in range(8): A(f"ds_read_b128 {vr(72+4*i,4)}, v15 offset:{b_*8192+i*1024}")
        for i in range(8):
            if i % 4 == 0: A(f"s_add_u32 s39, s38, {(2*b_+i//4)*65536}")
            A(f"s_waitcnt lgkmcnt({7-i})")
            A(f"buffer_store_dwordx4 {vr(72+4*i,4)}, v1, s[12:15], s39 offen offset:{(i%4)*1024}{SC}")
    def aux_halo_issue():
        poll("P2_h", 32, 1, 4, st=False)
        A("s_lshl_b32 s36, s31, 3")
        A("s_add_u32 s36, s36, s30")
        A("s_lshl_b32 s36, s36, 12")
        A(f"s_add_u32 s36, s36, {WS_H - 4096}")
        for wc in range(2):
            r = 72 + 24 * wc + 48
            A(f"buffer_load_dwordx4 {vr(r+4,4)}, v1, s[12:15], s36 offen offset:{2048*wc} sc1")
            A(f"buffer_load_dwordx2 {vr(r+12,2)}, v1, s[12:15], s36 offen offset:{2048*wc+1024} sc1")
            A(f"buffer_load_dwordx2 {vr(r+16,2)}, v1, s[12:15], s36 offen offset:{2048*wc+1032} sc1")
        bconsts()
    def aux_halo_compute():
        A("s_waitcnt vmcnt(0) lgkmcnt(0)")
        A("s_setprio 3")
        T = []
        for wc in range(2):
            r = 72 + 24 * wc + 48
            T.append(dict(q=r, kp=r+4, kc=r+8, v=[r+12, r+16], s=72+8*wc, p=88+4*wc, o=96+8*wc, l=112+4*wc, so="s38", imm=2048*wc))
        btiles(T)
        A(f"s_setprio {opts.get('lprio', 0)}")

    A.c("---- fallback: exact row max over all keys, then redo the pass ----")
    A.label("P2_fallback")
    A("s_mov_b32 s24, 1")
    for x in range(2): A(f"v_mov_b32 v{MX[x]}, 0xff800000")
    A("s_mov_b32 s21, 0")
    A.label("P2_maxloop")
    A(f"buffer_load_dwordx4 {vr(KF,4)}, v31, s[4:7], s21 offen{LD}")
    A(f"buffer_load_dwordx4 {vr(KF+4,4)}, v31, s[4:7], s21 offen offset:256{LD}")
    A("s_waitcnt vmcnt(0)")
    for x in range(2): A(M32(SX[x], KF, Q[x], None))
    for x in range(2): A(M32(SX[x], KF+4, Q[x]+4, SX[x]))
    A("s_nop 7")
    A("s_nop 3")
    for x in range(2):
        for i in range(8): A(f"v_max3_f32 v{MX[x]}, v{SX[x]+2*i}, v{SX[x]+2*i+1}, v{MX[x]}")
    A("s_add_u32 s21, s21, 4096")
    A("s_cmp_lt_u32 s21, 0x40000")
    A("s_cbranch_scc1 P2_maxloop")
    for x in range(2):
        A(f"v_mov_b32 v6, v{MX[x]}")
        A("s_nop 1")
        A(f"v_permlane32_swap_b32 v{MX[x]}, v6")
        A("s_nop 1")
        A(f"v_max_f32 v{MX[x]}, v{MX[x]}, v6")
    A("s_barrier")
    A("s_branch P2_restart")

    A.c("---- phase 2 helper waves: 8 streams K/V, 9 publishes parked data and prefills Wo ----")
    A.label("P2_helpers")
    p2_ids()
    A("v_mov_b64 v[48:49], 0")
    A("v_mov_b64 v[50:51], 0")
    A("v_lshlrev_b32 v1, 4, v1")
    A("s_lshl_b32 s26, s16, 6")
    A("s_lshl_b32 s27, s17, 3")
    A("s_add_u32 s26, s26, s27")
    A("v_lshrrev_b32 v41, 4, v1")
    p3_targets(40, 42, 41, "s17", 0)
    A("s_lshl_b32 s40, s16, 2")
    A(f"s_add_u32 s40, s40, {WS_F + 128}")
    A("v_add_u32 v40, s40, v40")
    A("s_cmp_eq_u32 s19, 9")
    A("s_cbranch_scc1 P2_aux")
    A("s_lshl_b32 s27, s26, 11")
    A("s_barrier")
    poll("P2_k", 0, 8, 2)
    A.label("P2_lstart")
    def l_stage():
        A("s_and_b32 s21, s23, 3")
        A("s_lshl_b32 s21, s21, 15")
        A("s_lshr_b32 s20, s23, 2")
        A("s_lshl_b32 s20, s20, 13")
        A("s_add_u32 s21, s21, s20")
        for g in range(4):
            A(f"s_add_u32 m0, s22, {g * 4096}")
            A(f"s_add_u32 s20, s21, {(g >> 1) * 131072 + (g & 1) * 4096}")
            for i in range(4):
                A(f"buffer_load_dwordx4 v1, s[4:7], s20 offen offset:{1024*i}{LD} lds")
        A(f"s_add_u32 s22, s22, {STG}")
        A(f"s_cmp_eq_u32 s22, {RING}")
        A("s_cselect_b32 s22, 0, s22")
    if QL:
        A("s_cmp_eq_u32 s33, 0")
        A("s_cbranch_scc1 P2_noq")
    for g in range(4):
        A(f"s_mov_b32 m0, {BREG + g * 4096}")
        A(f"s_add_u32 s20, s27, {g * 4096}")
        for i in range(4):
            A(f"buffer_load_dwordx4 v1, s[12:15], s20 offen offset:{1024*i}{LD} lds")
    A.label("P2_noq")
    A("s_mov_b32 s21, 0")
    A("s_mov_b32 s22, 0")
    A("s_mov_b32 s23, 0")
    sched = opts.get("ksched", "s s b s s b b p2 s s s b s b b b p3 s s s b s b s b s b s b s b b b b b").split()
    issued = 0; nb = -1
    for act in sched:
        if act == 's':
            assert issued < 16 and issued - 5 <= nb - 1 or issued < 6, (issued, nb)
            A("s_call_b64 s[28:29], P2_lsub"); issued += 1
        elif act == 'b':
            need = min(nb + 1, 15)
            assert issued > need
            A(f"s_waitcnt vmcnt({min(63, 16 * (issued - 1 - need))})")
            A("s_barrier"); nb += 1
        elif act == 'p2':
            assert issued == 4; poll("P2_k2", 64, 8, 2, st=False)
        elif act == 'p3':
            assert issued == 8; poll("P2_k3", 96, 8, 2, st=False)
    assert issued == 16 and nb == 16, (issued, nb)
    A("s_branch P2_htail")
    A.label("P2_lsub")
    l_stage()
    A("s_add_u32 s23, s23, 1")
    A("s_setpc_b64 s[28:29]")
    A.label("P2_aux")
    if opts.get("cnt", 2) == 1: poll_cnt("P2_c", 256, 2)
    if opts.get("cnt", 2) == 2:
        A("v_readfirstlane_b32 s46, v23")
        A("s_nop 3")
        A("s_cmp_ge_u32 s46, 256")
        A("s_cbranch_scc1 P2_c_go")
        poll_cnt("P2_c", 256, 2)
    A("s_barrier")
    A("s_cmp_lg_u32 s33, 0")
    A("s_cbranch_scc1 P2_auxb")
    signal(10, 16, 2)
    def park_copy(b_):
        wc, q = divmod(b_, 3)
        for i in range(8): A(f"ds_read_b128 {vr(72+4*i,4)}, v15 offset:{b_*8192+i*1024}")
        for i in range(8):
            if i % 4 == 0: A(f"s_add_u32 s39, s38, {wc*262144+q*8192+(i//4)*4096}")
            A(f"s_waitcnt lgkmcnt({7-i})")
            A(f"buffer_store_dwordx4 {vr(72+4*i,4)}, v1, s[12:15], s39 offen offset:{(i%4)*1024}{SC}")
    NB0 = opts.get("nb0", 2)
    A(f"v_add_u32 v15, {PARK}, v1")
    A("s_lshl_b32 s38, s31, 7")
    A("s_lshl_b32 s39, s30, 3")
    A("s_add_u32 s38, s38, s39")
    A("s_lshl_b32 s38, s38, 12")
    A(f"s_add_u32 s38, s38, {WS_KV + 8192}")
    asched = opts.get("asched", "b c0 c3 b w2 b c1 c4 b c2 c5 b b w3").split()
    nb_ = 0
    for act in asched:
        if act == 'b': A("s_barrier"); nb_ += 1
        elif act[0] == 'c': park_copy(int(act[1]))
        else:
            A(f"v_add_u32 v10, {64 if act == 'w2' else 32}, v10")
            A("s_waitcnt vmcnt(0)")
            signal(10, 16, 2)
    assert nb_ == 6
    A("s_branch P2_a1")
    A.label("P2_auxb")
    A("s_add_u32 s38, s30, 1")
    A("s_lshr_b32 s39, s38, 2")
    A("s_and_b32 s38, s38, 3")
    A("s_lshl_b32 s38, s38, 3")
    A("s_add_u32 s38, s38, s39")
    A("s_and_b32 s39, s2, -26")
    A("s_add_u32 s38, s38, s39")
    A("s_lshl_b32 s38, s38, 8")
    A(f"s_add_u32 s38, s38, {WS_F + 32}")
    A("v_mov_b32 v14, s38")
    A("s_barrier")
    aux_stash()
    A("s_barrier")
    A("s_cmp_eq_u32 s30, 7")
    A("s_cbranch_scc1 P2_auxb1")
    signal(14, 1, 2)
    A.label("P2_auxb1")
    aux_copy(0); aux_copy(1)
    A("s_barrier")
    aux_copy(2); aux_copy(3)
    A("s_barrier")
    A("s_cmp_eq_u32 s30, 0")
    A("s_cbranch_scc1 P2_auxb2")
    aux_halo_issue()
    A("s_barrier")
    aux_halo_compute()
    A("s_barrier")
    A("s_branch P2_a1")
    A.label("P2_auxb2")
    A("s_barrier")
    A("s_barrier")
    A("s_branch P2_a1")
    A.label("P2_astart")
    for i in range(6): A("s_barrier")
    A.label("P2_a1")
    if opts.get("wo_pf", 1):
        m3 = opts.get("mix3", 0)
        A("s_mov_b32 s10, 0x200000")
        A("s_cmp_lt_u32 s35, 16" if m3 else "s_cmp_lt_u32 s34, 4")
        A(f"s_cselect_b32 s8, s{P_AWO}, s{P_BWO}")
        A(f"s_cselect_b32 s9, s{P_AWO+1}, s{P_BWO+1}")
        A("v_and_b32 v44, 0x70, v1")
        A("v_lshlrev_b32 v44, 3, v44")
        A("v_lshrrev_b32 v45, 7, v1")
        A("v_lshl_add_u32 v44, v45, 11, v44")
        if m3:
            A("s_and_b32 s40, s35, 15")
            A("s_lshl_b32 s40, s40, 17")
            A("s_and_b32 s41, s34, 4")
            A("s_lshl_b32 s41, s41, 8")
        else:
            A("s_lshl_b32 s40, s35, 16")
            A("s_and_b32 s41, s34, 2")
            A("s_lshl_b32 s41, s41, 9")
        A("s_add_u32 s40, s40, s41")
    for i in range(4):
        if opts.get("wo_pf", 1):
            for _ in range(2 if opts.get("mix3", 0) else 1):
                A("buffer_load_dword v46, v44, s[8:11], s40 offen")
                A("s_add_u32 s40, s40, 16384")
        if i: A("s_barrier")
    A("s_cmp_eq_u32 s33, 0")
    A("s_cbranch_scc1 P2_a2")
    A("s_waitcnt vmcnt(0)")
    signal(12, 32, 2)
    A("s_mov_b32 s33, 0")
    A.label("P2_a2")
    p3_ids()
    if opts.get("out_touch", 0):
        A(f"s_mov_b32 s8, s{P_OUT}")
        A(f"s_mov_b32 s9, s{P_OUT+1}")
        A(f"s_mov_b32 s10, {2048*4096}")
        A("s_lshl_b32 s40, s17, 19")
        A("buffer_load_dword v46, off, s[8:11], s40")
    A("v_lshrrev_b32 v52, 4, v1")
    A("s_lshl_b32 s39, s18, 8")
    A(f"s_sub_u32 s6, {1024*2048}, s39")
    A("v_lshrrev_b32 v53, 4, v52")
    A("v_lshlrev_b32 v54, 1, v53")
    A("v_and_b32 v55, 15, v52")
    A("v_xor_b32 v54, v54, v55")
    A("v_lshlrev_b32 v54, 4, v54")
    A("v_lshl_add_u32 v48, v53, 11, v54")
    A("v_xor_b32 v49, 128, v48")
    A(f"v_add_u32 v49, {8192-1024}, v49")
    A("s_lshl_b32 s40, 16384, s16")
    A("s_sub_u32 s40, s40, 2048")
    A("s_lshr_b32 s41, 32768, s16")
    A("s_cmp_eq_u32 s16, 0")
    A("v_add_u32 v50, s40, v48")
    A("v_add_u32 v51, s40, v49")
    A(f"s_cselect_b32 s4, s{P_AWO}, s{P_BWO}")
    A(f"s_cselect_b32 s5, s{P_AWO+1}, s{P_BWO+1}")
    A("s_add_u32 s4, s4, s39")
    A("s_addc_u32 s5, s5, 0")
    r3 = opts.get("rot3", 1)
    if r3 == 1: A("s_lshl_b32 s21, s34, 18")
    elif r3 == 0: A("s_mov_b32 s21, 0")
    else:
        A("s_add_u32 s21, s17, s18"); A("s_and_b32 s21, s21, 1"); A(f"s_mul_i32 s21, s21, {131072 * r3}")
    A(f"s_mov_b32 s23, {W3 + 2*S3}")
    A("s_mov_b32 s38, 0")
    assert NW == 6
    def w_issue():
        for q in range(4):
            A(f"s_add_u32 m0, s23, {q*4096}")
            if q & 1: A("s_add_u32 s20, s20, s41")
            else: A(f"s_add_u32 s20, s21, {q*32768}")
            for i in range(4): A(f"buffer_load_dwordx4 v{48+i}, s[4:7], s20 offen offset:{1024*i}{opts.get('ld1', '')} lds")
        A("s_add_u32 s21, s21, 0x20000")
        A("s_and_b32 s21, s21, 0x1fffff")
    ring_loader("P3_w", NW, W3, w_issue, None)
    A.label("P2_wback")
    A("s_barrier")
    A("s_cmp_lg_u32 s38, 4")
    A("s_cbranch_scc1 P2_wb1")
    A("s_barrier")
    A.label("P2_wb1")
    A("s_cmp_lt_u32 s38, 6")
    A("s_cbranch_scc1 P3_w_go2")
    A("s_barrier")
    A.label("P2_htail")
    A("s_barrier")
    A("s_cmp_lg_u32 s24, 0")
    A("s_cbranch_scc1 P2_hfin")
    read_flags(8)
    A("s_waitcnt lgkmcnt(0)")
    or_flags(8, 44)
    A("s_nop 3")
    A("s_cmp_eq_u32 s44, 0")
    A("s_cbranch_scc1 P2_hfin")
    A("s_mov_b32 s24, 1")
    A("s_waitcnt vmcnt(0)")
    A("s_barrier")
    A("s_cmp_eq_u32 s19, 9")
    A("s_cbranch_scc1 P2_astart")
    A("s_branch P2_lstart")
    A.label("P2_hfin")
    A("s_cmp_eq_u32 s19, 9")
    A("s_cbranch_scc0 P3_oload")
    A("s_barrier")
    A("s_waitcnt vmcnt(0)")
    A("s_barrier")
    pat = opts.get("wpat")
    if not pat:
        A("s_branch P3_w_l1")
    else:
        g = 24; issued = []
        for b in range(1, 16):
            need = [i for i, gg in enumerate(issued) if gg >> 2 <= b]
            if need: A(f"s_waitcnt vmcnt({min(63, 4 * (len(issued) - 1 - max(need)))})")
            assert g >> 2 > b or g == 64, (g, b)
            A("s_barrier")
            for _ in range(pat[(b - 1) % len(pat)]):
                if g == 64: break
                st_, q = g >> 2, g & 3
                assert st_ - 6 < b
                A(f"s_mov_b32 m0, {W3 + ((st_ + 2) % NW) * S3 + q * 4096}")
                if q & 1: A("s_add_u32 s20, s20, s41")
                else: A(f"s_add_u32 s20, s21, {q*32768}")
                if opts.get("p3noload", 0) < 2:
                    for i in range(4): A(f"buffer_load_dwordx4 v{48+i}, s[4:7], s20 offen offset:{1024*i}{opts.get('ld1', '')} lds")
                if q == 3:
                    A("s_add_u32 s21, s21, 0x20000")
                    A("s_and_b32 s21, s21, 0x1fffff")
                issued.append(g); g += 1
        A("s_endpgm")
    A.label("L_done")
    A("s_endpgm")
    hdr = """; concat_heads__mha_block__sliding_local_dilated__prompt -- fused single-launch kernel for gfx950
; (hand-designed; emitted by the author's own generator script gen/mega.py)
; Kernarg (8-byte pointers): 0 A_x, 8 A_wqkv, 16 A_wo, 24 B_x, 32 B_wqkv, 40 B_wo, 48 out, 56 debug, 64 ws
;
; 256 workgroups (one per CU, 160 KB LDS), 10 waves each: waves 0-7 compute, waves 8-9 stream data (LDS-DMA) and
; do the hand-offs.  Workgroups with id >= 256 exit at once.
;  Phase 1  QKV projection, tile 256 rows x (q,k,v of two heads), v_mfma_f32_16x16x32_bf16.
;           Branch A tiles publish K/V (and the partner head's Q, pre-scaled by dh^-0.5*log2(e)) in MFMA fragment
;           order in ws.  Branch B tiles run the windowed (W=8, dilation 2) attention straight from the accumulators
;           with the true row max; the first 16 rows of a tile are redone by wave 9 with the neighbour tile's keys.
;  Phase 2  full attention of branch A, one head x 256 queries per workgroup, keys split between the two waves of a
;           SIMD.  S^T = K Q^T - m comes out of the MFMA (C operand), P = exp2(S^T) stays fp32 and its high halves
;           feed v_smfmac (P V and the row sums).  m is the exact max over the first 32 keys; after the pass a
;           run-time check (row sum < 2^64, |O| < 2^120, NaN-propagating) decides: if it fails the workgroup
;           computes the true row max over all keys and redoes the pass with it.
;  Phase 3  output projection, tile 128 x 128.
; Hand-offs between workgroups: write-through (sc1) stores -> vmcnt(0) in every storing wave -> barrier -> flag word
; in the consumer's private flag block in ws -> sc1 poll -> sc1 loads.  Every workgroup clears its own flag block at
; the start of the launch and counts that in debug[0]; no flag is set before all 256 have been counted, so nothing
; found in ws is ever trusted.  Workgroup -> tile maps assume id%8 = XCD for L2 locality only.  All waits are bounded.
""" + f"; @launch grid=(256,1,1) block=(640,1,1) lds={LDS_BYTES}\n"
    return hdr + A.text() + '.section .rodata,"a"\n' + descriptor(NAME, 168, 102)

if __name__ == "__main__":
    opts = json.loads(sys.argv[2]) if len(sys.argv) > 2 else {}
    open(sys.argv[1], "w").write(gen(opts))
```

```python
import sys, os, json, struct, math
sys.path.insert(0, os.path.dirname(os.path.abspath(__file__)))
from asmlib import *

NAME = "concat_heads__mha_block__sliding_local_dilated__prompt_kernel"
WS_Q = 0
WS_KV = 4 << 20
WS_H = 12 << 20
WS_O = 24 << 20
WS_F = 32 << 20
WS_BYTES = (32 << 20) + 65536
QSCALE = (32 ** -0.5) * math.log2(math.e)
LDS_BYTES = 163840
def f32bits(x): return struct.unpack("<I", struct.pack("<f", x))[0]
def M32(d, a, b, c):
    cs = "0" if c is None else vr(c, 16)
    return f"v_mfma_f32_32x32x16_bf16 {vr(d,16)}, {vr(a,4)}, {vr(b,4)}, {cs}"
def M16(d, a, b, c):
    cs = "0" if c is None else vr(c, 4)
    return f"v_mfma_f32_16x16x32_bf16 {vr(d,4)}, {vr(a,4)}, {vr(b,4)}, {cs}"

P_AX, P_AW, P_AWO, P_BX, P_BW, P_BWO, P_OUT, P_DBG, P_WS = 76, 78, 80, 82, 84, 86, 88, 90, 92

def gen(opts=None):
    opts = opts or {}
    A = Asm()
    stamp = opts.get("stamp", False)
    SC = " sc1"
    QL = opts.get("qloc", 1)
    SC1 = opts.get("p1st", " sc1")
    LD = opts.get("ld_mod", " sc1")
    def ST(i):
        if stamp:
            A("s_memtime s[100:101]" if opts.get("cyc") else "s_memrealtime s[100:101]")
            A("s_waitcnt lgkmcnt(0)")
            A(f"s_mov_b32 s{50+i}, s100")
    def TB(vreg, idx):
        if opts.get("tb"):
            A("s_memtime s[100:101]")
            A("s_waitcnt lgkmcnt(0)")
            if isinstance(idx, str):
                A(f"s_mov_b32 m0, {idx}"); A("s_nop 0"); A(f"v_writelane_b32 v{vreg}, s100, m0")
            else: A(f"v_writelane_b32 v{vreg}, s100, {idx}")
    def lane(dst):
        A(f"v_mbcnt_lo_u32_b32 v{dst}, -1, 0")
        A(f"v_mbcnt_hi_u32_b32 v{dst}, -1, v{dst}")
    def poll_cnt(tag, target, vtmp):
        A(f"s_mov_b32 s47, {opts.get('poll_max', 30000)}")
        A.label(f"{tag}_poll")
        A(f"buffer_load_dword v{vtmp}, off, s[72:75], 0 sc1")
        A("s_waitcnt vmcnt(0)")
        A(f"v_readfirstlane_b32 s46, v{vtmp}")
        A("s_sub_u32 s47, s47, 1")
        A("s_cmp_eq_u32 s47, 0")
        A(f"s_cbranch_scc1 {tag}_go")
        A(f"s_cmp_ge_u32 s46, {target}")
        A(f"s_cbranch_scc1 {tag}_go")
        A(f"s_branch {tag}_poll")
        A.label(f"{tag}_go")
    def poll(tag, off, nflags, vtmp, st=True):
        A(f"s_mov_b32 s47, {opts.get('poll_max', 30000)}")
        A("s_lshl_b32 s46, s2, 8")
        A(f"s_add_u32 s46, s46, {WS_F + off}")
        A(f"v_lshrrev_b32 v{vtmp+1}, 2, v1")
        A(f"v_and_b32 v{vtmp+1}, {4*nflags-1}, v{vtmp+1}")
        if opts.get("pp", 0) and st:
            if st: ST(0)
            A(f"buffer_load_dword v{vtmp}, v{vtmp+1}, s[12:15], s46 offen sc1")
            for _ in range(opts["pp"]): A("s_nop 15")
            A.label(f"{tag}_poll")
            for r_new, r_old in ((vtmp + 2, vtmp), (vtmp, vtmp + 2)):
                A(f"buffer_load_dword v{r_new}, v{vtmp+1}, s[12:15], s46 offen sc1")
                A("s_sub_u32 s47, s47, 1")
                A("s_waitcnt vmcnt(1)")
                A(f"v_cmp_eq_u32 vcc, 0, v{r_old}")
                A("s_cmp_eq_u32 s47, 0")
                A(f"s_cbranch_scc1 {tag}_go")
                A("s_cmp_eq_u64 vcc, 0")
                A(f"s_cbranch_scc1 {tag}_go")
            A(f"s_branch {tag}_poll")
        else:
            if st: ST(0)
            A.label(f"{tag}_poll")
            A(f"buffer_load_dword v{vtmp}, v{vtmp+1}, s[12:15], s46 offen sc1")
            A("s_sub_u32 s47, s47, 1")
            A("s_waitcnt vmcnt(0)")
            A(f"v_cmp_eq_u32 vcc, 0, v{vtmp}")
            A("s_cmp_eq_u32 s47, 0")
            A(f"s_cbranch_scc1 {tag}_go")
            A("s_cmp_eq_u64 vcc, 0")
            A(f"s_cbranch_scc1 {tag}_go")
            if opts.get('poll_sleep', 0): A(f"s_sleep {opts.get('poll_sleep', 0)}")
            A(f"s_branch {tag}_poll")
        A.label(f"{tag}_go")
        if st: ST(1)
        if stamp and st: A("s_mov_b32 s52, s47")
    def p3_targets(dst, tmp, vlane, sblk, xoff):
        A(f"v_lshrrev_b32 v{tmp}, 3, v{vlane}")
        A(f"v_and_b32 v{tmp}, 1, v{tmp}")
        A(f"s_lshl_b32 s40, {sblk}, 1")
        A(f"v_add_u32 v{tmp}, s40, v{tmp}")
        if opts.get("mix3", 0):
            A(f"v_lshrrev_b32 v{dst}, 2, v{tmp}")
            A(f"v_and_b32 v{tmp}, 3, v{tmp}")
            A(f"v_lshl_add_u32 v{dst}, v{tmp}, 3, v{dst}")
            A(f"v_and_b32 v{tmp}, 3, v{vlane}")
            A(f"v_lshl_add_u32 v{dst}, v{tmp}, 5, v{dst}")
            A(f"v_and_b32 v{tmp}, 4, v{vlane}")
            A(f"v_add_u32 v{dst}, v{dst}, v{tmp}")
            if bool(xoff) != (opts["mix3"] == 2): A(f"v_add_u32 v{dst}, 128, v{dst}")
        else:
            A(f"v_lshrrev_b32 v{dst}, 3, v{tmp}")
            A(f"v_and_b32 v{tmp}, 7, v{tmp}")
            A(f"v_lshl_add_u32 v{dst}, v{tmp}, 3, v{dst}")
            A(f"v_and_b32 v{tmp}, 3, v{vlane}")
            A(f"v_lshl_add_u32 v{dst}, v{tmp}, 6, v{dst}")
            A(f"v_and_b32 v{tmp}, 4, v{vlane}")
            A(f"v_lshrrev_b32 v{tmp}, 1, v{tmp}")
            A(f"v_add3_u32 v{dst}, v{dst}, v{tmp}, {xoff}")
        A(f"v_lshlrev_b32 v{dst}, 8, v{dst}")
    def signal(vaddr, nl, vtmp):
        A(f"v_mov_b32 v{vtmp}, 1")
        A(f"s_mov_b64 exec, {(1 << nl) - 1}")
        A(f"buffer_store_dword v{vtmp}, v{vaddr}, s[12:15], 0 offen sc1")
        A("s_mov_b64 exec, -1")

    A('.amdgcn_target "amdgcn-amd-amdhsa--gfx950"')
    A(".text")
    kernel_begin(A, NAME)
    if opts.get("padto") or opts.get("xst"):
        A("s_memrealtime s[98:99]")
    A("s_load_dwordx16 s[76:91], s[0:1], 0")
    A("s_load_dwordx2 s[92:93], s[0:1], 64")
    A("v_lshrrev_b32 v14, 6, v0")
    A("v_and_b32 v1, 63, v0")
    A("v_readfirstlane_b32 s19, v14")
    A("s_cmp_ge_u32 s2, 256")
    A("s_cbranch_scc1 L_done")
    XSLOT = 32768; WBASE = 3 * XSLOT; WSLOT = 12288; WEND = WBASE + 5 * WSLOT
    A("s_and_b32 s34, s2, 7")
    A("s_lshr_b32 s35, s2, 3")
    mix = opts.get("mix", 1)
    if mix:
        A("s_lshr_b32 s16, s35, 4")
        A("s_and_b32 s17, s34, 1")
        A("s_lshl_b32 s17, s17, 2")
        A("s_and_b32 s36, s35, 3")
        A("s_add_u32 s17, s17, s36")
        A("s_lshr_b32 s18, s34, 1")
        A("s_lshl_b32 s18, s18, 2")
        A("s_lshr_b32 s36, s35, 2")
        A("s_and_b32 s36, s36, 3")
        A("s_add_u32 s18, s18, s36")
    else:
        A("s_lshr_b32 s16, s34, 2")
        A("s_and_b32 s17, s34, 1")
        A("s_lshl_b32 s17, s17, 2")
        A("s_and_b32 s36, s35, 3")
        A("s_add_u32 s17, s17, s36")
        A("s_lshr_b32 s18, s34, 1")
        A("s_and_b32 s18, s18, 1")
        A("s_lshl_b32 s18, s18, 3")
        A("s_lshr_b32 s36, s35, 2")
        A("s_add_u32 s18, s18, s36")
    A(f"s_mov_b32 s14, {WS_BYTES}")
    A("s_mov_b32 s15, 0x20000")
    A("s_mov_b32 s74, 256")
    A("s_mov_b32 s75, 0x20000")
    A("s_mov_b32 s7, 0x20000")
    A("s_mov_b32 s11, 0x20000")
    def common_srds():
        A(f"s_mov_b32 s12, s{P_WS}")
        A(f"s_mov_b32 s13, s{P_WS+1}")
        A(f"s_mov_b32 s72, s{P_DBG}")
        A(f"s_mov_b32 s73, s{P_DBG+1}")
    A("s_cmp_lt_u32 s19, 8")
    A("s_cbranch_scc1 P1_compute")
    A(f"s_setprio {opts.get('lprio', 3)}")
    rotv = opts.get("rotv", 2)
    if rotv == 1:
        A("s_lshr_b32 s49, s34, 1")
        A("s_lshl_b32 s49, s49, 9")
        A("s_and_b32 s23, s34, 1")
        A("s_lshl_b32 s23, s23, 10")
        A("s_add_u32 s49, s49, s23")
        A("s_lshl_b32 s23, s16, 8")
        A("s_add_u32 s49, s49, s23")
    elif rotv == 2:
        A(f"s_mul_i32 s49, s16, {128 * opts.get('brofs', 8)}")
    elif rotv == 3:
        A("s_lshl_b32 s49, s34, 8")
    else:
        A("s_lshr_b32 s49, s34, 1")
        A("s_xor_b32 s49, s49, s34")
        A("s_and_b32 s49, s49, 1")
        A("s_lshl_b32 s49, s49, 10")
        A("s_lshl_b32 s23, s16, 9")
        A("s_add_u32 s49, s49, s23")
        A("s_and_b32 s23, s34, 1")
        A("s_lshl_b32 s23, s23, 8")
        A("s_add_u32 s49, s49, s23")
    A("s_add_u32 s48, s17, s18")
    A(f"s_and_b32 s48, s48, {opts.get('grp', 1)}")
    if opts.get("gsh"): A(f"s_lshl_b32 s48, s48, {opts['gsh']}")
    if opts.get("xg"):
        A("s_lshr_b32 s23, s34, 1")
        A("s_xor_b32 s23, s23, s34")
        A("s_and_b32 s23, s23, 1")
        A("s_lshl_b32 s23, s23, 1")
        A("s_or_b32 s48, s48, s23")
    A("v_lshrrev_b32 v15, 3, v1")
    A("v_lshrrev_b32 v16, 4, v1")
    A("v_and_b32 v18, 7, v1")
    A("s_mov_b32 s40, 0")
    A("s_cmp_eq_u32 s19, 8")
    A("s_cbranch_scc1 P1_xload")
    A("s_lshl_b32 s39, s18, 7")
    A(f"s_sub_u32 s6, {1024*6144}, s39")
    A("v_and_b32 v16, 1, v16")
    A("v_lshlrev_b32 v16, 1, v16")
    A("v_xor_b32 v16, v18, v16")
    A("v_lshlrev_b32 v16, 4, v16")
    A("v_mul_u32_u24 v17, 6144, v15")
    A("v_add_u32 v2, v17, v16")
    A("v_xor_b32 v16, 64, v16")
    A("v_add_u32 v3, v17, v16")
    A(f"v_add_u32 v3, {8*6144-1024}, v3")
    A(f"v_add_u32 v4, {16*6144-2048}, v2")
    A(f"v_add_u32 v5, {16*6144-2048}, v3")
    A("s_lshl_b32 s48, s48, 1")
    A(f"s_mov_b32 s22, {WBASE}")
    A("v_lshlrev_b32 v20, 2, v1")
    A("v_mov_b32 v21, 0")
    A("v_mov_b32 v22, 1")
    A("s_lshl_b32 s45, s2, 8")
    A(f"s_add_u32 s45, s45, {WS_F}")
    A("s_and_b32 s44, s35, 7")
    A("s_lshl_b32 s44, s44, 1")
    A("s_add_u32 s44, s44, 9")
    A("s_cmp_eq_u32 s16, 0")
    A("s_waitcnt lgkmcnt(0)")
    A(f"s_cselect_b32 s4, s{P_AW}, s{P_BW}")
    A(f"s_cselect_b32 s5, s{P_AW+1}, s{P_BW+1}")
    A("s_add_u32 s4, s4, s39")
    A("s_addc_u32 s5, s5, 0")
    common_srds()
    A("s_branch P1_wgo")
    A.c("---- phase 1, wave 9: W stream (5 half-stage ring); clears the flag block and counts the arrival ----")
    A.label("P1_wclr")
    A("buffer_store_dword v21, v20, s[12:15], s45 offen sc1")
    A.label("P1_wwait")
    A("s_waitcnt vmcnt(12)")
    A("s_barrier")
    A("s_cmp_eq_u32 s40, s44")
    A("s_cbranch_scc0 P1_wgo")
    A("s_waitcnt vmcnt(0)")
    A("s_mov_b64 exec, 1")
    A("buffer_atomic_add v22, off, s[72:75], 0 sc1")
    if opts.get("padmin"):
        A("s_not_b32 s97, s98")
        A("v_mov_b32 v24, s97")
        A("buffer_atomic_umax v24, off, s[72:75], 0 offset:32 sc1")
    A("s_mov_b64 exec, -1")
    A.label("P1_wgo")
    if opts.get("abl") == "nodma":
        A("s_cmp_lt_u32 s40, 5"); A("s_cbranch_scc1 P1_wgo2"); A("s_add_u32 s40, s40, 1"); A("s_branch P1_w1"); A.label("P1_wgo2")
    A("s_xor_b32 s23, s40, s48")
    A("s_lshl_b32 s23, s23, 6")
    A("s_add_u32 s23, s23, s49")
    A("s_and_b32 s23, s23, 2047")
    A("s_mul_i32 s20, s23, 3072")
    for ty in range(3):
        A(f"s_add_u32 m0, s22, {ty*4096}")
        if ty: A("s_add_u32 s20, s20, 2048")
        else: A("s_add_u32 s40, s40, 1")
        for i in range(4):
            A(f"buffer_load_dwordx4 v{2+i}, s[4:7], s20 offen offset:{1024*i}{opts.get('ld1', '')} lds")
    A(f"s_add_u32 s22, s22, {WSLOT}")
    A(f"s_cmp_eq_u32 s22, {WEND}")
    A(f"s_cselect_b32 s22, {WBASE}, s22")
    WPRE = opts.get("wpre", 3)
    A(f"s_cmp_eq_u32 s40, {WPRE}")
    A("s_cbranch_scc0 P1_w1")
    A(f"s_waitcnt vmcnt({12*(WPRE-2)})")
    A("s_barrier")
    A.label("P1_w1")
    A("s_cmp_lt_u32 s40, 5")
    A("s_cbranch_scc1 P1_wgo")
    A("s_bitcmp0_b32 s40, 0")
    A("s_cbranch_scc1 P1_w2")
    A("s_cmp_eq_u32 s40, 5")
    A("s_cbranch_scc1 P1_wclr")
    A("s_branch P1_wwait")
    A.label("P1_w2")
    A("s_cmp_lt_u32 s40, 32")
    A("s_cbranch_scc1 P1_wgo")
    A("s_branch P1_ltail")
    A.c("---- phase 1, wave 8: X stream (3 stage ring) ----")
    A.label("P1_xload")
    if opts.get("tb"):
        for i in range(3): A(f"v_mov_b32 v{60+i}, 0")
    A("s_mov_b32 s6, 0x80000")
    A("s_lshl_b32 s36, s17, 19")
    A("v_xor_b32 v17, v18, v16")
    A("v_lshlrev_b32 v17, 4, v17")
    A("v_lshl_add_u32 v2, v15, 11, v17")
    A("v_xor_b32 v3, 64, v2")
    A(f"v_add_u32 v3, {16384-1024}, v3")
    A(f"v_add_u32 v4, {32768-2048}, v2")
    A(f"v_add_u32 v5, {32768-2048}, v3")
    A("s_mov_b32 s22, 0")
    A("s_cmp_eq_u32 s16, 0")
    A("s_waitcnt lgkmcnt(0)")
    A(f"s_cselect_b32 s4, s{P_AX}, s{P_BX}")
    A(f"s_cselect_b32 s5, s{P_AX+1}, s{P_BX+1}")
    A("s_add_u32 s4, s4, s36")
    A("s_addc_u32 s5, s5, 0")
    if opts.get("xst"): A("s_memrealtime s[96:97]")
    A.label("P1_xgo")
    if opts.get("abl") == "nodma":
        A("s_cmp_gt_u32 s40, 2"); A("s_cbranch_scc1 P1_xskip")
    A("s_xor_b32 s21, s40, s48")
    A("s_lshl_b32 s21, s21, 7")
    A("s_add_u32 s21, s21, s49")
    A("s_and_b32 s21, s21, 2047")
    XB0 = opts.get("xb0", 4)
    for q in range(8):
        A(f"s_add_u32 m0, s22, {q*4096}")
        A(f"s_add_u32 s20, s21, {q*65536}")
        if q == XB0:
            A("s_cmp_eq_u32 s40, 1")
            A("s_cbranch_scc0 P1_x0")
            if opts.get("xst"): A("s_memrealtime s[94:95]")
            A(f"s_waitcnt vmcnt({4*XB0})")
            if opts.get("xst"): A("s_memrealtime s[62:63]")
            A("s_barrier")
            if opts.get("xst"): A("s_memrealtime s[60:61]")
            A.label("P1_x0")
        for i in range(4):
            A(f"buffer_load_dwordx4 v{2+i}, s[4:7], s20 offen offset:{1024*i}{opts.get('ld1', '')} lds")
    A.label("P1_xskip")
    A(f"s_add_u32 s22, s22, {XSLOT}")
    A(f"s_cmp_eq_u32 s22, {3*XSLOT}")
    A("s_cselect_b32 s22, 0, s22")
    A("s_add_u32 s40, s40, 1")
    A(f"s_cmp_lt_u32 s40, {2 if XB0 == 8 else 3}")
    A("s_cbranch_scc1 P1_xgo")
    TB(60, "s40")
    A("s_waitcnt vmcnt(32)")
    TB(61, "s40")
    A("s_barrier")
    TB(62, "s40")
    A("s_cmp_lt_u32 s40, 16")
    A("s_cbranch_scc1 P1_xgo")
    if opts.get("xst"):
        common_srds()
        A("s_waitcnt lgkmcnt(0)")
        A("s_lshl_b32 s36, s2, 8")
        A(f"s_add_u32 s36, s36, {64<<20}")
        A("s_mov_b32 s14, 0x8000000")
        for w_ in range(4):
            for i, r in enumerate((98, 96, 94, 62, 60) + (60,) * 6):
                A(f"v_mov_b32 v30, s{r}")
                A(f"buffer_store_dword v30, off, s[12:15], s36 offset:{4*i+64*w_}")
        A(f"s_mov_b32 s14, {WS_BYTES}")
    A.label("P1_ltail")
    common_srds()
    if opts.get("cnt", 2) == 2:
        A("buffer_load_dword v23, off, s[72:75], 0")
    A("s_waitcnt vmcnt(0)")
    A("s_barrier")
    if QL:
        assert mix
        A("v_and_b32 v10, 8, v1")
        A("v_lshlrev_b32 v10, 4, v10")
        A("v_and_b32 v11, 3, v1")
        A("v_lshl_add_u32 v10, v11, 3, v10")
        A("v_bfe_u32 v11, v1, 2, 1")
        A("s_and_b32 s45, s2, 0x66")
        A("v_add3_u32 v10, v10, v11, s45")
    else:
        A("v_lshrrev_b32 v10, 3, v1")
        A("s_lshl_b32 s45, s18, 1")
        A("v_add_u32 v10, s45, v10")
        A("v_and_b32 v11, 3, v10")
        A("v_lshrrev_b32 v10, 2, v10")
        A("v_lshl_add_u32 v10, v11, 3, v10")
        A("v_and_b32 v11, 7, v1")
        A("v_lshl_add_u32 v10, v11, 5, v10")
    A("s_lshl_b32 s45, s17, 2")
    A(f"s_add_u32 s45, s45, {WS_F}")
    A("v_lshlrev_b32 v10, 8, v10")
    A("v_add_u32 v10, s45, v10")
    p3_targets(12, 13, 1, "s17", 4)
    A("v_lshrrev_b32 v13, 4, v1")
    A("v_and_b32 v13, 1, v13")
    A("v_lshl_add_u32 v12, v13, 2, v12")
    A("s_lshl_b32 s45, s18, 3")
    A(f"s_add_u32 s45, s45, {WS_F + 128}")
    A("v_add_u32 v12, s45, v12")
    A("s_mov_b32 s33, s16")
    A("s_mov_b32 s30, s17")
    A("s_mov_b32 s31, s18")
    A("s_barrier")
    A("s_branch P2_helpers")
    A.c("---- phase 1, waves 0-7: 64 x 96 tile per wave ----")
    A.label("P1_compute")
    if opts.get("code_pf", 1):
        A("s_getpc_b64 s[40:41]")
        A("v_and_b32 v20, 127, v0")
        A("v_lshlrev_b32 v20, 7, v20")
        A("v_min_u32 v20, L_done-P1_compute-64, v20")
        A("s_cmp_lt_u32 s19, 2")
        A("s_cbranch_scc0 P1_nopf")
        A("global_load_dword v21, v20, s[40:41]")
        A.label("P1_nopf")
    if opts.get("apf"):
        A("s_cmp_eq_u32 s16, 0")
        A("s_cbranch_scc1 P1_noapf")
        A("s_lshl_b32 s36, s17, 4")
        A("s_add_u32 s36, s36, s18")
        A("s_lshl_b32 s36, s36, 3")
        A("s_add_u32 s36, s36, s19")
        A("v_lshlrev_b32 v20, 7, v1")
        A("s_mov_b32 s6, 0x400000")
        A("s_mov_b32 s10, 0x600000")
        A("s_lshl_b32 s37, s36, 12")
        A("s_mul_i32 s38, s36, 6144")
        A("s_waitcnt lgkmcnt(0)")
        A(f"s_mov_b32 s4, s{P_AX}")
        A(f"s_mov_b32 s5, s{P_AX+1}")
        A(f"s_mov_b32 s8, s{P_AW}")
        A(f"s_mov_b32 s9, s{P_AW+1}")
        if opts["apf"] & 1:
            A("s_mov_b64 exec, 0xffffffff")
            A("buffer_load_dword v22, v20, s[4:7], s37 offen")
        if opts["apf"] & 2:
            A("s_mov_b32 exec_lo, -1")
            A("s_mov_b32 exec_hi, 0xffff")
            A("buffer_load_dword v23, v20, s[8:11], s38 offen")
        A("s_mov_b64 exec, -1")
        A.label("P1_noapf")
    ST(0)
    A("v_lshrrev_b32 v15, 1, v14")
    A("v_and_b32 v16, 15, v1")
    A("v_lshl_add_u32 v17, v15, 6, v16")
    A("v_lshlrev_b32 v17, 7, v17")
    A("v_lshrrev_b32 v16, 1, v16")
    A("v_lshrrev_b32 v18, 4, v1")
    A("v_xor_b32 v16, v16, v18")
    A("v_lshl_add_u32 v2, v16, 4, v17")
    A("v_xor_b32 v3, 64, v2")
    A("v_lshrrev_b32 v16, 2, v1")
    A("v_and_b32 v16, 3, v16")
    A("v_lshl_add_u32 v17, v18, 3, v16")
    A("v_lshlrev_b32 v17, 7, v17")
    A("v_lshrrev_b32 v16, 1, v16")
    A("v_and_b32 v19, 1, v18")
    A("v_lshl_add_u32 v16, v19, 1, v16")
    A("v_and_b32 v19, 1, v14")
    A("v_lshlrev_b32 v19, 1, v19")
    A("v_xor_b32 v16, v16, v19")
    A("v_lshl_add_u32 v17, v16, 5, v17")
    A("v_and_b32 v16, 3, v1")
    A("v_lshl_add_u32 v4, v16, 3, v17")
    A("v_xor_b32 v5, 32, v4")
    A("v_lshlrev_b32 v1, 4, v1")
    ACC = 72; XF = 8; WF = [24, 48]
    AX, AW0, AW1 = 0, 6, 7
    for i in range(0, 96, 2): A(f"v_mov_b64 v[{ACC+i}:{ACC+i+1}], 0")
    A("s_and_b32 s36, s19, 1")
    A("s_lshl_b32 s37, s18, 1")
    A("s_add_u32 s36, s36, s37")
    A("s_lshl_b32 s36, s36, 6")
    A("s_lshl_b32 s37, s17, 3")
    A("s_add_u32 s36, s36, s37")
    A("s_lshr_b32 s37, s19, 1")
    A("s_lshl_b32 s37, s37, 1")
    A("s_add_u32 s36, s36, s37")
    A("s_lshl_b32 s64, s36, 11")
    A("s_add_u32 s65, s64, 2048")
    A("s_lshl_b32 s66, s36, 12")
    A(f"s_add_u32 s66, s66, {WS_KV}")
    A("s_add_u32 s67, s66, 4096")
    A("s_add_u32 s68, s66, 2048")
    A("s_add_u32 s69, s66, 6144")
    A(f"s_mov_b32 s42, {f32bits(QSCALE)}")
    A(f"s_mov_b32 s43, {f32bits(QSCALE)}")
    barpos = opts.get("barpos", 4)
    def xf(st): return XF + 4*st
    def wf(s, n6): return WF[s] + 4*n6
    def acc(st, n6): return ACC + (st*6+n6)*4
    def xrd(st): return ('rd', f"ds_read_b128 {vr(xf(st),4)}, v{AX} offset:{st*2048}", f"x{st}")
    def wrds(s):
        L = []
        for i in range(6):
            ty, nt = i >> 1, i & 1
            for half in range(2):
                L.append(('rd', f"ds_read_b64_tr_b16 {vr(wf(s,i)+2*half,2)}, v{AW0+nt} offset:{ty*4096+half*512}", f"w{s}_{i}"))
        return L
    def mf(s, st, n6):
        d = acc(st, n6)
        t = M16(d, wf(s,n6), xf(st), d) if n6 < 4 else M16(d, xf(st), wf(s,n6), d)
        needs = [f"x{st}", f"w{s}_{n6}"]
        if st == 0 and n6 == 0: needs = ["x0", "x1", "x2"] + [f"w{s}_{i}" for i in range(6)]
        return ('op', t, needs)
    def nextW():
        return [f"s_add_u32 s46, s46, {WSLOT}", f"s_cmp_eq_u32 s46, {WEND}", f"s_cselect_b32 s46, {WBASE}, s46",
                f"v_add_u32 v{AW0}, s46, v4", f"v_add_u32 v{AW1}, s46, v5"]
    A("s_mov_b32 s44, 0")
    A(f"s_mov_b32 s46, {WBASE}")
    A("s_mov_b32 s40, 16")
    A(f"v_mov_b32 v{AX}, v2")
    A(f"v_add_u32 v{AW0}, s46, v4")
    A(f"v_add_u32 v{AW1}, s46, v5")
    A("s_waitcnt lgkmcnt(0)")
    common_srds()
    A("s_waitcnt vmcnt(0)")
    A("s_barrier")
    ST(1)
    if opts.get("p1s", 1) == 0:
        items = []
        for sub in range(2):
            s = sub
            ms = [mf(s, st, (q if st % 2 == 0 else 5 - q)) for st in range(4) for q in range(6)]
            wr = wrds(s ^ 1)
            gaps = [[] for _ in range(24)]
            start = 0 if sub == 0 else barpos
            pre = nextW()
            if sub == 0:
                pre += [f"v_add_u32 v{AX}, s44, v3"]
            else:
                pre += [f"s_add_u32 s44, s44, {XSLOT}", f"s_cmp_eq_u32 s44, {3*XSLOT}", "s_cselect_b32 s44, 0, s44", f"v_add_u32 v{AX}, s44, v2",
                        "s_sub_u32 s40, s40, 1"]
            for i, l in enumerate(pre): gaps[min(i // 3, 2 if sub == 0 else barpos - 1)].append(('raw', l))
            if sub == 1: gaps[barpos - 1].append(('all', "s_barrier"))
            g = max(start, 2)
            for r in wr:
                if g in (5, 11, 17): g += 1
                gaps[g].append(r); g += 1
            assert g <= 23, g
            for st in range(4): gaps[6*st+5].append(xrd(st))
            if sub == 1: gaps[22].append(('raw', "s_cmp_lg_u32 s40, 0"))
            for i in range(24):
                items.append(ms[i]); items += gaps[i]
    else:
        items = []
        AXS = [1, 0]
        for sub in range(2):
            s = sub
            ms = [mf(s, st, (q if st % 2 == 0 else 5 - q)) for st in range(4) for q in range(6)]
            wr = wrds(s ^ 1)
            gaps = [[] for _ in range(24)]
            g = 0 if sub == 0 else barpos
            if sub == 1: gaps[barpos - 1].append(('all', "s_barrier"))
            for r in wr:
                if g in (5, 11, 17): g += 1
                gaps[g].append(r); g += 1
            lastw = g - 1
            for st in range(4):
                gaps[6*st+5].append(('rd', f"ds_read_b128 {vr(xf(st),4)}, v{AXS[sub]} offset:{st*2048}", f"x{st}"))
            nw = nextW()
            if sub == 0:
                sc = [f"s_add_u32 s44, s44, {XSLOT}", f"s_cmp_eq_u32 s44, {3*XSLOT}", "s_cselect_b32 s44, 0, s44", f"v_add_u32 v{AXS[1]}, s44, v2"]
            else:
                sc = [f"v_add_u32 v{AXS[0]}, s44, v3", "s_sub_u32 s40, s40, 1"]
            sc = sc + nw[:3]
            gg = 6
            for l in sc:
                gaps[gg].append(('raw', l)); gg += 1
            gaps[lastw + 1].append(('raw', nw[3])); gaps[lastw + 2].append(('raw', nw[4]))
            if sub == 1: gaps[22].append(('raw', "s_cmp_lg_u32 s40, 0"))
            for i in range(24):
                items.append(ms[i]); items += gaps[i]
    pro = [it for it in items if it[0] == 'rd'][-16:]
    assert sorted(set(t[2] for t in pro)) == sorted([f"x{i}" for i in range(4)] + [f"w0_{i}" for i in range(6)])
    for it in pro: A(it[1])
    if opts.get("p1s", 1):
        for l in nextW(): A(l)
        A("v_mov_b32 v1, v3")
    if opts.get("abl") == "nord":
        for it in wrds(1): A(it[1])
    body1, _ = schedule_waits(items, passes=1, init_queue=[t[2] for t in pro])
    A(".p2align 6")
    A.label("P1_loop")
    for l in body1:
        if opts.get("abl") == "nord" and l.startswith("ds_read") and "v[48:" not in l and False: continue
        if opts.get("abl") == "nord" and l.startswith("ds_read"): l = "s_nop 0"
        A(l)
    A("s_cbranch_scc1 P1_loop")
    if opts.get("p1s", 1):
        lane(1)
        A("v_lshlrev_b32 v1, 4, v1")
    A("s_waitcnt lgkmcnt(0)")
    ST(2)
    A("s_cmp_lg_u32 s16, 0")
    A("s_cbranch_scc1 P1_bepi")
    PARK = 114688
    A("s_and_b32 s36, s19, 1")
    A("s_mul_i32 s36, s36, 24576")
    A("s_lshr_b32 s37, s19, 1")
    A("s_lshl_b32 s37, s37, 13")
    A("s_add_u32 s36, s36, s37")
    A(f"s_add_u32 s36, s36, {PARK - 8192}")
    A("v_add_u32 v6, s36, v1")
    A("s_lshl_b32 s37, s19, 11")
    A("s_and_b32 s37, s37, 0x3000")
    A("s_add_u32 s37, s37, 98304")
    A("v_add_u32 v7, s37, v1")
    if opts.get("eprio", 1):
        A("s_bitcmp1_b32 0xab, s19")
        A("s_cbranch_scc0 P1_np")
        A("s_setprio 2")
        A.label("P1_np")
    A("s_cmp_lt_u32 s19, 2")
    A("s_cbranch_scc1 P1_kv")
    A.c("---- phase 1 epilogue, branch A: pack and publish Q / K / V fragments ----")
    A.label("P1_q")
    for st in range(4):
        p = 8 + 4 * st
        for nt in range(2):
            d = acc(st, nt)
            for r in (0, 2): A(f"v_pk_mul_f32 v[{d+r}:{d+r+1}], v[{d+r}:{d+r+1}], s[42:43]")
            A(f"v_cvt_pk_bf16_f32 v{p+2*nt}, v{d}, v{d+1}")
            A(f"v_cvt_pk_bf16_f32 v{p+2*nt+1}, v{d+2}, v{d+3}")
    if QL:
        A("s_bitcmp0_b32 s19, 0")
        A("s_cbranch_scc1 P1_ql")
    for st in range(4): A(f"buffer_store_dwordx4 {vr(8+4*st,4)}, v1, s[12:15], s{64+(st>>1)} offen offset:{(st&1)*1024}{SC}")
    if QL:
        A("s_branch P1_qd")
        A.label("P1_ql")
        for st in range(4): A(f"ds_write_b128 v7, {vr(8+4*st,4)} offset:{st*1024}")
        A.label("P1_qd")
    A("s_cmp_lt_u32 s19, 2")
    A("s_cbranch_scc1 P1_parked")
    A.label("P1_kv")
    kv = []
    for mt in range(2):
        for nt in range(2):
            p = 40 + 8 * mt + 4 * nt; kv.append((p, mt, 2048 + nt * 1024))
            for u in range(2):
                d = acc(2*mt+u, 4+nt)
                A(f"v_cvt_pk_bf16_f32 v{p+2*u}, v{d}, v{d+1}")
                A(f"v_cvt_pk_bf16_f32 v{p+2*u+1}, v{d+2}, v{d+3}")
    for st in range(4):
        p = 24 + 4 * st; kv.insert(st, (p, st >> 1, (st & 1) * 1024))
        for nt in range(2):
            d = acc(st, 2+nt)
            A(f"v_cvt_pk_bf16_f32 v{p+2*nt}, v{d}, v{d+1}")
            A(f"v_cvt_pk_bf16_f32 v{p+2*nt+1}, v{d+2}, v{d+3}")
    for p, mt, off in kv[4:]:
        A(f"v_permlane16_swap_b32 v{p}, v{p+2}")
        A(f"v_permlane16_swap_b32 v{p+1}, v{p+3}")
    A("s_cmp_gt_u32 s19, 1")
    A("s_cbranch_scc1 P1_park")
    for p, mt, off in kv: A(f"buffer_store_dwordx4 {vr(p,4)}, v1, s[12:15], s{66+mt} offen offset:{off}{SC}")
    A("s_branch P1_q")
    A.label("P1_park")
    for p, mt, off in kv: A(f"ds_write_b128 v6, {vr(p,4)} offset:{mt*4096+off}")
    A.label("P1_parked")
    if opts.get("eprio", 1): A("s_setprio 0")
    A("s_waitcnt vmcnt(0) lgkmcnt(0)")
    A("s_barrier")
    A.c("---- phase 2, waves 0-7: attention, 64 queries x half of the keys per wave ----")
    A.label("P2_compute")
    ST(3)

    NS = 6; STG = 16384; RING = NS * STG; BREG = RING; FLAGS = 40960; XCH = 0; HX = LDS_BYTES - 16384; OBS = BREG + 16384; STASH = 5 * STG
    IDX = 4; ONES = 8; KF = 12; VF = 20; MX = [28, 29]; SA = 32; SB = 48
    Q = [64, 72]; L = [80, 84]; O = [96, 112]; NEGM = [128, 144]
    QB = 128; KBP = 136; KBC = 144; VBC = 152; VBP = 12; PK = 16; OB = O[1]; LB = L[1]
    def S32(d, a, b): return f"v_smfmac_f32_32x32x32_bf16 {vr(d,16)}, {vr(a,4)}, {vr(b,8)}, v{IDX}"
    def S16(d, a, b): return f"v_smfmac_f32_16x16x64_bf16 {vr(d,4)}, {vr(a,4)}, {vr(b,8)}, v{IDX}"
    def E(r): return f"v_exp_f32 v{r}, v{r}"
    def key_of(r, hb): return 8 * (r >> 2) + 4 * hb + (r & 3)
    def bmask(r, prev):
        m = 0
        for l in range(64):
            d = (l & 31) - key_of(r, l >> 5) + (32 if prev else 0)
            if 0 <= d <= 14 and d % 2 == 0: m |= 1 << l
        return m
    def rowmax(regs, dst, tmp):
        regs = list(regs)
        A(f"v_max3_f32 v{dst}, v{regs[0]}, v{regs[1]}, v{regs[2]}")
        i = 3
        while i + 1 < len(regs):
            A(f"v_max3_f32 v{dst}, v{regs[i]}, v{regs[i+1]}, v{dst}"); i += 2
        if i < len(regs): A(f"v_max_f32 v{dst}, v{regs[i]}, v{dst}")
        A(f"v_mov_b32 v{tmp}, v{dst}")
        A("s_nop 1")
        A(f"v_permlane32_swap_b32 v{dst}, v{tmp}")
        A("s_nop 1")
        A(f"v_max_f32 v{dst}, v{dst}, v{tmp}")
    def read_flags(r):
        A(f"v_mov_b32 v7, {FLAGS}")
        A(f"ds_read_b128 {vr(r,4)}, v7")
        A(f"ds_read_b128 {vr(r+4,4)}, v7 offset:16")
    def or_flags(r, sdst):
        A(f"v_or3_b32 v{r}, v{r}, v{r+4}, v{r+5}")
        A(f"v_or3_b32 v{r}, v{r}, v{r+6}, v{r+7}")
        A(f"v_or3_b32 v{r}, v{r}, v{r+1}, v{r+2}")
        A(f"v_or_b32 v{r}, v{r}, v{r+3}")
        A("s_nop 0")
        A(f"v_readfirstlane_b32 s{sdst}, v{r}")
    def p2_ids():
        if QL:
            A("s_lshl_b32 s36, s18, 1")
            A("s_add_u32 s16, s16, s36")
        else:
            A("s_and_b32 s16, s35, 3")
            A("s_lshl_b32 s36, s34, 2")
            A("s_add_u32 s16, s16, s36")
            A("s_lshr_b32 s17, s35, 2")
        A("s_lshl_b32 s36, s16, 18")
        A(f"s_add_u32 s36, s36, {WS_KV}")
        A(f"s_add_u32 s4, s{P_WS}, s36")
        A(f"s_addc_u32 s5, s{P_WS+1}, 0")
        A("s_mov_b32 s6, 0x40000")
        A("s_mov_b32 s24, 0")
    p2_ids()
    A("v_lshrrev_b32 v6, 4, v1")
    A("s_lshr_b32 s18, s19, 2")
    A("s_and_b32 s20, s19, 3")
    A("s_lshl_b32 s20, s20, 1")
    A("s_add_u32 s20, s20, s18")
    A("s_lshl_b32 s26, s17, 3")
    A("s_add_u32 s26, s26, s20")
    A("s_lshl_b32 s39, s18, 13")
    A("v_and_b32 v31, 15, v6")
    A("v_lshlrev_b32 v31, 4, v31")
    A("v_and_b32 v5, 16, v6")
    A("v_lshl_add_u32 v31, v5, 6, v31")
    A("v_and_b32 v5, 32, v6")
    A("v_lshl_add_u32 v31, v5, 4, v31")
    A("s_lshl_b32 s31, s26, 5")
    A("s_add_u32 s31, s31, s16")
    A("s_lshl_b32 s31, s31, 11")
    A(f"s_add_u32 s31, s31, {WS_O}")
    A(f"v_mov_b32 v{IDX}, 0xdddd")
    A("v_and_b32 v5, 4, v6")
    A("v_cmp_eq_u32 vcc, 0, v5")
    A("v_mov_b32 v7, 0x3f803f80")
    A("v_add_u32 v30, s39, v31")
    A(f"v_cndmask_b32 v{ONES}, 0, v7, vcc")
    A(f"v_cndmask_b32 v{ONES+1}, 0, v7, vcc")
    A(f"v_sub_u32 v{ONES+2}, v7, v{ONES}")
    A(f"v_mov_b32 v{ONES+3}, v{ONES+2}")
    A("s_lshl_b32 s27, s20, 11")
    A(f"s_add_u32 s27, s27, {BREG}")
    A("v_add_u32 v5, s27, v31")
    A("v_xor_b32 v6, 2048, v5")
    A.label("P2_restart")
    for x in range(2):
        for i in range(0, 16, 2): A(f"v_mov_b64 v[{O[x]+i}:{O[x]+i+1}], 0")
        for i in range(0, 4, 2): A(f"v_mov_b64 v[{L[x]+i}:{L[x]+i+1}], 0")
    A("v_mov_b32 v2, v30")
    A(f"s_mov_b32 s25, {STG}")
    A(f"v_add_u32 v3, {STG}, v30")
    A("s_mov_b32 s23, 16")
    A("s_barrier")
    ST(4)
    SX = [SA, SB]
    A("s_cmp_lg_u32 s24, 0")
    A("s_cbranch_scc1 P2_main")
    A(f"ds_read_b128 {vr(VF,4)}, v31 offset:0")
    for x in range(2): A(f"ds_read_b128 {vr(Q[x],4)}, v{5+x}")
    A(f"ds_read_b128 {vr(VF+4,4)}, v31 offset:256")
    for x in range(2): A(f"ds_read_b128 {vr(Q[x]+4,4)}, v{5+x} offset:256")
    A("s_waitcnt lgkmcnt(3)")
    for x in range(2): A(M32(SX[x], VF, Q[x], None))
    A("s_waitcnt lgkmcnt(0)")
    for x in range(2): A(M32(SX[x], VF+4, Q[x]+4, SX[x]))
    A("s_nop 7")
    A("s_nop 2")
    for x in range(2): rowmax(range(SX[x], SX[x]+16), MX[x], 6)
    A.c("---- negated max into the C operands, software pipeline prologue ----")
    A.label("P2_main")
    A(f"ds_read_b128 {vr(KF,4)}, v2 offset:0")
    A(f"ds_read_b128 {vr(KF+4,4)}, v2 offset:256")
    A(f"ds_read_b128 {vr(VF,4)}, v2 offset:2048")
    def negm(x):
        A(f"v_sub_f32 v{NEGM[x]}, 0, v{MX[x]}")
        A(f"v_sub_f32 v{NEGM[x]+1}, 0, v{MX[x]}")
        for i in range(2, 16, 2): A(f"v_mov_b64 v[{NEGM[x]+i}:{NEGM[x]+i+1}], v[{NEGM[x]}:{NEGM[x]+1}]")
    negm(0)
    for i in (0, 2): A(f"v_mov_b64 v[{VF+4+i}:{VF+5+i}], 0")
    A("s_waitcnt lgkmcnt(1)")
    A(M32(SA, KF, Q[0], NEGM[0]))
    A(M32(SA, KF+4, Q[0]+4, SA))
    negm(1)
    for i in range(0, 8, 2): A(f"v_mov_b64 v[{SB+8+i}:{SB+9+i}], 0")
    A(E(SA))
    A("s_nop 0")
    A(".p2align 6")
    A.label("P2_loop")
    def rd(dst, tile, off):
        a, t = ("v2", tile) if tile < 2 else ("v3", tile - 2)
        return f"ds_read_b128 {vr(dst,4)}, {a} offset:{t*4096+off}"
    if opts.get("sched", 1) == 0:
        for u in range(4):
            cur, nxt = (SA, SB) if u % 2 == 0 else (SB, SA)
            i = u // 2; xc = u % 2; xp = xn = xc ^ 1
            if xc == 0:
                w_pv1 = w_qka = w_qkb = None; w_pv0 = 3
                r_pv1 = [rd(VF+4, i, 2304)]; r_qka = [rd(KF, i+1, 0)]; r_qkb = [rd(KF+4, i+1, 256)]; r_pv0 = []
            else:
                w_pv1, w_qka, w_qkb, w_pv0 = 2, 1, 0, None
                r_pv1 = r_qka = r_qkb = []; r_pv0 = [rd(VF, i+1, 2048)]
            bar = (u == 1)
            last = (u == 3)
            def W(n):
                if n is not None: A(f"s_waitcnt lgkmcnt({n})")
            if w_pv1 is None: A("s_nop 0")
            W(w_pv1)
            A(S32(O[xp], VF+4, nxt+8))
            for l in r_pv1: A(l)
            A(E(cur+1)); A(E(cur+2)); A(E(cur+3))
            A(S16(L[xp], ONES, nxt+8))
            A(E(cur+4)); A(E(cur+5))
            W(w_qka)
            A(M32(nxt, KF, Q[xn], NEGM[xn]))
            for l in r_qka: A(l)
            A(E(cur+6)); A(E(cur+7)); A(E(cur+8))
            W(w_qkb)
            A(M32(nxt, KF+4, Q[xn]+4, nxt))
            if bar: A("s_barrier")
            for l in r_qkb: A(l)
            A(E(cur+9)); A(E(cur+10)); A(E(cur+11))
            W(w_pv0)
            A(S32(O[xc], VF, cur))
            for l in r_pv0: A(l)
            A(E(cur+12))
            if last: A(f"s_add_u32 s25, s25, {STG}")
            A(E(cur+13))
            if last: A(f"s_cmp_eq_u32 s25, {RING}")
            A(E(cur+14))
            if last: A("s_cselect_b32 s25, 0, s25")
            A(S16(L[xc], ONES, cur))
            if last:
                A("s_sub_u32 s23, s23, 1")
                A("v_mov_b32 v2, v3")
                A("v_add_u32 v3, s25, v30")
                A("s_cmp_lg_u32 s23, 0")
            else: A("s_nop 0")
            A(E(cur+15)); A(E(nxt))
            if last: A("s_cbranch_scc1 P2_loop")
    else:
        barslot = (1, 0)
        for u in range(4):
            cur, nxt = (SA, SB) if u % 2 == 0 else (SB, SA)
            i = u // 2; xc = u % 2; xp = xn = xc ^ 1
            last = (u == 3)
            e = [E(cur+k) for k in range(1, 16)] + [E(nxt)]
            PV1 = S32(O[xp], VF+4, nxt+8); SM1 = S16(L[xp], ONES, nxt+8)
            QA = M32(nxt, KF, Q[xn], NEGM[xn]); QB_ = M32(nxt, KF+4, Q[xn]+4, nxt)
            PV0 = S32(O[xc], VF, cur); SM0 = S16(L[xc], ONES, cur)
            def F(k, dflt="s_nop 0"):
                if (u, k) == tuple(barslot): return ["s_barrier"]
                if (u, k) == (1, 2): return ["s_waitcnt vmcnt(0)"]
                return [dflt]
            W = lambda n: f"s_waitcnt lgkmcnt({n})"
            if xc == 0:
                seq = (F(2) if u else []) + [SM1] + e[0:2] + [PV1, rd(VF+4, i, 2304)] + e[2:5] + [QA, rd(KF, i+1, 0)] + e[5:8] + [QB_, rd(KF+4, i+1, 256)] + e[8:11] + [SM0] + e[11:13] + [W(3), PV0] + F(1) + e[13:16]
            elif not last:
                seq = F(2) + [SM1] + e[0:2] + [W(2), PV1] + e[2:5] + [W(0), QA] + e[5:8] + [QB_] + F(0) + e[8:11] + [SM0] + e[11:13] + [PV0, rd(VF, i+1, 2048)] + F(1) + e[13:16]
            else:
                seq = [f"s_add_u32 s25, s25, {STG}", SM1] + e[0:2] + [W(2), PV1, f"s_cmp_eq_u32 s25, {RING}"] + e[2:5] + [W(0), QA, "s_cselect_b32 s25, 0, s25"] + e[5:8] + \
                      [QB_, "s_sub_u32 s23, s23, 1"] + e[8:11] + [SM0, "s_cmp_lg_u32 s23, 0"] + e[11:13] + [PV0, rd(VF, i+1, 2048), "v_mov_b32 v2, v3", "v_add_u32 v3, s25, v30"] + e[13:16] + ["s_cbranch_scc1 P2_loop"]
            for l in seq: A(l)
    A("s_waitcnt lgkmcnt(0)")
    A(S32(O[1], VF+4, SB+8))
    A(S16(L[1], ONES, SB+8))
    ST(5)
    A(f"s_mov_b32 s44, {f32bits(2.0**56)}")
    A("s_mul_i32 s36, s19, 5120")
    A("v_add_u32 v7, s36, v1")
    A(f"v_mul_f32 v5, s44, v{L[0]}")
    for i in range(0, 16, 2): A(f"v_maximum3_f32 v5, |v{O[0]+i}|, |v{O[0]+i+1}|, v5")
    A(f"s_mov_b32 s45, {f32bits(2.0**120)}")
    for i in range(4): A(f"ds_write_b128 v7, {vr(O[1]+4*i,4)} offset:{XCH+1024*i}")
    A(f"ds_write_b32 v7, v{L[1]} offset:{XCH+4096}")
    A(f"v_mul_f32 v6, s44, v{L[1]}")
    for i in range(0, 16, 2): A(f"v_maximum3_f32 v6, |v{O[1]+i}|, |v{O[1]+i+1}|, v6")
    A("v_maximum3_f32 v5, v5, v6, v6")
    A("s_lshl_b32 s36, s19, 2")
    A(f"s_add_u32 s36, s36, {FLAGS}")
    A("v_cmp_ngt_f32 vcc, s45, v5")
    A("v_mov_b32 v7, s36")
    A("s_xor_b32 s36, s19, 4")
    A("s_mul_i32 s36, s36, 5120")
    A("v_add_u32 v3, s36, v1")
    if opts.get("force_fb"): A("s_mov_b64 vcc, -1")
    A("s_cmp_lg_u64 vcc, 0")
    A("s_cselect_b32 s44, 1, 0")
    A("v_mov_b32 v6, s44")
    A("ds_write_b32 v7, v6")
    A("s_waitcnt lgkmcnt(0)")
    A("s_barrier")
    A(f"ds_read_b32 v5, v3 offset:{XCH+4096}")
    for i in range(4): A(f"ds_read_b128 {vr(SA+4*i,4)}, v3 offset:{XCH+1024*i}")
    read_flags(SB)
    A("s_waitcnt lgkmcnt(2)")
    A(f"v_add_f32 v6, v5, v{L[0]}")
    A("v_rcp_f32 v6, v6")
    for i in range(0, 16, 2): A(f"v_pk_add_f32 v[{O[0]+i}:{O[0]+i+1}], v[{SA+i}:{SA+i+1}], v[{O[0]+i}:{O[0]+i+1}]")
    for i in range(0, 16, 2): A(f"v_pk_mul_f32 v[{O[0]+i}:{O[0]+i+1}], v[{O[0]+i}:{O[0]+i+1}], v[6:7] op_sel_hi:[1,0]")
    for i in range(8): A(f"v_cvt_pk_bf16_f32 v{SA+i}, v{O[0]+2*i}, v{O[0]+2*i+1}")
    for m in range(2):
        A(f"buffer_store_dwordx4 {vr(SA+4*m,4)}, v1, s[12:15], s31 offen offset:{1024*m}{SC}")
    A("s_cmp_lg_u32 s24, 0")
    A("s_cbranch_scc1 P2_fin")
    A("s_waitcnt lgkmcnt(0)")
    or_flags(SB, 44)
    A("s_nop 3")
    A("s_cmp_eq_u32 s44, 0")
    A("s_cbranch_scc0 P2_fallback")
    A.c("---- phase 2 done; phase 3: waves 0-3 compute 64 x 64 each ----")
    A.label("P2_fin")
    ST(6)
    A("s_waitcnt vmcnt(0)")
    A("s_barrier")
    ST(7)
    A("s_cmp_gt_u32 s19, 3")
    A("s_cbranch_scc1 L_done")

    NO = opts.get("no", 4); NW = 10 - NO; S3 = 16384; W3 = NO * S3
    def p3_ids():
        if opts.get("mix3", 0):
            A("s_lshr_b32 s16, s35, 4")
            if opts["mix3"] == 2: A("s_xor_b32 s16, s16, 1")
            A("s_and_b32 s17, s34, 3")
            A("s_lshl_b32 s17, s17, 2")
            A("s_and_b32 s36, s35, 3")
            A("s_add_u32 s17, s17, s36")
            A("s_and_b32 s18, s34, 4")
            A("s_lshr_b32 s36, s35, 2")
            A("s_and_b32 s36, s36, 3")
            A("s_add_u32 s18, s18, s36")
            return
        A("s_lshr_b32 s16, s34, 2")
        A("s_and_b32 s17, s34, 1")
        A("s_lshl_b32 s17, s17, 3")
        A("s_and_b32 s36, s35, 7")
        A("s_add_u32 s17, s17, s36")
        A("s_lshr_b32 s18, s34, 1")
        A("s_and_b32 s18, s18, 1")
        A("s_lshl_b32 s18, s18, 2")
        A("s_lshr_b32 s36, s35, 3")
        A("s_add_u32 s18, s18, s36")
    p3_ids()
    A("v_lshrrev_b32 v1, 4, v1")
    A("s_lshr_b32 s36, s19, 1")
    A("s_and_b32 s37, s19, 1")
    A("v_lshrrev_b32 v18, 4, v1")
    A("v_and_b32 v17, 15, v1")
    A("v_lshlrev_b32 v2, 4, v17")
    A("v_lshl_add_u32 v2, v18, 9, v2")
    A("s_lshl_b32 s38, s36, 13")
    A("v_add_u32 v2, s38, v2")
    A("v_lshrrev_b32 v19, 2, v1")
    A("v_and_b32 v19, 7, v19")
    A("v_lshrrev_b32 v20, 5, v1")
    A("v_lshl_add_u32 v20, v20, 4, v19")
    A("v_lshlrev_b32 v20, 8, v20")
    A("s_lshl_b32 s38, s37, 2")
    A("v_xor_b32 v21, s38, v19")
    A("v_lshl_add_u32 v20, v21, 5, v20")
    A("v_and_b32 v21, 3, v1")
    A("v_lshl_add_u32 v3, v21, 3, v20")
    for a in range(1, 4): A(f"v_xor_b32 v{3+a}, {32*a}, v3")
    ACC3 = 88; FS = [24, 56]; AO = 8; AW = 9
    for i in range(0, 64, 2): A(f"v_mov_b64 v[{ACC3+i}:{ACC3+i+1}], 0")
    for i in range(0, 32, 2): A(f"v_mov_b64 v[{FS[1]+i}:{FS[1]+i+1}], 0")
    A("v_lshlrev_b32 v22, 12, v17")
    A("v_and_b32 v21, 1, v18")
    A("v_lshl_add_u32 v22, v21, 5, v22")
    A("v_lshrrev_b32 v21, 1, v18")
    A("v_lshl_add_u32 v22, v21, 4, v22")
    if opts.get("fl", 1):
        A("v_and_b32 v22, 0x7fff, v22")
        A("v_and_b32 v21, 8, v1")
        A("v_lshl_add_u32 v22, v21, 3, v22")
        A("v_add_u32 v23, 32768, v22")
    A("s_lshl_b32 s38, s17, 7")
    A("s_lshl_b32 s36, s36, 6")
    A("s_add_u32 s36, s36, s38")
    A("s_lshl_b32 s36, s36, 12")
    A("s_lshl_b32 s38, s16, 11")
    A("s_add_u32 s36, s36, s38")
    A("s_lshl_b32 s38, s18, 8")
    A("s_add_u32 s36, s36, s38")
    A("s_lshl_b32 s37, s37, 7")
    A("s_add_u32 s40, s36, s37")
    for st in range(1, 4): A(f"s_add_u32 s{40+st}, s40, {st*16*4096}")
    A(f"s_mov_b32 s8, s{P_OUT}")
    A(f"s_mov_b32 s9, s{P_OUT+1}")
    A(f"s_mov_b32 s10, {2048*4096}")
    def of(s, st): return FS[s] + 4*st
    def wf3(s, a): return FS[s] + 16 + 4*a
    def acc3(st, a): return ACC3 + (st*4+a)*4
    def rd_items(hh, s):
        L_ = [('rd', f"ds_read_b128 {vr(of(s,0),4)}, v{AO} offset:{hh*2048}", f"o{s}_0")]
        for i in range(4):
            for half in range(2):
                L_.append(('rd', f"ds_read_b64_tr_b16 {vr(wf3(s,i)+2*half,2)}, v{AW+i} offset:{hh*8192+half*2048}", f"w{s}_{i}"))
        for i in range(1, 4):
            L_.append(('rd', f"ds_read_b128 {vr(of(s,i),4)}, v{AO} offset:{(i>>1)*4096+hh*2048+(i&1)*256}", f"o{s}_{i}"))
        return L_
    def mf_items(s):
        L_ = []
        for st in range(4):
            for a in (range(4) if st % 2 == 0 else range(3, -1, -1)):
                needs = [f"o{s}_{st}", f"w{s}_{a}"]
                if st == 0 and a == 0: needs += [f"w{s}_{i}" for i in range(4)] + [f"o{s}_{i}" for i in range(4)]
                L_.append(('op', M16(acc3(st, a), wf3(s, a), of(s, st), acc3(st, a)), needs))
        return L_
    upd = [f"s_add_u32 s23, s23, {S3}", f"s_cmp_eq_u32 s23, {W3}", "s_cselect_b32 s23, 0, s23", f"v_add_u32 v{AO}, s23, v2",
           f"s_add_u32 s22, s22, {S3}", f"s_cmp_eq_u32 s22, {LDS_BYTES}", f"s_cselect_b32 s22, {W3}, s22", "s_sub_u32 s38, s38, 1"] + \
          [f"v_add_u32 v{AW+a}, s22, v{3+a}" for a in range(4)] + ["s_cmp_lg_u32 s38, 0"]
    upd = [('raw', u) for u in upd]
    items = [('all', "s_barrier")] + interleave(mf_items(1), rd_items(0, 0), [2] * 16)
    items += interleave(mf_items(0), rd_items(1, 1) + upd, [2] * 16)
    body, _ = schedule_waits(items, passes=2)
    A("s_mov_b32 s23, 0")
    A(f"s_mov_b32 s22, {W3 + 2*S3}")
    A("s_mov_b32 s38, 16")
    A(f"v_mov_b32 v{AO}, v2")
    for a in range(4): A(f"v_add_u32 v{AW+a}, s22, v{3+a}")
    if stamp:
        A("s_barrier"); ST(8); A("s_branch P3_first")
    A(".p2align 6")
    A.label("P3_loop")
    for i, l in enumerate(body):
        A(l)
        if l == "s_barrier" and stamp: A.label("P3_first")
    A("s_cbranch_scc1 P3_loop")
    A("s_waitcnt lgkmcnt(0)")
    fin = [it[1] for it in mf_items(1)]
    if not opts.get("fl", 1):
        for l in fin: A(l)
    ST(9)
    if opts.get("fl", 1):
        def epi(st):
            E_ = []
            p0 = 24 + 8 * st; p1 = p0 + 4; t = 8 + 4 * (st & 1)
            for pr in range(2):
                for u in range(2):
                    d = acc3(st, 2*pr+u)
                    E_.append(f"v_cvt_pk_bf16_f32 v{p0+4*pr+2*u}, v{d}, v{d+1}")
                    E_.append(f"v_cvt_pk_bf16_f32 v{p0+4*pr+2*u+1}, v{d+2}, v{d+3}")
            for p in (p0, p1):
                E_.append(f"v_permlane16_swap_b32 v{p}, v{p+2}")
                E_.append(f"v_permlane16_swap_b32 v{p+1}, v{p+3}")
            E_.append(f"v_mov_b64 {vr(t,2)}, {vr(p0,2)}")
            E_.append(f"v_mov_b64 {vr(t+2,2)}, {vr(p0+2,2)}")
            for r in range(4): E_.append(f"v_mov_b32_dpp v{p0+r}, v{p1+r} row_ror:8 row_mask:0xf bank_mask:0xc")
            E_.append(f"buffer_store_dwordx4 {vr(p0,4)}, v22, s[8:11], s{40+st} offen{SC}")
            for r in range(4): E_.append(f"v_mov_b32_dpp v{p1+r}, v{t+r} row_ror:8 row_mask:0xf bank_mask:0x3")
            E_.append(f"buffer_store_dwordx4 {vr(p1,4)}, v23, s[8:11], s{40+st} offen{SC}")
            return E_
        lead = opts.get("lead", 9)
        for l in fin[:lead]: A(l)
        allE = epi(0) + epi(1) + epi(2) + epi(3)
        for l in interleave(fin[lead:], allE, [2] * 16): A(l)
    else:
        n = 0
        for st in range(4):
            for pr in range(2):
                p = 24 + n * 4; n += 1
                for u in range(2):
                    d = acc3(st, 2*pr+u)
                    A(f"v_cvt_pk_bf16_f32 v{p+2*u}, v{d}, v{d+1}")
                    A(f"v_cvt_pk_bf16_f32 v{p+2*u+1}, v{d+2}, v{d+3}")
            A("s_nop 1")
            for pr in range(2):
                p = 24 + (n - 2 + pr) * 4
                A(f"v_permlane16_swap_b32 v{p}, v{p+2}")
                A(f"v_permlane16_swap_b32 v{p+1}, v{p+3}")
                if opts.get("fl"): A(f"buffer_store_dwordx4 {vr(p,4)}, v{22+pr}, s[8:11], s{40+st} offen{opts.get('flmod', SC)}")
                else: A(f"buffer_store_dwordx4 {vr(p,4)}, v22, s[8:11], s{40+st} offen offset:{pr*64}{opts.get('flmod', SC)}")
    if opts.get("padto"):
        A("s_waitcnt vmcnt(0)")
        A(f"s_mov_b32 s37, {opts['padto']}")
        if opts.get("padmin"):
            A("buffer_load_dword v3, off, s[72:75], 0 offset:32 sc1")
            A("s_waitcnt vmcnt(0)")
            A("v_readfirstlane_b32 s98, v3")
            A("s_nop 3")
            A("s_not_b32 s98, s98")
        if opts.get("probe") is not None:
            ST(10)
            A(f"s_sub_u32 s37, s{50+opts['probe']}, s98")
            A(f"s_add_u32 s37, s37, {opts['padto']}")
        A.label("L_pad")
        A("s_memrealtime s[100:101]")
        A("s_waitcnt lgkmcnt(0)")
        A("s_sub_u32 s36, s100, s98")
        A("s_cmp_lt_u32 s36, s37")
        A("s_cbranch_scc1 L_pad")
        if opts.get("probe") is not None: A("s_endpgm")
    if stamp:
        A("s_waitcnt vmcnt(0)")
        ST(10)
        if opts.get("dbgout") is not None:
            A(f"s_cmp_lg_u32 s2, {opts['dbgout']}")
            A("s_cbranch_scc1 L_nodbg")
            A("s_cmp_lg_u32 s19, 0")
            A("s_cbranch_scc1 L_nodbg")
            for i in range(1, 11):
                A(f"s_sub_u32 s36, s{50+i}, s50")
                A("v_mov_b32 v3, s36")
                A(f"buffer_store_dword v3, off, s[72:75], 0 offset:{4*i}")
            A.label("L_nodbg")
        A("s_lshl_b32 s36, s2, 2")
        A("s_add_u32 s36, s36, s19")
        A("s_lshl_b32 s36, s36, 6")
        A(f"s_add_u32 s36, s36, {64<<20}")
        A("s_mov_b32 s14, 0x8000000")
        for i in range(12):
            A(f"v_mov_b32 v3, s{50+i}")
            A(f"buffer_store_dword v3, off, s[12:15], s36 offset:{4*i}")
    A("s_endpgm")
    def ring_loader(tag, nslots, base, issue, pre):
        if pre is not None:
            A(f"s_mov_b32 s23, {base}")
            A("s_mov_b32 s38, 0")
        A.label(f"{tag}_go2")
        issue()
        A("s_add_u32 s38, s38, 1")
        A(f"s_add_u32 s23, s23, {S3}")
        A(f"s_cmp_eq_u32 s23, {base + nslots*S3}")
        A(f"s_cselect_b32 s23, {base}, s23")
        if pre is None:
            A(f"s_cmp_le_u32 s38, {nslots}")
            A("s_cbranch_scc1 P2_wback")
            A.label(f"{tag}_l1")
        else:
            A(f"s_cmp_eq_u32 s38, {pre}")
            A(f"s_cbranch_scc0 {tag}_l1")
            A(f"s_waitcnt vmcnt({min(63, 16*(pre-1))})")
            A("s_barrier")
            A.label(f"{tag}_l1")
            A(f"s_cmp_lt_u32 s38, {nslots}")
            A(f"s_cbranch_scc1 {tag}_go2")
        A(f"s_waitcnt vmcnt({min(63, 16*(nslots-2))})")
        A("s_barrier")
        A("s_cmp_lt_u32 s38, 16")
        A(f"s_cbranch_scc1 {tag}_go2")
        for j in range(nslots - 2):
            A(f"s_waitcnt vmcnt({min(63, 16*(nslots-3-j))})")
            A("s_barrier")
        if stamp and opts.get("probe") is None:
            A("s_lshl_b32 s36, s2, 1")
            A("s_and_b32 s37, s19, 1")
            A("s_add_u32 s36, s36, s37")
            A("s_lshl_b32 s36, s36, 6")
            A(f"s_add_u32 s36, s36, {65<<20}")
            A("s_mov_b32 s14, 0x8000000")
            for i in range(3):
                A(f"v_mov_b32 v3, s{50+i}")
                A(f"buffer_store_dword v3, off, s[12:15], s36 offset:{4*i}")
        A("s_endpgm")
    A.c("---- phase 3, wave 8: publish O, wait for all heads, stream O ----")
    A.label("P3_oload")
    p3_ids()
    A("s_lshl_b32 s36, s16, 22")
    A("s_lshl_b32 s37, s17, 18")
    A("s_add_u32 s36, s36, s37")
    A(f"s_add_u32 s36, s36, {WS_O}")
    A(f"s_add_u32 s4, s{P_WS}, s36")
    A(f"s_addc_u32 s5, s{P_WS+1}, 0")
    A("s_mov_b32 s6, 0x40000")
    r3 = opts.get("rot3", 1)
    if r3 == 1: A("s_lshl_b32 s21, s34, 13")
    elif r3 == 0: A("s_mov_b32 s21, 0")
    else:
        A("s_add_u32 s21, s17, s18"); A("s_and_b32 s21, s21, 1"); A(f"s_mul_i32 s21, s21, {4096 * r3}")
    A("s_barrier")
    signal(40, 16, 2)
    poll("P3_o", 128, 32, 2)
    def o_issue():
        for t in range(4):
            A(f"s_add_u32 m0, s23, {t*4096}")
            A(f"s_add_u32 s20, s21, {t*65536}")
            if not opts.get("p3noload"):
                for i in range(4): A(f"buffer_load_dwordx4 v1, s[4:7], s20 offen offset:{1024*i}{LD} lds")
        A("s_add_u32 s21, s21, 4096")
        A("s_and_b32 s21, s21, 0xffff")
    ring_loader("P3_o", NO, 0, o_issue, opts.get("opre", 2))


    A.c("---- phase 1 epilogue, branch B: windowed attention from the accumulators ----")
    A.label("P1_bepi")
    def QP(st): return 8 + 4*st
    def KP(st): return 28 + 4*st
    def VW(nt, st): return 46 + 10*nt + 2*st
    MC, MP, ON = 64, 68, 2
    def SS(st): return 72 + 8*st
    def PB(st): return 104 + 4*st
    def OT(st, nt): return 120 + 8*st + 4*nt
    def LR(st): return 152 + 4*st
    def cv(d, a): A(f"v_cvt_pk_bf16_f32 v{d}, v{a}, v{a+1}")
    A("s_lshl_b32 s36, s19, 11")
    A(f"s_add_u32 s36, s36, {HX}")
    A("v_add_u32 v6, s36, v1")
    for st in (3, 0, 1, 2):
        for nt in range(2):
            cv(KP(st)+2*nt, acc(st, 2+nt)); cv(KP(st)+2*nt+1, acc(st, 2+nt)+2)
            cv(VW(nt, st), acc(st, 4+nt)); cv(VW(nt, st)+1, acc(st, 4+nt)+2)
        if st == 3:
            A(f"ds_write_b128 v6, {vr(KP(3),4)}")
            A(f"ds_write_b64 v6, {vr(VW(0,3),2)} offset:1024")
            A(f"ds_write_b64 v6, {vr(VW(1,3),2)} offset:1032")
            A("s_lshl_b32 s36, s18, 3")
            A("s_add_u32 s36, s36, s17")
            A("s_lshl_b32 s36, s36, 1")
            A("s_and_b32 s37, s19, 1")
            A("s_add_u32 s36, s36, s37")
            A("s_lshl_b32 s36, s36, 11")
            A(f"s_add_u32 s36, s36, {WS_H}")
            A("s_cmp_lt_u32 s19, 6")
            A("s_cbranch_scc1 P1_b1")
            A(f"buffer_store_dwordx4 {vr(KP(3),4)}, v1, s[12:15], s36 offen{SC}")
            A(f"buffer_store_dwordx2 {vr(VW(0,3),2)}, v1, s[12:15], s36 offen offset:1024{SC}")
            A(f"buffer_store_dwordx2 {vr(VW(1,3),2)}, v1, s[12:15], s36 offen offset:1032{SC}")
            A.label("P1_b1")
    A("s_waitcnt lgkmcnt(0)")
    A("s_barrier")
    A("v_subrev_u32 v6, 4096, v6")
    A(f"ds_read_b128 {vr(KP(-1),4)}, v6")
    A(f"ds_read_b64 {vr(VW(0,-1),2)}, v6 offset:1024")
    A(f"ds_read_b64 {vr(VW(1,-1),2)}, v6 offset:1032")
    for st in range(4):
        for nt in range(2):
            d = acc(st, nt)
            for r in (0, 2): A(f"v_pk_mul_f32 v[{d+r}:{d+r+1}], v[{d+r}:{d+r+1}], s[42:43]")
            cv(QP(st)+2*nt, d); cv(QP(st)+2*nt+1, d+2)
    def bconsts():
        A("v_mov_b32 v7, 0xff800000")
        for prev in range(2):
            for r in range(4):
                m = 0
                for l in range(64):
                    dl = (l & 15) - (4 * (l >> 4) + r) + 16 * prev
                    if 0 <= dl <= 14 and dl % 2 == 0: m |= 1 << l
                A(f"s_mov_b32 s40, {m & 0xffffffff}")
                A(f"s_mov_b32 s41, {m >> 32}")
                A(f"v_cndmask_b32 v{(MP if prev else MC)+r}, v7, 0, s[40:41]")
        for r in range(4): A(f"v_mov_b32 v{ON+r}, 0x3f803f80")
        A("v_and_b32 v0, 0xf0, v1")
        A("v_and_b32 v6, 0x300, v1")
        A("v_lshl_add_u32 v0, v6, 1, v0")
    bconsts()
    def tile(st):
        return dict(q=QP(st), kp=KP(st-1), kc=KP(st), v=[VW(0, st-1), VW(1, st-1)], s=SS(st), p=PB(st), o=OT(st, 0), l=LR(st),
                    so=f"s{38+(st>>1)}", imm=(st&1)*256)
    def btiles(T):
        k = len(T)
        def pad(n):
            if n - (k - 1) > 0: A(f"s_nop {n - (k - 1) - 1}")
        for t in T:
            A(M16(t['s'], t['kp'], t['q'], t.get('mp', MP)))
            A(M16(t['s']+4, t['kc'], t['q'], MC))
        A("s_nop 7")
        for i in range(4):
            for t in T:
                b_ = t['s']; m = t['l']
                if i == 0: A(f"v_max3_f32 v{m}, v{b_}, v{b_+1}, v{b_+2}")
                elif i < 3: A(f"v_max3_f32 v{m}, v{b_+2*i+1}, v{b_+2*i+2}, v{m}")
                else: A(f"v_max_f32 v{m}, v{b_+7}, v{m}")
        for sw in ("v_permlane32_swap_b32", "v_permlane16_swap_b32"):
            for t in T: A(f"v_mov_b32 v{t['l']+1}, v{t['l']}")
            pad(2)
            for t in T: A(f"{sw} v{t['l']}, v{t['l']+1}")
            pad(2)
            for t in T: A(f"v_max_f32 v{t['l']}, v{t['l']}, v{t['l']+1}")
        for t in T:
            for r in range(0, 8, 2):
                b_ = t['s'] + r
                A(f"v_pk_add_f32 v[{b_}:{b_+1}], v[{b_}:{b_+1}], v[{t['l']}:{t['l']+1}] op_sel_hi:[1,0] neg_lo:[0,1] neg_hi:[0,1]")
        for t in T:
            for r in range(8): A(f"v_exp_f32 v{t['s']+r}, v{t['s']+r}")
        A("s_nop 0")
        for t in T:
            for r in range(4): cv(t['p']+r, t['s']+2*r)
        A("s_nop 1")
        for t in T:
            A(M16(t['l'], ON, t['p'], None))
            for nt in range(2): A(M16(t['o']+4*nt, t['v'][nt], t['p'], None))
        A("s_nop 7")
        for t in T: A(f"v_rcp_f32 v{t['l']}, v{t['l']}")
        A("s_nop 0")
        for t in T:
            for r in range(0, 8, 2):
                b_ = t['o'] + r
                A(f"v_pk_mul_f32 v[{b_}:{b_+1}], v[{b_}:{b_+1}], v[{t['l']}:{t['l']+1}] op_sel_hi:[1,0]")
            for r in range(4): cv(t['s']+r, t['o']+2*r)
            if 'lds' in t: A(f"ds_write_b128 v6, {vr(t['s'],4)} offset:{t['lds']}")
            else: A(f"buffer_store_dwordx4 {vr(t['s'],4)}, v0, s[12:15], {t['so']} offen offset:{t['imm']}{SC}")
    MP0 = PB(3)
    for r in (0, 2): A(f"v_mov_b64 {vr(MP0+r,2)}, {vr(MP+r,2)}")
    A("s_waitcnt lgkmcnt(0)")
    A("s_cmp_gt_u32 s19, 1")
    A("s_cbranch_scc1 P1_b4")
    for r in range(4): A(f"v_mov_b32 v{MP0+r}, v7")
    for r in (0, 2): A(f"v_mov_b64 {vr(KP(-1)+r,2)}, 0")
    for nt in range(2): A(f"v_mov_b64 {vr(VW(nt,-1),2)}, 0")
    A("s_mul_i32 s40, s19, 3072")
    A(f"s_add_u32 s40, s40, {STASH}")
    A("v_add_u32 v6, s40, v1")
    A(f"ds_write_b128 v6, {vr(QP(0),4)}")
    A(f"ds_write_b128 v6, {vr(KP(0),4)} offset:1024")
    A(f"ds_write_b64 v6, {vr(VW(0,0),2)} offset:2048")
    A(f"ds_write_b64 v6, {vr(VW(1,0),2)} offset:2056")
    A.label("P1_b4")
    A("s_and_b32 s38, s19, 6")
    A("s_lshl_b32 s38, s38, 12")
    A("s_lshl_b32 s39, s37, 11")
    A("s_add_u32 s38, s38, s39")
    A(f"s_add_u32 s38, s38, {OBS}")
    A("v_add_u32 v6, s38, v0")
    T = [tile(st) for st in range(4)]
    if opts.get("obd", 1):
        A("s_lshl_b32 s38, s17, 3")
        A("s_and_b32 s39, s19, 6")
        A("s_add_u32 s38, s38, s39")
        A("s_lshl_b32 s38, s38, 5")
        A("s_lshl_b32 s39, s18, 1")
        A("s_add_u32 s38, s38, s39")
        A("s_add_u32 s38, s38, s37")
        A("s_lshl_b32 s38, s38, 11")
        A(f"s_add_u32 s38, s38, {WS_O + (4 << 20)}")
        A("s_add_u32 s39, s38, 65536")
    else:
        for st in range(4): T[st]['lds'] = (st >> 1) * 4096 + (st & 1) * 256
    T[0]['mp'] = MP0
    btiles(T)
    A("s_waitcnt lgkmcnt(0)")
    A("s_branch P2_compute")
    def aux_stash():
        A(f"v_add_u32 v6, {STASH}, v1")
        for wc in range(2):
            r = 72 + 24 * wc + 48
            A(f"ds_read_b128 {vr(r,4)}, v6 offset:{3072*wc}")
            A(f"ds_read_b128 {vr(r+8,4)}, v6 offset:{3072*wc+1024}")
            A(f"ds_read_b64 {vr(r+14,2)}, v6 offset:{3072*wc+2048}")
            A(f"ds_read_b64 {vr(r+18,2)}, v6 offset:{3072*wc+2056}")
        A("s_lshl_b32 s38, s30, 8")
        A("s_lshl_b32 s39, s31, 1")
        A("s_add_u32 s38, s38, s39")
        A("s_lshl_b32 s38, s38, 11")
        A(f"s_add_u32 s38, s38, {WS_O + (4 << 20)}")
        A(f"v_add_u32 v15, {OBS}, v1")
        A("s_waitcnt lgkmcnt(0)")
    def aux_copy(b_):
        if opts.get("obd", 1): return
        for i in range(8): A(f"ds_read_b128 {vr(72+4*i,4)}, v15 offset:{b_*8192+i*1024}")
        for i in range(8):
            if i % 4 == 0: A(f"s_add_u32 s39, s38, {(2*b_+i//4)*65536}")
            A(f"s_waitcnt lgkmcnt({7-i})")
            A(f"buffer_store_dwordx4 {vr(72+4*i,4)}, v1, s[12:15], s39 offen offset:{(i%4)*1024}{SC}")
    def aux_halo_issue():
        poll("P2_h", 32, 1, 4, st=False)
        A("s_lshl_b32 s36, s31, 3")
        A("s_add_u32 s36, s36, s30")
        A("s_lshl_b32 s36, s36, 12")
        A(f"s_add_u32 s36, s36, {WS_H - 4096}")
        for wc in range(2):
            r = 72 + 24 * wc + 48
            A(f"buffer_load_dwordx4 {vr(r+4,4)}, v1, s[12:15], s36 offen offset:{2048*wc} sc1")
            A(f"buffer_load_dwordx2 {vr(r+12,2)}, v1, s[12:15], s36 offen offset:{2048*wc+1024} sc1")
            A(f"buffer_load_dwordx2 {vr(r+16,2)}, v1, s[12:15], s36 offen offset:{2048*wc+1032} sc1")
        bconsts()
    def aux_halo_compute():
        A("s_waitcnt vmcnt(0) lgkmcnt(0)")
        if opts.get("nohalo"): return
        A(f"s_setprio {opts.get('hprio', 3)}")
        T = []
        for wc in range(2):
            r = 72 + 24 * wc + 48
            T.append(dict(q=r, kp=r+4, kc=r+8, v=[r+12, r+16], s=72+8*wc, p=88+4*wc, o=96+8*wc, l=112+4*wc, so="s38", imm=2048*wc))
        btiles(T)
        A(f"s_setprio {opts.get('lprio', 3)}")

    A.c("---- fallback: exact row max over all keys, then redo the pass ----")
    A.label("P2_fallback")
    A("s_mov_b32 s24, 1")
    for x in range(2): A(f"v_mov_b32 v{MX[x]}, 0xff800000")
    A("s_mov_b32 s21, 0")
    A.label("P2_maxloop")
    A(f"buffer_load_dwordx4 {vr(KF,4)}, v31, s[4:7], s21 offen{LD}")
    A(f"buffer_load_dwordx4 {vr(KF+4,4)}, v31, s[4:7], s21 offen offset:256{LD}")
    A("s_waitcnt vmcnt(0)")
    for x in range(2): A(M32(SX[x], KF, Q[x], None))
    for x in range(2): A(M32(SX[x], KF+4, Q[x]+4, SX[x]))
    A("s_nop 7")
    A("s_nop 3")
    for x in range(2):
        for i in range(8): A(f"v_max3_f32 v{MX[x]}, v{SX[x]+2*i}, v{SX[x]+2*i+1}, v{MX[x]}")
    A("s_add_u32 s21, s21, 4096")
    A("s_cmp_lt_u32 s21, 0x40000")
    A("s_cbranch_scc1 P2_maxloop")
    for x in range(2):
        A(f"v_mov_b32 v6, v{MX[x]}")
        A("s_nop 1")
        A(f"v_permlane32_swap_b32 v{MX[x]}, v6")
        A("s_nop 1")
        A(f"v_max_f32 v{MX[x]}, v{MX[x]}, v6")
    A("s_barrier")
    A("s_branch P2_restart")

    A.c("---- phase 2 helper waves: 8 streams K/V, 9 publishes parked data and prefills Wo ----")
    A.label("P2_helpers")
    p2_ids()
    A("v_mov_b64 v[48:49], 0")
    A("v_mov_b64 v[50:51], 0")
    A("v_lshlrev_b32 v1, 4, v1")
    A("s_lshl_b32 s26, s16, 6")
    A("s_lshl_b32 s27, s17, 3")
    A("s_add_u32 s26, s26, s27")
    A("v_lshrrev_b32 v41, 4, v1")
    p3_targets(40, 42, 41, "s17", 0)
    A("s_lshl_b32 s40, s16, 2")
    A(f"s_add_u32 s40, s40, {WS_F + 128}")
    A("v_add_u32 v40, s40, v40")
    A("s_cmp_eq_u32 s19, 9")
    A("s_cbranch_scc1 P2_aux")
    A("s_lshl_b32 s27, s26, 11")
    A("s_barrier")
    if opts.get("early"):
        A("s_cmp_eq_u32 s33, 0")
        A("s_cbranch_scc1 P2_k_go")
    poll("P2_k", 0, 8, 2)
    A.label("P2_lstart")
    def l_stage():
        A("s_and_b32 s21, s23, 3")
        A("s_lshl_b32 s21, s21, 15")
        A("s_lshr_b32 s20, s23, 2")
        A("s_lshl_b32 s20, s20, 13")
        A("s_add_u32 s21, s21, s20")
        for g in range(4):
            A(f"s_add_u32 m0, s22, {g * 4096}")
            A(f"s_add_u32 s20, s21, {(g >> 1) * 131072 + (g & 1) * 4096}")
            for i in range(4):
                A(f"buffer_load_dwordx4 v1, s[4:7], s20 offen offset:{1024*i}{LD} lds")
        A(f"s_add_u32 s22, s22, {STG}")
        A(f"s_cmp_eq_u32 s22, {RING}")
        A("s_cselect_b32 s22, 0, s22")
    if QL:
        A("s_cmp_eq_u32 s33, 0")
        A("s_cbranch_scc1 P2_noq")
    for g in range(4):
        A(f"s_mov_b32 m0, {BREG + g * 4096}")
        A(f"s_add_u32 s20, s27, {g * 4096}")
        for i in range(4):
            A(f"buffer_load_dwordx4 v1, s[12:15], s20 offen offset:{1024*i}{LD} lds")
    A.label("P2_noq")
    A("s_mov_b32 s21, 0")
    A("s_mov_b32 s22, 0")
    A("s_mov_b32 s23, 0")
    sched = opts.get("ksched", "s s b s s b b p2 s b s s b s b b p3 s b s s b s s b s b s b s b b b b b").split()
    issued = 0; nb = -1
    for act in sched:
        if act == 's':
            assert issued < 16 and issued - 5 <= nb - 1 or issued < 6, (issued, nb)
            A("s_call_b64 s[28:29], P2_lsub"); issued += 1
        elif act == 'b':
            need = min(nb + 1, 15)
            assert issued > need
            TB(60, 33 + nb)
            A(f"s_waitcnt vmcnt({min(63, 16 * (issued - 1 - need))})")
            TB(61, 33 + nb)
            A("s_barrier"); nb += 1
            TB(62, 32 + nb)
        elif act == 'p2':
            assert issued == 4; poll("P2_k2", 64, 8, 2, st=False)
        elif act == 'p3':
            assert issued == 8; poll("P2_k3", 96, 8, 2, st=False)
    assert issued == 16 and nb == 16, (issued, nb)
    if opts.get("tb"):
        A("s_mul_i32 s36, s2, 1024")
        A(f"s_add_u32 s36, s36, {66<<20}")
        A("s_mov_b32 s14, 0x8000000")
        A("v_lshrrev_b32 v63, 2, v1")
        for i in range(3): A(f"buffer_store_dword v{60+i}, v63, s[12:15], s36 offen offset:{256*i}")
        A(f"s_mov_b32 s14, {WS_BYTES}")
    A("s_branch P2_htail")
    A.label("P2_lsub")
    l_stage()
    A("s_add_u32 s23, s23, 1")
    A("s_setpc_b64 s[28:29]")
    A.label("P2_aux")
    if opts.get("cnt", 2) == 1: poll_cnt("P2_c", 256, 2)
    if opts.get("cnt", 2) == 2:
        A("v_readfirstlane_b32 s46, v23")
        A("s_nop 3")
        A("s_cmp_ge_u32 s46, 256")
        A("s_cbranch_scc1 P2_c_go")
        poll_cnt("P2_c", 256, 2)
    A("s_barrier")
    A("s_cmp_lg_u32 s33, 0")
    A("s_cbranch_scc1 P2_auxb")
    signal(10, 16, 2)
    def park_copy(b_):
        wc, q = divmod(b_, 3)
        for i in range(8): A(f"ds_read_b128 {vr(72+4*i,4)}, v15 offset:{b_*8192+i*1024}")
        for i in range(8):
            if i % 4 == 0: A(f"s_add_u32 s39, s38, {wc*262144+q*8192+(i//4)*4096}")
            A(f"s_waitcnt lgkmcnt({7-i})")
            A(f"buffer_store_dwordx4 {vr(72+4*i,4)}, v1, s[12:15], s39 offen offset:{(i%4)*1024}{SC}")
    NB0 = opts.get("nb0", 2)
    A(f"v_add_u32 v15, {PARK}, v1")
    A("s_lshl_b32 s38, s31, 7")
    A("s_lshl_b32 s39, s30, 3")
    A("s_add_u32 s38, s38, s39")
    A("s_lshl_b32 s38, s38, 12")
    A(f"s_add_u32 s38, s38, {WS_KV + 8192}")
    asched = opts.get("asched", "b c0 c3 b w2 b c1 c4 b c2 c5 b b w3").split()
    nb_ = 0
    for act in asched:
        if act == 'b': A("s_barrier"); nb_ += 1
        elif act[0] == 'c': park_copy(int(act[1]))
        else:
            A(f"v_add_u32 v10, {64 if act == 'w2' else 32}, v10")
            A("s_waitcnt vmcnt(0)")
            signal(10, 16, 2)
    assert nb_ == 6
    A("s_branch P2_a1")
    A.label("P2_auxb")
    A("s_add_u32 s38, s30, 1")
    A("s_lshr_b32 s39, s38, 2")
    A("s_and_b32 s38, s38, 3")
    A("s_lshl_b32 s38, s38, 3")
    A("s_add_u32 s38, s38, s39")
    A("s_and_b32 s39, s2, -26")
    A("s_add_u32 s38, s38, s39")
    A("s_lshl_b32 s38, s38, 8")
    A(f"s_add_u32 s38, s38, {WS_F + 32}")
    A("v_mov_b32 v14, s38")
    A("s_barrier")
    aux_stash()
    A("s_barrier")
    A("s_cmp_eq_u32 s30, 7")
    A("s_cbranch_scc1 P2_auxb1")
    signal(14, 1, 2)
    A.label("P2_auxb1")
    aux_copy(0); aux_copy(1)
    A("s_barrier")
    aux_copy(2); aux_copy(3)
    A("s_barrier")
    A("s_cmp_eq_u32 s30, 0")
    A("s_cbranch_scc1 P2_auxb2")
    aux_halo_issue()
    A("s_barrier")
    aux_halo_compute()
    A("s_barrier")
    A("s_branch P2_a1")
    A.label("P2_auxb2")
    A("s_barrier")
    A("s_barrier")
    A("s_branch P2_a1")
    A.label("P2_astart")
    for i in range(6): A("s_barrier")
    A.label("P2_a1")
    if opts.get("wo_pf", 1):
        m3 = opts.get("mix3", 0)
        A("s_mov_b32 s10, 0x200000")
        A(("s_cmp_lt_u32 s35, 16" if m3 == 1 else "s_cmp_ge_u32 s35, 16") if m3 else "s_cmp_lt_u32 s34, 4")
        A(f"s_cselect_b32 s8, s{P_AWO}, s{P_BWO}")
        A(f"s_cselect_b32 s9, s{P_AWO+1}, s{P_BWO+1}")
        A("v_and_b32 v44, 0x70, v1")
        A("v_lshlrev_b32 v44, 3, v44")
        A("v_lshrrev_b32 v45, 7, v1")
        A("v_lshl_add_u32 v44, v45, 11, v44")
        if m3:
            A("s_and_b32 s40, s35, 15")
            A("s_lshl_b32 s40, s40, 17")
            A("s_and_b32 s41, s34, 4")
            A("s_lshl_b32 s41, s41, 8")
        else:
            A("s_lshl_b32 s40, s35, 16")
            A("s_and_b32 s41, s34, 2")
            A("s_lshl_b32 s41, s41, 9")
        A("s_add_u32 s40, s40, s41")
    for i in range(4):
        if opts.get("wo_pf", 1):
            for _ in range(2 if opts.get("mix3", 0) else 1):
                A("buffer_load_dword v46, v44, s[8:11], s40 offen")
                A("s_add_u32 s40, s40, 16384")
        if i: A("s_barrier")
    A("s_cmp_eq_u32 s33, 0")
    A("s_cbranch_scc1 P2_a2")
    A("s_waitcnt vmcnt(0)")
    signal(12, 32, 2)
    A("s_mov_b32 s33, 0")
    A.label("P2_a2")
    p3_ids()
    if opts.get("out_touch", 0):
        A(f"s_mov_b32 s8, s{P_OUT}")
        A(f"s_mov_b32 s9, s{P_OUT+1}")
        A(f"s_mov_b32 s10, {2048*4096}")
        A("s_lshl_b32 s40, s17, 19")
        A("buffer_load_dword v46, off, s[8:11], s40")
    A("v_lshrrev_b32 v52, 4, v1")
    A("s_lshl_b32 s39, s18, 8")
    A(f"s_sub_u32 s6, {1024*2048}, s39")
    A("v_lshrrev_b32 v53, 4, v52")
    A("v_lshlrev_b32 v54, 1, v53")
    A("v_and_b32 v55, 15, v52")
    A("v_xor_b32 v54, v54, v55")
    A("v_lshlrev_b32 v54, 4, v54")
    A("v_lshl_add_u32 v48, v53, 11, v54")
    A("v_xor_b32 v49, 128, v48")
    A(f"v_add_u32 v49, {8192-1024}, v49")
    A("s_lshl_b32 s40, 16384, s16")
    A("s_sub_u32 s40, s40, 2048")
    A("s_lshr_b32 s41, 32768, s16")
    A("s_cmp_eq_u32 s16, 0")
    A("v_add_u32 v50, s40, v48")
    A("v_add_u32 v51, s40, v49")
    A(f"s_cselect_b32 s4, s{P_AWO}, s{P_BWO}")
    A(f"s_cselect_b32 s5, s{P_AWO+1}, s{P_BWO+1}")
    A("s_add_u32 s4, s4, s39")
    A("s_addc_u32 s5, s5, 0")
    r3 = opts.get("rot3", 1)
    if r3 == 1: A("s_lshl_b32 s21, s34, 18")
    elif r3 == 0: A("s_mov_b32 s21, 0")
    else:
        A("s_add_u32 s21, s17, s18"); A("s_and_b32 s21, s21, 1"); A(f"s_mul_i32 s21, s21, {131072 * r3}")
    A(f"s_mov_b32 s23, {W3 + 2*S3}")
    A("s_mov_b32 s38, 0")
    assert NW == 6
    def w_issue():
        for q in range(4):
            A(f"s_add_u32 m0, s23, {q*4096}")
            if q & 1: A("s_add_u32 s20, s20, s41")
            else: A(f"s_add_u32 s20, s21, {q*32768}")
            for i in range(4): A(f"buffer_load_dwordx4 v{48+i}, s[4:7], s20 offen offset:{1024*i}{opts.get('ld1', '')} lds")
        A("s_add_u32 s21, s21, 0x20000")
        A("s_and_b32 s21, s21, 0x1fffff")
    ring_loader("P3_w", NW, W3, w_issue, None)
    A.label("P2_wback")
    A("s_barrier")
    A("s_cmp_lg_u32 s38, 4")
    A("s_cbranch_scc1 P2_wb1")
    A("s_barrier")
    A.label("P2_wb1")
    A("s_cmp_lt_u32 s38, 6")
    A("s_cbranch_scc1 P3_w_go2")
    A("s_barrier")
    A.label("P2_htail")
    A("s_barrier")
    A("s_cmp_lg_u32 s24, 0")
    A("s_cbranch_scc1 P2_hfin")
    read_flags(8)
    A("s_waitcnt lgkmcnt(0)")
    or_flags(8, 44)
    A("s_nop 3")
    A("s_cmp_eq_u32 s44, 0")
    A("s_cbranch_scc1 P2_hfin")
    A("s_mov_b32 s24, 1")
    A("s_waitcnt vmcnt(0)")
    A("s_barrier")
    A("s_cmp_eq_u32 s19, 9")
    A("s_cbranch_scc1 P2_astart")
    A("s_branch P2_lstart")
    A.label("P2_hfin")
    A("s_cmp_eq_u32 s19, 9")
    A("s_cbranch_scc0 P3_oload")
    A("s_barrier")
    A("s_waitcnt vmcnt(0)")
    A("s_barrier")
    pat = opts.get("wpat")
    if not pat:
        A("s_branch P3_w_l1")
    else:
        g = 24; issued = []
        for b in range(1, 16):
            need = [i for i, gg in enumerate(issued) if gg >> 2 <= b]
            if need: A(f"s_waitcnt vmcnt({min(63, 4 * (len(issued) - 1 - max(need)))})")
            assert g >> 2 > b or g == 64, (g, b)
            A("s_barrier")
            for _ in range(pat[(b - 1) % len(pat)]):
                if g == 64: break
                st_, q = g >> 2, g & 3
                assert st_ - 6 < b
                A(f"s_mov_b32 m0, {W3 + ((st_ + 2) % NW) * S3 + q * 4096}")
                if q & 1: A("s_add_u32 s20, s20, s41")
                else: A(f"s_add_u32 s20, s21, {q*32768}")
                if opts.get("p3noload", 0) < 2:
                    for i in range(4): A(f"buffer_load_dwordx4 v{48+i}, s[4:7], s20 offen offset:{1024*i}{opts.get('ld1', '')} lds")
                if q == 3:
                    A("s_add_u32 s21, s21, 0x20000")
                    A("s_and_b32 s21, s21, 0x1fffff")
                issued.append(g); g += 1
        A("s_endpgm")
    A.label("L_done")
    A("s_endpgm")
    hdr = """; concat_heads__mha_block__sliding_local_dilated__prompt -- fused single-launch kernel for gfx950
; (hand-designed; emitted by the author's own generator script gen/mega.py)
; Kernarg (8-byte pointers): 0 A_x, 8 A_wqkv, 16 A_wo, 24 B_x, 32 B_wqkv, 40 B_wo, 48 out, 56 debug, 64 ws
;
; 256 workgroups (one per CU, 160 KB LDS), 10 waves each: waves 0-7 compute, waves 8-9 stream data (LDS-DMA) and
; do the hand-offs.  Workgroups with id >= 256 exit at once.
;  Phase 1  QKV projection, tile 256 rows x (q,k,v of two heads), v_mfma_f32_16x16x32_bf16.
;           Branch A tiles publish K/V (and the partner head's Q, pre-scaled by dh^-0.5*log2(e)) in MFMA fragment
;           order in ws.  Branch B tiles run the windowed (W=8, dilation 2) attention straight from the accumulators
;           with the true row max; the first 16 rows of a tile are redone by wave 9 with the neighbour tile's keys.
;  Phase 2  full attention of branch A, one head x 256 queries per workgroup, keys split between the two waves of a
;           SIMD.  S^T = K Q^T - m comes out of the MFMA (C operand), P = exp2(S^T) stays fp32 and its high halves
;           feed v_smfmac (P V and the row sums).  m is the exact max over the first 32 keys; after the pass a
;           run-time check (row sum < 2^64, |O| < 2^120, NaN-propagating) decides: if it fails the workgroup
;           computes the true row max over all keys and redoes the pass with it.
;  Phase 3  output projection, tile 128 x 128.
; Hand-offs between workgroups: write-through (sc1) stores -> vmcnt(0) in every storing wave -> barrier -> flag word
; in the consumer's private flag block in ws -> sc1 poll -> sc1 loads.  Every workgroup clears its own flag block at
; the start of the launch and counts that in debug[0]; no flag is set before all 256 have been counted, so nothing
; found in ws is ever trusted.  Workgroup -> tile maps assume id%8 = XCD for L2 locality only.  All waits are bounded.
""" + f"; @launch grid=(256,1,1) block=(640,1,1) lds={LDS_BYTES}\n"
    return hdr + A.text() + '.section .rodata,"a"\n' + descriptor(NAME, 168, 102)

if __name__ == "__main__":
    opts = json.loads(sys.argv[2]) if len(sys.argv) > 2 else {}
    open(sys.argv[1], "w").write(gen(opts))
```
